```python
import torch

def _softmax(x, axis=-1):
    return torch.softmax(x, dim=axis)
def _gelu(x):
    return torch.nn.functional.gelu(x, approximate="tanh")
def _silu(x):
    return torch.nn.functional.silu(x)
def _sigmoid(x):
    return torch.sigmoid(x)
def _layernorm(x, axis=-1, eps=1e-5):
    m = x.mean(dim=axis, keepdim=True)
    v = x.var(dim=axis, keepdim=True, unbiased=False)
    return (x - m) / torch.sqrt(v + eps)
def _scatter_add(tgt, idx, src, axis=0):
    return tgt.clone().index_add_(axis, idx, src)
def _segment_sum(src, seg, n):
    out = torch.zeros((n,) + src.shape[1:], dtype=src.dtype)
    return out.index_add_(0, seg, src)
def _pad(x, pw):
    flat = tuple(v for pair in reversed(pw) for v in pair)
    return torch.nn.functional.pad(x, flat)

kernel_name = 'recurrent_scan__ssm_conv_s4d__dense_activation_squared_relu__prompt'

def setup_inputs():

    _w = (lambda a: (lambda t: t.to(torch.bfloat16) if t.is_floating_point() else t)(torch.as_tensor(a)))
    def _A_setup():
        Bsz, L, D, N = 1, 2048, 640, 192
        return {
            "u": _w((lambda *s: torch.randn(*s, dtype=torch.bfloat16) * 0.05)(Bsz, L, D)),
            "log_A_real": _w((lambda *s: torch.randn(*s, dtype=torch.bfloat16) * 3.2)(D, N) * 0.5),
            "A_imag": _w((lambda *s: torch.randn(*s, dtype=torch.bfloat16) * 0.05)(D, N) * 3.14),
            "C_real": _w((lambda *s: torch.randn(*s, dtype=torch.bfloat16) * 0.2)(D, N) / N ** 0.5),
            "C_imag": _w((lambda *s: torch.randn(*s, dtype=torch.bfloat16) * 0.2)(D, N) / N ** 0.5),
            "log_dt": _w((lambda *s: torch.randn(*s, dtype=torch.bfloat16) * 0.05)(D) * 0.5 - 4.0),
            "D_skip": _w((lambda *s: torch.randn(*s, dtype=torch.bfloat16) * 0.05)(D)),
        }
    _A_in = _A_setup()

    def _B_setup():
        B, S, D, F = 1, 2048, 640, 1536
        return {
            "x": _w((lambda *s: torch.randn(*s, dtype=torch.bfloat16) * 0.05)(B, S, D)),
            "w1": _w((lambda *s: torch.randn(*s, dtype=torch.bfloat16) * 0.05)(D, F)),
            "b1": _w((lambda *s: torch.randn(*s, dtype=torch.bfloat16) * 0.4)(F)),
            "w2": _w((lambda *s: torch.randn(*s, dtype=torch.bfloat16) * 0.05)(F, D)),
            "b2": _w((lambda *s: torch.randn(*s, dtype=torch.bfloat16) * 1.6)(D)),
        }
    _B_in = _B_setup()

    return {
        "A_u": _A_in["u"],
        "A_log_A_real": _A_in["log_A_real"],
        "A_A_imag": _A_in["A_imag"],
        "A_C_real": _A_in["C_real"],
        "A_C_imag": _A_in["C_imag"],
        "A_log_dt": _A_in["log_dt"],
        "A_D_skip": _A_in["D_skip"],
        "B_x": _B_in["x"],
        "B_w1": _B_in["w1"],
        "B_b1": _B_in["b1"],
        "B_w2": _B_in["w2"],
        "B_b2": _B_in["b2"],
    }

def reference(A_u, A_log_A_real, A_A_imag, A_C_real, A_C_imag, A_log_dt, A_D_skip, B_x, B_w1, B_b1, B_w2, B_b2):
    def _A_ref(u, log_A_real, A_imag, C_real, C_imag, log_dt, D_skip):
        L = u.shape[1]
        dt = torch.exp(log_dt)
        A = -torch.exp(log_A_real) + 1j * A_imag
        C = (C_real + 1j * C_imag) * dt[:, None]
        pos = (lambda x, dt: x.to(dt))(torch.arange(L), log_dt.dtype)
        P = torch.exp((A * dt[:, None])[:, :, None] * pos[None, None, :])
        K = 2.0 * torch.einsum("dn,dnl->dl", C, P).real
        L2 = 2 * L
        u_t = (lambda x, *d: x.permute(*d))(u, 0, 2, 1)
        Kf = (lambda x, *a, **k: torch.fft.rfft(x.float(), *a, **k))(K, L2)
        Uf = (lambda x, *a, **k: torch.fft.rfft(x.float(), *a, **k))(u_t, L2)
        y = (lambda x, *a, **k: torch.fft.irfft(x, *a, **k).to(torch.bfloat16))(Uf * Kf[None, :, :], L2)[:, :, :L]
        y = (lambda x, *d: x.permute(*d))(y, 0, 2, 1)
        return y + u * D_skip[None, None, :]

    def _B_ref(x, w1, b1, w2, b2):
        h = torch.einsum("bsd,df->bsf", x, w1) + b1
        zero = torch.zeros_like(h)
        r = torch.where(h > zero, h, zero)
        h = r * r
        out = torch.einsum("bsf,fd->bsd", h, w2) + b2
        return out

    x = A_u
    xn = _layernorm(x, axis=-1)
    s = _A_ref(xn, A_log_A_real, A_A_imag, A_C_real, A_C_imag, A_log_dt, A_D_skip)
    g = _silu(_B_ref(xn, B_w1, B_b1, B_w2, B_b2))
    return x + s * g
```

```python
import re

REG_RE = re.compile(r'^(-|\|)?(abs\()?([vas])(\d+|\[(\d+):(\d+)\])\)?\|?$')

def parse_regs(tok):
    tok = tok.strip()
    if tok in ('vcc', 'exec', 'm0', 'scc'):
        return [tok]
    if tok in ('vcc_lo', 'vcc_hi'): return ['vcc']
    if tok in ('exec_lo', 'exec_hi'): return ['exec']
    m = REG_RE.match(tok)
    if not m: return []
    k = m.group(3)
    if m.group(5) is not None:
        return [(k, i) for i in range(int(m.group(5)), int(m.group(6)) + 1)]
    return [(k, int(m.group(4)))]

TRANS = ('v_exp_f32', 'v_log_f32', 'v_rcp_f32', 'v_rsq_f32', 'v_sqrt_f32', 'v_sin_f32', 'v_cos_f32')

class Ins:
    __slots__ = ('text', 'mn', 'kind', 'dst', 'src', 'tok', 'need', 'ops', 'srcC', 'srcAB', 'passes', 'dpp', 'wide', 'data', 'ldsdma', 'cost')
    def __init__(self, text):
        self.text = text
        self.tok = None; self.need = []
        self.dst = []; self.src = []; self.srcC = []; self.srcAB = []; self.passes = 0
        self.dpp = False; self.wide = False; self.data = []; self.ldsdma = False
        t = text.split(';')[0].strip()
        if t.endswith(':'):
            self.kind = 'label'; self.mn = t; return
        parts = t.split(None, 1)
        mn = parts[0]; self.mn = mn
        rest = parts[1] if len(parts) > 1 else ''
        ops = []; depth = 0; cur = ''
        for ch in rest:
            if ch in '[(': depth += 1
            if ch in '])': depth -= 1
            if ch == ',' and depth == 0:
                ops.append(cur.strip()); cur = ''
            else: cur += ch
        if cur.strip(): ops.append(cur.strip())
        mods = ''
        if ops:
            sp = ops[-1].split(None, 1)
            ops[-1] = sp[0]
            if len(sp) > 1: mods = sp[1]
        self.ops = ops
        R = [parse_regs(o) for o in ops]
        flat = lambda L: [r for x in L for r in x]
        if mn.startswith('v_mfma'):
            self.kind = 'mfma'
            self.dst = R[0]; self.srcAB = R[1] + R[2]; self.srcC = R[3]; self.src = self.srcAB + self.srcC
            self.passes = 8 if '32x32x16' in mn else 4
            assert ('32x32x16' in mn) or ('16x16x32' in mn)
        elif mn.startswith('v_'):
            self.kind = 'trans' if mn.replace('_e32', '').replace('_e64', '') in TRANS else 'valu'
            if mn.startswith('v_cmp'):
                self.dst = R[0]; self.src = flat(R[1:])
                if mn.startswith('v_cmpx'): self.dst = self.dst + ['exec']
            elif mn.startswith('v_permlane') and 'swap' in mn:
                self.dst = R[0] + R[1]; self.src = R[0] + R[1]
            elif '_co_' in mn:
                self.dst = R[0] + R[1]; self.src = flat(R[2:])
            elif mn == 'v_nop':
                pass
            else:
                self.dst = R[0]; self.src = flat(R[1:])
                if mn.startswith(('v_fmac', 'v_dot2c', 'v_writelane', 'v_pk_fmac')): self.src = self.src + R[0]
                if mn.startswith('v_cndmask') and len(ops) == 3: self.src = self.src + ['vcc']
            if 'dpp' in mn or 'row_' in mods or 'quad_perm' in mods or 'wave_' in mods:
                self.dpp = True
                self.src = self.src + R[0]
            if 'sdwa' in mn: self.src = self.src + R[0]
        elif mn.startswith('ds_'):
            self.kind = 'ds'
            if mn.startswith(('ds_read', 'ds_bpermute', 'ds_permute', 'ds_swizzle')) or '_rtn' in mn:
                self.dst = R[0]; self.src = flat(R[1:])
            else:
                self.src = flat(R)
        elif mn.startswith(('buffer_', 'global_')):
            self.kind = 'vmem'
            lds = re.search(r'\blds\b', mods) is not None or '_lds_' in mn
            if lds:
                self.ldsdma = True; self.src = flat(R) + ['m0']
            elif '_load' in mn:
                self.dst = R[0]; self.src = flat(R[1:])
                if 'd16' in mn: self.src = self.src + R[0]
            elif mn in ('buffer_inv', 'buffer_wbl2'):
                pass
            else:
                self.src = flat(R)
                if mn.startswith('buffer_'): self.data = R[0]
                else: self.data = R[1]
                self.wide = ('x4' in mn) or ('x3' in mn)
                if 'atomic' in mn and re.search(r'\bsc0\b', mods): self.dst = self.data
        elif mn.startswith(('s_load', 's_buffer_load', 's_memtime', 's_memrealtime')):
            self.kind = 'smem'; self.dst = R[0]; self.src = flat(R[1:])
        elif mn.startswith(('s_cbranch', 's_branch', 's_setpc', 's_swappc', 's_endpgm')):
            self.kind = 'branch'; self.src = flat(R)
        elif mn in ('s_waitcnt', 's_nop', 's_barrier', 's_sleep', 's_setprio'):
            self.kind = 'other'
        elif mn.startswith('s_'):
            self.kind = 'salu'
            if mn.startswith(('s_cmp', 's_bitcmp')):
                self.src = flat(R)
            else:
                self.dst = R[0]; self.src = flat(R[1:])
                if 'saveexec' in mn: self.dst = self.dst + ['exec']
        else:
            raise ValueError("unknown instr: " + text)

class Tok:
    def __init__(self, cls): self.cls = cls; self.done = False

class Stream:
    def __init__(self): self.l = []
    def __call__(self, text, need=None, tok=False):
        for line in text.split('\n'):
            line = line.strip()
            if not line or line.startswith(';'): continue
            i = Ins(line)
            if need: i.need = list(need) if isinstance(need, (list, tuple)) else [need]; need = None
            if i.kind in ('vmem', 'ds'):
                i.tok = Tok('vm' if i.kind == 'vmem' else 'lgkm')
            self.l.append(i)
        return self.l[-1].tok
    def wait(self, *toks):
        i = Ins('s_nop 0'); i.kind = 'waitonly'; i.need = [t for t in toks if t is not None]
        self.l.append(i)
    def ext(self, other):
        self.l.extend(other.l if isinstance(other, Stream) else other)
    def label(self, name): self(name + ':')
    def pseudo(self, kind, name=None):
        i = Ins('s_nop 0'); i.kind = kind; i.text = name; self.l.append(i)
    def save(self, name): self.pseudo('save', name)
    def restore(self, name): self.pseudo('restore', name)
    def endpath(self): self.pseudo('endpath')

def interleave(main, fillers, per_gap, start=0, is_anchor=lambda i: i.kind == 'mfma', flush=True):
    out = Stream(); f = list(fillers.l); n = 0; acc = 0.0
    for ins in main.l:
        out.l.append(ins)
        if is_anchor(ins):
            if n >= start:
                acc += per_gap
                while acc >= 1.0 and f:
                    x = f.pop(0); out.l.append(x)
                    if x.kind != 'waitonly': acc -= 1.0
                if not f: acc = 0.0
            n += 1
    if flush: out.l.extend(f); f = []
    rest = Stream(); rest.l = f
    return (out, rest) if not flush else out

def finalize(stream, verbose=False):
    out = []
    q = {'vm': [], 'lgkm': []}
    saved = {}; lost = set(); issued = set()
    def emit_wait(vm=None, lg=None):
        parts = []
        if vm is not None: parts.append(f'vmcnt({min(vm,63)})')
        if lg is not None: parts.append(f'lgkmcnt({min(lg,15)})')
        out.append(Ins('s_waitcnt ' + ' '.join(parts)))
    def retire(cls, n):
        L = q[cls]
        while len(L) > n:
            L.pop(0)
    for ins in stream.l:
        if ins.kind == 'label':
            out.append(ins); continue
        if ins.kind == 'save':
            saved[ins.text] = {c: list(q[c]) for c in q}; continue
        if ins.kind == 'restore':
            for c in q: q[c][:] = list(saved[ins.text][c])
            continue
        if ins.kind == 'endpath':
            for cls in q:
                pend = [x for x in q[cls] if x[1]]
                if pend:
                    raise RuntimeError(f"pending loads at endpath: {[(sorted(map(str,x[1])))[:4] for x in pend]}")
                for x in q[cls]:
                    if x[0] is not None: lost.add(id(x[0]))
                q[cls][:] = []
            continue
        if ins.mn == 's_waitcnt' and ins.kind == 'other':
            m = re.search(r'vmcnt\((\d+)\)', ins.text)
            if m: retire('vm', int(m.group(1)))
            m = re.search(r'lgkmcnt\((\d+)\)', ins.text)
            if m: retire('lgkm', int(m.group(1)))
            out.append(ins); continue
        need = {'vm': None, 'lgkm': None}
        touched = set(ins.src) | set(ins.dst)
        for cls in q:
            L = q[cls]
            idx = -1
            for k, (tok, dst, sm) in enumerate(L):
                if (dst & touched) or (tok is not None and tok in ins.need):
                    idx = k
            if idx >= 0:
                n = len(L) - 1 - idx
                if cls == 'lgkm' and any(x[2] for x in L): n = 0
                need[cls] = n
        for t in ins.need:
            if id(t) not in issued or (id(t) in lost and not any(t is x[0] for x in q[t.cls])):
                raise RuntimeError("token not in flight (issued later or lost): " + ins.text)
        if need['vm'] is not None or need['lgkm'] is not None:
            emit_wait(need['vm'], need['lgkm'])
            if need['vm'] is not None: retire('vm', min(need['vm'], 63))
            if need['lgkm'] is not None: retire('lgkm', min(need['lgkm'], 15))
        if ins.kind == 'waitonly': continue
        out.append(ins)
        if ins.tok is not None: issued.add(id(ins.tok))
        if ins.kind == 'vmem':
            q['vm'].append((ins.tok, set(ins.dst), False))
            if len(q['vm']) > 63: raise RuntimeError("more than 63 vmem outstanding")
        elif ins.kind == 'ds': q['lgkm'].append((ins.tok, set(ins.dst), False))
        elif ins.kind == 'smem': q['lgkm'].append((None, set(ins.dst), True))
    res = []
    nnop = 0
    def states(i):
        if i.kind == 'label': return 0
        if i.mn == 's_nop': return int(i.ops[0], 0) + 1
        return 1
    isv = lambda r: isinstance(r, tuple) and r[0] in 'va'
    iss = lambda r: (isinstance(r, tuple) and r[0] == 's') or r == 'vcc'
    for ins in out:
        req = 0
        if ins.kind not in ('label',):
            dist = 0
            S = set(ins.src); D = set(ins.dst)
            for p in reversed(res):
                if dist >= 20: break
                if p.kind == 'label':
                    continue
                need = 0
                PD = set(p.dst)
                pv = p.kind in ('valu', 'trans')
                cv = ins.kind in ('valu', 'trans')
                if pv and ins.kind == 'mfma' and (PD & S): need = max(need, 2)
                if pv and 'exec' in PD and ins.kind == 'mfma': need = max(need, 4)
                if p.kind == 'mfma':
                    big = {4: 8, 8: 12}[p.passes]
                    if ins.kind == 'mfma':
                        if PD & set(ins.srcAB): need = max(need, big)
                        if PD & set(ins.srcC):
                            if list(p.dst) == list(ins.srcC) and p.passes == ins.passes: pass
                            else: need = max(need, big - 2)
                        elif PD & D: need = max(need, big - 2)
                    elif ins.kind in ('valu', 'trans', 'ds', 'vmem'):
                        if PD & (S | D): need = max(need, big)
                        if (set(p.srcC) & D): need = max(need, {4: 3, 8: 7}[p.passes])
                if p.kind == 'trans' and cv and (PD & S): need = max(need, 1)
                if p.mn.startswith('v_dot') and (PD & (S | D)): need = max(need, 3)
                if pv and ins.dpp and any(isv(r) for r in PD & S): need = max(need, 2)
                if pv and 'exec' in PD and ins.dpp: need = max(need, 5)
                if pv and ins.mn.startswith('v_permlane') and (PD & S): need = max(need, 2)
                if pv and ins.mn.startswith(('v_readlane', 'v_readfirstlane')) and any(isv(r) for r in PD & S): need = max(need, 1)
                if pv and 'exec' in PD and ins.mn.startswith(('v_readlane', 'v_readfirstlane', 'v_writelane', 'v_permlane')): need = max(need, 4)
                if pv and any(iss(r) for r in PD & S):
                    if cv: need = max(need, 4 if ins.mn.startswith(('v_readlane', 'v_writelane')) else 2)
                    if ins.kind == 'vmem': need = max(need, 5)
                    if ins.kind in ('salu', 'branch'): need = max(need, 1)
                if pv and 'vcc' in PD and ins.mn.startswith('s_cbranch_vcc'): need = max(need, 1)
                if p.kind == 'salu' and 'm0' in PD and ins.ldsdma: need = max(need, 1)
                if p.kind == 'vmem' and p.wide and (set(p.data) & D): need = max(need, 2)
                if pv and ('sdwa' in p.mn or 'op_sel' in p.text) and not p.mn.startswith('v_pk') and cv and (PD & (S | D)): need = max(need, 1)
                if need - dist > req: req = need - dist
                dist += states(p)
        while req > 0:
            k = min(req, 16)
            res.append(Ins(f's_nop {k-1}')); req -= k; nnop += 1
        res.append(ins)
    if verbose: print(f"; finalize: {len(res)} instrs, {nnop} nops inserted")
    return [('' if i.kind == 'label' else '    ') + i.text for i in res]
```

```python
import sys, math, struct
sys.path.insert(0, 'gen')
from emit import *

NAME = "recurrent_scan__ssm_conv_s4d__dense_activation_squared_relu__prompt"
opt = dict(stop=99, stamps=0, dumpk=0)
for a in sys.argv[1:]:
    k, v = a.split('='); opt[k] = int(v)

def f32(x): return struct.unpack('<I', struct.pack('<f', x))[0]
def vr(b, n=1): return f"v{b}" if n == 1 else f"v[{b}:{b+n-1}]"
def ar(b, n=1): return f"a{b}" if n == 1 else f"a[{b}:{b+n-1}]"

XNA = 0; XNB = 0x280000; HB = 0x500000; YT = 0xB00000
FX = 0xD80000; FH = FX + 0x1000; FY = FX + 0x3000
STAMP = 0xE00000; KDUMP = 0x1000000
L_W = 0; L_SCR = 86016; SCR_W = 9216
L_K = 122880; KSLOT = 8512; OOFF = 4284
L_U = L_K + 3 * KSLOT; USLOT = 4352
L_LN = L_U; LNROW = 1344
L_MISC = L_U + 3 * USLOT
L_YST = 81920
LDS_BYTES = 163840
assert L_MISC + 64 <= LDS_BYTES and L_LN + 8 * LNROW <= L_MISC
sWG, sWAVE, sRB, sCB, sRB2, sCB2, sCBASE, sPAR, sNONCE = 2, 3, 4, 5, 6, 7, 8, 9, 10
P = lambda k: f"s[{16+2*k}:{17+2*k}]"
pX, pLOGA, pAIM, pCR, pCI, pLOGDT, pDSK, pBX, pW1, pB1, pW2, pB2, pOUT, pDBG, pWS = range(15)
SRD_X, SRD_W1, SRD_W2, SRD_WS, SRD_OUT = "s[48:51]", "s[52:55]", "s[56:59]", "s[60:63]", "s[64:67]"
SPIN_MAX = 1 << 22

S = Stream()
nstamp = [0]
def stamp(s, idx):
    if not opt['stamps']: return
    s(f"s_memtime s[68:69]")
    s("s_waitcnt lgkmcnt(0)")
    s(f"s_mov_b32 s{84+idx}, s68")

def bf16_round(s, dst, src, tmp=None):
    s(f"v_cvt_pk_bf16_f32 {dst}, {src}, {src}")
    s(f"v_and_b32 {dst}, 0xffff0000, {dst}")

uid = [0]
def poll(s, vdst, voff, nreg=1, extra_nonce=False, cond_regs=None):
    uid[0] += 1; L = f".Lpoll{uid[0]}"
    s(f"s_mov_b32 s70, 0")
    s.label(L)
    ld = {1: 'dword', 2: 'dwordx2', 4: 'dwordx4'}[nreg]
    s(f"buffer_load_{ld} {vr(vdst, nreg)}, {vr(voff)}, {SRD_WS}, 0 offen sc0 sc1")
    if extra_nonce:
        s(f"global_load_dword {vr(vdst+nreg)}, {vr(vdst+nreg+1)}, {P(pDBG)} sc0 sc1")
    s("s_waitcnt vmcnt(0)")
    if extra_nonce:
        s(f"v_readfirstlane_b32 s{sNONCE}, {vr(vdst+nreg)}")
        s("s_nop 1")
    for k in range(nreg):
        s(f"v_xor_b32 {vr(vdst+k)}, s{sNONCE}, {vr(vdst+k)}")
    for k in range(1, nreg):
        s(f"v_or_b32 {vr(vdst)}, {vr(vdst)}, {vr(vdst+k)}")
    s(f"v_cmp_ne_u32 vcc, 0, {vr(vdst)}")
    s(f"s_add_u32 s70, s70, 1")
    s(f"s_cmp_gt_u32 s70, {SPIN_MAX}")
    s(f"s_cbranch_scc1 {L}x")
    if extra_nonce:
        s(f"s_cmp_eq_u32 s{sNONCE}, 0")
        s(f"s_cbranch_scc1 {L}")
    s(f"s_cbranch_vccnz {L}")
    s.label(L + "x")

vL = 0
S(f"s_cmp_ge_u32 s{sWG}, 256")
S("s_cbranch_scc1 .Lend")
S("s_load_dwordx16 s[16:31], s[0:1], 0")
S("s_load_dwordx8 s[32:39], s[0:1], 64")
S("s_load_dwordx4 s[40:43], s[0:1], 96")
S("s_load_dwordx2 s[44:45], s[0:1], 112")
S("v_lshrrev_b32 v1, 6, v0")
S("v_and_b32 v0, 63, v0")
S(f"v_readfirstlane_b32 s{sWAVE}, v1")
S(f"""s_and_b32 s11, s{sWG}, 7
s_lshr_b32 s12, s{sWG}, 3
s_lshr_b32 s13, s11, 1
s_and_b32 s14, s11, 1
s_lshl_b32 s{sRB}, s13, 2
s_and_b32 s15, s12, 3
s_add_u32 s{sRB}, s{sRB}, s15
s_lshl_b32 s{sCB}, s14, 3
s_lshr_b32 s15, s12, 2
s_add_u32 s{sCB}, s{sCB}, s15
s_lshl_b32 s{sRB2}, s13, 3
s_and_b32 s15, s12, 7
s_add_u32 s{sRB2}, s{sRB2}, s15
s_lshl_b32 s{sCB2}, s14, 2
s_lshr_b32 s15, s12, 3
s_add_u32 s{sCB2}, s{sCB2}, s15
s_and_b32 s{sPAR}, s12, 1
s_lshl_b32 s{sCBASE}, s11, 4
s_lshr_b32 s15, s12, 1
s_add_u32 s{sCBASE}, s{sCBASE}, s15
s_mul_i32 s{sCBASE}, s{sCBASE}, 5
s_lshl_b32 s15, s{sPAR}, 1
s_add_u32 s{sCBASE}, s{sCBASE}, s15
s_mov_b32 s{sNONCE}, 0""")
stamp(S, 0)
vPO = 96
vPAR = 100
S(f"""s_cmp_eq_u32 s{sWAVE}, 3
s_cselect_b32 s11, 0, s{sWAVE}
s_movk_i32 s12, 128
s_cselect_b32 s12, 384, s12
s_cselect_b32 s13, 256, 0
s_cselect_b32 s14, 2, 0
s_add_u32 s11, s11, s{sCBASE}
s_mul_i32 s15, s11, 384
s_add_u32 s15, s15, s13
s_lshl_b32 s11, s11, 1""")
S(f"v_lshl_add_u32 v{vPO}, v0, 1, s15")
S(f"v_add_u32 v{vPO+1}, s12, v{vPO}")
S(f"v_add_u32 v{vPO+2}, s12, v{vPO+1}")
S(f"v_mov_b32 v92, s11")
S(f"v_add_u32 v93, s14, v92")
S(f"v_add_u32 v94, s14, v93")
for k in range(15): S(f"v_mov_b32 v{vPAR+k}, 0")
vXO = 90
S(f"""s_lshl_b32 s11, s{sWG}, 3
s_lshl_b32 s12, s{sWAVE}, 2
s_add_u32 s11, s11, s12
v_lshrrev_b32 v{vXO}, 4, v0
v_add_u32 v{vXO}, s11, v{vXO}
v_mul_u32_u24 v{vXO}, 1280, v{vXO}
v_and_b32 v91, 15, v0
v_lshl_add_u32 v{vXO}, v91, 4, v{vXO}""")
S("s_waitcnt lgkmcnt(0)")
def srd(name, p, nbytes):
    b = int(name[2:name.index(':')])
    S(f"s_mov_b32 s{b}, s{16+2*p}\ns_mov_b32 s{b+1}, s{17+2*p}\ns_mov_b32 s{b+2}, {nbytes}\ns_mov_b32 s{b+3}, 0x20000")
srd(SRD_X, pX, 2048*640*2)
vX = 20
S(f"s_cmp_ge_u32 s{sWAVE}, 2")
S("s_cbranch_scc1 .Lnox")
for j in range(5):
    S(f"buffer_load_dwordx4 {vr(vX+4*j,4)}, v{vXO}, {SRD_X}, 0 offen offset:{256*j}")
S.label(".Lnox")
for u in range(3):
    for k, p in enumerate((pLOGA, pAIM, pCR, pCI)):
        S(f"global_load_short_d16_hi v{vPAR+5*u+k}, v{vPO+u}, {P(p)}")
    S(f"global_load_short_d16_hi v{vPAR+5*u+4}, v{92+u}, {P(pLOGDT)}")
srd(SRD_W1, pW1, 640*1536*2)
srd(SRD_W2, pW2, 640*1536*2)
srd(SRD_WS, pWS, 0x10000000)
srd(SRD_OUT, pOUT, 2048*640*2)
S(f"v_mov_b32 v1, {L_MISC}\nv_mov_b32 v2, 0\nv_mov_b32 v3, 0")
S(f"ds_write_b64 v1, v[2:3]")
vW1O = 116
for i in range(3):
    S(f"""v_add_u32 v1, {64*i}, v0
v_mul_u32_u24 v2, 0xaaab, v1
v_lshrrev_b32 v2, 19, v2
v_mul_u32_u24 v3, 12, v2
v_sub_u32 v3, v1, v3
v_mul_u32_u24 v2, 3072, v2
v_lshl_add_u32 v{vW1O+i}, v3, 4, v2""")
S("s_waitcnt lgkmcnt(0)")
S("s_barrier")

def w1_dma(s, ks_sreg, nks):
    s(f"s_mul_i32 s71, s{ks_sreg}, 49152")
    s(f"s_mul_i32 s72, s{sCB}, 192")
    s(f"s_add_u32 s71, s71, s72")
    s(f"s_mul_i32 s72, s{ks_sreg}, 3072")
    t = None
    for k in range(nks):
        for i in range(3):
            s(f"s_add_u32 m0, s72, {L_W + k*3072 + i*1024}")
            t = s(f"buffer_load_dwordx4 v{vW1O+i}, {SRD_W1}, s71 offen lds")
        if k < nks - 1: s(f"s_add_u32 s71, s71, 49152")
    return t

S(f"s_cmp_ge_u32 s{sWAVE}, 2")
S.save('role0')
S("s_cbranch_scc1 .Lrole_dma")
CODE_BYTES = 32768
S("s_getpc_b64 s[72:73]")
S(f"s_lshl_b32 s11, s{sWAVE}, 14")
S(f"v_lshl_add_u32 v1, v0, 4, s11")
for k in range(16):
    S(f"global_load_dwordx4 v[232:235], v1, s[72:73] offset:{(k%4)*1024}")
    if k % 4 == 3 and k < 15: S("v_add_u32 v1, 4096, v1")
vF = 40
for k in range(20):
    S(f"v_lshlrev_b32 v{vF+2*k}, 16, v{vX+k}")
    S(f"v_and_b32 v{vF+2*k+1}, 0xffff0000, v{vX+k}")
stamp(S, 1)
S(f"v_pk_add_f32 v[80:81], v[{vF}:{vF+1}], v[{vF+2}:{vF+3}]")
S(f"v_pk_add_f32 v[82:83], v[{vF+4}:{vF+5}], v[{vF+6}:{vF+7}]")
for k in range(4, 20):
    a = 80 + 2 * (k & 1)
    S(f"v_pk_add_f32 v[{a}:{a+1}], v[{a}:{a+1}], v[{vF+2*k}:{vF+2*k+1}]")
S("v_pk_add_f32 v[80:81], v[80:81], v[82:83]")
S("v_add_f32 v80, v80, v81")
def rowsum(s, r):
    for sh in (8, 4, 2, 1):
        s(f"v_add_f32_dpp v{r}, v{r}, v{r} row_ror:{sh} row_mask:0xf bank_mask:0xf")
rowsum(S, 80)
S(f"v_mul_f32 v80, {f32(-1.0/640)}, v80")
S("v_mov_b32 v81, v80")
for k in range(20):
    t = 86 + 2 * (k & 1)
    S(f"v_pk_add_f32 v[{t}:{t+1}], v[{vF+2*k}:{vF+2*k+1}], v[80:81]")
    a = 82 + 2 * (k & 1)
    if k < 2: S(f"v_pk_mul_f32 v[{a}:{a+1}], v[{t}:{t+1}], v[{t}:{t+1}]")
    else: S(f"v_pk_fma_f32 v[{a}:{a+1}], v[{t}:{t+1}], v[{t}:{t+1}], v[{a}:{a+1}]")
S("v_pk_add_f32 v[82:83], v[82:83], v[84:85]")
S("v_add_f32 v82, v82, v83")
rowsum(S, 82)
S(f"v_mul_f32 v82, {f32(1.0/640)}, v82")
bf16_round(S, "v82", "v82")
S(f"v_add_f32 v82, {f32(1e-5)}, v82")
bf16_round(S, "v82", "v82")
S("v_sqrt_f32 v82, v82")
bf16_round(S, "v80", "v80")
S("v_mov_b32 v81, v80")
bf16_round(S, "v82", "v82")
S("v_rcp_f32 v82, v82")
for k in range(20):
    S(f"v_pk_add_f32 v[{vF+2*k}:{vF+2*k+1}], v[{vF+2*k}:{vF+2*k+1}], v[80:81]")
    S(f"v_cvt_pk_bf16_f32 v{vX+k}, v{vF+2*k}, v{vF+2*k+1}")
S("v_mov_b32 v83, v82")
S(f"""s_lshl_b32 s11, s{sWAVE}, 2
v_lshrrev_b32 v1, 4, v0
v_add_u32 v1, s11, v1
v_mul_u32_u24 v1, {LNROW}, v1
v_and_b32 v2, 15, v0
v_lshl_add_u32 v1, v2, 4, v1
v_add_u32 v1, {L_LN}, v1""")
for j in range(5):
    for k in range(4*j, 4*j+4):
        S(f"v_lshlrev_b32 v{vF+2*k}, 16, v{vX+k}")
        S(f"v_and_b32 v{vF+2*k+1}, 0xffff0000, v{vX+k}")
        S(f"v_pk_mul_f32 v[{vF+2*k}:{vF+2*k+1}], v[{vF+2*k}:{vF+2*k+1}], v[82:83]")
        S(f"v_cvt_pk_bf16_f32 v{vX+k}, v{vF+2*k}, v{vF+2*k+1}")
    S(f"ds_write_b128 v1, {vr(vX+4*j,4)} offset:{256*j}")
S(f"""s_lshl_b32 s11, s{sWAVE}, 2
s_add_u32 s12, s11, {L_MISC}
s_xor_b32 s13, s12, 4
v_mov_b32 v2, s12
v_mov_b32 v3, 1
ds_write_b32 v2, v3
v_mov_b32 v2, s13
s_mov_b32 s70, 0""")
S("v_mov_b32 v88, 0")
tn = S(f"global_load_dword v89, v88, {P(pDBG)} sc0 sc1")
S(f"""v_and_b32 v4, 7, v0
v_mul_u32_u24 v4, {LNROW}, v4
v_lshrrev_b32 v5, 3, v0
v_lshl_add_u32 v4, v5, 4, v4
s_mul_i32 s11, s{sWAVE}, 640
s_add_u32 s11, s11, {L_LN}
v_add_u32 v4, s11, v4
v_and_b32 v5, 15, v0
v_lshrrev_b32 v6, 2, v5
v_mul_u32_u24 v6, {LNROW}, v6
v_and_b32 v5, 3, v5
v_lshl_add_u32 v6, v5, 3, v6
v_lshrrev_b32 v5, 4, v0
v_lshl_add_u32 v6, v5, 5, v6
v_add_u32 v6, s11, v6
v_lshrrev_b32 v7, 4, v0
v_lshlrev_b32 v7, 10, v7
v_bfe_u32 v5, v0, 3, 1
v_lshl_add_u32 v7, v5, 9, v7
v_and_b32 v5, 7, v0
v_lshl_add_u32 v7, v5, 4, v7
v_lshlrev_b32 v8, 4, v0
s_lshr_b32 s12, s{sWG}, 2
s_mul_i32 s12, s12, 40960
s_and_b32 s13, s{sWG}, 3
s_lshl_b32 s13, s13, 7
s_add_u32 s12, s12, s13
s_mul_i32 s13, s{sWAVE}, 20480
s_add_u32 s12, s12, s13
s_mul_i32 s13, s{sWG}, 10240
s_mul_i32 s14, s{sWAVE}, 5120
s_add_u32 s13, s13, s14
s_add_u32 s13, s13, {XNB}""")
S.label(".Llnsync")
S("""ds_read_b32 v3, v2
s_waitcnt lgkmcnt(0)
v_readfirstlane_b32 s11, v3
s_add_u32 s70, s70, 1""")
S(f"s_cmp_gt_u32 s70, {SPIN_MAX}\ns_cbranch_scc1 .Llnsyncx\ns_cmp_eq_u32 s11, 0\ns_cbranch_scc1 .Llnsync")
S.label(".Llnsyncx")
for it in range(5):
    S(f"ds_read_b128 {vr(40+4*it,4)}, v4 offset:{128*it}")
for it in range(5):
    S(f"ds_read_b64_tr_b16 {vr(60+4*it,2)}, v6 offset:{128*it}")
    S(f"ds_read_b64_tr_b16 {vr(62+4*it,2)}, v6 offset:{128*it + 4*LNROW}")
for it in range(5):
    S(f"buffer_store_dwordx4 {vr(40+4*it,4)}, v7, {SRD_WS}, s12 offen sc0 sc1")
    if it < 4: S("s_add_u32 s12, s12, 4096")
for it in range(5):
    tl = S(f"buffer_store_dwordx4 {vr(60+4*it,4)}, v8, {SRD_WS}, s13 offen offset:{1024*(it%4)} sc0 sc1")
    if it == 3: S("s_add_u32 s13, s13, 4096")
stamp(S, 2)
LN_STORE_TOK = tl
S(f"v_readfirstlane_b32 s{sNONCE}, v89")
S("s_mov_b32 s70, 0")
S.label(".Lnonce")
S(f"s_cmp_lg_u32 s{sNONCE}, 0\ns_cbranch_scc1 .Lnoncex")
S(f"global_load_dword v89, v88, {P(pDBG)} sc0 sc1\ns_waitcnt vmcnt(0)\nv_readfirstlane_b32 s{sNONCE}, v89\ns_add_u32 s70, s70, 1\ns_cmp_le_u32 s70, {SPIN_MAX}\ns_cbranch_scc1 .Lnonce")
S.label(".Lnoncex")
S(f"""s_lshl_b32 s11, s{sWG}, 3
s_lshl_b32 s12, s{sWAVE}, 2
s_add_u32 s11, s11, s12
s_add_u32 s11, s11, {FX}
v_mov_b32 v2, s{sNONCE}
s_waitcnt vmcnt(0)
buffer_store_dword v2, v88, {SRD_WS}, s11 offen sc0 sc1""")
stamp(S, 3)
S.endpath()
S("s_branch .Lkgen")
S.label(".Lrole_dma")
S.restore('role0')
S(f"""s_sub_u32 s11, s{sWAVE}, 2
s_or_b32 s12, s{sWG}, s11
s_cmp_lg_u32 s12, 0
s_cbranch_scc1 .Lnononce
s_memrealtime s[68:69]
s_waitcnt lgkmcnt(0)
s_lshl_b32 s68, s68, 1
s_or_b32 s68, s68, 1
v_mov_b32 v1, s68
v_mov_b32 v2, 0
global_store_dword v2, v1, {P(pDBG)} sc0 sc1""")
S.label(".Lnononce")
S(f"s_mul_i32 s11, s11, 14")
w1_dma(S, 11, 14)
S("s_waitcnt vmcnt(42)")
S.endpath()

S.label(".Lkgen")
vD = 4
vFs = 120
vPK = 184
vFO = 200
vGO = 232
vT = 40
vSW, vSR = 250, 251
S(f"""s_mul_i32 s11, s{sWAVE}, {SCR_W}
s_add_u32 s11, s11, {L_SCR}
v_mul_u32_u24 v{vSW}, 144, v0
v_add_u32 v{vSW}, s11, v{vSW}
v_and_b32 v1, 15, v0
v_bfe_u32 v2, v1, 2, 1
v_lshlrev_b32 v{vSR}, 6, v2
v_bfe_u32 v2, v1, 3, 1
v_mul_u32_u24 v2, {8*144}, v2
v_add_u32 v{vSR}, v{vSR}, v2
v_and_b32 v2, 3, v1
v_lshl_add_u32 v{vSR}, v2, 3, v{vSR}
v_bfe_u32 v2, v0, 4, 1
v_lshl_add_u32 v{vSR}, v2, 5, v{vSR}
v_lshrrev_b32 v2, 5, v0
v_mul_u32_u24 v2, {16*144}, v2
v_add_u32 v{vSR}, v{vSR}, v2
v_add_u32 v{vSR}, s11, v{vSR}
v_lshlrev_b32 v252, 4, v0
v_add_u32 v252, {L_K}, v252
s_cmp_eq_u32 s{sWAVE}, 3
s_cselect_b32 s74, 3, 2
s_mov_b32 s75, 0""")
for k in range(16): S(f"v_mov_b32 v{vD+k}, 0")
def cmul(s, d, x, y):
    s(f"v_pk_mul_f32 v[{d}:{d+1}], v[{x}:{x+1}], v[{y}:{y+1}] op_sel:[0,0] op_sel_hi:[1,0]") if d != x else None
    assert d != x and d != y
    s(f"v_pk_fma_f32 v[{d}:{d+1}], v[{x}:{x+1}], v[{y}:{y+1}], v[{d}:{d+1}] op_sel:[1,1,0] op_sel_hi:[0,1,1] neg_lo:[0,1,0]")
def cmuls(s, lst):
    for d, x, y in lst:
        assert d != x and d != y
        s(f"v_pk_mul_f32 v[{d}:{d+1}], v[{x}:{x+1}], v[{y}:{y+1}] op_sel:[0,0] op_sel_hi:[1,0]")
    for d, x, y in lst:
        s(f"v_pk_fma_f32 v[{d}:{d+1}], v[{x}:{x+1}], v[{y}:{y+1}], v[{d}:{d+1}] op_sel:[1,1,0] op_sel_hi:[0,1,1] neg_lo:[0,1,0]")
S.label(".Lkloop")
LOG2E = 1.4426950408889634
I2PI = 1.0 / (2 * math.pi)
i2pi_hi = struct.unpack('<f', struct.pack('<f', I2PI))[0]
i2pi_lo = I2PI - i2pi_hi
pa, pb, pc, pd, pe = range(vPAR, vPAR + 5)
va, vbh, vbl, vdt = vT, vT+1, vT+2, vT+3
vW1, vW8, vW256, vW2, vW4 = vT+4, vT+6, vT+8, vT+10, vT+12
S(f"""v_mul_f32 v{vdt}, {f32(LOG2E)}, v{pe}
v_mul_f32 v{va}, {f32(LOG2E)}, v{pa}
v_exp_f32 v{vdt}, v{vdt}
v_exp_f32 v{va}, v{va}""")
bf16_round(S, f"v{vdt}", f"v{vdt}")
bf16_round(S, f"v{va}", f"v{va}")
G = lambda k: vFs + 2 * k
S(f"""v_mul_f32 v{pb}, v{pb}, v{vdt}
v_mul_f32 v{va}, v{va}, v{vdt}
v_mul_f32 v{vbh}, {f32(i2pi_hi)}, v{pb}
v_mul_f32 v{va}, {f32(-LOG2E)}, v{va}
s_mov_b32 s11, {f32(i2pi_hi)}
v_fma_f32 v{vbl}, v{pb}, s11, -v{vbh}
v_fmac_f32 v{vbl}, {f32(i2pi_lo)}, v{pb}
v_add_f32 v{vdt}, v{vdt}, v{vdt}
v_mul_f32 v{pc}, v{pc}, v{vdt}
v_mul_f32 v{pd}, v{pd}, v{vdt}""")
t0 = vT + 16
for n, (k, w) in enumerate(((8, vW8), (1, vW1), (256, vW256))):
    m, an = t0 + 2*n, t0 + 2*n + 1
    if k == 1:
        S(f"v_exp_f32 v{m}, v{va}\nv_fract_f32 v{an}, v{vbh}\nv_add_f32 v{an}, v{an}, v{vbl}")
    else:
        S(f"v_mul_f32 v{m}, {f32(float(k))}, v{va}\nv_mul_f32 v{an}, {f32(float(k))}, v{vbh}\nv_exp_f32 v{m}, v{m}\nv_fract_f32 v{an}, v{an}\nv_fmac_f32 v{an}, {f32(float(k))}, v{vbl}")
    S(f"v_cos_f32 v{w}, v{an}\nv_sin_f32 v{w+1}, v{an}")
    S(f"v_mul_f32 v{w}, v{w}, v{m}\nv_mul_f32 v{w+1}, v{w+1}, v{m}")
S(f"v_mov_b32 v{G(0)}, 1.0\nv_mov_b32 v{G(0)+1}, 0\nv_mov_b32 v{G(1)}, v{vW8}\nv_mov_b32 v{G(1)+1}, v{vW8+1}")
cmuls(S, [(G(2), G(1), G(1)), (vW2, vW1, vW1)])
cmuls(S, [(G(3), G(2), G(1)), (G(4), G(2), G(2)), (vW4, vW2, vW2)])
def pack8(s, vals, blk, negim):
    b = vPK + 8 * (blk & 1)
    for j in range(4):
        s(f"v_cvt_pk_bf16_f32 v{b+j}, v{vals[2*j]}, v{vals[2*j+1]}")
    s(f"ds_write_b128 v{vSW}, {vr(b,4)} offset:{16*blk}")
    n = '-' if negim else ''
    for j in range(4):
        s(f"v_cvt_pk_bf16_f32 v{b+4+j}, {n}v{vals[2*j]+1}, {n}v{vals[2*j+1]+1}")
    s(f"ds_write_b128 v{vSW}, {vr(b+4,4)} offset:{64+16*blk}")
cmuls(S, [(G(k), G(k-4), G(4)) for k in (5, 6, 7, 8)])
for blk in range(4):
    if blk < 3:
        lo = 8 * blk + 9
        cmuls(S, [(G(k), G(k-4), G(4)) for k in range(lo, lo+4)])
        cmuls(S, [(G(k), G(k-4), G(4)) for k in range(lo+4, min(lo+8, 32))])
    pack8(S, [G(8*blk+j) for j in range(8)], blk, False)
def trimm(s_, r): return (r + 2 * (s_ & 3)) * 144 + (s_ >> 2) * 32 * 144
for s_ in range(8):
    for r in range(2):
        S(f"ds_read_b64_tr_b16 {vr(vFO+4*s_+2*r,2)}, v{vSR} offset:{trimm(s_, r)}")
hi0 = [0,1,2,3,4,5,6,7,8, 512,516,520, 1024,1032, 1280,1288]
hi1 = [256,256,258,260,260,260,262,264,264, 768,772,776, 1536,1544, 1792,1800]
his = sorted(set(hi0 + hi1))
gi = {h: G(n) for n, h in enumerate(his)}
S(f"v_mov_b32 v{gi[0]}, v{pc}\nv_mov_b32 v{gi[0]+1}, v{pd}")
cmuls(S, [(gi[1], gi[0], vW1), (gi[2], gi[0], vW2), (gi[4], gi[0], vW4), (gi[8], gi[0], vW8), (gi[256], gi[0], vW256)])
cmuls(S, [(gi[3], gi[2], vW1), (gi[5], gi[4], vW1), (gi[6], gi[4], vW2), (gi[258], gi[256], vW2), (gi[260], gi[256], vW4), (gi[264], gi[256], vW8), (gi[512], gi[256], vW256)])
cmuls(S, [(gi[7], gi[6], vW1), (gi[262], gi[260], vW2), (gi[516], gi[512], vW4), (gi[520], gi[512], vW8), (gi[768], gi[512], vW256)])
rowhi = [ (hi0, hi1)[(p >> 2) & 1][4 * (p >> 3) + (p & 3)] for p in range(32)]
pack8(S, [gi[h] for h in rowhi[0:8]], 0, True)
cmuls(S, [(gi[772], gi[768], vW4), (gi[776], gi[768], vW8), (gi[1024], gi[768], vW256)])
pack8(S, [gi[h] for h in rowhi[8:16]], 1, True)
cmuls(S, [(gi[1032], gi[1024], vW8), (gi[1280], gi[1024], vW256)])
cmuls(S, [(gi[1288], gi[1280], vW8), (gi[1536], gi[1280], vW256)])
pack8(S, [gi[h] for h in rowhi[16:24]], 2, True)
cmuls(S, [(gi[1544], gi[1536], vW8), (gi[1792], gi[1536], vW256)])
cmuls(S, [(gi[1800], gi[1792], vW8)])
pack8(S, [gi[h] for h in rowhi[24:32]], 3, True)
def gread(s_):
    for r in range(2):
        S(f"ds_read_b64_tr_b16 {vr(vGO+4*(s_&3)+2*r,2)}, v{vSR} offset:{trimm(s_, r)}")
for s_ in range(4): gread(s_)
for k in range(10): S(f"v_mov_b32 v{vPAR+k}, v{vPAR+5+k}")
for s_ in range(8):
    S(f"v_mfma_f32_32x32x16_bf16 {vr(vD,16)}, {vr(vGO+4*(s_&3),4)}, {vr(vFO+4*s_,4)}, {vr(vD,16)}")
    if s_ + 4 < 8: gread(s_ + 4)
S(f"s_add_u32 s75, s75, 1\ns_cmp_lg_u32 s{sWAVE}, 3\ns_cbranch_scc1 .Lknodump")
S("s_nop 7\ns_nop 3")
for k in range(4):
    S(f"ds_write_b128 v252, {vr(vD+4*k,4)} offset:{1024*k}")
S(f"v_add_u32 v252, {KSLOT}, v252")
for k in range(16): S(f"v_mov_b32 v{vD+k}, 0")
S.label(".Lknodump")
S("s_cmp_lt_u32 s75, s74\ns_cbranch_scc1 .Lkloop")
stamp(S, 4)
S("s_waitcnt vmcnt(0) lgkmcnt(0)")
S("s_barrier")
S.endpath()
stamp(S, 5)
S(f"s_mul_i32 s11, s{sWAVE}, 3\ns_add_u32 s11, s11, 28")
w1_dma(S, 11, 3)
S(f"""s_lshl_b32 s11, s{sRB}, 7
s_lshl_b32 s12, s{sWAVE}, 5
s_add_u32 s11, s11, s12
s_add_u32 s11, s11, {FX}
v_and_b32 v1, 7, v0
v_lshl_add_u32 v1, v1, 2, s11
v_mov_b32 v42, 0""")
poll(S, 40, 1, 1, extra_nonce=True)
stamp(S, 6)
S(f"""s_lshl_b32 s11, s{sRB}, 2
s_add_u32 s11, s11, s{sWAVE}
s_mul_i32 s76, s11, 40960
v_lshlrev_b32 v253, 4, v0""")
for ks in range(40):
    S(f"buffer_load_dwordx4 {ar(4*ks,4)}, v253, {SRD_WS}, s76 offen offset:{1024*(ks%4)} sc1")
    if ks % 4 == 3 and ks < 39: S("s_add_u32 s76, s76, 4096")
vB1P = 96; vB1 = 200
S(f"""s_mul_i32 s11, s{sCB}, 192
v_lshrrev_b32 v1, 5, v0
v_lshl_add_u32 v1, v1, 3, s11""")
for k in range(12):
    S(f"global_load_dwordx2 {vr(vB1P+2*k,2)}, v1, {P(pB1)} offset:{16*k}")
S(f"s_cmp_eq_u32 s{sWAVE}, 3")
S.save('exp')
S("s_cbranch_scc1 .Lnoexp")
S(f"s_mul_i32 s11, s{sWAVE}, {KSLOT}\ns_add_u32 s11, s11, {L_K}\nv_lshl_add_u32 v1, v0, 4, s11")
for k in range(4):
    S(f"ds_read_b128 {vr(44+4*k,4)}, v1 offset:{1024*k}")
S(f"""v_and_b32 v2, 31, v0
v_sub_u32 v2, 31, v2
v_lshl_add_u32 v2, v2, 4, s11
v_subrev_u32 v2, 32, v2
v_lshrrev_b32 v3, 5, v0
v_sub_u32 v3, 1, v3
v_lshl_add_u32 v60, v3, 9, v2
v_mul_u32_u24 v3, 1056, v3
v_add_u32 v61, v3, v2
v_add_u32 v62, {OOFF}, v60
v_add_u32 v63, {OOFF}, v61
v_and_b32 v3, 1, v0
v_cmp_eq_u32 vcc, 1, v3""")
for k in range(8):
    S(f"v_pk_add_f32 v[{vD+2*k}:{vD+2*k+1}], v[{vD+2*k}:{vD+2*k+1}], v[{44+2*k}:{45+2*k}]")
d = lambda k: f"v{vD+k}"
def build(e_pairs, o_pairs, base, aE, aO, imm):
    for j, (a, b) in enumerate(e_pairs): S(f"v_cvt_pk_bf16_f32 v{base+j}, {a}, {b}")
    S(f"ds_write_b128 v{aE}, {vr(base,4)} offset:{imm+32}")
    for j, (a, b) in enumerate(o_pairs): S(f"v_cvt_pk_bf16_f32 v{base+4+j}, {a}, {b}")
    wo(base + 4, aO, imm + 32)
def wo(b, aO, off):
    S(f"v_add_u32 v1, {off}, v{aO}")
    S(f"ds_write2_b32 v1, v{b}, v{b+1} offset0:0 offset1:1")
    S(f"ds_write2_b32 v1, v{b+2}, v{b+3} offset0:2 offset1:3")
build([(d(7),d(6)),(d(5),d(4)),(d(3),d(2)),(d(1),d(0))], [(d(8),d(7)),(d(6),d(5)),(d(4),d(3)),(d(2),d(1))], 64, 60, 62, 3*1056)
build([(d(11),d(11)),(d(10),d(10)),(d(10),d(9)),(d(9),d(9))], [(d(11),d(11)),(d(11),d(10)),(d(10),d(10)),(d(9),d(9))], 72, 60, 62, 2*1056)
for n, (r0, imm) in enumerate(((12, 512), (14, 0))):
    S(f"v_cndmask_b32 v3, {d(r0)}, {d(r0+1)}, vcc")
    V0, V1 = d(r0), d(r0+1)
    build([(V1,V1),(V1,'v3'),(V0,V0),(V0,V0)], [(V1,V1),(V1,V1),('v3',V0),(V0,V0)], 80 + 8*n, 61, 63, imm)
S("s_mov_b32 exec_lo, 0\ns_mov_b32 exec_hi, 0x80000000")
S(f"ds_write_b128 v60, {vr(64,4)} offset:{3*1056}")
S(f"ds_write_b128 v60, {vr(72,4)} offset:{2*1056}")
wo(68, 62, 3*1056); wo(76, 62, 2*1056)
S("s_mov_b32 exec_lo, 0x80000000\ns_mov_b32 exec_hi, 0")
S(f"ds_write_b128 v61, {vr(88,4)}")
wo(92, 63, 0)
S("s_mov_b32 exec_lo, 1")
S(f"v_mov_b32 v64, 0\nv_mov_b32 v65, 0\nv_mov_b32 v66, 0\nv_mov_b32 v67, 0\nv_cvt_pk_bf16_f32 v68, {d(0)}, v64\nv_mov_b32 v2, s11")
S(f"ds_write_b128 v2, {vr(64,4)} offset:{(3*264+256)*4}")
S(f"v_add_u32 v2, {OOFF + (3*264+256)*4}, v2")
S("ds_write2_b32 v2, v68, v64 offset0:0 offset1:1\nds_write2_b32 v2, v64, v64 offset0:2 offset1:3")
S("s_mov_b64 exec, -1")
S.label(".Lnoexp")
S.restore('exp')
S(f"""v_lshrrev_b32 v1, 4, v0
v_mul_u32_u24 v1, {USLOT}, v1
v_and_b32 v2, 15, v0
v_lshl_add_u32 v1, v2, 4, v1
v_add_u32 v1, {L_U}, v1
v_mov_b32 v44, 0
v_mov_b32 v45, 0
v_mov_b32 v46, 0
v_mov_b32 v47, 0
s_mov_b32 exec_hi, 0xffff
ds_write_b128 v1, v[44:47]
s_mov_b64 exec, -1""")
if opt['dumpk']:
    S("s_waitcnt lgkmcnt(0)\ns_barrier")
    S(f"s_mul_i32 s11, s{sWG}, 32768\ns_add_u32 s11, s11, {KDUMP}\ns_lshl_b32 s12, s{sWAVE}, 10\nv_lshl_add_u32 v1, v0, 4, s12")
    for k in range(7):
        S(f"v_add_u32 v2, {L_K + 4096*k}, v1\nds_read_b128 v[44:47], v2\nv_add_u32 v2, {4096*k}, v1\nbuffer_store_dwordx4 v[44:47], v2, {SRD_WS}, s11 offen")
for k in range(24):
    S(f"v_lshlrev_b32 v{vB1+2*k}, 16, v{vB1P+k}\nv_and_b32 v{vB1+2*k+1}, 0xffff0000, v{vB1P+k}")

vAC = 20
vAR = 120
vA0, vA1 = 254, 255
S(f"""v_and_b32 v1, 15, v0
v_lshrrev_b32 v2, 2, v1
v_lshrrev_b32 v3, 5, v0
v_lshl_add_u32 v2, v3, 3, v2
v_mul_u32_u24 v{vA0}, 192, v2
v_and_b32 v1, 3, v1
v_lshl_add_u32 v{vA0}, v1, 3, v{vA0}
v_bfe_u32 v1, v0, 4, 1
v_lshl_add_u32 v{vA0}, v1, 5, v{vA0}
v_add_u32 v{vA1}, 61440, v{vA0}""")
def g1_read(s, ks):
    for ft in range(3):
        for r in range(2):
            base, k = (vA0, ks) if ks < 20 else (vA1, ks - 20)
            s(f"ds_read_b64_tr_b16 {vr(vAR + 12*(ks%3) + 4*ft + 2*r, 2)}, v{base} offset:{k*3072 + r*768 + ft*64}")
g1_read(S, 0); g1_read(S, 1)
vUL = 160
Sg = Stream()
for ks in range(40):
    if ks == 26: Sg("s_barrier")
    if ks + 2 < 40: g1_read(Sg, ks + 2)
    for ft in range(3):
        c = vr(vAC + 16*ft, 16) if ks > 0 else "0"
        Sg(f"v_mfma_f32_32x32x16_bf16 {vr(vAC+16*ft,16)}, {vr(vAR + 12*(ks%3) + 4*ft, 4)}, {ar(4*ks,4)}, {c}")
S.ext(Sg)
stamp(S, 7)
S(f"v_lshlrev_b32 v1, 4, v0\nv_add_u32 v1, {FX}, v1")
poll(S, 176, 1, 4)
S("v_add_u32 v1, 1024, v1")
poll(S, 176, 1, 4)
S(f"""v_lshrrev_b32 v1, 2, v0
v_mul_u32_u24 v1, 10240, v1
v_and_b32 v2, 3, v0
v_lshl_add_u32 v1, v2, 4, v1
s_mul_i32 s11, s{sWAVE}, {64*10240}
s_lshl_b32 s12, s{sCBASE}, 4
s_add_u32 s11, s11, s12
s_add_u32 s11, s11, {XNB}
v_mul_u32_u24 v2, {USLOT}, v2
v_lshrrev_b32 v3, 2, v0
v_lshl_add_u32 v2, v3, 4, v2
s_lshl_b32 s12, s{sWAVE}, 10
s_add_u32 s12, s12, {L_U + 256}
v_add_u32 v2, s12, v2
s_mov_b32 exec_lo, 0x77777777
s_mov_b32 exec_hi, 0x77777777""")
for k in range(4):
    S(f"buffer_load_dwordx4 {vr(vUL+4*k,4)}, v1, {SRD_WS}, s11 offen sc1")
    if k < 3: S(f"s_add_u32 s11, s11, {16*10240}")
S("s_mov_b64 exec, -1")
S(f"""s_mov_b32 s77, 0x00003f80
s_mov_b32 s78, 0x3f800000
v_bfe_u32 v1, v0, 4, 1
v_mul_u32_u24 v1, {48*1024}, v1
v_and_b32 v3, 15, v0
v_lshl_add_u32 v1, v3, 4, v1
v_lshrrev_b32 v3, 5, v0
v_lshl_add_u32 v1, v3, 8, v1
s_lshl_b32 s11, s{sRB}, 3
s_lshl_b32 s12, s{sWAVE}, 1
s_add_u32 s11, s11, s12
s_mul_i32 s11, s11, 48
s_mul_i32 s12, s{sCB}, 3
s_add_u32 s11, s11, s12
s_lshl_b32 s11, s11, 10
s_add_u32 s79, s11, {HB}""")
for ft in range(3):
    tp = 120 + 8 * (ft & 1)
    for k in range(8):
        a = vAC + 16*ft + 2*k; b = vB1 + 16*ft + 2*k
        S(f"v_cvt_pk_bf16_f32 v{tp+k}, v{a}, v{a+1}")
        S(f"v_dot2_f32_bf16 v{a}, v{tp+k}, s77, v{b}")
        S(f"v_dot2_f32_bf16 v{a+1}, v{tp+k}, s78, v{b+1}")
    for k in range(8):
        a = vAC + 16*ft + 2*k
        S(f"v_cvt_pk_bf16_f32 v{tp+k}, v{a}, v{a+1}")
        S(f"v_pk_max_i16 v{tp+k}, v{tp+k}, 0")
        S(f"v_lshlrev_b32 v{a}, 16, v{tp+k}")
        S(f"v_and_b32 v{a+1}, 0xffff0000, v{tp+k}")
        S(f"v_pk_mul_f32 v[{a}:{a+1}], v[{a}:{a+1}], v[{a}:{a+1}]")
        S(f"v_cvt_pk_bf16_f32 v{tp+k}, v{a}, v{a+1}")
    for jp in range(2):
        th = S(f"buffer_store_dwordx4 {vr(tp+4*jp,4)}, v1, {SRD_WS}, s79 offen offset:{1024*ft + 512*jp} sc0 sc1")
S("s_mov_b32 exec_lo, 0x77777777\ns_mov_b32 exec_hi, 0x77777777")
for k in range(4):
    S(f"ds_write_b128 v2, {vr(vUL+4*k,4)} offset:{256*k}")
S("s_mov_b64 exec, -1")
S(f"""s_lshl_b32 s11, s{sRB}, 2
s_add_u32 s11, s11, s{sWAVE}
s_lshl_b32 s11, s11, 4
s_add_u32 s11, s11, s{sCB}
s_lshl_b32 s11, s11, 2
s_add_u32 s80, s11, {FH}
v_mov_b32 v110, s{sNONCE}
v_mov_b32 v111, 0""")
S("s_waitcnt lgkmcnt(0)")
S("s_barrier")
stamp(S, 8)

vCA = 4; vCP = 20; vKB = 28; vR = 44; vU, vK, vKn, vYO = 108, 109, 112, 113
vW2O = 114
vW2R = 119
for i in range(5):
    S(f"""v_add_u32 v1, {64*i}, v0
v_mul_u32_u24 v2, 0xcccd, v1
v_lshrrev_b32 v2, 19, v2
v_mul_u32_u24 v3, 10, v2
v_sub_u32 v3, v1, v3
v_mul_u32_u24 v2, 1280, v2
v_lshl_add_u32 v{vW2O+i}, v3, 4, v2""")
S(f"""s_mul_i32 s81, s{sWAVE}, {384*1280}
s_mul_i32 s11, s{sCB2}, 160
s_add_u32 s81, s81, s11
s_mul_i32 s82, s{sWAVE}, 20480""")
def w2_dma(s, rnd):
    t = None
    for k in range(4):
        for i in range(5):
            s(f"s_add_u32 m0, s82, {k*5120 + i*1024}")
            t = s(f"buffer_load_dwordx4 v{vW2O+i}, {SRD_W2}, s81 offen lds")
        s(f"s_add_u32 s81, s81, {32*1280}")
    return t
def w2_read(s, rnd, tok):
    s.wait(tok)
    for k in range(4):
        for dt in range(5):
            for r in range(2):
                s(f"ds_read_b64_tr_b16 {ar(((4*rnd+k)*5+dt)*4 + 2*r, 2)}, v{vW2R} offset:{k*5120 + r*1280 + dt*32}")
tw0 = w2_dma(S, 0)
S(f"""v_lshrrev_b32 v1, 5, v0
v_lshlrev_b32 v1, 4, v1
v_bfe_u32 v2, v0, 4, 1
v_lshl_add_u32 v1, v2, 2, v1
v_bfe_u32 v2, v0, 2, 2
v_add_u32 v1, v1, v2
v_mul_u32_u24 v1, 160, v1
v_and_b32 v2, 3, v0
v_lshl_add_u32 v1, v2, 3, v1
v_add_u32 v{vW2R}, s82, v1""")
S.wait(th)
S(f"buffer_store_dword v110, v111, {SRD_WS}, s80 offen sc0 sc1")
S(f"""s_add_u32 s11, s{sPAR}, s{sWAVE}
s_mov_b32 s83, 0
s_cmp_eq_u32 s{sWAVE}, 2
s_cselect_b32 s11, s{sPAR}, s11
s_cselect_b32 s83, 1, 0
s_add_u32 s15, s{sPAR}, 1
s_cmp_eq_u32 s{sWAVE}, 3
s_cbranch_scc0 .Lcu1
s_mov_b32 s83, s{sPAR}
s_lshl_b32 s11, s{sPAR}, 1
s_sub_u32 s11, 2, s11
s_mov_b32 s15, 0""")
S.label(".Lcu1")
vUl, vKl, vYl = 120, 121, 122
S(f"""v_and_b32 v1, 15, v0
v_lshrrev_b32 v2, 4, v0
v_add_u32 v3, v1, v2
v_lshlrev_b32 v{vUl}, 4, v3
v_add_u32 v{vUl}, {L_U + 16}, v{vUl}
v_and_b32 v3, 7, v0
v_sub_u32 v{vKl}, 8, v3
v_lshrrev_b32 v{vKl}, 1, v{vKl}
v_lshl_add_u32 v{vKl}, v2, 2, v{vKl}
v_lshlrev_b32 v{vKl}, 2, v{vKl}
v_and_b32 v3, 1, v0
v_sub_u32 v3, 1, v3
v_mul_u32_u24 v3, {OOFF}, v3
v_add_u32 v{vKl}, v{vKl}, v3
v_bfe_u32 v3, v0, 3, 1
v_sub_u32 v3, 1, v3
v_mul_u32_u24 v3, 1056, v3
v_add_u32 v{vKl}, v{vKl}, v3
v_add_u32 v{vKl}, {L_K}, v{vKl}
v_lshlrev_b32 v{vYl}, 4, v1
v_bfe_u32 v3, v0, 4, 1
v_lshl_add_u32 v{vYl}, v3, 8, v{vYl}
v_lshrrev_b32 v3, 5, v0
v_lshl_add_u32 v{vYl}, v3, 10, v{vYl}""")
def unit_setup(s, sslot):
    s(f"""s_mul_i32 s12, s{sslot}, {USLOT}
v_add_u32 v{vU}, s12, v{vUl}
s_mul_i32 s12, s{sslot}, {KSLOT}
s_mul_i32 s13, s83, 2112
s_add_u32 s12, s12, s13
v_add_u32 v{vK}, s12, v{vKl}
v_add_u32 v{vKn}, 1056, v{vK}
s_add_u32 s12, s{sCBASE}, s{sslot}
s_lshl_b32 s14, s12, 3
s_lshl_b32 s12, s12, 12
s_lshl_b32 s13, s83, 11
s_sub_u32 s12, s12, s13
s_add_u32 s46, s12, {YT + 2048}
s_lshl_b32 s13, s83, 2
s_sub_u32 s14, s14, s13
s_add_u32 s47, s14, {FY + 4}""")
    for sg in range(3): conv_load(s, sg)
def conv_load(s, sg):
    s(f"ds_read_b128 {vr(vR + 4*(sg & 15), 4)}, v{vU} offset:{64*sg}")
    base, o = (vK, 16*sg) if sg < 16 else (vKn, 16*(sg-16))
    kb = vKB + 4*(sg & 3)
    s(f"ds_read2_b32 {vr(kb,2)}, v{base} offset0:{o} offset1:{o+1}")
    s(f"ds_read2_b32 {vr(kb+2,2)}, v{base} offset0:{o+2} offset1:{o+3}")
def conv_block(ramp):
    s = Stream()
    for sg in range(16):
        conv_load(s, sg + 3)
        for rt in (3, 2, 1, 0):
            first = 12 - 4*rt
            if ramp and sg < first: continue
            c = "0" if (ramp and sg == first) else vr(vCA + 4*rt, 4)
            s(f"v_mfma_f32_16x16x32_bf16 {vr(vCA+4*rt,4)}, {vr(vKB + 4*(sg&3),4)}, {vr(vR + 4*((sg+4+4*rt)&15),4)}, {c}")
    s(f"v_add_u32 v{vU}, 1024, v{vU}\nv_add_u32 v{vK}, 1056, v{vK}\nv_add_u32 v{vKn}, 1056, v{vKn}")
    return s
def conv_save(s):
    for rt in (3, 2, 1, 0):
        for h in range(2):
            s(f"v_cvt_pk_bf16_f32 v{vCP + 4*(rt>>1) + 2*(rt&1) + h}, v{vCA+4*rt+2*h}, v{vCA+4*rt+2*h+1}")
def conv_fin(s):
    s("s_mov_b32 exec_lo, 0")
    conv_save(s)
    s("s_mov_b32 exec_lo, -1")
    t = None
    for pr in range(2):
        b = vCP + 4*pr
        s(f"v_permlane16_swap_b32 v{b}, v{b+2}")
        s(f"v_permlane16_swap_b32 v{b+1}, v{b+3}")
        t = s(f"buffer_store_dwordx4 {vr(b,4)}, v{vYl}, {SRD_WS}, s46 offen offset:{512*pr} sc0 sc1")
    return t
unit_setup(S, 11)
B0 = conv_block(True); S.ext(B0)
conv_save(S)
F1 = Stream(); w2_read(F1, 0, tw0); tw1 = w2_dma(F1, 1)
S.ext(interleave(conv_block(False), F1, 1.5, start=2))
S("s_cmp_eq_u32 s83, 1")
S.save('b2')
S("s_cbranch_scc1 .Lb2x")
F2 = Stream(); w2_read(F2, 1, tw1); tw2 = w2_dma(F2, 2)
S.ext(interleave(conv_block(False), F2, 1.5, start=2))
S("s_waitcnt lgkmcnt(0)")
S.endpath()
S("s_branch .Lb3")
S.label(".Lb2x")
S.restore('b2')
ty = conv_fin(S)
S("s_mov_b32 s100, s47")
unit_setup(S, 15)
F2 = Stream(); w2_read(F2, 1, tw1); F2.wait(ty)
F2(f"buffer_store_dword v110, v111, {SRD_WS}, s100 offen sc0 sc1")
tw2 = w2_dma(F2, 2)
S.ext(interleave(conv_block(True), F2, 2.5, start=2))
S("s_waitcnt lgkmcnt(0)")
S.endpath()
S.label(".Lb3")
conv_save(S)
S.ext(conv_block(False))
conv_fin(S)
S("s_waitcnt vmcnt(0) lgkmcnt(0)")
S(f"buffer_store_dword v110, v111, {SRD_WS}, s47 offen sc0 sc1")
stamp(S, 9)

S(f"""s_lshr_b32 s11, s{sRB2}, 1
s_lshl_b32 s11, s11, 2
s_and_b32 s12, s{sRB2}, 1
s_lshl_b32 s12, s12, 1
s_add_u32 s11, s11, s12
s_lshl_b32 s11, s11, 4
s_lshl_b32 s12, s{sWAVE}, 2
s_add_u32 s11, s11, s12
s_lshl_b32 s11, s11, 2
s_add_u32 s11, s11, {FH}
v_bfe_u32 v1, v0, 2, 1
v_lshlrev_b32 v1, 6, v1
v_and_b32 v2, 3, v0
v_lshl_add_u32 v1, v2, 2, v1
v_add_u32 v1, s11, v1""")
poll(S, 40, 1, 1)
stamp(S, 10)
vH = 108
vW2R2 = 3
S(f"v_mov_b32 v{vW2R2}, v{vW2R}")
vHO = 252
S(f"v_lshlrev_b32 v{vHO}, 4, v0\nv_add_u32 v{vHO+1}, 4096, v{vHO}\nv_add_u32 v{vHO+2}, 8192, v{vHO}")
for p in range(4):
    S(f"""s_add_u32 s11, s{sWAVE}, {p+1}
s_and_b32 s11, s11, 3
s_lshl_b32 s12, s{sRB2}, 2
s_add_u32 s11, s11, s12
s_mul_i32 s11, s11, 48
s_mul_i32 s12, s{sWAVE}, 12
s_add_u32 s11, s11, s12
s_lshl_b32 s11, s11, 10
s_add_u32 s{71+p}, s11, {HB}""")
def h_load(s, p, k):
    s(f"buffer_load_dwordx4 {vr(vH + 48*(p%3) + 4*k, 4)}, v{vHO + k//4}, {SRD_WS}, s{71+p} offen offset:{1024*(k%4)} sc1")
for p in range(3):
    for k in range(12): h_load(S, p, k)
for k in range(4):
    for dt in range(5):
        for r in range(2):
            S(f"ds_read_b64_tr_b16 {ar(((8+k)*5+dt)*4 + 2*r, 2)}, v{vW2R2} offset:{k*5120 + r*1280 + dt*32}")
vG2 = 4
vRW = 255
S(f"v_add_u32 v{vRW}, s82, v{vHO}")
def g2_pass(p):
    s = Stream()
    ac = vG2 + 20*(p & 1)
    for k in range(12):
        for dt in range(5):
            c = "0" if k == 0 else vr(ac + 4*dt, 4)
            s(f"v_mfma_f32_16x16x32_bf16 {vr(ac+4*dt,4)}, {ar((k*5+dt)*4,4)}, {vr(vH + 48*(p%3) + 4*k, 4)}, {c}")
    return s
def g2_dump(s, p):
    ac = vG2 + 20*(p & 1)
    for dt in range(5):
        s(f"ds_write_b128 v{vRW}, {vr(ac+4*dt,4)} offset:{p*5120 + dt*1024}")
S.ext(g2_pass(0))
F = Stream()
for k in range(12): h_load(F, 3, k)
g2_dump(F, 0)
S.ext(interleave(g2_pass(1), F, 1, start=3))
F = Stream(); g2_dump(F, 1)
S.ext(interleave(g2_pass(2), F, 1, start=3))
F = Stream(); g2_dump(F, 2)
S.ext(interleave(g2_pass(3), F, 1, start=3))
stamp(S, 11)
S(f"""s_mul_i32 s11, s{sCB2}, 640
s_lshr_b32 s12, s{sRB2}, 4
s_lshl_b32 s12, s12, 2
s_add_u32 s11, s11, s12
s_add_u32 s11, s11, {FY}
v_lshl_add_u32 v1, v0, 3, s11""")
poll(S, 44, 1, 1)
S("v_and_b32 v2, 15, v0\nv_lshlrev_b32 v2, 3, v2\ns_add_u32 s11, s11, 512\nv_add_u32 v1, s11, v2")
poll(S, 44, 1, 1)
vY = 44
S(f"""v_lshrrev_b32 v1, 1, v0
v_lshlrev_b32 v1, 12, v1
v_and_b32 v2, 1, v0
v_lshl_add_u32 v1, v2, 4, v1
s_mul_i32 s11, s{sCB2}, {80*4096}
s_lshl_b32 s12, s{sRB2}, 7
s_add_u32 s11, s11, s12
s_lshl_b32 s12, s{sWAVE}, 5
s_add_u32 s11, s11, s12
s_add_u32 s11, s11, {YT}
s_add_u32 s12, s11, {32*4096}
s_add_u32 s13, s11, {64*4096}""")
S(f"buffer_load_dwordx4 {vr(vY,4)}, v1, {SRD_WS}, s11 offen sc1")
S(f"buffer_load_dwordx4 {vr(vY+4,4)}, v1, {SRD_WS}, s12 offen sc1")
S("s_mov_b32 exec_hi, 0")
S(f"buffer_load_dwordx4 {vr(vY+8,4)}, v1, {SRD_WS}, s13 offen sc1")
S("s_mov_b32 exec_hi, -1")
vEX, vEN, vEB, vED = 56, 66, 76, 86
vOO = 96
S(f"""v_and_b32 v1, 15, v0
v_lshrrev_b32 v2, 4, v0
s_lshl_b32 s11, s{sRB2}, 6
s_lshl_b32 s12, s{sWAVE}, 4
s_add_u32 s11, s11, s12
v_add_u32 v{vOO}, s11, v1
v_mul_u32_u24 v{vOO}, 1280, v{vOO}
v_lshl_add_u32 v{vOO}, v2, 3, v{vOO}
s_mul_i32 s12, s{sCB2}, 160
v_add_u32 v{vOO}, s12, v{vOO}
v_lshl_add_u32 v97, v2, 3, s12
s_lshr_b32 s13, s11, 5
s_mul_i32 s13, s13, 40
s_mul_i32 s14, s{sCB2}, 5
s_add_u32 s13, s13, s14
s_lshl_b32 s13, s13, 10
s_and_b32 s14, s11, 31
s_lshl_b32 s14, s14, 4
s_add_u32 s13, s13, s14
s_add_u32 s14, s13, 4096
v_lshlrev_b32 v98, 4, v1
v_lshrrev_b32 v99, 1, v2
v_lshl_add_u32 v98, v99, 9, v98
v_and_b32 v99, 1, v2
v_lshl_add_u32 v98, v99, 3, v98""")
for dt in range(5):
    S(f"buffer_load_dwordx2 {vr(vEX+2*dt,2)}, v{vOO}, {SRD_X}, 0 offen offset:{32*dt}")
    S(f"buffer_load_dwordx2 {vr(vEN+2*dt,2)}, v98, {SRD_WS}, s{13 if dt<4 else 14} offen offset:{1024*(dt%4)} sc1")
    S(f"global_load_dwordx2 {vr(vEB+2*dt,2)}, v97, {P(pB2)} offset:{32*dt}")
    S(f"global_load_dwordx2 {vr(vED+2*dt,2)}, v97, {P(pDSK)} offset:{32*dt}")
S(f"""s_mul_i32 s11, s{sWAVE}, 2560
s_add_u32 s11, s11, {L_YST}
v_lshl_add_u32 v100, v0, 4, s11
v_lshrrev_b32 v101, 2, v0
v_lshlrev_b32 v101, 5, v101
v_and_b32 v1, 3, v0
v_lshl_add_u32 v101, v1, 3, v101
v_add_u32 v101, s11, v101""")
S(f"ds_write_b128 v100, {vr(vY,4)}")
S(f"ds_write_b128 v100, {vr(vY+4,4)} offset:1024")
S("s_mov_b32 exec_hi, 0")
S(f"ds_write_b128 v100, {vr(vY+8,4)} offset:2048")
S("s_mov_b32 exec_hi, -1")
vYP = 44
for dt in range(5):
    S(f"ds_read_b64_tr_b16 {vr(108+2*dt,2)}, v101 offset:{512*dt}")
S("s_waitcnt lgkmcnt(0)")
S("s_barrier")
vPS = 120
for p in range(3):
    S(f"s_sub_u32 s11, s{sWAVE}, {p+1}\ns_and_b32 s11, s11, 3\ns_mul_i32 s11, s11, 20480\nv_add_u32 v{102+p}, s11, v{vHO}")
    for dt in range(5):
        S(f"ds_read_b128 {vr(vPS + 20*p + 4*dt, 4)}, v{102+p} offset:{p*5120 + dt*1024}")
vS = 180
S("s_mov_b32 s77, 0x00003f80\ns_mov_b32 s78, 0x3f800000")
for k in range(10):
    a = vS + 2*k
    S(f"""v_lshlrev_b32 v{a}, 16, v{vEN+k}
v_and_b32 v{a+1}, 0xffff0000, v{vEN+k}
v_lshlrev_b32 v200, 16, v{vED+k}
v_and_b32 v201, 0xffff0000, v{vED+k}
v_pk_mul_f32 v[{a}:{a+1}], v[{a}:{a+1}], v[200:201]
v_cvt_pk_bf16_f32 v{vEN+k}, v{a}, v{a+1}
v_lshlrev_b32 v200, 16, v{108+k}
v_and_b32 v201, 0xffff0000, v{108+k}
v_dot2_f32_bf16 v{a}, v{vEN+k}, s77, v200
v_dot2_f32_bf16 v{a+1}, v{vEN+k}, s78, v201
v_cvt_pk_bf16_f32 v{vEN+k}, v{a}, v{a+1}
v_lshlrev_b32 v{a}, 16, v{vEN+k}
v_and_b32 v{a+1}, 0xffff0000, v{vEN+k}""")
ac = vG2 + 20
for k in range(10):
    a = ac + 2*k
    for p in range(3):
        S(f"v_pk_add_f32 v[{a}:{a+1}], v[{a}:{a+1}], v[{vPS+20*p+2*k}:{vPS+20*p+2*k+1}]")
for k in range(10):
    a = ac + 2*k; t = 202 + 4*(k & 1)
    S(f"""v_cvt_pk_bf16_f32 v{t}, v{a}, v{a+1}
v_lshlrev_b32 v{a}, 16, v{vEB+k}
v_and_b32 v{a+1}, 0xffff0000, v{vEB+k}
v_dot2_f32_bf16 v{a}, v{t}, s77, v{a}
v_dot2_f32_bf16 v{a+1}, v{t}, s78, v{a+1}
v_cvt_pk_bf16_f32 v{t}, v{a}, v{a+1}
v_lshlrev_b32 v{a}, 16, v{t}
v_and_b32 v{a+1}, 0xffff0000, v{t}
v_mul_f32 v{t}, {f32(-LOG2E)}, v{a}
v_mul_f32 v{t+1}, {f32(-LOG2E)}, v{a+1}
v_exp_f32 v{t}, v{t}
v_exp_f32 v{t+1}, v{t+1}
v_add_f32 v{t}, 1.0, v{t}
v_add_f32 v{t+1}, 1.0, v{t+1}
v_rcp_f32 v{t}, v{t}
v_rcp_f32 v{t+1}, v{t+1}
v_pk_mul_f32 v[{a}:{a+1}], v[{a}:{a+1}], v[{t}:{t+1}]
v_cvt_pk_bf16_f32 v{t}, v{a}, v{a+1}
v_lshlrev_b32 v{a}, 16, v{t}
v_and_b32 v{a+1}, 0xffff0000, v{t}
v_pk_mul_f32 v[{a}:{a+1}], v[{a}:{a+1}], v[{vS+2*k}:{vS+2*k+1}]
v_cvt_pk_bf16_f32 v{t}, v{a}, v{a+1}
v_lshlrev_b32 v{a}, 16, v{vEX+k}
v_and_b32 v{a+1}, 0xffff0000, v{vEX+k}
v_dot2_f32_bf16 v{a}, v{t}, s77, v{a}
v_dot2_f32_bf16 v{a+1}, v{t}, s78, v{a+1}
v_cvt_pk_bf16_f32 v{vEX+k}, v{a}, v{a+1}""")
    if k & 1:
        S(f"buffer_store_dwordx2 {vr(vEX+k-1,2)}, v{vOO}, {SRD_OUT}, 0 offen offset:{32*(k//2)}")
stamp(S, 12)
if opt['stamps']:
    S(f"s_lshl_b32 s11, s{sWG}, 2\ns_add_u32 s11, s11, s{sWAVE}\ns_lshl_b32 s11, s11, 6\ns_add_u32 s11, s11, {STAMP}\nv_mov_b32 v1, 0")
    for k in range(4):
        for j in range(4): S(f"v_mov_b32 v{4+j}, s{84+4*k+j}")
        S(f"buffer_store_dwordx4 v[4:7], v1, {SRD_WS}, s11 offen offset:{16*k}")
S.label(".Lend")
S("s_endpgm")

body = finalize(S)
hdr = open('cdna_kernels/' + NAME + '.s.ref').read().split('\n')
out = []
for l in hdr:
    if l.startswith('; @launch'): out.append(f"; @launch grid=(256,1,1) block=(256,1,1) lds={LDS_BYTES}"); break
    out.append(l)
out.append(f""".amdgcn_target "amdgcn-amd-amdhsa--gfx950"
.text
.globl {NAME}_kernel
.p2align 8
.type {NAME}_kernel,@function
{NAME}_kernel:""")
out += body
out.append(f""".p2align 8
.fill 8448, 4, 0xbf800000
.section .rodata,"a"
.p2align 6
.amdhsa_kernel {NAME}_kernel
  .amdhsa_next_free_vgpr 512
  .amdhsa_next_free_sgpr 102
  .amdhsa_accum_offset 256
  .amdhsa_group_segment_fixed_size 0
  .amdhsa_kernarg_size 120
  .amdhsa_user_sgpr_count 2
  .amdhsa_user_sgpr_kernarg_segment_ptr 1
  .amdhsa_system_sgpr_workgroup_id_x 1
.end_amdhsa_kernel""")
print('\n'.join(out))
```

```python
import re

REG_RE = re.compile(r'^(-|\|)?(abs\()?([vas])(\d+|\[(\d+):(\d+)\])\)?\|?$')

def parse_regs(tok):
    tok = tok.strip()
    if tok in ('vcc', 'exec', 'm0', 'scc'):
        return [tok]
    if tok in ('vcc_lo', 'vcc_hi'): return ['vcc']
    if tok in ('exec_lo', 'exec_hi'): return ['exec']
    m = REG_RE.match(tok)
    if not m: return []
    k = m.group(3)
    if m.group(5) is not None:
        return [(k, i) for i in range(int(m.group(5)), int(m.group(6)) + 1)]
    return [(k, int(m.group(4)))]

TRANS = ('v_exp_f32', 'v_log_f32', 'v_rcp_f32', 'v_rsq_f32', 'v_sqrt_f32', 'v_sin_f32', 'v_cos_f32')

class Ins:
    __slots__ = ('text', 'mn', 'kind', 'dst', 'src', 'tok', 'need', 'ops', 'srcC', 'srcAB', 'passes', 'dpp', 'wide', 'data', 'ldsdma', 'cost')
    def __init__(self, text):
        self.text = text
        self.tok = None; self.need = []
        self.dst = []; self.src = []; self.srcC = []; self.srcAB = []; self.passes = 0
        self.dpp = False; self.wide = False; self.data = []; self.ldsdma = False
        t = text.split(';')[0].strip()
        if t.endswith(':'):
            self.kind = 'label'; self.mn = t; return
        parts = t.split(None, 1)
        mn = parts[0]; self.mn = mn
        rest = parts[1] if len(parts) > 1 else ''
        ops = []; depth = 0; cur = ''
        for ch in rest:
            if ch in '[(': depth += 1
            if ch in '])': depth -= 1
            if ch == ',' and depth == 0:
                ops.append(cur.strip()); cur = ''
            else: cur += ch
        if cur.strip(): ops.append(cur.strip())
        mods = ''
        if ops:
            sp = ops[-1].split(None, 1)
            ops[-1] = sp[0]
            if len(sp) > 1: mods = sp[1]
        self.ops = ops
        R = [parse_regs(o) for o in ops]
        flat = lambda L: [r for x in L for r in x]
        if mn.startswith('v_mfma'):
            self.kind = 'mfma'
            self.dst = R[0]; self.srcAB = R[1] + R[2]; self.srcC = R[3]; self.src = self.srcAB + self.srcC
            self.passes = 8 if '32x32x16' in mn else 4
            assert ('32x32x16' in mn) or ('16x16x32' in mn)
        elif mn.startswith('v_'):
            self.kind = 'trans' if mn.replace('_e32', '').replace('_e64', '') in TRANS else 'valu'
            if mn.startswith('v_cmp'):
                self.dst = R[0]; self.src = flat(R[1:])
                if mn.startswith('v_cmpx'): self.dst = self.dst + ['exec']
            elif mn.startswith('v_permlane') and 'swap' in mn:
                self.dst = R[0] + R[1]; self.src = R[0] + R[1]
            elif '_co_' in mn:
                self.dst = R[0] + R[1]; self.src = flat(R[2:])
            elif mn == 'v_nop':
                pass
            else:
                self.dst = R[0]; self.src = flat(R[1:])
                if mn.startswith(('v_fmac', 'v_dot2c', 'v_writelane', 'v_pk_fmac')): self.src = self.src + R[0]
                if mn.startswith('v_cndmask') and len(ops) == 3: self.src = self.src + ['vcc']
            if 'dpp' in mn or 'row_' in mods or 'quad_perm' in mods or 'wave_' in mods:
                self.dpp = True
                self.src = self.src + R[0]
            if 'sdwa' in mn: self.src = self.src + R[0]
        elif mn.startswith('ds_'):
            self.kind = 'ds'
            if mn.startswith(('ds_read', 'ds_bpermute', 'ds_permute', 'ds_swizzle')) or '_rtn' in mn:
                self.dst = R[0]; self.src = flat(R[1:])
            else:
                self.src = flat(R)
            if 'addtid' in mn: self.src = self.src + ['m0']; self.ldsdma = True
        elif mn.startswith(('buffer_', 'global_')):
            self.kind = 'vmem'
            lds = re.search(r'\blds\b', mods) is not None or '_lds_' in mn
            if lds:
                self.ldsdma = True; self.src = flat(R) + ['m0']
            elif '_load' in mn:
                self.dst = R[0]; self.src = flat(R[1:])
                if 'd16' in mn: self.src = self.src + R[0]
            elif mn in ('buffer_inv', 'buffer_wbl2'):
                pass
            else:
                self.src = flat(R)
                if mn.startswith('buffer_'): self.data = R[0]
                else: self.data = R[1]
                self.wide = ('x4' in mn) or ('x3' in mn)
                if 'atomic' in mn and re.search(r'\bsc0\b', mods): self.dst = self.data
        elif mn.startswith(('s_load', 's_buffer_load', 's_memtime', 's_memrealtime')):
            self.kind = 'smem'; self.dst = R[0]; self.src = flat(R[1:])
        elif mn.startswith(('s_cbranch', 's_branch', 's_setpc', 's_swappc', 's_endpgm')):
            self.kind = 'branch'; self.src = flat(R)
        elif mn in ('s_waitcnt', 's_nop', 's_barrier', 's_sleep', 's_setprio'):
            self.kind = 'other'
        elif mn.startswith('s_'):
            self.kind = 'salu'
            if mn.startswith(('s_cmp', 's_bitcmp')):
                self.src = flat(R)
            else:
                self.dst = R[0]; self.src = flat(R[1:])
                if 'saveexec' in mn: self.dst = self.dst + ['exec']
        else:
            raise ValueError("unknown instr: " + text)

class Tok:
    def __init__(self, cls): self.cls = cls; self.done = False

class Stream:
    def __init__(self): self.l = []
    def __call__(self, text, need=None, tok=False):
        for line in text.split('\n'):
            line = line.strip()
            if not line or line.startswith(';'): continue
            i = Ins(line)
            if need: i.need = list(need) if isinstance(need, (list, tuple)) else [need]; need = None
            if i.kind in ('vmem', 'ds'):
                i.tok = Tok('vm' if i.kind == 'vmem' else 'lgkm')
            self.l.append(i)
        return self.l[-1].tok
    def junk(self, text):
        t = self(text); self.l[-1].dst = []; return t
    def wait(self, *toks):
        i = Ins('s_nop 0'); i.kind = 'waitonly'; i.need = [t for t in toks if t is not None]
        self.l.append(i)
    def ext(self, other):
        self.l.extend(other.l if isinstance(other, Stream) else other)
    def label(self, name): self(name + ':')
    def pseudo(self, kind, name=None):
        i = Ins('s_nop 0'); i.kind = kind; i.text = name; self.l.append(i)
    def save(self, name): self.pseudo('save', name)
    def restore(self, name): self.pseudo('restore', name)
    def assume(self, regs):
        i = Ins('s_nop 0'); i.kind = 'assume'; i.dst = list(regs); self.l.append(i)
    def endpath(self, keep=()):
        self.pseudo('endpath'); self.l[-1].dst = list(keep)
    def endpath_old(self): self.pseudo('endpath')

def interleave(main, fillers, per_gap, start=0, is_anchor=lambda i: i.kind == 'mfma', flush=True):
    out = Stream(); f = list(fillers.l); n = 0; acc = 0.0
    for ins in main.l:
        out.l.append(ins)
        if is_anchor(ins):
            if n >= start:
                acc += per_gap
                while acc >= 1.0 and f:
                    x = f.pop(0); out.l.append(x)
                    if x.kind != 'waitonly': acc -= 1.0
                if not f: acc = 0.0
            n += 1
    if flush: out.l.extend(f); f = []
    rest = Stream(); rest.l = f
    return (out, rest) if not flush else out

def sprinkle(main, groups, every, start=0):
    out = Stream(); g = list(groups); n = 0; nxt = start + every
    for ins in main.l:
        out.l.append(ins)
        if ins.kind in ('waitonly', 'label', 'save', 'restore', 'endpath', 'assume'): continue
        n += 1
        if n >= nxt and g:
            out.ext(g.pop(0)); nxt += every
    for x in g: out.ext(x)
    return out

def weave(main, plan, is_anchor=lambda i: i.kind == 'mfma'):
    out = Stream(); n = 0; used = set()
    for ins in main.l:
        out.l.append(ins)
        if is_anchor(ins):
            if n in plan: out.ext(plan[n]); used.add(n)
            n += 1
    for k in sorted(plan):
        if k not in used: out.ext(plan[k])
    return out

def spread(fill, first, last, plan=None):
    plan = {} if plan is None else plan
    L = list(fill.l); real = [i for i in L if i.kind != 'waitonly']
    n = last - first + 1; tot = len(real); k = 0
    for ins in L:
        a = first + min(n - 1, (k * n) // max(tot, 1))
        plan.setdefault(a, Stream()).l.append(ins)
        if ins.kind != 'waitonly': k += 1
    return plan

def finalize(stream, verbose=False):
    out = []
    q = {'vm': [], 'lgkm': []}
    saved = {}; lost = set(); issued = set()
    def emit_wait(vm=None, lg=None):
        parts = []
        if vm is not None: parts.append(f'vmcnt({min(vm,63)})')
        if lg is not None: parts.append(f'lgkmcnt({min(lg,15)})')
        out.append(Ins('s_waitcnt ' + ' '.join(parts)))
    def retire(cls, n):
        L = q[cls]
        while len(L) > n:
            L.pop(0)
    for ins in stream.l:
        if ins.kind == 'label':
            out.append(ins); continue
        if ins.kind == 'assume':
            q['vm'].append((None, set(ins.dst), False)); continue
        if ins.kind == 'save':
            saved[ins.text] = {c: list(q[c]) for c in q}; continue
        if ins.kind == 'restore':
            for c in q: q[c][:] = list(saved[ins.text][c])
            continue
        if ins.kind == 'endpath':
            for cls in q:
                pend = [x for x in q[cls] if x[1] - set(ins.dst)]
                if ins.dst and cls == 'vm': assert q[cls][-1][1] == set(ins.dst), "kept load must be the youngest"
                if pend:
                    raise RuntimeError(f"pending loads at endpath: {[(sorted(map(str,x[1])))[:4] for x in pend]}")
                for x in q[cls]:
                    if x[0] is not None: lost.add(id(x[0]))
                q[cls][:] = []
            continue
        if ins.mn == 's_waitcnt' and ins.kind == 'other':
            m = re.search(r'vmcnt\((\d+)\)', ins.text)
            if m: retire('vm', int(m.group(1)))
            m = re.search(r'lgkmcnt\((\d+)\)', ins.text)
            if m: retire('lgkm', int(m.group(1)))
            out.append(ins); continue
        need = {'vm': None, 'lgkm': None}
        touched = set(ins.src) | set(ins.dst)
        for cls in q:
            L = q[cls]
            idx = -1
            for k, (tok, dst, sm) in enumerate(L):
                if (dst & touched) or (tok is not None and tok in ins.need):
                    idx = k
            if idx >= 0:
                n = len(L) - 1 - idx
                if cls == 'lgkm' and any(x[2] for x in L): n = 0
                need[cls] = n
        for t in ins.need:
            if id(t) not in issued or (id(t) in lost and not any(t is x[0] for x in q[t.cls])):
                raise RuntimeError("token not in flight (issued later or lost): " + ins.text)
        if need['vm'] is not None or need['lgkm'] is not None:
            emit_wait(need['vm'], need['lgkm'])
            if need['vm'] is not None: retire('vm', min(need['vm'], 63))
            if need['lgkm'] is not None: retire('lgkm', min(need['lgkm'], 15))
        if ins.kind == 'waitonly': continue
        out.append(ins)
        if ins.tok is not None: issued.add(id(ins.tok))
        if ins.kind == 'vmem':
            q['vm'].append((ins.tok, set(ins.dst), False))
            if len(q['vm']) > 63: raise RuntimeError("more than 63 vmem outstanding")
        elif ins.kind == 'ds': q['lgkm'].append((ins.tok, set(ins.dst), False))
        elif ins.kind == 'smem': q['lgkm'].append((None, set(ins.dst), True))
    res = []
    nnop = 0
    def states(i):
        if i.kind == 'label': return 0
        if i.mn == 's_nop': return int(i.ops[0], 0) + 1
        return 1
    isv = lambda r: isinstance(r, tuple) and r[0] in 'va'
    iss = lambda r: (isinstance(r, tuple) and r[0] == 's') or r == 'vcc'
    for ins in out:
        req = 0
        if ins.kind not in ('label',):
            dist = 0
            S = set(ins.src); D = set(ins.dst)
            for p in reversed(res):
                if dist >= 20: break
                if p.kind == 'label':
                    continue
                need = 0
                PD = set(p.dst)
                pv = p.kind in ('valu', 'trans')
                cv = ins.kind in ('valu', 'trans')
                if pv and ins.kind == 'mfma' and (PD & S): need = max(need, 2)
                if pv and 'exec' in PD and ins.kind == 'mfma': need = max(need, 4)
                if p.kind == 'mfma':
                    big = {4: 8, 8: 12}[p.passes]
                    if ins.kind == 'mfma':
                        if PD & set(ins.srcAB): need = max(need, big)
                        if PD & set(ins.srcC):
                            if list(p.dst) == list(ins.srcC) and p.passes == ins.passes: pass
                            else: need = max(need, big - 2)
                        elif PD & D: need = max(need, big - 2)
                    elif ins.kind in ('valu', 'trans', 'ds', 'vmem'):
                        if PD & (S | D): need = max(need, big)
                        if (set(p.srcC) & D): need = max(need, {4: 3, 8: 7}[p.passes])
                if p.kind == 'trans' and cv and (PD & S): need = max(need, 1)
                if p.mn.startswith('v_dot') and (PD & (S | D)): need = max(need, 3)
                if pv and ins.dpp and any(isv(r) for r in PD & S): need = max(need, 2)
                if pv and 'exec' in PD and ins.dpp: need = max(need, 5)
                if pv and ins.mn.startswith('v_permlane') and (PD & S): need = max(need, 2)
                if pv and ins.mn.startswith(('v_readlane', 'v_readfirstlane')) and any(isv(r) for r in PD & S): need = max(need, 1)
                if pv and 'exec' in PD and ins.mn.startswith(('v_readlane', 'v_readfirstlane', 'v_writelane', 'v_permlane')): need = max(need, 4)
                if pv and any(iss(r) for r in PD & S):
                    if cv: need = max(need, 4 if ins.mn.startswith(('v_readlane', 'v_writelane')) else 2)
                    if ins.kind == 'vmem': need = max(need, 5)
                    if ins.kind in ('salu', 'branch'): need = max(need, 1)
                if pv and 'vcc' in PD and ins.mn.startswith('s_cbranch_vcc'): need = max(need, 1)
                if p.kind == 'salu' and 'm0' in PD and ins.ldsdma: need = max(need, 1)
                if p.kind == 'vmem' and p.wide and (set(p.data) & D): need = max(need, 2)
                if pv and ('sdwa' in p.mn or 'op_sel' in p.text) and not p.mn.startswith('v_pk') and cv and (PD & (S | D)): need = max(need, 1)
                if need - dist > req: req = need - dist
                dist += states(p)
        while req > 0:
            k = min(req, 16)
            res.append(Ins(f's_nop {k-1}')); req -= k; nnop += 1
        res.append(ins)
    if verbose: print(f"; finalize: {len(res)} instrs, {nnop} nops inserted")
    return [('' if i.kind == 'label' else '    ') + i.text for i in res]

import subprocess, tempfile, os
def align_pass(lines, head, minrun=5):
    src = head + '\n' + '\n'.join(lines) + '\n'
    with tempfile.TemporaryDirectory() as d:
        open(d + '/a.s', 'w').write(src)
        r = subprocess.run(['clang', '-x', 'assembler', '-target', 'amdgcn-amd-amdhsa', '-mcpu=gfx950', '-c', d + '/a.s', '-o', d + '/a.o'], capture_output=True, text=True)
        assert r.returncode == 0, r.stderr
        dis = subprocess.run(['llvm-objdump', '-d', '--mcpu=gfx950', d + '/a.o'], capture_output=True, text=True).stdout
    sizes = []
    for l in dis.splitlines():
        m = re.search(r'// [0-9A-F]{12}: ((?:[0-9A-F]{8} ?)+)', l)
        if m: sizes.append(4 * len(m.group(1).split()))
    idx = [i for i, l in enumerate(lines) if not l.strip().endswith(':')]
    assert len(idx) == len(sizes), (len(idx), len(sizes))
    size = dict(zip(idx, sizes))
    out = []; off = 0; prev = None; nfix = [0, 0]
    for pos, i in enumerate(range(len(lines))):
        if i not in size:
            out.append(lines[i]); prev = None; continue
        if size[i] == 8 and off % 8 == 4:
            run = 0; j = i
            while j < len(lines) and (j not in size or size[j] == 8):
                if j in size: run += 1
                j += 1
            if run >= minrun:
                mn = out[prev].split()[0] if prev is not None else ''
                if prev is not None and mn.startswith('v_') and psize == 4 and not mn.endswith(('_e64', '_dpp', '_sdwa')) and not mn.startswith(('v_readfirstlane', 'v_permlane', 'v_nop', 'v_accvgpr')):
                    out[prev] = out[prev].replace(mn, mn + '_e64', 1); nfix[0] += 1
                else:
                    out.append('    s_nop 0'); nfix[1] += 1
                off += 4
        out.append(lines[i]); prev = len(out) - 1; psize = size[i]; off += size[i]
    return out, off, nfix
```

```python
import sys, math, struct
sys.path.insert(0, 'gen')
from emit import *

NAME = "recurrent_scan__ssm_conv_s4d__dense_activation_squared_relu__prompt"
opt = dict(stamps=0, spin=20000, code_kb=36, g1pre=10, hpre=12, align=1, flpad=2, ychk=50, yst=30, t64=0, hchk=20, tlb=1)
for a in sys.argv[1:]:
    k, v = a.split('='); opt[k] = int(v)

def f32(x): return struct.unpack('<I', struct.pack('<f', x))[0]
def vr(b, n=1): return f"v{b}" if n == 1 else f"v[{b}:{b+n-1}]"
def ar(b, n=1): return f"a{b}" if n == 1 else f"a[{b}:{b+n-1}]"
def vp(b): return f"v[{b}:{b+1}]"

XNA = 0; XNB = 0x400000; HB = 0x800000; YT = 0x1000000
FX = 0x1500000; FH = FX + 0x1000; FY = FX + 0x3000
STAMP = 0x1600000
XAS = 65536; XBS = 8192; HBS = 64; YS = 8192
L_W = 40960
L_SCR = 0; SCR_W = 8704; TROW = 272
L_K = 0; KSLOT = 8512; OOFF = 4284
L_U = L_K + 3 * KSLOT; USLOT = 4352
LNROW = 1344
W2W = 30720
LDS_BYTES = 163840
assert L_U + 3 * USLOT <= L_W and 4 * SCR_W <= L_W and 4 * LNROW <= SCR_W
sWG, sWAVE, sRB, sCB, sRB2, sCB2, sCBASE, sPAR, sNONCE = 2, 3, 4, 5, 6, 7, 8, 9, 10
P = lambda k: f"s[{16+2*k}:{17+2*k}]"
pX, pLOGA, pAIM, pCR, pCI, pLOGDT, pDSK, pBX, pW1, pB1, pW2, pB2, pOUT, pDBG, pWS = range(15)
SRD_X, SRD_W1, SRD_W2, SRD_WS, SRD_OUT = "s[48:51]", "s[52:55]", "s[56:59]", "s[60:63]", "s[64:67]"
sYB, sYF, sYF2 = 46, 47, 100
sRG = 82
sJ, sXH = 101, 83
SPIN_MAX = opt['spin']
JUNK = "a255"
LOG2E = 1.4426950408889634

S = Stream()
COLD = Stream()
stamp_names = []
SKIP = set(('g2_p1', 'bar2', 'cv_b0')) if opt.get('kloop') else set()
if opt.get('early'): SKIP = set('g1_1 g1_20 g1 g1ep cv_b0 cv_b1 cv_b2 cv_b3 conv g2_p0 g2_p1 g2_p2 g2 e_bar exp'.split())
else: SKIP |= set('ln_a ln_b ln_c ln_d k_go k_s0 k_s1 k_s2 k_s3 k_s4 k_s5 k_s6'.split())
def stamp(s, name):
    if not opt['stamps']: return
    if name in SKIP: return
    if name not in stamp_names: stamp_names.append(name)
    idx = stamp_names.index(name)
    assert idx < 28
    s("s_memtime s[68:69]")
    s("s_waitcnt lgkmcnt(0)")
    if idx < 16: s(f"s_mov_b32 s{84+idx}, s68")
    else: s(f"v_accvgpr_write_b32 a{240+idx-16}, s68")

def bf16_round(s, dst, src):
    s(f"v_cvt_pk_bf16_f32 {dst}, {src}, {src}")
    s(f"v_and_b32 {dst}, 0xffff0000, {dst}")

LDN = {1: 'dword', 2: 'dwordx2', 4: 'dwordx4'}
def flag_load(s, loads, nonce=None):
    for vd, n, vo, imm in loads:
        s(f"buffer_load_{LDN[n]} {vr(vd, n)}, v{vo}, {SRD_WS}, 0 offen offset:{imm} sc0 sc1")
    if nonce: s(f"global_load_dword v{nonce[0]}, v{nonce[1]}, {P(pDBG)} sc0 sc1")
def flag_test(s, loads, nonce=None):
    regs = [vd + k for vd, n, vo, imm in loads for k in range(n)]
    if nonce:
        s(f"v_readfirstlane_b32 s{sNONCE}, v{nonce[0]}")
    for r in regs: s(f"v_xor_b32 v{r}, s{sNONCE}, v{r}")
    for r in regs[1:]: s(f"v_or_b32 v{regs[0]}, v{regs[0]}, v{r}")
    if nonce:
        s(f"v_cmp_eq_u32 vcc, 0, v{nonce[0]}")
        s(f"v_cndmask_b32 v{regs[0]}, v{regs[0]}, 1, vcc")
    s(f"v_cmp_ne_u32 vcc, 0, v{regs[0]}")
uid = [0]
def flag_check(s, loads, nonce=None):
    uid[0] += 1; L = f".Lc{uid[0]}"
    flag_test(s, loads, nonce)
    s(f"s_cbranch_vccnz {L}s")
    s.label(f"{L}b")
    c = COLD
    c.label(f"{L}s")
    c("s_mov_b32 s70, 0")
    c.label(f"{L}l")
    c("s_sleep 2")
    flag_load(c, loads, nonce)
    c("s_waitcnt vmcnt(0)")
    flag_test(c, loads, nonce)
    c(f"s_add_u32 s70, s70, 1\ns_cmp_gt_u32 s70, {SPIN_MAX}\ns_cbranch_scc1 {L}x\ns_cbranch_vccnz {L}l")
    c.label(f"{L}x")
    c(f"s_nop 4\ns_branch {L}b")

if opt['stamps']:
    S("s_memtime s[84:85]"); stamp_names.append('start')
S(f"s_cmp_ge_u32 s{sWG}, 256")
S("s_cbranch_scc1 .Lend")
S("s_getpc_b64 s[72:73]")
S("v_lshlrev_b32 v1, 3, v0")
S("s_load_dwordx16 s[16:31], s[0:1], 0")
S.junk(f"global_load_dword {JUNK}, v1, s[72:73] offset:128")
S("s_load_dwordx8 s[32:39], s[0:1], 64")
S("s_load_dwordx4 s[40:43], s[0:1], 96")
S("s_load_dwordx2 s[44:45], s[0:1], 112")
vXO = 90
S(f"""s_and_b32 s11, s{sWG}, 7
s_lshr_b32 s{sJ}, s{sWG}, 3
s_lshl_b32 s{sRG}, s11, 5
s_add_u32 s{sRG}, s{sRG}, s{sJ}
v_lshrrev_b32 v2, 4, v0
v_lshl_add_u32 v2, s{sRG}, 3, v2
v_mul_u32_u24 v2, 1280, v2
v_and_b32 v3, 15, v0
v_lshl_add_u32 v{vXO}, v3, 4, v2
v_lshrrev_b32 v3, 6, v0
v_and_b32 v0, 63, v0
v_readfirstlane_b32 s{sWAVE}, v3
s_mul_i32 s12, s{sJ}, {opt['code_kb'] * 32}
v_lshl_add_u32 v1, v0, 5, s12
s_cmp_lg_u32 s{sWAVE}, 3
s_cbranch_scc1 .Lnopf""")
S.junk(f"global_load_dword {JUNK}, v1, s[72:73]")
S.label(".Lnopf")
S(f"""s_cmp_ge_u32 s{sWAVE}, 2
s_waitcnt lgkmcnt(0)""")
vX = 20
S("s_cbranch_scc1 .Lnox")
for j in range(5):
    S(f"global_load_dwordx4 {vr(vX+4*j,4)}, v{vXO}, {P(pX)} offset:{256*j}")
S.label(".Lnox")
stamp(S, 'x_iss')
vPO = 96; vPAR = 100
S(f"""s_and_b32 s{sPAR}, s{sJ}, 1
s_lshl_b32 s{sCBASE}, s11, 4
s_lshr_b32 s15, s{sJ}, 1
s_add_u32 s{sCBASE}, s{sCBASE}, s15
s_mul_i32 s{sCBASE}, s{sCBASE}, 5
s_lshl_b32 s15, s{sPAR}, 1
s_add_u32 s{sCBASE}, s{sCBASE}, s15
s_cmp_eq_u32 s{sWAVE}, 3
s_cselect_b32 s12, 0, s{sWAVE}
s_movk_i32 s13, 128
s_cselect_b32 s13, 384, s13
s_cselect_b32 s14, 256, 0
s_cselect_b32 s70, 2, 0
s_add_u32 s12, s12, s{sCBASE}
s_mul_i32 s15, s12, 384
s_add_u32 s15, s15, s14
s_lshl_b32 s12, s12, 1
v_lshl_add_u32 v{vPO}, v0, 1, s15
v_add_u32 v{vPO+1}, s13, v{vPO}
v_add_u32 v{vPO+2}, s13, v{vPO+1}
v_mov_b32 v92, s12
v_add_u32 v93, s70, v92
v_add_u32 v94, s70, v93""")
for u in range(3):
    for k, p in enumerate((pLOGA, pAIM, pCR, pCI)):
        S(f"global_load_ushort v{vPAR+5*u+k}, v{vPO+u}, {P(p)}")
    S(f"global_load_ushort v{vPAR+5*u+4}, v{92+u}, {P(pLOGDT)}")
stamp(S, 'issued')
if opt['stamps']:
    S("s_memrealtime s[68:69]\ns_waitcnt lgkmcnt(0)\nv_accvgpr_write_b32 a252, s68")
def srd(name, p, nbytes):
    b = int(name[2:name.index(':')])
    S(f"s_mov_b32 s{b}, s{16+2*p}\ns_mov_b32 s{b+1}, s{17+2*p}\ns_mov_b32 s{b+2}, {nbytes}\ns_mov_b32 s{b+3}, 0x20000")
srd(SRD_W1, pW1, 640*1536*2)
srd(SRD_W2, pW2, 640*1536*2)
srd(SRD_WS, pWS, 0x10000000)
srd(SRD_X, pX, 2048*640*2)
srd(SRD_OUT, pOUT, 2048*640*2)
S(f"""s_lshr_b32 s13, s11, 1
s_and_b32 s{sXH}, s11, 1
s_lshl_b32 s{sRB}, s13, 2
s_and_b32 s15, s{sJ}, 3
s_add_u32 s{sRB}, s{sRB}, s15
s_lshl_b32 s{sCB}, s{sXH}, 3
s_lshr_b32 s15, s{sJ}, 2
s_add_u32 s{sCB}, s{sCB}, s15
s_lshl_b32 s{sRB2}, s13, 3
s_and_b32 s15, s{sJ}, 7
s_add_u32 s{sRB2}, s{sRB2}, s15
s_lshl_b32 s{sCB2}, s{sXH}, 2
s_lshr_b32 s15, s{sJ}, 3
s_add_u32 s{sCB2}, s{sCB2}, s15
s_mov_b32 s{sNONCE}, 0
s_mul_i32 s78, s{sWAVE}, {SCR_W}
v_mov_b32 v241, 0
s_cmp_ge_u32 s{sWAVE}, 2""")
S.save('role0')
S("s_cbranch_scc1 .Lrole_b")
S(f"""v_lshrrev_b32 v5, 4, v0
v_mul_u32_u24 v1, {LNROW}, v5
v_and_b32 v4, 15, v0
v_lshl_add_u32 v1, v4, 4, v1
v_add_u32 v1, s78, v1
v_and_b32 v9, 3, v0
v_mul_u32_u24 v4, {LNROW}, v9
v_lshrrev_b32 v6, 2, v0
v_lshl_add_u32 v4, v6, 4, v4
v_add_u32 v4, s78, v4
v_lshrrev_b32 v7, 3, v0
v_lshlrev_b32 v7, 10, v7
v_and_b32 v6, 1, v6
v_lshl_add_u32 v7, v6, 9, v7
v_lshl_add_u32 v7, v9, 4, v7
v_bfe_u32 v6, v0, 2, 2
v_mul_u32_u24 v6, {LNROW}, v6
v_lshl_add_u32 v6, v9, 3, v6
v_lshl_add_u32 v6, v5, 5, v6
v_add_u32 v6, s78, v6
v_lshlrev_b32 v8, 3, v0
v_mov_b32 v88, 0
s_lshr_b32 s12, s{sRG}, 2
s_mul_i32 s12, s12, {XAS}
s_and_b32 s13, s{sRG}, 3
s_lshl_b32 s13, s13, 7
s_add_u32 s12, s12, s13
s_lshl_b32 s13, s{sWAVE}, 6
s_add_u32 s12, s12, s13
s_lshl_b32 s13, s{sRG}, 1
s_add_u32 s13, s13, s{sWAVE}
s_mul_i32 s13, s13, {XBS}
s_add_u32 s13, s13, {XNB}""")
vF = 40
for k in range(20):
    S(f"v_lshlrev_b32 v{vF+2*k}, 16, v{vX+k}")
    S(f"v_and_b32 v{vF+2*k+1}, 0xffff0000, v{vX+k}")
    if k == 3:
        S(f"v_pk_add_f32 v[80:81], {vp(vF)}, {vp(vF+2)}")
        S(f"v_pk_add_f32 v[82:83], {vp(vF+4)}, {vp(vF+6)}")
    elif k > 3:
        a = 80 + 2 * (k & 1)
        S(f"v_pk_add_f32 {vp(a)}, {vp(a)}, {vp(vF+2*k)}")
stamp(S, 'x_in')
S("v_pk_add_f32 v[80:81], v[80:81], v[82:83]")
S("v_add_f32 v80, v80, v81")
def rowsum(s, r, t):
    for sh in (8, 4, 2, 1):
        s(f"v_add_f32_dpp v{r}, v{r}, v{r} row_ror:{sh} row_mask:0xf bank_mask:0xf")
rowsum(S, 80, 81)
stamp(S, 'ln_a')
S(f"v_mul_f32 v84, {f32(-1.0/640)}, v80")
bf16_round(S, "v80", "v84")
S(f"global_load_dword v89, v88, {P(pDBG)} sc0 sc1")
S("v_mov_b32 v81, v80")
S("v_sub_f32 v84, v84, v80")
for k in range(20):
    a = 82 + 4 * (k & 1)
    S(f"v_pk_add_f32 {vp(vF+2*k)}, {vp(vF+2*k)}, v[80:81]")
    S(f"v_cvt_pk_bf16_f32 v{vX+k}, v{vF+2*k}, v{vF+2*k+1}")
    if k < 2: S(f"v_pk_mul_f32 {vp(a)}, {vp(vF+2*k)}, {vp(vF+2*k)}")
    else: S(f"v_pk_fma_f32 {vp(a)}, {vp(vF+2*k)}, {vp(vF+2*k)}, {vp(a)}")
S("v_pk_add_f32 v[82:83], v[82:83], v[86:87]")
S("v_add_f32 v82, v82, v83")
R = Stream(); rowsum(R, 82, 83)
R(f"v_mul_f32 v84, v84, v84\nv_mul_f32 v82, {f32(1.0/640)}, v82\nv_sub_f32 v82, v82, v84\nv_max_f32 v82, 0, v82")
bf16_round(R, "v82", "v82")
R(f"v_add_f32 v82, {f32(1e-5)}, v82")
bf16_round(R, "v82", "v82")
R("v_sqrt_f32 v82, v82")
bf16_round(R, "v82", "v82")
R("v_rcp_f32 v82, v82")
U = []
for k in range(20):
    g = Stream(); g(f"v_lshlrev_b32 v{vF+2*k}, 16, v{vX+k}\nv_and_b32 v{vF+2*k+1}, 0xffff0000, v{vX+k}"); U.append(g)
S.ext(sprinkle(R, U, 1))
S("v_mov_b32 v83, v82")
stamp(S, 'ln_b')
for j in range(5):
    for k in range(4*j, 4*j+4):
        S(f"v_pk_mul_f32 {vp(vF+2*k)}, {vp(vF+2*k)}, v[82:83]")
    for k in range(4*j, 4*j+4):
        S(f"v_cvt_pk_bf16_f32 v{vX+k}, v{vF+2*k}, v{vF+2*k+1}")
    S(f"ds_write_b128 v1, {vr(vX+4*j,4)} offset:{256*j}")
for j in range(5):
    S(f"ds_read_b128 {vr(60+4*j,4)}, v4 offset:{256*j}")
for it in range(10):
    S(f"ds_read_b64_tr_b16 {vr(40+2*it,2)}, v6 offset:{128*it}")
stamp(S, 'ln_c')
for j in range(5):
    S(f"buffer_store_dwordx4 {vr(60+4*j,4)}, v7, {SRD_WS}, s12 offen" + ("" if opt.get('plainst') else " sc0 sc1"))
    if j < 4: S("s_add_u32 s12, s12, 8192")
for it in range(10):
    S(f"buffer_store_dwordx2 {vr(40+2*it,2)}, v8, {SRD_WS}, s13 offen offset:{512*(it%8)}" + ("" if opt.get('plainst') else " sc0 sc1"))
    if it == 7: S("s_add_u32 s13, s13, 4096")
stamp(S, 'ln_d')
S(f"v_readfirstlane_b32 s{sNONCE}, v89")
stamp(S, 'ln_st')
S.endpath()
S("s_branch .Lkgen")
S.label(".Lrole_b")
S.restore('role0')
if opt['tlb']:
    S(f"""v_min_u32 v10, 10, v0
v_lshlrev_b32 v10, 21, v10
v_and_b32 v11, 0x200000, v10
v_add_u32 v10, 0x1fff80, v10
v_mov_b32 v12, 0x80
s_cmp_eq_u32 s{sWAVE}, 3
s_cbranch_scc1 .Ltlb3""")
    for vo, p_ in ((10, pWS), (12, pW2), (12, pW1), (12, pDBG)):
        S.junk(f"global_load_dword {JUNK}, v{vo}, {P(p_)}")
    S("s_branch .Ltlbd")
    S.label(".Ltlb3")
    for vo, p_ in ((11, pOUT), (12, pB1), (12, pB2), (12, pDSK)):
        S.junk(f"global_load_dword {JUNK}, v{vo}, {P(p_)}"); S.l[-1].kind = 'other'
    S.label(".Ltlbd")
S(f"""s_sub_u32 s11, s{sWAVE}, 2
s_or_b32 s12, s{sWG}, s11
s_cmp_lg_u32 s12, 0
s_cbranch_scc1 .Lnononce
s_memrealtime s[68:69]
s_waitcnt lgkmcnt(0)
s_lshl_b32 s68, s68, 1
s_or_b32 s68, s68, 1
v_mov_b32 v1, s68
v_mov_b32 v2, 0
global_store_dword v2, v1, {P(pDBG)} sc0 sc1""")
S.label(".Lnononce")
vTW2, vTW1 = 241, 242
S(f"""s_lshr_b32 s12, s{sJ}, 3
s_mul_i32 s12, s12, 384
s_and_b32 s13, s{sJ}, 7
s_mul_i32 s13, s13, 24
s_add_u32 s12, s12, s13
s_mul_i32 s13, s11, 12
s_add_u32 s12, s12, s13
s_mul_i32 s12, s12, 1280
s_mul_i32 s13, s{sXH}, 640
s_add_u32 s12, s12, s13
v_mul_u32_u24 v2, 0x3334, v0
v_lshrrev_b32 v2, 16, v2
v_mul_u32_u24 v1, 5, v2
v_sub_u32 v1, v0, v1
v_mul_u32_u24 v2, 1280, v2
v_lshl_add_u32 v1, v1, 7, v2
v_add_u32 v{vTW2}, s12, v1""")
S.junk(f"buffer_load_dword {JUNK}, v{vTW2}, {SRD_W2}, 0 offen")
S(f"""s_mul_i32 s11, s11, 10
s_mul_i32 s13, s{sJ}, 20
s_add_u32 s11, s11, s13
s_mul_i32 s11, s11, 3072
s_mul_i32 s13, s{sXH}, 1536
s_add_u32 s11, s11, s13
v_mul_u32_u24 v2, 0x1556, v0
v_lshrrev_b32 v2, 16, v2
v_mul_u32_u24 v3, 12, v2
v_sub_u32 v3, v0, v3
v_mul_u32_u24 v2, 3072, v2
v_lshl_add_u32 v3, v3, 7, v2
v_add_u32 v{vTW1}, s11, v3""")
S.junk(f"buffer_load_dword {JUNK}, v{vTW1}, {SRD_W1}, 0 offen")
S(f"s_waitcnt vmcnt({6 if opt['tlb'] else 2})")
S(f"s_mov_b32 s11, {5*3072}")
S.junk(f"buffer_load_dword {JUNK}, v{vTW1}, {SRD_W1}, s11 offen")
S.endpath()

S.label(".Lkgen")
vD = [4, 20, 36]
vT = 52
vW1O = 116
vW2O = 243
vFs = 120; vPK = 184
vFO = 192
vGOl = [224, 228, 232, 236, 76, 80, 84, 88]
vSR, vONE, vW2R = 248, 249, 250
for i in range(5):
    S(f"""v_add_u32 v1, {64*i}, v0
v_mul_u32_u24 v2, 0xcccd, v1
v_lshrrev_b32 v2, 19, v2
v_mul_u32_u24 v3, 10, v2
v_sub_u32 v3, v1, v3
v_mul_u32_u24 v2, 1280, v2
v_lshl_add_u32 v{vW2O+i}, v3, 4, v2""")
S(f"""s_mul_i32 s81, s{sWAVE}, {384*1280}
s_mul_i32 s11, s{sCB2}, 160
s_add_u32 s81, s81, s11
s_mul_i32 s79, s{sWAVE}, {W2W}
s_add_u32 s79, s79, {L_W}
s_mov_b32 m0, s78
v_and_b32 v1, 31, v0
v_mul_u32_u24 v{vSR}, {TROW}, v1
v_lshrrev_b32 v2, 5, v0
v_lshl_add_u32 v{vSR}, v2, 4, v{vSR}
v_add_u32 v{vSR}, s78, v{vSR}
v_mov_b32 v{vONE}, 0x3f80""")
sW2B = 79
def cmuls(s, lst):
    for d, x, y in lst:
        assert d != x and d != y
        s(f"v_pk_mul_f32 {vp(d)}, {vp(x)}, {vp(y)} op_sel:[0,0] op_sel_hi:[1,0]")
    for d, x, y in lst:
        s(f"v_pk_fma_f32 {vp(d)}, {vp(x)}, {vp(y)}, {vp(d)} op_sel:[1,1,0] op_sel_hi:[0,1,1] neg_lo:[0,1,0]")
I2PI = 1.0 / (2 * math.pi)
i2pi_hi = struct.unpack('<f', struct.pack('<f', I2PI))[0]
i2pi_lo = I2PI - i2pi_hi
hi0 = [0,1,2,3,4,5,6,7,8, 512,516,520, 1024,1032, 1280,1288]
hi1 = [256,256,258,260,260,260,262,264,264, 768,772,776, 1536,1544, 1792,1800]
rowhi = [(hi0, hi1)[(p >> 2) & 1][4 * (p >> 3) + (p & 3)] for p in range(32)]
def k_mfmas(u):
    out = []
    for s_ in range(8):
        x = Stream()
        c = "0" if s_ == 0 else vr(vD[u], 16)
        x(f"v_mfma_f32_32x32x16_bf16 {vr(vD[u],16)}, {vr(vGOl[s_],4)}, {vr(vFO+4*s_,4)}, {c}")
        out.append(x)
    return out
pkc = [0]
def put(s, items, neg, mf=None):
    regs = []
    if mf: s.ext(mf.pop(0))
    for r, rows in items:
        b = vPK + (pkc[0] & 7); pkc[0] += 1
        s(f"v_cvt_pk_bf16_f32 v{b}, v{r}, {'-' if neg else ''}v{r+1}")
        regs.append((b, rows))
    if mf: s.ext(mf.pop(0))
    for b, rows in regs:
        for p in rows: s(f"ds_write_addtid_b32 v{b} offset:{p*TROW}")
    s.pseudo('slot')
def kgen_unit(u):
    A = Stream(); B = Stream()
    pa, pb, pc, pd, pe = range(vPAR + 5*u, vPAR + 5*u + 5)
    va, vbh, vbl, vdt = vT, vT+1, vT+2, vT+3
    vW1, vW8, vW256, vW2, vW4, vG0 = vT+4, vT+6, vT+8, vT+10, vT+12, vT+14
    G = lambda k: vFs + 2 * k
    for r in (pe, pa, pb, pc, pd): A(f"v_lshlrev_b32 v{r}, 16, v{r}")
    A(f"""v_mul_f32 v{vdt}, {f32(LOG2E)}, v{pe}
v_mul_f32 v{va}, {f32(LOG2E)}, v{pa}
v_exp_f32 v{vdt}, v{vdt}
v_exp_f32 v{va}, v{va}
s_mov_b32 s11, {f32(i2pi_hi)}
v_cvt_pk_bf16_f32 v{va}, v{vdt}, v{va}
v_lshlrev_b32 v{vdt}, 16, v{va}
v_and_b32 v{va}, 0xffff0000, v{va}
v_mul_f32 v{pb}, v{pb}, v{vdt}
v_mul_f32 v{va}, v{va}, v{vdt}
v_mul_f32 v{vbh}, {f32(i2pi_hi)}, v{pb}
v_mul_f32 v{va}, {f32(-LOG2E)}, v{va}
v_fma_f32 v{vbl}, v{pb}, s11, -v{vbh}
v_add_f32 v{vdt}, v{vdt}, v{vdt}
v_fmac_f32 v{vbl}, {f32(i2pi_lo)}, v{pb}""")
    t0 = vT + 16
    m8, a8, m1, a1, m2, a2 = range(t0, t0 + 6)
    A(f"""v_mul_f32 v{m8}, {f32(8.0)}, v{va}
v_mul_f32 v{a8}, {f32(8.0)}, v{vbh}
v_exp_f32 v{m8}, v{m8}
v_fract_f32 v{a8}, v{a8}
v_exp_f32 v{m1}, v{va}
v_fmac_f32 v{a8}, {f32(8.0)}, v{vbl}
v_fract_f32 v{a1}, v{vbh}
v_cos_f32 v{vW8}, v{a8}
v_add_f32 v{a1}, v{a1}, v{vbl}
v_sin_f32 v{vW8+1}, v{a8}
v_mul_f32 v{m2}, {f32(256.0)}, v{va}
v_cos_f32 v{vW1}, v{a1}
v_mul_f32 v{a2}, {f32(256.0)}, v{vbh}
v_sin_f32 v{vW1+1}, v{a1}
v_fract_f32 v{a2}, v{a2}
v_exp_f32 v{m2}, v{m2}
v_fmac_f32 v{a2}, {f32(256.0)}, v{vbl}
v_pk_mul_f32 {vp(vW8)}, {vp(vW8)}, {vp(m8)} op_sel:[0,0] op_sel_hi:[1,0]
v_cos_f32 v{vW256}, v{a2}
v_pk_mul_f32 {vp(vW1)}, {vp(vW1)}, {vp(m1)} op_sel:[0,0] op_sel_hi:[1,0]
v_sin_f32 v{vW256+1}, v{a2}
ds_write_addtid_b32 v{vONE}""")
    F = lambda k: vW8 if k == 1 else G(k)
    cmuls(A, [(F(2), F(1), F(1)), (vW2, vW1, vW1)])
    A(f"v_mul_f32 v{vG0}, v{pc}, v{vdt}\nv_mul_f32 v{vG0+1}, v{pd}, v{vdt}")
    cmuls(A, [(F(3), F(2), F(1)), (F(4), F(2), F(2)), (vW4, vW2, vW2)])
    A(f"v_pk_mul_f32 {vp(vW256)}, {vp(vW256)}, {vp(m2)} op_sel:[0,0] op_sel_hi:[1,0]")
    mf = k_mfmas(u - 1) if u > 0 else None
    for lo in range(5, 32, 8):
        cmuls(A, [(F(k), F(k-4), F(4)) for k in range(lo, min(lo+4, 32))])
        cmuls(A, [(F(k), F(k-4), F(4)) for k in range(lo+4, min(lo+8, 32))])
        put(A, [(F(k), [k]) for k in range(lo-4, min(lo+4, 32))], False, mf)
    assert not mf
    for s_ in range(8):
        B(f"ds_read_b128 {vr(vFO+4*s_,4)}, v{vSR} offset:{32*s_}")
    his = sorted(set(hi0 + hi1))
    gi = {h: G(n) for n, h in enumerate(his)}; gi[0] = vG0
    rows = lambda h: [p for p in range(32) if rowhi[p] == h]
    steps = [[(1,0,vW1), (2,0,vW2), (4,0,vW4), (8,0,vW8), (256,0,vW256)],
             [(3,2,vW1), (5,4,vW1), (258,256,vW2), (512,256,vW256)],
             [(6,4,vW2), (260,256,vW4), (264,256,vW8), (768,512,vW256)],
             [(7,6,vW1), (262,260,vW2), (516,512,vW4), (1024,768,vW256)],
             [(520,512,vW8), (772,768,vW4), (776,768,vW8), (1280,1024,vW256)],
             [(1032,1024,vW8), (1288,1280,vW8), (1536,1280,vW256)],
             [(1544,1536,vW8), (1792,1536,vW256)],
             [(1800,1792,vW8)]]
    pend = [0]
    for n, st in enumerate(steps):
        cmuls(B, [(gi[d_], gi[x_], y_) for d_, x_, y_ in st])
        if n in (1, 3, 5):
            k = min(8, len(pend))
            put(B, [(gi[h], rows(h)) for h in pend[:k]], True); pend = pend[k:]
        pend += [d_ for d_, x_, y_ in st]
    assert len(pend) <= 8, pend
    put(B, [(gi[h], rows(h)) for h in pend], True)
    for s_ in range(8):
        B(f"ds_read_b128 {vr(vGOl[s_],4)}, v{vSR} offset:{32*s_}")
    s = Stream(); s.ext(A); s.ext(B)
    segs = [Stream()]
    for i in s.l:
        if i.kind == 'slot': segs.append(Stream())
        else: segs[-1].l.append(i)
    return segs
def flat(gs):
    s = Stream()
    for g in gs: s.ext(g)
    return s
def w2_dma(k, restore):
    gs = []; t = None
    for i in range(5):
        if i in (0, 2, 4) or not restore: gs.append(Stream())
        g = gs[-1]
        g(f"s_add_u32 m0, s{sW2B}, {(k%6)*5120 + i*1024}")
        t = g(f"buffer_load_dwordx4 v{vW2O+i}, {SRD_W2}, s81 offen lds")
        if i == 4 and k < 11: g(f"s_add_u32 s81, s81, {32*1280}")
        if restore and i in (1, 3, 4): g("s_mov_b32 m0, s78")
    return gs, t
def w2_read(k, tok, per=3):
    gs = []; n = 0; t = None
    for dt in range(5):
        for r in range(2):
            if n % per == 0: gs.append(Stream())
            if n == 0 and tok is not None: gs[-1].wait(tok)
            t = gs[-1](f"ds_read_b64_tr_b16 {ar((k*5+dt)*4 + 2*r, 2)}, v{vW2R} offset:{(k%6)*5120 + r*1280 + dt*32}")
            n += 1
    return gs, t
def w1_dma(slots, tok):
    gs = []
    for sl in slots:
        g = Stream()
        if tok is not None: g.wait(tok); tok = None
        if sl % 5 == 0:
            g(f"""s_lshl_b32 s71, s{sWAVE}, 1
s_add_u32 s71, s71, {sl//5}
s_add_u32 s71, s71, s{sCB}
s_and_b32 s71, s71, 7
s_mul_i32 s71, s71, {5*49152}
s_add_u32 s71, s71, s73""")
        for i in range(3):
            g(f"s_add_u32 m0, s{sW2B}, {sl*3072 + i*1024}")
            g(f"buffer_load_dwordx4 v{vW1O+i}, {SRD_W1}, s71 offen lds")
        g("s_mov_b32 m0, s78")
        if sl % 5 != 4: g("s_add_u32 s71, s71, 49152")
        gs.append(g)
    return gs
tw = {}
G0 = []
for k in range(6):
    gs, tw[k] = w2_dma(k, True); G0 += gs
pre = Stream()
for i in range(3):
    pre(f"""v_add_u32 v1, {64*i}, v0
v_mul_u32_u24 v2, 0xaaab, v1
v_lshrrev_b32 v2, 19, v2
v_mul_u32_u24 v3, 12, v2
v_sub_u32 v3, v1, v3
v_mul_u32_u24 v2, 3072, v2
v_lshl_add_u32 v{vW1O+i}, v3, 4, v2""")
pre(f"""v_lshrrev_b32 v1, 5, v0
v_lshlrev_b32 v1, 4, v1
v_bfe_u32 v2, v0, 4, 1
v_lshl_add_u32 v1, v2, 2, v1
v_bfe_u32 v2, v0, 2, 2
v_add_u32 v1, v1, v2
v_mul_u32_u24 v1, 160, v1
v_and_b32 v2, 3, v0
v_lshl_add_u32 v1, v2, 3, v1
v_add_u32 v{vW2R}, s{sW2B}, v1
s_mul_i32 s73, s{sCB}, 192""")
FL = Stream()
FL(f"s_cmp_ge_u32 s{sWAVE}, 2\ns_cbranch_scc1 .Lnoflag")
FL(f"s_cmp_eq_u32 s{sNONCE}, 0\ns_cbranch_scc1 .Lnonce_s")
FL.label(".Lnonce_b")
COLD.label(".Lnonce_s")
COLD(f"s_mov_b32 s70, 0\nv_mov_b32 v1, 0")
COLD.label(".Lnonce_l")
COLD(f"global_load_dword v2, v1, {P(pDBG)} sc0 sc1\ns_waitcnt vmcnt(0)\nv_readfirstlane_b32 s{sNONCE}, v2\ns_add_u32 s70, s70, 1\ns_cmp_gt_u32 s70, {SPIN_MAX}\ns_cbranch_scc1 .Lnonce_b\ns_cmp_eq_u32 s{sNONCE}, 0\ns_cbranch_scc1 .Lnonce_l\ns_branch .Lnonce_b")
FL(f"""s_lshl_b32 s12, s{sRG}, 3
s_lshl_b32 s13, s{sWAVE}, 2
s_add_u32 s12, s12, s13
s_add_u32 s12, s12, {FX}
v_mov_b32 v2, s{sNONCE}
v_mov_b32 v1, 0
s_waitcnt vmcnt(30)""")
FL.l[-1].mn = 's_waitcnt_raw'
FL(f"buffer_store_dword v2, v1, {SRD_WS}, s12 offen sc0 sc1")
FL.l[-1].kind = 'other'
FL.label(".Lnoflag")
stamp(S, 'k_go')
U0 = kgen_unit(0)
for i in range(7): stamp(U0[i], f'k_s{i}')
U0 = flat(U0)
S.ext(sprinkle(U0, G0 + [pre] + [Stream()] * opt['flpad'] + [FL], opt.get('dmaev', 9), start=opt.get('dmast', 70)))
stamp(S, 'k_u0')
U1 = kgen_unit(1)
S.ext(U1[0])
for a, slots, sg in ((0, (0, 1, 2), (1, 2)), (2, (3, 4, 5), (3, 4)), (4, (6, 7, 8, 9), (5, 6, 7))):
    for k in (a, a + 1):
        gs, t = w2_read(k, tw[k]); S.ext(flat(gs))
    seg = flat([U1[i] for i in sg]); gs = w1_dma(slots, t)
    S.ext(sprinkle(seg, gs, len(seg.l) // (len(gs) + 1), start=0))
S.ext(U1[8])
stamp(S, 'k_u1')
def xreg(i): return ar(120 + 4 * (i % 30), 4)
def xn_load(s, i):
    if i % 5 == 0:
        s(f"s_add_u32 s77, s{sCB}, {i//5}\ns_and_b32 s77, s77, 7\ns_mul_i32 s77, s77, 5120\ns_add_u32 s77, s77, s76")
    k = i % 5
    s(f"buffer_load_dwordx4 {xreg(i)}, v{253 if k < 4 else 252}, {SRD_WS}, s77 offen offset:{1024*min(k,3)} sc1")
G1PRE = opt['g1pre']
vB1P = 96; vB1 = 192
XF = [(1, 1, 240, 0)]; XN = (2, 3)
S(f"""s_lshl_b32 s11, s{sRB}, 7
s_lshl_b32 s12, s{sWAVE}, 5
s_add_u32 s11, s11, s12
s_add_u32 s11, s11, {FX}
v_and_b32 v240, 7, v0
v_lshl_add_u32 v240, v240, 2, s11
v_mov_b32 v3, 0
s_mul_i32 s11, s{sCB}, 192
v_lshrrev_b32 v251, 5, v0
v_lshl_add_u32 v251, v251, 3, s11
s_lshl_b32 s11, s{sRB}, 2
s_add_u32 s11, s11, s{sWAVE}
s_mul_i32 s76, s11, {XAS}
v_lshlrev_b32 v253, 4, v0
v_add_u32 v252, 1024, v253""")
def xn_first():
    gs = []
    for i in range(G1PRE):
        g = Stream(); xn_load(g, i); gs.append(g)
    for k in range(0, 12, 3):
        g = Stream()
        for kk in range(k, k + 3): g(f"global_load_dwordx2 {vr(vB1P+2*kk,2)}, v251, {P(pB1)} offset:{16*kk}")
        gs.append(g)
    return gs
S(f"s_cmp_lg_u32 s{sWAVE}, 3")
S.save('u2')
S("s_cbranch_scc1 .Lk2")
U2 = kgen_unit(2)
S.ext(flat(U2[0:2]))
flag_load(S, XF, XN)
S.ext(flat(U2[2:5]))
flag_check(S, XF, XN)
seg = flat(U2[5:]); gs = xn_first()
S.ext(sprinkle(seg, gs, len(seg.l) // (len(gs) + 1)))
for x in k_mfmas(2): S.ext(x)
S("s_branch .Lk3")
S.label(".Lk2")
S.restore('u2')
flag_load(S, XF, XN)
for x in k_mfmas(1): S.ext(x)
flag_check(S, XF, XN)
stamp(S, 'xnpoll')
S.ext(flat(xn_first()))
S(f"s_cmp_lg_u32 s{sWAVE}, 2\ns_cbranch_scc1 .Lk3")
for o in (192, 204):
    S(f"s_mov_b32 s11, {o*1280}")
    S.junk(f"buffer_load_dword {JUNK}, v{vTW2}, {SRD_W2}, s11 offen"); S.l[-1].kind = 'other'
S.label(".Lk3")
stamp(S, 'kgen')
S("s_barrier")
stamp(S, 'bar1')
S(f"s_cmp_lg_u32 s{sWAVE}, 3\ns_cbranch_scc1 .Lnomb")
for u in range(3):
    for k in range(4):
        S(f"ds_write_b128 v253, {vr(vD[u]+4*k,4)} offset:{L_K + u*KSLOT + 1024*k}")
S.label(".Lnomb")
for k in range(8):
    S(f"v_pk_add_f32 {vp(vD[0]+2*k)}, {vp(vD[0]+2*k)}, {vp(vD[1]+2*k)}")
S("s_waitcnt lgkmcnt(0)")
S("s_barrier")
stamp(S, 'bar2')
vD0 = vD[0]
S(f"s_cmp_eq_u32 s{sWAVE}, 3")
S.save('exp')
S("s_cbranch_scc1 .Lnoexp")
S(f"s_mul_i32 s11, s{sWAVE}, {KSLOT}\ns_add_u32 s11, s11, {L_K}\nv_add_u32 v1, s11, v253")
for k in range(4):
    S(f"ds_read_b128 {vr(44+4*k,4)}, v1 offset:{1024*k}")
S(f"""v_and_b32 v2, 31, v0
v_sub_u32 v2, 31, v2
v_lshl_add_u32 v2, v2, 4, s11
v_lshrrev_b32 v3, 5, v0
v_sub_u32 v3, 1, v3
v_lshl_add_u32 v60, v3, 9, v2
v_mul_u32_u24 v3, 1056, v3
v_add_u32 v61, v3, v2
v_add_u32 v62, {OOFF}, v60
v_add_u32 v63, {OOFF}, v61
v_and_b32 v3, 1, v0
v_cmp_eq_u32 vcc, 1, v3""")
for k in range(8):
    S(f"v_pk_add_f32 {vp(vD0+2*k)}, {vp(vD0+2*k)}, {vp(44+2*k)}")
d = lambda k: f"v{vD0+k}"
def wo(b, aO, off):
    S(f"v_add_u32 v1, {off}, v{aO}")
    S(f"ds_write2_b32 v1, v{b}, v{b+1} offset0:0 offset1:1")
    S(f"ds_write2_b32 v1, v{b+2}, v{b+3} offset0:2 offset1:3")
def build(e_pairs, o_pairs, base, aE, aO, imm):
    for j, (a, b) in enumerate(e_pairs): S(f"v_cvt_pk_bf16_f32 v{base+j}, {a}, {b}")
    S(f"ds_write_b128 v{aE}, {vr(base,4)} offset:{imm}")
    for j, (a, b) in enumerate(o_pairs): S(f"v_cvt_pk_bf16_f32 v{base+4+j}, {a}, {b}")
    wo(base + 4, aO, imm)
build([(d(7),d(6)),(d(5),d(4)),(d(3),d(2)),(d(1),d(0))], [(d(8),d(7)),(d(6),d(5)),(d(4),d(3)),(d(2),d(1))], 64, 60, 62, 3*1056)
build([(d(11),d(11)),(d(10),d(10)),(d(10),d(9)),(d(9),d(9))], [(d(11),d(11)),(d(11),d(10)),(d(10),d(10)),(d(9),d(9))], 72, 60, 62, 2*1056)
for n, (r0, imm) in enumerate(((12, 512), (14, 0))):
    S(f"v_cndmask_b32 v3, {d(r0)}, {d(r0+1)}, vcc")
    V0, V1 = d(r0), d(r0+1)
    build([(V1,V1),(V1,'v3'),(V0,V0),(V0,V0)], [(V1,V1),(V1,V1),('v3',V0),(V0,V0)], 80 + 8*n, 61, 63, imm)
S("s_mov_b32 exec_lo, 0\ns_mov_b32 exec_hi, 0x80000000")
S(f"ds_write_b128 v60, {vr(64,4)} offset:{3*1056-32}")
S(f"ds_write_b128 v60, {vr(72,4)} offset:{2*1056-32}")
wo(68, 62, 3*1056-32); wo(76, 62, 2*1056-32)
S("s_mov_b32 exec_lo, 0x80000000\ns_mov_b32 exec_hi, 0")
S("v_subrev_u32 v61, 32, v61")
S(f"ds_write_b128 v61, {vr(88,4)}")
wo(92, 63, -32)
S("s_mov_b32 exec_lo, 1")
S(f"v_mov_b32 v64, 0\nv_mov_b32 v65, 0\nv_mov_b32 v66, 0\nv_mov_b32 v67, 0\nv_cvt_pk_bf16_f32 v68, {d(0)}, v64\nv_mov_b32 v2, s11")
S(f"ds_write_b128 v2, {vr(64,4)} offset:{(3*264+256)*4}")
S(f"v_add_u32 v2, {OOFF + (3*264+256)*4}, v2")
S("ds_write2_b32 v2, v68, v64 offset0:0 offset1:1\nds_write2_b32 v2, v64, v64 offset0:2 offset1:3")
S("s_mov_b64 exec, -1")
S("s_branch .Lexpd")
S.label(".Lnoexp")
S.restore('exp')
S(f"""v_lshrrev_b32 v1, 4, v0
v_mul_u32_u24 v1, {USLOT}, v1
v_and_b32 v2, 15, v0
v_lshl_add_u32 v1, v2, 4, v1
v_mov_b32 v44, 0
v_mov_b32 v45, 0
v_mov_b32 v46, 0
v_mov_b32 v47, 0
s_mov_b32 exec_hi, 0xffff
ds_write_b128 v1, v[44:47] offset:{L_U}
s_mov_b64 exec, -1""")
S.label(".Lexpd")
S.restore('exp')
stamp(S, 'exp')

vAC = 20; vAR = 120; vA0, vA1 = 254, 255
S(f"""v_and_b32 v1, 15, v0
v_lshrrev_b32 v2, 2, v1
v_lshrrev_b32 v3, 5, v0
v_lshl_add_u32 v2, v3, 3, v2
v_mul_u32_u24 v{vA0}, 192, v2
v_and_b32 v1, 3, v1
v_lshl_add_u32 v{vA0}, v1, 3, v{vA0}
v_bfe_u32 v1, v0, 4, 1
v_lshl_add_u32 v{vA0}, v1, 5, v{vA0}
v_add_u32 v{vA0}, {L_W}, v{vA0}
v_add_u32 v{vA1}, 61440, v{vA0}""")
def g1_read(s, ks, ft):
    for r in range(2):
        base, k = (vA0, ks) if ks < 20 else (vA1, ks - 20)
        s(f"ds_read_b64_tr_b16 {vr(vAR + 12*(ks%3) + 4*ft + 2*r, 2)}, v{base} offset:{k*3072 + r*768 + ft*64}")
for ks in range(2):
    for ft in range(3): g1_read(S, ks, ft)
vUL = 160
Sg = Stream()
for ks in range(40):
    if opt['stamps'] and ks in (1, 20): stamp(Sg, f'g1_{ks}')
    for ft in range(3):
        c = vr(vAC + 16*ft, 16) if ks > 0 else "0"
        Sg(f"v_mfma_f32_32x32x16_bf16 {vr(vAC+16*ft,16)}, {vr(vAR + 12*(ks%3) + 4*ft, 4)}, {xreg(ks)}, {c}")
        if ks + 2 < 40: g1_read(Sg, ks + 2, ft)
        if ft == 0 and ks + G1PRE < 40: xn_load(Sg, ks + G1PRE)
plan = {}
UF = [(176, 4, 180, 0), (184, 4, 180, 1024)]
F = Stream()
F(f"v_add_u32 v180, {FX}, v253")
flag_load(F, UF)
spread(F, 55, 57, plan)
vCA = 4; vCP = 68; vKB = 76; vR = 188; vU, vK, vKn = 92, 93, 94
vW2On = 95; vNON, vZ, vW2Rn = 100, 101, 102
vUl, vKl, vYl = 103, 104, 105
F = Stream()
for k in range(24):
    F(f"v_lshlrev_b32 v{vB1+2*k}, 16, v{vB1P+k}\nv_and_b32 v{vB1+2*k+1}, 0xffff0000, v{vB1P+k}")
for i in range(5): F(f"v_mov_b32 v{vW2On+i}, v{vW2O+i}")
F(f"v_mov_b32 v{vW2Rn}, v{vW2R}")
vW2O = vW2On; vW2R = vW2Rn
F(f"""v_lshrrev_b32 v1, 2, v0
v_mul_u32_u24 v1, {XBS}, v1
v_and_b32 v2, 3, v0
v_lshl_add_u32 v181, v2, 3, v1
s_mul_i32 s11, s{sWAVE}, {128*XBS}
s_lshl_b32 s12, s{sCBASE}, 3
s_add_u32 s11, s11, s12
s_add_u32 s15, s11, {XNB}
v_mul_u32_u24 v2, {USLOT}, v2
v_lshrrev_b32 v3, 2, v0
v_lshl_add_u32 v2, v3, 3, v2
s_lshl_b32 s12, s{sWAVE}, 10
s_add_u32 s12, s12, {L_U + 256}
v_add_u32 v182, s12, v2
s_mov_b32 s74, 0x00003f80
s_mov_b32 s75, 0x3f800000
v_bfe_u32 v1, v0, 4, 1
v_mul_u32_u24 v1, {HBS*1024}, v1
v_and_b32 v3, 15, v0
v_lshl_add_u32 v1, v3, 4, v1
v_lshrrev_b32 v3, 5, v0
v_lshl_add_u32 v183, v3, 8, v1
s_lshl_b32 s11, s{sRB}, 3
s_lshl_b32 s12, s{sWAVE}, 1
s_add_u32 s11, s11, s12
s_mul_i32 s11, s11, {HBS}
s_mul_i32 s12, s{sCB}, 3
s_add_u32 s11, s11, s12
s_lshl_b32 s11, s11, 10
s_add_u32 s72, s11, {HB}
s_lshl_b32 s11, s{sRB}, 2
s_add_u32 s11, s11, s{sWAVE}
s_lshl_b32 s11, s11, 4
s_add_u32 s11, s11, s{sCB}
s_lshl_b32 s11, s11, 2
s_add_u32 s80, s11, {FH}
v_mov_b32 v{vNON}, s{sNONCE}
v_mov_b32 v{vZ}, 0
v_and_b32 v1, 15, v0
v_lshrrev_b32 v2, 4, v0
v_add_u32 v3, v1, v2
v_lshlrev_b32 v{vUl}, 4, v3
v_add_u32 v{vUl}, {L_U + 16}, v{vUl}
v_and_b32 v3, 7, v0
v_sub_u32 v{vKl}, 8, v3
v_lshrrev_b32 v{vKl}, 1, v{vKl}
v_lshl_add_u32 v{vKl}, v2, 2, v{vKl}
v_lshlrev_b32 v{vKl}, 2, v{vKl}
v_and_b32 v3, 1, v0
v_sub_u32 v3, 1, v3
v_mul_u32_u24 v3, {OOFF}, v3
v_add_u32 v{vKl}, v{vKl}, v3
v_bfe_u32 v3, v0, 3, 1
v_sub_u32 v3, 1, v3
v_mul_u32_u24 v3, 1056, v3
v_add_u32 v{vKl}, v{vKl}, v3
v_lshlrev_b32 v{vYl}, 4, v1
v_bfe_u32 v3, v0, 4, 1
v_lshl_add_u32 v{vYl}, v3, 8, v{vYl}
v_lshrrev_b32 v3, 5, v0
v_lshl_add_u32 v{vYl}, v3, 10, v{vYl}
s_nop 0""")
spread(F, 6, 84, plan)
F = Stream()
flag_check(F, UF)
F("s_mov_b32 exec_lo, 0x77777777\ns_mov_b32 exec_hi, 0x77777777")
for k in range(8):
    F(f"buffer_load_dwordx2 {vr(vUL+2*k,2)}, v181, {SRD_WS}, s15 offen sc1")
    if k < 7: F(f"s_add_u32 s15, s15, {16*XBS}")
F("s_mov_b64 exec, -1")
plan.setdefault(91, Stream()).ext(F)
def unit_addr(s, sslot):
    s(f"""s_mul_i32 s12, s{sslot}, {USLOT}
v_add_u32 v{vU}, s12, v{vUl}
s_mul_i32 s12, s{sslot}, {KSLOT}
s_mul_i32 s13, s83, 2112
s_add_u32 s12, s12, s13
v_add_u32 v{vK}, s12, v{vKl}
v_add_u32 v{vKn}, 1056, v{vK}
s_add_u32 s12, s{sCBASE}, s{sslot}
s_lshl_b32 s14, s12, 3
s_mul_i32 s12, s12, {YS}
s_lshl_b32 s13, s83, 11
s_sub_u32 s12, s12, s13
s_add_u32 s{sYB}, s12, {YT + 2048}
s_lshl_b32 s13, s83, 2
s_sub_u32 s14, s14, s13
s_add_u32 s{sYF}, s14, {FY + 4}""")
F = Stream()
F(f"""s_add_u32 s11, s{sPAR}, s{sWAVE}
s_cmp_eq_u32 s{sWAVE}, 2
s_cselect_b32 s11, s{sPAR}, s11
s_cselect_b32 s83, 1, 0
s_add_u32 s15, s{sPAR}, 1
s_lshl_b32 s12, s{sPAR}, 1
s_sub_u32 s12, 2, s12
s_cmp_eq_u32 s{sWAVE}, 3
s_cselect_b32 s83, s{sPAR}, s83
s_cselect_b32 s11, s12, s11
s_cselect_b32 s15, 0, s15
s_add_u32 s78, s{sWAVE}, s{sCB2}
s_and_b32 s78, s78, 3""")
unit_addr(F, 11)
spread(F, 95, 117, plan)
S.ext(weave(Sg, plan))
stamp(S, 'g1')
for ft in range(3):
    tp = 120 + 8 * ft
    for k in range(8):
        a = vAC + 16*ft + 2*k; b = vB1 + 16*ft + 2*k
        S(f"v_cvt_pk_bf16_f32 v{tp+k}, v{a}, v{a+1}")
        S(f"v_dot2_f32_bf16 v{a}, v{tp+k}, s74, v{b}")
        S(f"v_dot2_f32_bf16 v{a+1}, v{tp+k}, s75, v{b+1}")
    for k in range(8):
        a = vAC + 16*ft + 2*k
        S(f"v_cvt_pk_bf16_f32 v{tp+k}, v{a}, v{a+1}")
        S(f"v_pk_max_i16 v{tp+k}, v{tp+k}, 0")
        S(f"v_lshlrev_b32 v{a}, 16, v{tp+k}")
        S(f"v_and_b32 v{a+1}, 0xffff0000, v{tp+k}")
        S(f"v_pk_mul_f32 {vp(a)}, {vp(a)}, {vp(a)}")
        S(f"v_cvt_pk_bf16_f32 v{tp+k}, v{a}, v{a+1}")
    for jp in range(2):
        th = S(f"buffer_store_dwordx4 {vr(tp+4*jp,4)}, v183, {SRD_WS}, s72 offen offset:{1024*ft + 512*jp} sc0 sc1")
    if ft == 1:
        S("s_mov_b32 exec_lo, 0x77777777\ns_mov_b32 exec_hi, 0x77777777")
        for k in range(8):
            S(f"ds_write_b64 v182, {vr(vUL+2*k,2)} offset:{128*k}")
        S("s_mov_b64 exec, -1")
S("s_waitcnt lgkmcnt(0)")
S("s_barrier")
stamp(S, 'g1ep')

def conv_load(s, sg):
    s(f"ds_read_b128 {vr(vR + 4*(sg & 15), 4)}, v{vU} offset:{64*sg}")
    base, o = (vK, 16*sg) if sg < 16 else (vKn, 16*(sg-16))
    kb = vKB + 4*(sg & 3)
    s(f"ds_read2_b32 {vr(kb,2)}, v{base} offset0:{o} offset1:{o+1}")
    s(f"ds_read2_b32 {vr(kb+2,2)}, v{base} offset0:{o+2} offset1:{o+3}")
def conv_block(ramp, last=False):
    s = Stream()
    for sg in range(16):
        ld = Stream()
        if not (last and sg + 3 >= 16): conv_load(ld, sg + 3)
        for rt in (3, 2, 1, 0):
            first = 12 - 4*rt
            if ramp and sg < first: continue
            c = "0" if (ramp and sg == first) else vr(vCA + 4*rt, 4)
            s(f"v_mfma_f32_16x16x32_bf16 {vr(vCA+4*rt,4)}, {vr(vKB + 4*(sg&3),4)}, {vr(vR + 4*((sg+4+4*rt)&15),4)}, {c}")
            if ld.l: s.l.append(ld.l.pop(0))
        s.ext(ld)
    if not last:
        s(f"v_add_u32 v{vU}, 1024, v{vU}\nv_add_u32 v{vK}, 1056, v{vK}\nv_add_u32 v{vKn}, 1056, v{vKn}")
    return s
def conv_save(s):
    for rt in (3, 2, 1, 0):
        for h in range(2):
            s(f"v_cvt_pk_bf16_f32 v{vCP + 4*(rt>>1) + 2*(rt&1) + h}, v{vCA+4*rt+2*h}, v{vCA+4*rt+2*h+1}")
def conv_fin(s):
    s("s_mov_b32 exec_lo, 0")
    conv_save(s)
    s("s_mov_b32 exec_lo, -1")
    t = None
    for pr in range(2):
        b = vCP + 4*pr
        s(f"v_permlane16_swap_b32 v{b}, v{b+2}")
        s(f"v_permlane16_swap_b32 v{b+1}, v{b+3}")
        t = s(f"buffer_store_dwordx4 {vr(b,4)}, v{vYl}, {SRD_WS}, s{sYB} offen offset:{512*pr} sc0 sc1")
    return t
for sg in range(3): conv_load(S, sg)
vEX, vEN, vEB, vED = 20, 30, 40, 50
vOO = 106
F = Stream()
F(f"""v_and_b32 v1, 15, v0
v_lshrrev_b32 v2, 4, v0
s_lshl_b32 s11, s{sRB2}, 6
s_lshl_b32 s12, s78, 4
s_add_u32 s11, s11, s12
v_add_u32 v{vOO}, s11, v1
v_mul_u32_u24 v{vOO}, 1280, v{vOO}
v_lshl_add_u32 v{vOO}, v2, 3, v{vOO}
s_mul_i32 s12, s{sCB2}, 160
v_add_u32 v{vOO}, s12, v{vOO}
v_lshl_add_u32 v60, v2, 3, s12
s_lshr_b32 s13, s11, 5
s_mul_i32 s13, s13, {XAS//1024}
s_mul_i32 s14, s{sCB2}, 5
s_add_u32 s13, s13, s14
s_lshl_b32 s13, s13, 10
s_and_b32 s14, s11, 31
s_lshl_b32 s14, s14, 4
s_add_u32 s13, s13, s14
s_add_u32 s14, s13, 4096
v_lshlrev_b32 v61, 4, v1
v_lshrrev_b32 v3, 1, v2
v_lshl_add_u32 v61, v3, 9, v61
v_and_b32 v3, 1, v2
v_lshl_add_u32 v61, v3, 3, v61""")
S.ext(F)
F = Stream()
for dt in range(5):
    F(f"buffer_load_dwordx2 {vr(vEN+2*dt,2)}, v61, {SRD_WS}, s{13 if dt<4 else 14} offen offset:{1024*(dt%4)} sc1")
    F(f"global_load_dwordx2 {vr(vED+2*dt,2)}, v60, {P(pDSK)} offset:{32*dt}")
    F(f"buffer_load_dwordx2 {vr(vEX+2*dt,2)}, v{vOO}, {SRD_X}, 0 offen offset:{32*dt}")
    F(f"global_load_dwordx2 {vr(vEB+2*dt,2)}, v60, {P(pB2)} offset:{32*dt}")
S.ext(weave(conv_block(True), spread(F, 1, 39)))
stamp(S, 'cv_b0')
conv_save(S)
F = Stream()
for k in (6, 7): F.ext(flat(w2_dma(k, False)[0]))
F.wait(th)
F(f"buffer_store_dword v{vNON}, v{vZ}, {SRD_WS}, s80 offen sc0 sc1")
F.ext(flat(w2_dma(8, False)[0]))
S.ext(weave(conv_block(False), spread(F, 0, 63)))
stamp(S, 'cv_b1')
vH = 108; vHO = 252
HF = [(62, 1, 63, 0)]
def b2_fill(F):
    F(f"""s_lshr_b32 s11, s{sRB2}, 1
s_lshl_b32 s11, s11, 2
s_and_b32 s12, s{sRB2}, 1
s_lshl_b32 s12, s12, 1
s_add_u32 s11, s11, s12
s_lshl_b32 s11, s11, 4
s_lshl_b32 s12, s{sWAVE}, 2
s_add_u32 s11, s11, s12
s_lshl_b32 s11, s11, 2
s_add_u32 s11, s11, {FH}
v_bfe_u32 v1, v0, 2, 1
v_lshlrev_b32 v1, 6, v1
v_and_b32 v2, 3, v0
v_lshl_add_u32 v1, v2, 2, v1
v_add_u32 v63, s11, v1""")
    for k in (9, 10, 11): F.ext(flat(w2_dma(k, False)[0]))
    F(f"v_mov_b32 v1, v{vEB+9}")
S("s_cmp_eq_u32 s83, 1")
S.save('b2')
S("s_cbranch_scc1 .Lb2x")
F = Stream(); b2_fill(F); flag_load(F, HF)
S.ext(weave(conv_block(False), spread(F, 0, 56)))
S("s_waitcnt lgkmcnt(0)")
S.endpath(keep=[('v', 62)])
S("s_branch .Lb3")
S.label(".Lb2x")
S.restore('b2')
ty = conv_fin(S)
S(f"s_mov_b32 s{sYF2}, s{sYF}")
unit_addr(S, 15)
for sg in range(3): conv_load(S, sg)
F = Stream(); b2_fill(F); F.wait(ty)
F(f"buffer_store_dword v{vNON}, v{vZ}, {SRD_WS}, s{sYF2} offen sc0 sc1")
flag_load(F, HF)
S.ext(weave(conv_block(True), spread(F, 0, 37)))
S("s_waitcnt lgkmcnt(0)")
S.endpath(keep=[('v', 62)])
S.label(".Lb3")
S.assume([('v', 62)])
stamp(S, 'cv_b2')
conv_save(S)
F = Stream()
F(f"v_lshlrev_b32 v{vHO}, 4, v0\nv_add_u32 v{vHO+1}, 4096, v{vHO}\nv_add_u32 v{vHO+2}, 8192, v{vHO}")
for p in range(4):
    F(f"""s_add_u32 s11, s78, {p+1}
s_and_b32 s11, s11, 3
s_lshl_b32 s12, s{sRB2}, 2
s_add_u32 s11, s11, s12
s_mul_i32 s11, s11, {HBS}
s_mul_i32 s12, s{sWAVE}, 12
s_add_u32 s11, s11, s12
s_lshl_b32 s11, s11, 10
s_add_u32 s{71+p}, s11, {HB}""")
plan = spread(F, 0, 19)
NH = 36
def hreg(n): return vH + 4 * (n % NH)
def h_load(s, n):
    p, k = divmod(n, 12)
    s(f"buffer_load_dwordx4 {vr(hreg(n), 4)}, v{vHO + k//4}, {SRD_WS}, s{71+p} offen offset:{1024*(k%4)} sc1")
HPRE = opt['hpre']
F = Stream()
flag_test(F, HF)
F("s_mov_b64 s[76:77], vcc\ns_cmp_lg_u64 s[76:77], 0")
plan.setdefault(opt['hchk'], Stream()).ext(F)
for n in range(HPRE):
    F = Stream()
    F(f"s_cbranch_scc1 .Lhskip{n}")
    h_load(F, n)
    F.label(f".Lhskip{n}")
    plan.setdefault(opt['hchk'] + 1 + (n * (60 - opt['hchk'])) // HPRE, Stream()).ext(F)
F = Stream()
for k in (6, 7): F.ext(flat(w2_read(k, None)[0]))
spread(F, opt['hchk'] + 2, 63, plan)
S.ext(weave(conv_block(False, last=True), plan))
stamp(S, 'cv_b3')
ty = conv_fin(S)
S("s_cmp_lg_u64 s[76:77], 0\ns_cbranch_scc1 .Lhlate")
S.label(".Lhback")
COLD.label(".Lhlate")
COLD("s_mov_b32 s70, 0")
COLD.label(".Lhlate_l")
flag_load(COLD, HF)
COLD("s_waitcnt vmcnt(0)")
flag_test(COLD, HF)
COLD(f"s_add_u32 s70, s70, 1\ns_cmp_gt_u32 s70, {SPIN_MAX}\ns_cbranch_scc1 .Lhlate_x\ns_cbranch_vccnz .Lhlate_l")
COLD.label(".Lhlate_x")
for n in range(HPRE): h_load(COLD, n)
COLD("s_waitcnt vmcnt(0)\ns_branch .Lhback")
stamp(S, 'conv')

vG2 = 60
vRW = 255
S(f"v_add_u32 v{vRW}, s{sW2B}, v{vHO}")
def g2_pass(p):
    s = Stream()
    ac = vG2 + 20*(p & 1)
    for k in range(12):
        for dt in range(5):
            c = "0" if k == 0 else vr(ac + 4*dt, 4)
            s(f"v_mfma_f32_16x16x32_bf16 {vr(ac+4*dt,4)}, {ar((k*5+dt)*4,4)}, {vr(hreg(12*p+k), 4)}, {c}")
            if dt == 0 and 12*p + k + HPRE < 48: h_load(s, 12*p + k + HPRE)
    return s
def g2_dump(s, p):
    ac = vG2 + 20*(p & 1)
    for dt in range(5):
        s(f"ds_write_b128 v{vRW}, {vr(ac+4*dt,4)} offset:{p*5120 + dt*1024}")
F = Stream()
for k in range(8, 12): F.ext(flat(w2_read(k, None)[0]))
S.ext(weave(g2_pass(0), spread(F, 0, 38)))
stamp(S, 'g2_p0')
F = Stream()
g2_dump(F, 0)
F.wait(ty)
F(f"buffer_store_dword v{vNON}, v{vZ}, {SRD_WS}, s{sYF} offen sc0 sc1")
for k in range(10):
    a = 4 + 4*(k & 1)
    F(f"""v_lshlrev_b32 v{a}, 16, v{vEN+k}
v_and_b32 v{a+1}, 0xffff0000, v{vEN+k}
v_lshlrev_b32 v{a+2}, 16, v{vED+k}
v_and_b32 v{a+3}, 0xffff0000, v{vED+k}
v_mul_f32 v{a}, v{a}, v{a+2}
v_mul_f32 v{a+1}, v{a+1}, v{a+3}
v_cvt_pk_bf16_f32 v{vEN+k}, v{a}, v{a+1}""")
YF = [(50, 1, 51, 0), (52, 1, 53, 0)]
F(f"""s_mul_i32 s11, s{sCB2}, 640
s_lshr_b32 s12, s{sRB2}, 4
s_lshl_b32 s12, s12, 2
s_add_u32 s11, s11, s12
s_add_u32 s11, s11, {FY}
v_lshl_add_u32 v51, v0, 3, s11
v_and_b32 v2, 15, v0
v_lshlrev_b32 v2, 3, v2
s_add_u32 s11, s11, 512
v_add_u32 v53, s11, v2""")
S.ext(weave(g2_pass(1), spread(F, 3, 59)))
stamp(S, 'g2_p1')
vB2 = 156; vXf = 176
F = Stream()
flag_load(F, YF)
g2_dump(F, 1)
F(f"""v_lshrrev_b32 v1, 1, v0
v_mul_u32_u24 v1, {YS}, v1
v_and_b32 v2, 1, v0
v_lshl_add_u32 v54, v2, 4, v1
s_mul_i32 s11, s{sCB2}, {80*YS}
s_lshl_b32 s12, s{sRB2}, 7
s_add_u32 s11, s11, s12
s_lshl_b32 s12, s78, 5
s_add_u32 s11, s11, s12
s_add_u32 s11, s11, {YT}
s_add_u32 s12, s11, {32*YS}
s_add_u32 s13, s11, {64*YS}
v_lshrrev_b32 v55, 2, v0
v_lshlrev_b32 v55, 5, v55
v_and_b32 v1, 3, v0
v_lshl_add_u32 v55, v1, 3, v55
v_add_u32 v55, s{sW2B}, v55""")
for k in range(10):
    F(f"""v_lshlrev_b32 v{vB2+2*k}, 16, v{vEB+k}
v_and_b32 v{vB2+2*k+1}, 0xffff0000, v{vEB+k}
v_lshlrev_b32 v{vXf+2*k}, 16, v{vEX+k}
v_and_b32 v{vXf+2*k+1}, 0xffff0000, v{vEX+k}""")
plan = spread(F, 2, 46)
vY = 4
F = Stream(); flag_check(F, YF)
F(f"buffer_load_dwordx4 {vr(vY,4)}, v54, {SRD_WS}, s11 offen sc1")
F(f"buffer_load_dwordx4 {vr(vY+4,4)}, v54, {SRD_WS}, s12 offen sc1")
F("s_mov_b32 exec_hi, 0")
F(f"buffer_load_dwordx4 {vr(vY+8,4)}, v54, {SRD_WS}, s13 offen sc1")
F("s_mov_b32 exec_hi, -1")
plan.setdefault(opt['ychk'], Stream()).ext(F)
S.ext(weave(g2_pass(2), plan))
stamp(S, 'g2_p2')
vS = 204
vYT = 40
F = Stream()
g2_dump(F, 2)
for p in range(3):
    F(f"s_sub_u32 s11, s{sWAVE}, {p+1}\ns_and_b32 s11, s11, 3\ns_mul_i32 s11, s11, {W2W}\ns_add_u32 s11, s11, {L_W}\nv_add_u32 v{56+p}, s11, v{vHO}")
F(f"s_mov_b32 s76, 0x00003f80\ns_mov_b32 s77, 0x3f800000\ns_mov_b32 s12, {f32(-LOG2E)}\ns_mov_b32 s13, {f32(-LOG2E)}\ns_mov_b32 s14, 1.0\ns_mov_b32 s15, 1.0")
plan = spread(F, 3, 20)
F = Stream()
YST = 3 * 5120
F(f"ds_write_b128 v{vRW}, {vr(vY,4)} offset:{YST}")
F(f"ds_write_b128 v{vRW}, {vr(vY+4,4)} offset:{YST+1024}")
F("s_mov_b32 exec_hi, 0")
F(f"ds_write_b128 v{vRW}, {vr(vY+8,4)} offset:{YST+2048}")
F("s_mov_b32 exec_hi, -1")
for dt in range(5):
    F(f"ds_read_b64_tr_b16 {vr(vYT+2*dt,2)}, v55 offset:{YST + 512*dt}")
plan.setdefault(opt['yst'], Stream()).ext(F)
F = Stream()
for k in range(10):
    a = vS + 2*k
    F(f"""v_lshlrev_b32 v{a}, 16, v{vYT+k}
v_and_b32 v{a+1}, 0xffff0000, v{vYT+k}
v_dot2_f32_bf16 v{a}, v{vEN+k}, s76, v{a}
v_dot2_f32_bf16 v{a+1}, v{vEN+k}, s77, v{a+1}""")
spread(F, opt['yst'] + 6, 59, plan)
S.ext(weave(g2_pass(3), plan))
stamp(S, 'g2')
S("s_waitcnt lgkmcnt(0)")
S("s_barrier")
stamp(S, 'e_bar')
vPS = 108
PS = lambda p, dt: (108 + 20*p + 4*dt) if 20*p + 4*dt < 48 else (4 + 20*p + 4*dt - 48)
for p in range(3):
    for dt in range(5):
        S(f"ds_read_b128 {vr(PS(p, dt), 4)}, v{56+p} offset:{p*5120 + dt*1024}")
for k in range(10):
    a = vS + 2*k
    S(f"""v_cvt_pk_bf16_f32 v{vEN+k}, v{a}, v{a+1}
v_lshlrev_b32 v{a}, 16, v{vEN+k}
v_and_b32 v{a+1}, 0xffff0000, v{vEN+k}""")
ac = vG2 + 20
for p in range(3):
    for k in range(10):
        S(f"v_pk_add_f32 {vp(ac+2*k)}, {vp(ac+2*k)}, {vp(PS(p, k//2) + 2*(k&1))}")
T = lambda k: 224 + 2*k
def stage(fn):
    for k in range(10): fn(k, ac + 2*k, T(k))
stage(lambda k, a, t: S(f"v_cvt_pk_bf16_f32 v{t}, v{a}, v{a+1}"))
stage(lambda k, a, t: S(f"v_dot2_f32_bf16 v{a}, v{t}, s76, v{vB2+2*k}\nv_dot2_f32_bf16 v{a+1}, v{t}, s77, v{vB2+2*k+1}"))
stage(lambda k, a, t: S(f"v_cvt_pk_bf16_f32 v{t}, v{a}, v{a+1}"))
stage(lambda k, a, t: S(f"v_lshlrev_b32 v{a}, 16, v{t}\nv_and_b32 v{a+1}, 0xffff0000, v{t}\nv_pk_mul_f32 {vp(t)}, {vp(a)}, s[12:13]"))
stage(lambda k, a, t: S(f"v_exp_f32 v{t}, v{t}\nv_exp_f32 v{t+1}, v{t+1}"))
stage(lambda k, a, t: S(f"v_pk_add_f32 {vp(t)}, {vp(t)}, s[14:15]"))
stage(lambda k, a, t: S(f"v_rcp_f32 v{t}, v{t}\nv_rcp_f32 v{t+1}, v{t+1}"))
stage(lambda k, a, t: S(f"v_pk_mul_f32 {vp(a)}, {vp(a)}, {vp(t)}"))
stage(lambda k, a, t: S(f"v_cvt_pk_bf16_f32 v{t}, v{a}, v{a+1}\nv_lshlrev_b32 v{a}, 16, v{t}\nv_and_b32 v{a+1}, 0xffff0000, v{t}\nv_pk_mul_f32 {vp(a)}, {vp(a)}, {vp(vS+2*k)}\nv_cvt_pk_bf16_f32 v{t}, v{a}, v{a+1}"))
stage(lambda k, a, t: S(f"v_dot2_f32_bf16 v{a}, v{t}, s76, v{vXf+2*k}\nv_dot2_f32_bf16 v{a+1}, v{t}, s77, v{vXf+2*k+1}"))
for k in range(10):
    a = ac + 2*k
    S(f"v_cvt_pk_bf16_f32 v{vEX+k}, v{a}, v{a+1}")
    if k & 1:
        S(f"buffer_store_dwordx2 {vr(vEX+k-1,2)}, v{vOO}, {SRD_OUT}, 0 offen offset:{32*(k//2)}")
stamp(S, 'end')
if opt['stamps']:
    S("s_memrealtime s[68:69]\ns_waitcnt lgkmcnt(0)\nv_accvgpr_write_b32 a253, s68")
    S(f"s_lshl_b32 s11, s{sWG}, 2\ns_add_u32 s11, s11, s{sWAVE}\ns_lshl_b32 s11, s11, 7\ns_add_u32 s11, s11, {STAMP}\nv_mov_b32 v1, 0")
    for k in range(8):
        for j in range(4):
            n = 4*k + j
            if k < 4: S(f"v_mov_b32 v{4+n}, s{84+n}")
            elif n < 30: S(f"v_accvgpr_read_b32 v{4+n}, a{240+n-16}")
            else: S(f"v_accvgpr_read_b32 v{4+n}, a{252+n-30}")
        S(f"buffer_store_dwordx4 {vr(4+4*k,4)}, v1, {SRD_WS}, s11 offen offset:{16*k}")
S.label(".Lend")
S("s_endpgm")

body = finalize(S) + finalize(COLD) + ["    s_endpgm"]
H2 = f""".amdgcn_target "amdgcn-amd-amdhsa--gfx950"
.text
.globl {NAME}_kernel
.p2align 8
.type {NAME}_kernel,@function
{NAME}_kernel:"""
if opt['align']:
    body, nbytes, nfix = align_pass(body, H2)
    sys.stderr.write(f"code bytes {nbytes}, alignment fixes {nfix}\n")
hdr = open('cdna_kernels/' + NAME + '.s.ref').read().split('\n')
out = []
for l in hdr:
    if l.startswith('; @launch'): out.append(f"; @launch grid=(256,1,1) block=(256,1,1) lds={LDS_BYTES}"); break
    out.append(l)
out.append(H2)
out += body
kb = opt['code_kb']
assert not opt['align'] or nbytes <= kb * 1024
out.append(f""".fill ({kb*1024 + 2304} - (. - {NAME}_kernel)) / 4, 4, 0xbf800000
.section .rodata,"a"
.p2align 6
.amdhsa_kernel {NAME}_kernel
  .amdhsa_next_free_vgpr 512
  .amdhsa_next_free_sgpr 102
  .amdhsa_accum_offset 256
  .amdhsa_group_segment_fixed_size 0
  .amdhsa_kernarg_size 120
  .amdhsa_user_sgpr_count 2
  .amdhsa_user_sgpr_kernarg_segment_ptr 1
  .amdhsa_system_sgpr_workgroup_id_x 1
.end_amdhsa_kernel""")
if opt['stamps']: out.insert(0, "; stamps: " + ",".join(stamp_names))
print('\n'.join(out))
```

```python
import re

REG_RE = re.compile(r'^(-|\|)?(abs\()?([vas])(\d+|\[(\d+):(\d+)\])\)?\|?$')

def parse_regs(tok):
    tok = tok.strip()
    if tok in ('vcc', 'exec', 'm0', 'scc'):
        return [tok]
    if tok in ('vcc_lo', 'vcc_hi'): return ['vcc']
    if tok in ('exec_lo', 'exec_hi'): return ['exec']
    m = REG_RE.match(tok)
    if not m: return []
    k = m.group(3)
    if m.group(5) is not None:
        return [(k, i) for i in range(int(m.group(5)), int(m.group(6)) + 1)]
    return [(k, int(m.group(4)))]

TRANS = ('v_exp_f32', 'v_log_f32', 'v_rcp_f32', 'v_rsq_f32', 'v_sqrt_f32', 'v_sin_f32', 'v_cos_f32')

class Ins:
    __slots__ = ('text', 'mn', 'kind', 'dst', 'src', 'tok', 'need', 'ops', 'srcC', 'srcAB', 'passes', 'dpp', 'wide', 'data', 'ldsdma', 'cost')
    def __init__(self, text):
        self.text = text
        self.tok = None; self.need = []
        self.dst = []; self.src = []; self.srcC = []; self.srcAB = []; self.passes = 0
        self.dpp = False; self.wide = False; self.data = []; self.ldsdma = False
        t = text.split(';')[0].strip()
        if t.endswith(':'):
            self.kind = 'label'; self.mn = t; return
        parts = t.split(None, 1)
        mn = parts[0]; self.mn = mn
        rest = parts[1] if len(parts) > 1 else ''
        ops = []; depth = 0; cur = ''
        for ch in rest:
            if ch in '[(': depth += 1
            if ch in '])': depth -= 1
            if ch == ',' and depth == 0:
                ops.append(cur.strip()); cur = ''
            else: cur += ch
        if cur.strip(): ops.append(cur.strip())
        mods = ''
        if ops:
            sp = ops[-1].split(None, 1)
            ops[-1] = sp[0]
            if len(sp) > 1: mods = sp[1]
        self.ops = ops
        R = [parse_regs(o) for o in ops]
        flat = lambda L: [r for x in L for r in x]
        if mn.startswith('v_mfma'):
            self.kind = 'mfma'
            self.dst = R[0]; self.srcAB = R[1] + R[2]; self.srcC = R[3]; self.src = self.srcAB + self.srcC
            self.passes = 8 if '32x32x16' in mn else 4
            assert ('32x32x16' in mn) or ('16x16x32' in mn)
        elif mn.startswith('v_'):
            self.kind = 'trans' if mn.replace('_e32', '').replace('_e64', '') in TRANS else 'valu'
            if mn.startswith('v_cmp'):
                self.dst = R[0]; self.src = flat(R[1:])
                if mn.startswith('v_cmpx'): self.dst = self.dst + ['exec']
            elif mn.startswith('v_permlane') and 'swap' in mn:
                self.dst = R[0] + R[1]; self.src = R[0] + R[1]
            elif '_co_' in mn:
                self.dst = R[0] + R[1]; self.src = flat(R[2:])
            elif mn == 'v_nop':
                pass
            else:
                self.dst = R[0]; self.src = flat(R[1:])
                if mn.startswith(('v_fmac', 'v_dot2c', 'v_writelane', 'v_pk_fmac')): self.src = self.src + R[0]
                if mn.startswith('v_cndmask') and len(ops) == 3: self.src = self.src + ['vcc']
            if 'dpp' in mn or 'row_' in mods or 'quad_perm' in mods or 'wave_' in mods:
                self.dpp = True
                self.src = self.src + R[0]
            if 'sdwa' in mn: self.src = self.src + R[0]
        elif mn.startswith('ds_'):
            self.kind = 'ds'
            if mn.startswith(('ds_read', 'ds_bpermute', 'ds_permute', 'ds_swizzle')) or '_rtn' in mn:
                self.dst = R[0]; self.src = flat(R[1:])
            else:
                self.src = flat(R)
        elif mn.startswith(('buffer_', 'global_')):
            self.kind = 'vmem'
            lds = re.search(r'\blds\b', mods) is not None or '_lds_' in mn
            if lds:
                self.ldsdma = True; self.src = flat(R) + ['m0']
            elif '_load' in mn:
                self.dst = R[0]; self.src = flat(R[1:])
                if 'd16' in mn: self.src = self.src + R[0]
            elif mn in ('buffer_inv', 'buffer_wbl2'):
                pass
            else:
                self.src = flat(R)
                if mn.startswith('buffer_'): self.data = R[0]
                else: self.data = R[1]
                self.wide = ('x4' in mn) or ('x3' in mn)
                if 'atomic' in mn and re.search(r'\bsc0\b', mods): self.dst = self.data
        elif mn.startswith(('s_load', 's_buffer_load', 's_memtime', 's_memrealtime')):
            self.kind = 'smem'; self.dst = R[0]; self.src = flat(R[1:])
        elif mn.startswith(('s_cbranch', 's_branch', 's_setpc', 's_swappc', 's_endpgm')):
            self.kind = 'branch'; self.src = flat(R)
        elif mn in ('s_waitcnt', 's_nop', 's_barrier', 's_sleep', 's_setprio'):
            self.kind = 'other'
        elif mn.startswith('s_'):
            self.kind = 'salu'
            if mn.startswith(('s_cmp', 's_bitcmp')):
                self.src = flat(R)
            else:
                self.dst = R[0]; self.src = flat(R[1:])
                if 'saveexec' in mn: self.dst = self.dst + ['exec']
        else:
            raise ValueError("unknown instr: " + text)

class Tok:
    def __init__(self, cls): self.cls = cls; self.done = False

class Stream:
    def __init__(self): self.l = []
    def __call__(self, text, need=None, tok=False):
        for line in text.split('\n'):
            line = line.strip()
            if not line or line.startswith(';'): continue
            i = Ins(line)
            if need: i.need = list(need) if isinstance(need, (list, tuple)) else [need]; need = None
            if i.kind in ('vmem', 'ds'):
                i.tok = Tok('vm' if i.kind == 'vmem' else 'lgkm')
            self.l.append(i)
        return self.l[-1].tok
    def junk(self, text):
        t = self(text); self.l[-1].dst = []; return t
    def wait(self, *toks):
        i = Ins('s_nop 0'); i.kind = 'waitonly'; i.need = [t for t in toks if t is not None]
        self.l.append(i)
    def ext(self, other):
        self.l.extend(other.l if isinstance(other, Stream) else other)
    def label(self, name): self(name + ':')
    def pseudo(self, kind, name=None):
        i = Ins('s_nop 0'); i.kind = kind; i.text = name; self.l.append(i)
    def save(self, name): self.pseudo('save', name)
    def restore(self, name): self.pseudo('restore', name)
    def endpath(self): self.pseudo('endpath')

def interleave(main, fillers, per_gap, start=0, is_anchor=lambda i: i.kind == 'mfma', flush=True):
    out = Stream(); f = list(fillers.l); n = 0; acc = 0.0
    for ins in main.l:
        out.l.append(ins)
        if is_anchor(ins):
            if n >= start:
                acc += per_gap
                while acc >= 1.0 and f:
                    x = f.pop(0); out.l.append(x)
                    if x.kind != 'waitonly': acc -= 1.0
                if not f: acc = 0.0
            n += 1
    if flush: out.l.extend(f); f = []
    rest = Stream(); rest.l = f
    return (out, rest) if not flush else out

def sprinkle(main, groups, every, start=0):
    out = Stream(); g = list(groups); n = 0; nxt = start + every
    for ins in main.l:
        out.l.append(ins)
        if ins.kind in ('waitonly', 'label', 'save', 'restore', 'endpath'): continue
        n += 1
        if n >= nxt and g:
            out.ext(g.pop(0)); nxt += every
    for x in g: out.ext(x)
    return out

def weave(main, plan, is_anchor=lambda i: i.kind == 'mfma'):
    out = Stream(); n = 0; used = set()
    for ins in main.l:
        out.l.append(ins)
        if is_anchor(ins):
            if n in plan: out.ext(plan[n]); used.add(n)
            n += 1
    for k in sorted(plan):
        if k not in used: out.ext(plan[k])
    return out

def spread(fill, first, last, plan=None):
    plan = {} if plan is None else plan
    L = list(fill.l); real = [i for i in L if i.kind != 'waitonly']
    n = last - first + 1; tot = len(real); k = 0
    for ins in L:
        a = first + min(n - 1, (k * n) // max(tot, 1))
        plan.setdefault(a, Stream()).l.append(ins)
        if ins.kind != 'waitonly': k += 1
    return plan

def finalize(stream, verbose=False):
    out = []
    q = {'vm': [], 'lgkm': []}
    saved = {}; lost = set(); issued = set()
    def emit_wait(vm=None, lg=None):
        parts = []
        if vm is not None: parts.append(f'vmcnt({min(vm,63)})')
        if lg is not None: parts.append(f'lgkmcnt({min(lg,15)})')
        out.append(Ins('s_waitcnt ' + ' '.join(parts)))
    def retire(cls, n):
        L = q[cls]
        while len(L) > n:
            L.pop(0)
    for ins in stream.l:
        if ins.kind == 'label':
            out.append(ins); continue
        if ins.kind == 'save':
            saved[ins.text] = {c: list(q[c]) for c in q}; continue
        if ins.kind == 'restore':
            for c in q: q[c][:] = list(saved[ins.text][c])
            continue
        if ins.kind == 'endpath':
            for cls in q:
                pend = [x for x in q[cls] if x[1]]
                if pend:
                    raise RuntimeError(f"pending loads at endpath: {[(sorted(map(str,x[1])))[:4] for x in pend]}")
                for x in q[cls]:
                    if x[0] is not None: lost.add(id(x[0]))
                q[cls][:] = []
            continue
        if ins.mn == 's_waitcnt' and ins.kind == 'other':
            m = re.search(r'vmcnt\((\d+)\)', ins.text)
            if m: retire('vm', int(m.group(1)))
            m = re.search(r'lgkmcnt\((\d+)\)', ins.text)
            if m: retire('lgkm', int(m.group(1)))
            out.append(ins); continue
        need = {'vm': None, 'lgkm': None}
        touched = set(ins.src) | set(ins.dst)
        for cls in q:
            L = q[cls]
            idx = -1
            for k, (tok, dst, sm) in enumerate(L):
                if (dst & touched) or (tok is not None and tok in ins.need):
                    idx = k
            if idx >= 0:
                n = len(L) - 1 - idx
                if cls == 'lgkm' and any(x[2] for x in L): n = 0
                need[cls] = n
        for t in ins.need:
            if id(t) not in issued or (id(t) in lost and not any(t is x[0] for x in q[t.cls])):
                raise RuntimeError("token not in flight (issued later or lost): " + ins.text)
        if need['vm'] is not None or need['lgkm'] is not None:
            emit_wait(need['vm'], need['lgkm'])
            if need['vm'] is not None: retire('vm', min(need['vm'], 63))
            if need['lgkm'] is not None: retire('lgkm', min(need['lgkm'], 15))
        if ins.kind == 'waitonly': continue
        out.append(ins)
        if ins.tok is not None: issued.add(id(ins.tok))
        if ins.kind == 'vmem':
            q['vm'].append((ins.tok, set(ins.dst), False))
            if len(q['vm']) > 63: raise RuntimeError("more than 63 vmem outstanding")
        elif ins.kind == 'ds': q['lgkm'].append((ins.tok, set(ins.dst), False))
        elif ins.kind == 'smem': q['lgkm'].append((None, set(ins.dst), True))
    res = []
    nnop = 0
    def states(i):
        if i.kind == 'label': return 0
        if i.mn == 's_nop': return int(i.ops[0], 0) + 1
        return 1
    isv = lambda r: isinstance(r, tuple) and r[0] in 'va'
    iss = lambda r: (isinstance(r, tuple) and r[0] == 's') or r == 'vcc'
    for ins in out:
        req = 0
        if ins.kind not in ('label',):
            dist = 0
            S = set(ins.src); D = set(ins.dst)
            for p in reversed(res):
                if dist >= 20: break
                if p.kind == 'label':
                    continue
                need = 0
                PD = set(p.dst)
                pv = p.kind in ('valu', 'trans')
                cv = ins.kind in ('valu', 'trans')
                if pv and ins.kind == 'mfma' and (PD & S): need = max(need, 2)
                if pv and 'exec' in PD and ins.kind == 'mfma': need = max(need, 4)
                if p.kind == 'mfma':
                    big = {4: 8, 8: 12}[p.passes]
                    if ins.kind == 'mfma':
                        if PD & set(ins.srcAB): need = max(need, big)
                        if PD & set(ins.srcC):
                            if list(p.dst) == list(ins.srcC) and p.passes == ins.passes: pass
                            else: need = max(need, big - 2)
                        elif PD & D: need = max(need, big - 2)
                    elif ins.kind in ('valu', 'trans', 'ds', 'vmem'):
                        if PD & (S | D): need = max(need, big)
                        if (set(p.srcC) & D): need = max(need, {4: 3, 8: 7}[p.passes])
                if p.kind == 'trans' and cv and (PD & S): need = max(need, 1)
                if p.mn.startswith('v_dot') and (PD & (S | D)): need = max(need, 3)
                if pv and ins.dpp and any(isv(r) for r in PD & S): need = max(need, 2)
                if pv and 'exec' in PD and ins.dpp: need = max(need, 5)
                if pv and ins.mn.startswith('v_permlane') and (PD & S): need = max(need, 2)
                if pv and ins.mn.startswith(('v_readlane', 'v_readfirstlane')) and any(isv(r) for r in PD & S): need = max(need, 1)
                if pv and 'exec' in PD and ins.mn.startswith(('v_readlane', 'v_readfirstlane', 'v_writelane', 'v_permlane')): need = max(need, 4)
                if pv and any(iss(r) for r in PD & S):
                    if cv: need = max(need, 4 if ins.mn.startswith(('v_readlane', 'v_writelane')) else 2)
                    if ins.kind == 'vmem': need = max(need, 5)
                    if ins.kind in ('salu', 'branch'): need = max(need, 1)
                if pv and 'vcc' in PD and ins.mn.startswith('s_cbranch_vcc'): need = max(need, 1)
                if p.kind == 'salu' and 'm0' in PD and ins.ldsdma: need = max(need, 1)
                if p.kind == 'vmem' and p.wide and (set(p.data) & D): need = max(need, 2)
                if pv and ('sdwa' in p.mn or 'op_sel' in p.text) and not p.mn.startswith('v_pk') and cv and (PD & (S | D)): need = max(need, 1)
                if need - dist > req: req = need - dist
                dist += states(p)
        while req > 0:
            k = min(req, 16)
            res.append(Ins(f's_nop {k-1}')); req -= k; nnop += 1
        res.append(ins)
    if verbose: print(f"; finalize: {len(res)} instrs, {nnop} nops inserted")
    return [('' if i.kind == 'label' else '    ') + i.text for i in res]
```

```python
import sys, math, struct
sys.path.insert(0, 'gen')
from emit import *

NAME = "recurrent_scan__ssm_conv_s4d__dense_activation_squared_relu__prompt"
opt = dict(stamps=0, spin=20000, code_kb=40, g1pre=10)
for a in sys.argv[1:]:
    k, v = a.split('='); opt[k] = int(v)

def f32(x): return struct.unpack('<I', struct.pack('<f', x))[0]
def vr(b, n=1): return f"v{b}" if n == 1 else f"v[{b}:{b+n-1}]"
def ar(b, n=1): return f"a{b}" if n == 1 else f"a[{b}:{b+n-1}]"
def vp(b): return f"v[{b}:{b+1}]"

XNA = 0; XNB = 0x280000; HB = 0x500000; YT = 0xB00000
FX = 0xD80000; FH = FX + 0x1000; FY = FX + 0x3000
STAMP = 0xE00000
L_W = 0
L_R = 122880
L_SCR = L_R; SCR_W = 9216
L_K = L_R; KSLOT = 8512; OOFF = 4284
L_U = L_K + 3 * KSLOT; USLOT = 4352
L_LN = L_R; LNROW = 1344
L_MISC = L_U + 3 * USLOT
W2W = 30720
LDS_BYTES = 163840
assert L_MISC >= L_SCR + 4 * SCR_W and L_MISC + 64 <= LDS_BYTES and 8 * LNROW <= 2 * SCR_W
sWG, sWAVE, sRB, sCB, sRB2, sCB2, sCBASE, sPAR, sNONCE = 2, 3, 4, 5, 6, 7, 8, 9, 10
P = lambda k: f"s[{16+2*k}:{17+2*k}]"
pX, pLOGA, pAIM, pCR, pCI, pLOGDT, pDSK, pBX, pW1, pB1, pW2, pB2, pOUT, pDBG, pWS = range(15)
SRD_X, SRD_W1, SRD_W2, SRD_WS, SRD_OUT = "s[48:51]", "s[52:55]", "s[56:59]", "s[60:63]", "s[64:67]"
sYB, sYF, sYF2 = 46, 47, 100
sJ, sXH = 101, 83
SPIN_MAX = opt['spin']
JUNK = "a255"
LOG2E = 1.4426950408889634

S = Stream()
COLD = Stream()
stamp_names = []
def stamp(s, name):
    if not opt['stamps']: return
    if name not in stamp_names: stamp_names.append(name)
    idx = stamp_names.index(name)
    assert idx < 28
    s("s_memtime s[68:69]")
    s("s_waitcnt lgkmcnt(0)")
    if idx < 16: s(f"s_mov_b32 s{84+idx}, s68")
    else: s(f"v_accvgpr_write_b32 a{240+idx-16}, s68")

def bf16_round(s, dst, src):
    s(f"v_cvt_pk_bf16_f32 {dst}, {src}, {src}")
    s(f"v_and_b32 {dst}, 0xffff0000, {dst}")

LDN = {1: 'dword', 2: 'dwordx2', 4: 'dwordx4'}
def flag_load(s, loads, nonce=None):
    for vd, n, vo, imm in loads:
        s(f"buffer_load_{LDN[n]} {vr(vd, n)}, v{vo}, {SRD_WS}, 0 offen offset:{imm} sc0 sc1")
    if nonce: s(f"global_load_dword v{nonce[0]}, v{nonce[1]}, {P(pDBG)} sc0 sc1")
def flag_test(s, loads, nonce=None):
    regs = [vd + k for vd, n, vo, imm in loads for k in range(n)]
    if nonce:
        s(f"v_readfirstlane_b32 s{sNONCE}, v{nonce[0]}")
    for r in regs: s(f"v_xor_b32 v{r}, s{sNONCE}, v{r}")
    for r in regs[1:]: s(f"v_or_b32 v{regs[0]}, v{regs[0]}, v{r}")
    if nonce:
        s(f"v_cmp_eq_u32 vcc, 0, v{nonce[0]}")
        s(f"v_cndmask_b32 v{regs[0]}, v{regs[0]}, 1, vcc")
    s(f"v_cmp_ne_u32 vcc, 0, v{regs[0]}")
uid = [0]
def flag_check(s, loads, nonce=None):
    uid[0] += 1; L = f".Lc{uid[0]}"
    flag_test(s, loads, nonce)
    s(f"s_cbranch_vccnz {L}s")
    s.label(f"{L}b")
    c = COLD
    c.label(f"{L}s")
    c("s_mov_b32 s70, 0")
    c.label(f"{L}l")
    c("s_sleep 2")
    flag_load(c, loads, nonce)
    c("s_waitcnt vmcnt(0)")
    flag_test(c, loads, nonce)
    c(f"s_add_u32 s70, s70, 1\ns_cmp_gt_u32 s70, {SPIN_MAX}\ns_cbranch_scc1 {L}x\ns_cbranch_vccnz {L}l")
    c.label(f"{L}x")
    c(f"s_nop 4\ns_branch {L}b")

if opt['stamps']:
    S("s_memtime s[84:85]"); stamp_names.append('start')
S(f"s_cmp_ge_u32 s{sWG}, 256")
S("s_cbranch_scc1 .Lend")
S("s_load_dwordx16 s[16:31], s[0:1], 0")
S("s_getpc_b64 s[72:73]")
S("v_lshlrev_b32 v1, 7, v0")
S("s_load_dwordx8 s[32:39], s[0:1], 64")
S.junk(f"global_load_dword {JUNK}, v1, s[72:73]")
S.junk(f"global_load_dword {JUNK}, v1, s[72:73] offset:64")
S("s_load_dwordx4 s[40:43], s[0:1], 96")
S("s_load_dwordx2 s[44:45], s[0:1], 112")
vXO = 90
S(f"""v_lshrrev_b32 v2, 4, v0
s_lshl_b32 s11, s{sWG}, 3
v_add_u32 v2, s11, v2
v_mul_u32_u24 v2, 1280, v2
v_and_b32 v3, 15, v0
v_lshl_add_u32 v{vXO}, v3, 4, v2
v_lshrrev_b32 v3, 6, v0
v_and_b32 v0, 63, v0
v_readfirstlane_b32 s{sWAVE}, v3
s_and_b32 s11, s{sWG}, 7
s_lshr_b32 s{sJ}, s{sWG}, 3
s_and_b32 s{sPAR}, s{sJ}, 1
s_lshl_b32 s{sCBASE}, s11, 4
s_lshr_b32 s15, s{sJ}, 1
s_add_u32 s{sCBASE}, s{sCBASE}, s15
s_mul_i32 s{sCBASE}, s{sCBASE}, 5
s_lshl_b32 s15, s{sPAR}, 1
s_add_u32 s{sCBASE}, s{sCBASE}, s15""")
vPO = 96; vPAR = 100
S(f"""s_cmp_eq_u32 s{sWAVE}, 3
s_cselect_b32 s12, 0, s{sWAVE}
s_movk_i32 s13, 128
s_cselect_b32 s13, 384, s13
s_cselect_b32 s14, 256, 0
s_cselect_b32 s70, 2, 0
s_add_u32 s12, s12, s{sCBASE}
s_mul_i32 s15, s12, 384
s_add_u32 s15, s15, s14
s_lshl_b32 s12, s12, 1
v_lshl_add_u32 v{vPO}, v0, 1, s15
v_add_u32 v{vPO+1}, s13, v{vPO}
v_add_u32 v{vPO+2}, s13, v{vPO+1}
v_mov_b32 v92, s12
v_add_u32 v93, s70, v92
v_add_u32 v94, s70, v93
s_cmp_ge_u32 s{sWAVE}, 2
s_waitcnt lgkmcnt(0)""")
vX = 20
S("s_cbranch_scc1 .Lnox")
for j in range(5):
    S(f"global_load_dwordx4 {vr(vX+4*j,4)}, v{vXO}, {P(pX)} offset:{256*j}")
S.label(".Lnox")
for u in range(3):
    for k, p in enumerate((pLOGA, pAIM, pCR, pCI)):
        S(f"global_load_ushort v{vPAR+5*u+k}, v{vPO+u}, {P(p)}")
    S(f"global_load_ushort v{vPAR+5*u+4}, v{92+u}, {P(pLOGDT)}")
stamp(S, 'issued')
if opt['stamps']:
    S("s_memrealtime s[68:69]\ns_waitcnt lgkmcnt(0)\nv_accvgpr_write_b32 a252, s68")
if opt['code_kb'] > 32:
    S(f"v_add_u32 v1, 32768, v1\ns_cmp_ge_u32 s{sWAVE}, {(opt['code_kb'] - 32 + 7) // 8}\ns_cbranch_scc1 .Lnopf")
    S.junk(f"global_load_dword {JUNK}, v1, s[72:73]")
    S.junk(f"global_load_dword {JUNK}, v1, s[72:73] offset:64")
    S.label(".Lnopf")
    PFX = 2
def srd(name, p, nbytes):
    b = int(name[2:name.index(':')])
    S(f"s_mov_b32 s{b}, s{16+2*p}\ns_mov_b32 s{b+1}, s{17+2*p}\ns_mov_b32 s{b+2}, {nbytes}\ns_mov_b32 s{b+3}, 0x20000")
srd(SRD_W1, pW1, 640*1536*2)
srd(SRD_WS, pWS, 0x10000000)
srd(SRD_W2, pW2, 640*1536*2)
srd(SRD_X, pX, 2048*640*2)
srd(SRD_OUT, pOUT, 2048*640*2)
S(f"""s_lshr_b32 s13, s11, 1
s_and_b32 s{sXH}, s11, 1
s_lshl_b32 s{sRB}, s13, 2
s_and_b32 s15, s{sJ}, 3
s_add_u32 s{sRB}, s{sRB}, s15
s_lshl_b32 s{sCB}, s{sXH}, 3
s_lshr_b32 s15, s{sJ}, 2
s_add_u32 s{sCB}, s{sCB}, s15
s_lshl_b32 s{sRB2}, s13, 3
s_and_b32 s15, s{sJ}, 7
s_add_u32 s{sRB2}, s{sRB2}, s15
s_lshl_b32 s{sCB2}, s{sXH}, 2
s_lshr_b32 s15, s{sJ}, 3
s_add_u32 s{sCB2}, s{sCB2}, s15
s_mov_b32 s{sNONCE}, 0
v_mov_b32 v1, {L_MISC}
v_mov_b32 v2, 0
v_mov_b32 v3, 0
ds_write_b64 v1, v[2:3]
s_cmp_ge_u32 s{sWAVE}, 2
s_waitcnt lgkmcnt(0)
s_barrier""")
S.save('role0')
S("s_cbranch_scc1 .Lrole_b")
S("s_waitcnt vmcnt(15)")
vF = 40
for k in range(20):
    S(f"v_lshlrev_b32 v{vF+2*k}, 16, v{vX+k}")
    S(f"v_and_b32 v{vF+2*k+1}, 0xffff0000, v{vX+k}")
stamp(S, 'x_in')
S(f"v_pk_add_f32 v[80:81], {vp(vF)}, {vp(vF+2)}")
S(f"v_pk_add_f32 v[82:83], {vp(vF+4)}, {vp(vF+6)}")
for k in range(4, 20):
    a = 80 + 2 * (k & 1)
    S(f"v_pk_add_f32 {vp(a)}, {vp(a)}, {vp(vF+2*k)}")
S("v_pk_add_f32 v[80:81], v[80:81], v[82:83]")
S("v_add_f32 v80, v80, v81")
def rowsum(s, r, fill):
    for sh in (8, 4, 2, 1):
        s(f"v_add_f32_dpp v{r}, v{r}, v{r} row_ror:{sh} row_mask:0xf bank_mask:0xf")
        for _ in range(2):
            if fill: s(fill.pop(0))
fill = f"""s_lshl_b32 s11, s{sWAVE}, 2
v_lshrrev_b32 v1, 4, v0
v_add_u32 v1, s11, v1
v_mul_u32_u24 v1, {LNROW}, v1
v_and_b32 v2, 15, v0
v_lshl_add_u32 v1, v2, 4, v1
v_add_u32 v1, {L_LN}, v1
v_and_b32 v4, 7, v0
v_mul_u32_u24 v4, {LNROW}, v4
v_lshrrev_b32 v5, 3, v0
v_lshl_add_u32 v4, v5, 4, v4
s_mul_i32 s11, s{sWAVE}, 640
s_add_u32 s11, s11, {L_LN}
v_add_u32 v4, s11, v4
v_and_b32 v5, 15, v0
v_lshrrev_b32 v6, 2, v5""".split('\n')
rowsum(S, 80, fill)
S(f"v_mul_f32 v80, {f32(-1.0/640)}, v80")
S("v_mov_b32 v81, v80")
for k in range(20):
    t = 86 + 2 * (k & 1); a = 82 + 2 * (k & 1)
    S(f"v_pk_add_f32 {vp(t)}, {vp(vF+2*k)}, v[80:81]")
    if k < 2: S(f"v_pk_mul_f32 {vp(a)}, {vp(t)}, {vp(t)}")
    else: S(f"v_pk_fma_f32 {vp(a)}, {vp(t)}, {vp(t)}, {vp(a)}")
S("v_pk_add_f32 v[82:83], v[82:83], v[84:85]")
S("v_add_f32 v82, v82, v83")
bf16_round(S, "v80", "v80")
rowsum(S, 82, fill)
assert not fill
S("v_mov_b32 v81, v80")
S(f"v_mul_f32 v82, {f32(1.0/640)}, v82")
bf16_round(S, "v82", "v82")
S(f"v_add_f32 v82, {f32(1e-5)}, v82")
bf16_round(S, "v82", "v82")
S("v_sqrt_f32 v82, v82")
S("v_mov_b32 v88, 0")
bf16_round(S, "v82", "v82")
S("v_rcp_f32 v82, v82")
S(f"global_load_dword v89, v88, {P(pDBG)} sc0 sc1")
for k in range(20):
    S(f"v_pk_add_f32 {vp(vF+2*k)}, {vp(vF+2*k)}, v[80:81]")
    S(f"v_cvt_pk_bf16_f32 v{vX+k}, v{vF+2*k}, v{vF+2*k+1}")
S("v_mov_b32 v83, v82")
for j in range(5):
    for k in range(4*j, 4*j+4):
        S(f"v_lshlrev_b32 v{vF+2*k}, 16, v{vX+k}")
        S(f"v_and_b32 v{vF+2*k+1}, 0xffff0000, v{vX+k}")
    for k in range(4*j, 4*j+4):
        S(f"v_pk_mul_f32 {vp(vF+2*k)}, {vp(vF+2*k)}, v[82:83]")
    for k in range(4*j, 4*j+4):
        S(f"v_cvt_pk_bf16_f32 v{vX+k}, v{vF+2*k}, v{vF+2*k+1}")
    S(f"ds_write_b128 v1, {vr(vX+4*j,4)} offset:{256*j}")
S(f"""s_lshl_b32 s12, s{sWAVE}, 2
s_add_u32 s12, s12, {L_MISC}
s_xor_b32 s13, s12, 4
v_mov_b32 v2, s12
v_mov_b32 v3, 1
ds_write_b32 v2, v3
v_mov_b32 v2, s13
s_mov_b32 s70, 0
v_mul_u32_u24 v6, {LNROW}, v6
v_and_b32 v5, 3, v5
v_lshl_add_u32 v6, v5, 3, v6
v_lshrrev_b32 v5, 4, v0
v_lshl_add_u32 v6, v5, 5, v6
v_add_u32 v6, s11, v6
v_lshlrev_b32 v7, 10, v5
v_bfe_u32 v5, v0, 3, 1
v_lshl_add_u32 v7, v5, 9, v7
v_and_b32 v5, 7, v0
v_lshl_add_u32 v7, v5, 4, v7
v_lshlrev_b32 v8, 4, v0
s_lshr_b32 s12, s{sWG}, 2
s_mul_i32 s12, s12, 40960
s_and_b32 s13, s{sWG}, 3
s_lshl_b32 s13, s13, 7
s_add_u32 s12, s12, s13
s_mul_i32 s13, s{sWAVE}, 20480
s_add_u32 s12, s12, s13
s_mul_i32 s13, s{sWG}, 10240
s_mul_i32 s14, s{sWAVE}, 5120
s_add_u32 s13, s13, s14
s_add_u32 s13, s13, {XNB}""")
S.label(".Llnsync")
S(f"""ds_read_b32 v3, v2
s_waitcnt lgkmcnt(0)
v_readfirstlane_b32 s11, v3
s_add_u32 s70, s70, 1
s_cmp_gt_u32 s70, {SPIN_MAX*8}
s_cbranch_scc1 .Llnsyncx
s_cmp_eq_u32 s11, 0
s_cbranch_scc1 .Llnsync""")
S.label(".Llnsyncx")
for it in range(5):
    S(f"ds_read_b128 {vr(40+4*it,4)}, v4 offset:{128*it}")
for it in range(5):
    S(f"ds_read_b64_tr_b16 {vr(60+4*it,2)}, v6 offset:{128*it}")
    S(f"ds_read_b64_tr_b16 {vr(62+4*it,2)}, v6 offset:{128*it + 4*LNROW}")
for it in range(5):
    S(f"buffer_store_dwordx4 {vr(40+4*it,4)}, v7, {SRD_WS}, s12 offen sc0 sc1")
    if it < 4: S("s_add_u32 s12, s12, 4096")
for it in range(5):
    S(f"buffer_store_dwordx4 {vr(60+4*it,4)}, v8, {SRD_WS}, s13 offen offset:{1024*(it%4)} sc0 sc1")
    if it == 3: S("s_add_u32 s13, s13, 4096")
S(f"v_readfirstlane_b32 s{sNONCE}, v89")
S(f"""s_lshl_b32 s12, s{sWAVE}, 2
s_add_u32 s12, s12, {L_MISC}
v_mov_b32 v4, s12
v_mov_b32 v3, 2
ds_write_b32 v4, v3
s_mov_b32 s70, 0""")
stamp(S, 'ln_st')
S.label(".Llnsync2")
S(f"""ds_read_b32 v3, v2
s_waitcnt lgkmcnt(0)
v_readfirstlane_b32 s11, v3
s_add_u32 s70, s70, 1
s_cmp_gt_u32 s70, {SPIN_MAX*8}
s_cbranch_scc1 .Llnsync2x
s_cmp_lt_u32 s11, 2
s_cbranch_scc1 .Llnsync2""")
S.label(".Llnsync2x")
S.endpath()
S("s_branch .Lkgen")
S.label(".Lrole_b")
S.restore('role0')
S(f"""s_sub_u32 s11, s{sWAVE}, 2
s_or_b32 s12, s{sWG}, s11
s_cmp_lg_u32 s12, 0
s_cbranch_scc1 .Lnononce
s_memrealtime s[68:69]
s_waitcnt lgkmcnt(0)
s_lshl_b32 s68, s68, 1
s_or_b32 s68, s68, 1
v_mov_b32 v1, s68
v_mov_b32 v2, 0
global_store_dword v2, v1, {P(pDBG)} sc0 sc1""")
S.label(".Lnononce")
S(f"""s_mul_i32 s11, s11, 10
s_mul_i32 s12, s{sJ}, 20
s_add_u32 s11, s11, s12
s_mul_i32 s11, s11, 3072
s_mul_i32 s12, s{sXH}, 1536
s_add_u32 s11, s11, s12
s_add_u32 s12, s11, {2*3072}
v_lshrrev_b32 v1, 3, v0
v_mul_u32_u24 v1, 3072, v1
v_and_b32 v2, 7, v0
v_lshl_add_u32 v1, v2, 6, v1""")
for g in range(2):
    for c in range(3):
        S.junk(f"buffer_load_dword {JUNK}, v1, {SRD_W1}, s{11+g} offen offset:{512*c}")
S("s_waitcnt vmcnt(6)")
S.endpath()

S.label(".Lkgen")
vD = [4, 20, 36]
vT = 52
vW1O = 116
vFs = 120; vPK = 184
vFO = 200
vGOl = [232, 236, 240, 244, 76, 80, 84, 88]
vSW, vSR = 250, 251
for i in range(3):
    S(f"""v_add_u32 v1, {64*i}, v0
v_mul_u32_u24 v2, 0xaaab, v1
v_lshrrev_b32 v2, 19, v2
v_mul_u32_u24 v3, 12, v2
v_sub_u32 v3, v1, v3
v_mul_u32_u24 v2, 3072, v2
v_lshl_add_u32 v{vW1O+i}, v3, 4, v2""")
S(f"""s_mul_i32 s11, s{sWAVE}, {SCR_W}
s_add_u32 s11, s11, {L_SCR}
v_mul_u32_u24 v{vSW}, 144, v0
v_add_u32 v{vSW}, s11, v{vSW}
v_and_b32 v1, 15, v0
v_bfe_u32 v2, v1, 2, 1
v_lshlrev_b32 v{vSR}, 6, v2
v_bfe_u32 v2, v1, 3, 1
v_mul_u32_u24 v2, {8*144}, v2
v_add_u32 v{vSR}, v{vSR}, v2
v_and_b32 v2, 3, v1
v_lshl_add_u32 v{vSR}, v2, 3, v{vSR}
v_bfe_u32 v2, v0, 4, 1
v_lshl_add_u32 v{vSR}, v2, 5, v{vSR}
v_lshrrev_b32 v2, 5, v0
v_mul_u32_u24 v2, {16*144}, v2
v_add_u32 v{vSR}, v{vSR}, v2
v_add_u32 v{vSR}, s11, v{vSR}""")
def cmuls(s, lst):
    for d, x, y in lst:
        assert d != x and d != y
        s(f"v_pk_mul_f32 {vp(d)}, {vp(x)}, {vp(y)} op_sel:[0,0] op_sel_hi:[1,0]")
    for d, x, y in lst:
        s(f"v_pk_fma_f32 {vp(d)}, {vp(x)}, {vp(y)}, {vp(d)} op_sel:[1,1,0] op_sel_hi:[0,1,1] neg_lo:[0,1,0]")
I2PI = 1.0 / (2 * math.pi)
i2pi_hi = struct.unpack('<f', struct.pack('<f', I2PI))[0]
i2pi_lo = I2PI - i2pi_hi
hi0 = [0,1,2,3,4,5,6,7,8, 512,516,520, 1024,1032, 1280,1288]
hi1 = [256,256,258,260,260,260,262,264,264, 768,772,776, 1536,1544, 1792,1800]
rowhi = [(hi0, hi1)[(p >> 2) & 1][4 * (p >> 3) + (p & 3)] for p in range(32)]
def trimm(s_, r): return (r + 2 * (s_ & 3)) * 144 + (s_ >> 2) * 32 * 144
def k_mfmas(u):
    out = []
    for s_ in range(8):
        x = Stream()
        c = "0" if s_ == 0 else vr(vD[u], 16)
        x(f"v_mfma_f32_32x32x16_bf16 {vr(vD[u],16)}, {vr(vGOl[s_],4)}, {vr(vFO+4*s_,4)}, {c}")
        out.append(x)
    return out
def pack8(s, vals, blk, negim):
    b = vPK + 8 * (blk & 1)
    for j in range(4):
        s(f"v_cvt_pk_bf16_f32 v{b+j}, {vals[2*j][0]}, {vals[2*j+1][0]}")
    s(f"ds_write_b128 v{vSW}, {vr(b,4)} offset:{16*blk}")
    n = '-' if negim else ''
    for j in range(4):
        s(f"v_cvt_pk_bf16_f32 v{b+4+j}, {n}{vals[2*j][1]}, {n}{vals[2*j+1][1]}")
    s(f"ds_write_b128 v{vSW}, {vr(b+4,4)} offset:{64+16*blk}")
def kgen_unit(u):
    A = Stream(); B = Stream()
    pa, pb, pc, pd, pe = range(vPAR + 5*u, vPAR + 5*u + 5)
    va, vbh, vbl, vdt = vT, vT+1, vT+2, vT+3
    vW1, vW8, vW256, vW2, vW4, vG0 = vT+4, vT+6, vT+8, vT+10, vT+12, vT+14
    G = lambda k: vFs + 2 * k
    for r in (pe, pa, pb, pc, pd): A(f"v_lshlrev_b32 v{r}, 16, v{r}")
    A(f"""v_mul_f32 v{vdt}, {f32(LOG2E)}, v{pe}
v_mul_f32 v{va}, {f32(LOG2E)}, v{pa}
v_exp_f32 v{vdt}, v{vdt}
v_exp_f32 v{va}, v{va}
s_mov_b32 s11, {f32(i2pi_hi)}
v_cvt_pk_bf16_f32 v{va}, v{vdt}, v{va}
v_lshlrev_b32 v{vdt}, 16, v{va}
v_and_b32 v{va}, 0xffff0000, v{va}
v_mul_f32 v{pb}, v{pb}, v{vdt}
v_mul_f32 v{va}, v{va}, v{vdt}
v_mul_f32 v{vbh}, {f32(i2pi_hi)}, v{pb}
v_mul_f32 v{va}, {f32(-LOG2E)}, v{va}
v_fma_f32 v{vbl}, v{pb}, s11, -v{vbh}
v_add_f32 v{vdt}, v{vdt}, v{vdt}
v_fmac_f32 v{vbl}, {f32(i2pi_lo)}, v{pb}""")
    t0 = vT + 16
    m8, a8, m1, a1, m2, a2 = range(t0, t0 + 6)
    A(f"""v_mul_f32 v{m8}, {f32(8.0)}, v{va}
v_mul_f32 v{a8}, {f32(8.0)}, v{vbh}
v_exp_f32 v{m8}, v{m8}
v_fract_f32 v{a8}, v{a8}
v_exp_f32 v{m1}, v{va}
v_fmac_f32 v{a8}, {f32(8.0)}, v{vbl}
v_fract_f32 v{a1}, v{vbh}
v_cos_f32 v{vW8}, v{a8}
v_add_f32 v{a1}, v{a1}, v{vbl}
v_sin_f32 v{vW8+1}, v{a8}
v_mul_f32 v{m2}, {f32(256.0)}, v{va}
v_cos_f32 v{vW1}, v{a1}
v_mul_f32 v{a2}, {f32(256.0)}, v{vbh}
v_sin_f32 v{vW1+1}, v{a1}
v_fract_f32 v{a2}, v{a2}
v_exp_f32 v{m2}, v{m2}
v_fmac_f32 v{a2}, {f32(256.0)}, v{vbl}
v_pk_mul_f32 {vp(vW8)}, {vp(vW8)}, {vp(m8)} op_sel:[0,0] op_sel_hi:[1,0]
v_cos_f32 v{vW256}, v{a2}
v_pk_mul_f32 {vp(vW1)}, {vp(vW1)}, {vp(m1)} op_sel:[0,0] op_sel_hi:[1,0]
v_sin_f32 v{vW256+1}, v{a2}""")
    F = lambda k: vW8 if k == 1 else G(k)
    cmuls(A, [(F(2), F(1), F(1)), (vW2, vW1, vW1)])
    A(f"v_mul_f32 v{vG0}, v{pc}, v{vdt}\nv_mul_f32 v{vG0+1}, v{pd}, v{vdt}")
    cmuls(A, [(F(3), F(2), F(1)), (F(4), F(2), F(2)), (vW4, vW2, vW2)])
    A(f"v_pk_mul_f32 {vp(vW256)}, {vp(vW256)}, {vp(m2)} op_sel:[0,0] op_sel_hi:[1,0]")
    cmuls(A, [(F(k), F(k-4), F(4)) for k in (5, 6, 7, 8)])
    val = lambda r: (f"v{r}", f"v{r+1}")
    for blk in range(4):
        if blk < 3:
            lo = 8 * blk + 9
            cmuls(A, [(F(k), F(k-4), F(4)) for k in range(lo, lo+4)])
            cmuls(A, [(F(k), F(k-4), F(4)) for k in range(lo+4, min(lo+8, 32))])
        pack8(A, [("1.0", "0") if 8*blk+j == 0 else val(F(8*blk+j)) for j in range(8)], blk, False)
    for s_ in range(8):
        for r in range(2):
            B(f"ds_read_b64_tr_b16 {vr(vFO+4*s_+2*r,2)}, v{vSR} offset:{trimm(s_, r)}")
    his = sorted(set(hi0 + hi1))
    gi = {h: G(n) for n, h in enumerate(his)}; gi[0] = vG0
    cmuls(B, [(gi[1], gi[0], vW1), (gi[2], gi[0], vW2), (gi[4], gi[0], vW4), (gi[8], gi[0], vW8), (gi[256], gi[0], vW256)])
    cmuls(B, [(gi[3], gi[2], vW1), (gi[5], gi[4], vW1), (gi[6], gi[4], vW2), (gi[258], gi[256], vW2), (gi[260], gi[256], vW4), (gi[264], gi[256], vW8), (gi[512], gi[256], vW256)])
    cmuls(B, [(gi[7], gi[6], vW1), (gi[262], gi[260], vW2), (gi[516], gi[512], vW4), (gi[520], gi[512], vW8), (gi[768], gi[512], vW256)])
    cmuls(B, [(gi[772], gi[768], vW4), (gi[776], gi[768], vW8), (gi[1024], gi[768], vW256)])
    pack8(B, [val(gi[h]) for h in rowhi[0:8]], 0, True)
    cmuls(B, [(gi[1032], gi[1024], vW8), (gi[1280], gi[1024], vW256)])
    pack8(B, [val(gi[h]) for h in rowhi[8:16]], 1, True)
    cmuls(B, [(gi[1288], gi[1280], vW8), (gi[1536], gi[1280], vW256)])
    pack8(B, [val(gi[h]) for h in rowhi[16:24]], 2, True)
    cmuls(B, [(gi[1544], gi[1536], vW8), (gi[1792], gi[1536], vW256)])
    cmuls(B, [(gi[1800], gi[1792], vW8)])
    pack8(B, [val(gi[h]) for h in rowhi[24:32]], 3, True)
    for s_ in range(8):
        for r in range(2):
            B(f"ds_read_b64_tr_b16 {vr(vGOl[s_]+2*r,2)}, v{vSR} offset:{trimm(s_, r)}")
    if u > 0: A = sprinkle(A, k_mfmas(u - 1), 12, start=4)
    s = Stream(); s.ext(A); s.ext(B)
    return s
def w1_groups(u):
    pre = Stream()
    pre(f"""s_lshl_b32 s71, s{sWAVE}, 1
s_add_u32 s71, s71, {u}
s_mul_i32 s72, s71, {5*3072}
s_add_u32 s71, s71, s{sCB}
s_and_b32 s71, s71, 7
s_mul_i32 s71, s71, {5*49152}
s_mul_i32 s73, s{sCB}, 192
s_add_u32 s71, s71, s73""")
    gs = [pre]
    for k in range(5):
        for i in range(3):
            g = Stream()
            g(f"s_add_u32 m0, s72, {L_W + k*3072 + i*1024}")
            g(f"buffer_load_dwordx4 v{vW1O+i}, {SRD_W1}, s71 offen lds")
            if i == 2 and k < 4: g("s_add_u32 s71, s71, 49152")
            gs.append(g)
    return gs
S.ext(sprinkle(kgen_unit(0), w1_groups(0), 16, start=8))
stamp(S, 'k_u0')
S(f"s_cmp_ge_u32 s{sWAVE}, 2\ns_cbranch_scc1 .Lnoflag")
S(f"s_cmp_eq_u32 s{sNONCE}, 0\ns_cbranch_scc1 .Lnonce_s")
S.label(".Lnonce_b")
COLD.label(".Lnonce_s")
COLD(f"s_mov_b32 s70, 0\nv_mov_b32 v1, 0")
COLD.label(".Lnonce_l")
COLD(f"global_load_dword v2, v1, {P(pDBG)} sc0 sc1\ns_waitcnt vmcnt(0)\nv_readfirstlane_b32 s{sNONCE}, v2\ns_add_u32 s70, s70, 1\ns_cmp_gt_u32 s70, {SPIN_MAX}\ns_cbranch_scc1 .Lnonce_b\ns_cmp_eq_u32 s{sNONCE}, 0\ns_cbranch_scc1 .Lnonce_l\ns_branch .Lnonce_b")
S(f"""s_lshl_b32 s11, s{sWG}, 3
s_lshl_b32 s12, s{sWAVE}, 2
s_add_u32 s11, s11, s12
s_add_u32 s11, s11, {FX}
v_mov_b32 v2, s{sNONCE}
v_mov_b32 v1, 0
s_waitcnt vmcnt(15)
buffer_store_dword v2, v1, {SRD_WS}, s11 offen sc0 sc1""")
S.label(".Lnoflag")
stamp(S, 'ln_flag')
g2 = Stream()
g2(f"""s_mul_i32 s12, s{sJ}, 48
s_mul_i32 s13, s{sWAVE}, 12
s_add_u32 s12, s12, s13
s_mul_i32 s12, s12, 1280
s_mul_i32 s13, s{sXH}, 640
s_add_u32 s12, s12, s13
v_lshrrev_b32 v1, 2, v0
v_mul_u32_u24 v1, 1280, v1
v_and_b32 v2, 3, v0
v_lshl_add_u32 v1, v2, 6, v1""")
for c in range(3): g2.junk(f"buffer_load_dword {JUNK}, v1, {SRD_W2}, s12 offen offset:{256*c}")
S.ext(sprinkle(kgen_unit(1), w1_groups(1) + [g2], 16, start=2))
stamp(S, 'k_u1')
S(f"s_cmp_lg_u32 s{sWAVE}, 3")
S.save('u2')
S("s_cbranch_scc1 .Lk2")
S.ext(kgen_unit(2))
for x in k_mfmas(2): S.ext(x)
S("s_branch .Lk3")
S.label(".Lk2")
S.restore('u2')
for x in k_mfmas(1): S.ext(x)
S.label(".Lk3")
stamp(S, 'kgen')
S(f"""s_lshl_b32 s11, s{sRB}, 7
s_lshl_b32 s12, s{sWAVE}, 5
s_add_u32 s11, s11, s12
s_add_u32 s11, s11, {FX}
v_and_b32 v52, 7, v0
v_lshl_add_u32 v52, v52, 2, s11
v_mov_b32 v55, 0""")
S("s_waitcnt vmcnt(0)")
XF = [(53, 1, 52, 0)]
flag_load(S, XF, (54, 55))
S("s_barrier")
stamp(S, 'bar1')
S(f"v_lshlrev_b32 v253, 4, v0\ns_cmp_lg_u32 s{sWAVE}, 3\ns_cbranch_scc1 .Lnomb")
S(f"v_add_u32 v1, {L_K}, v253")
for u in range(3):
    for k in range(4):
        S(f"ds_write_b128 v1, {vr(vD[u]+4*k,4)} offset:{u*KSLOT + 1024*k}")
S.label(".Lnomb")
for k in range(8):
    S(f"v_pk_add_f32 {vp(vD[0]+2*k)}, {vp(vD[0]+2*k)}, {vp(vD[1]+2*k)}")
S(f"""s_lshl_b32 s11, s{sRB}, 2
s_add_u32 s11, s11, s{sWAVE}
s_mul_i32 s76, s11, 40960
v_add_u32 v252, 1024, v253
s_mul_i32 s11, s{sCB}, 192
v_lshrrev_b32 v1, 5, v0
v_lshl_add_u32 v1, v1, 3, s11""")
vB1P = 96; vB1 = 200
for k in range(12):
    S(f"global_load_dwordx2 {vr(vB1P+2*k,2)}, v1, {P(pB1)} offset:{16*k}")
S("s_waitcnt lgkmcnt(0)")
S("s_barrier")
flag_check(S, XF, (54, 55))
stamp(S, 'xnpoll')
def xn_load(s, i):
    if i % 5 == 0:
        s(f"s_add_u32 s77, s{sCB}, {i//5}\ns_and_b32 s77, s77, 7\ns_mul_i32 s77, s77, 5120\ns_add_u32 s77, s77, s76")
    k = i % 5
    s(f"buffer_load_dwordx4 {ar(4*i,4)}, v{253 if k < 4 else 252}, {SRD_WS}, s77 offen offset:{1024*min(k,3)} sc1")
G1PRE = opt['g1pre']
for i in range(G1PRE): xn_load(S, i)
vD0 = vD[0]
S(f"s_cmp_eq_u32 s{sWAVE}, 3")
S.save('exp')
S("s_cbranch_scc1 .Lnoexp")
S(f"s_mul_i32 s11, s{sWAVE}, {KSLOT}\ns_add_u32 s11, s11, {L_K}\nv_add_u32 v1, s11, v253")
for k in range(4):
    S(f"ds_read_b128 {vr(44+4*k,4)}, v1 offset:{1024*k}")
S(f"""v_and_b32 v2, 31, v0
v_sub_u32 v2, 31, v2
v_lshl_add_u32 v2, v2, 4, s11
v_subrev_u32 v2, 32, v2
v_lshrrev_b32 v3, 5, v0
v_sub_u32 v3, 1, v3
v_lshl_add_u32 v60, v3, 9, v2
v_mul_u32_u24 v3, 1056, v3
v_add_u32 v61, v3, v2
v_add_u32 v62, {OOFF}, v60
v_add_u32 v63, {OOFF}, v61
v_and_b32 v3, 1, v0
v_cmp_eq_u32 vcc, 1, v3""")
for k in range(8):
    S(f"v_pk_add_f32 {vp(vD0+2*k)}, {vp(vD0+2*k)}, {vp(44+2*k)}")
d = lambda k: f"v{vD0+k}"
def wo(b, aO, off):
    S(f"v_add_u32 v1, {off}, v{aO}")
    S(f"ds_write2_b32 v1, v{b}, v{b+1} offset0:0 offset1:1")
    S(f"ds_write2_b32 v1, v{b+2}, v{b+3} offset0:2 offset1:3")
def build(e_pairs, o_pairs, base, aE, aO, imm):
    for j, (a, b) in enumerate(e_pairs): S(f"v_cvt_pk_bf16_f32 v{base+j}, {a}, {b}")
    S(f"ds_write_b128 v{aE}, {vr(base,4)} offset:{imm+32}")
    for j, (a, b) in enumerate(o_pairs): S(f"v_cvt_pk_bf16_f32 v{base+4+j}, {a}, {b}")
    wo(base + 4, aO, imm + 32)
build([(d(7),d(6)),(d(5),d(4)),(d(3),d(2)),(d(1),d(0))], [(d(8),d(7)),(d(6),d(5)),(d(4),d(3)),(d(2),d(1))], 64, 60, 62, 3*1056)
build([(d(11),d(11)),(d(10),d(10)),(d(10),d(9)),(d(9),d(9))], [(d(11),d(11)),(d(11),d(10)),(d(10),d(10)),(d(9),d(9))], 72, 60, 62, 2*1056)
for n, (r0, imm) in enumerate(((12, 512), (14, 0))):
    S(f"v_cndmask_b32 v3, {d(r0)}, {d(r0+1)}, vcc")
    V0, V1 = d(r0), d(r0+1)
    build([(V1,V1),(V1,'v3'),(V0,V0),(V0,V0)], [(V1,V1),(V1,V1),('v3',V0),(V0,V0)], 80 + 8*n, 61, 63, imm)
S("s_mov_b32 exec_lo, 0\ns_mov_b32 exec_hi, 0x80000000")
S(f"ds_write_b128 v60, {vr(64,4)} offset:{3*1056}")
S(f"ds_write_b128 v60, {vr(72,4)} offset:{2*1056}")
wo(68, 62, 3*1056); wo(76, 62, 2*1056)
S("s_mov_b32 exec_lo, 0x80000000\ns_mov_b32 exec_hi, 0")
S(f"ds_write_b128 v61, {vr(88,4)}")
wo(92, 63, 0)
S("s_mov_b32 exec_lo, 1")
S(f"v_mov_b32 v64, 0\nv_mov_b32 v65, 0\nv_mov_b32 v66, 0\nv_mov_b32 v67, 0\nv_cvt_pk_bf16_f32 v68, {d(0)}, v64\nv_mov_b32 v2, s11")
S(f"ds_write_b128 v2, {vr(64,4)} offset:{(3*264+256)*4}")
S(f"v_add_u32 v2, {OOFF + (3*264+256)*4}, v2")
S("ds_write2_b32 v2, v68, v64 offset0:0 offset1:1\nds_write2_b32 v2, v64, v64 offset0:2 offset1:3")
S("s_mov_b64 exec, -1")
S("s_branch .Lexpd")
S.label(".Lnoexp")
S.restore('exp')
S(f"""v_lshrrev_b32 v1, 4, v0
v_mul_u32_u24 v1, {USLOT}, v1
v_and_b32 v2, 15, v0
v_lshl_add_u32 v1, v2, 4, v1
v_add_u32 v1, {L_U}, v1
v_mov_b32 v44, 0
v_mov_b32 v45, 0
v_mov_b32 v46, 0
v_mov_b32 v47, 0
s_mov_b32 exec_hi, 0xffff
ds_write_b128 v1, v[44:47]
s_mov_b64 exec, -1""")
S.label(".Lexpd")
S.restore('exp')
stamp(S, 'exp')
for k in range(24):
    S(f"v_lshlrev_b32 v{vB1+2*k}, 16, v{vB1P+k}\nv_and_b32 v{vB1+2*k+1}, 0xffff0000, v{vB1P+k}")

vAC = 20; vAR = 120; vA0, vA1 = 254, 255
S(f"""v_and_b32 v1, 15, v0
v_lshrrev_b32 v2, 2, v1
v_lshrrev_b32 v3, 5, v0
v_lshl_add_u32 v2, v3, 3, v2
v_mul_u32_u24 v{vA0}, 192, v2
v_and_b32 v1, 3, v1
v_lshl_add_u32 v{vA0}, v1, 3, v{vA0}
v_bfe_u32 v1, v0, 4, 1
v_lshl_add_u32 v{vA0}, v1, 5, v{vA0}
v_add_u32 v{vA1}, 61440, v{vA0}""")
def g1_read(s, ks, ft):
    for r in range(2):
        base, k = (vA0, ks) if ks < 20 else (vA1, ks - 20)
        s(f"ds_read_b64_tr_b16 {vr(vAR + 12*(ks%3) + 4*ft + 2*r, 2)}, v{base} offset:{k*3072 + r*768 + ft*64}")
for ks in range(2):
    for ft in range(3): g1_read(S, ks, ft)
vUL = 160
Sg = Stream()
for ks in range(40):
    if opt['stamps'] and ks in (1, 10, 20, 30): stamp(Sg, f'g1_{ks}')
    for ft in range(3):
        c = vr(vAC + 16*ft, 16) if ks > 0 else "0"
        Sg(f"v_mfma_f32_32x32x16_bf16 {vr(vAC+16*ft,16)}, {vr(vAR + 12*(ks%3) + 4*ft, 4)}, {ar(4*ks,4)}, {c}")
        if ks + 2 < 40: g1_read(Sg, ks + 2, ft)
        if ft == 0 and ks + G1PRE < 40: xn_load(Sg, ks + G1PRE)
plan = {}
UF = [(176, 4, 180, 0), (184, 4, 180, 1024)]
F = Stream()
F(f"v_add_u32 v180, {FX}, v253")
flag_load(F, UF)
spread(F, 58, 60, plan)
F = Stream()
F(f"""v_lshrrev_b32 v1, 2, v0
v_mul_u32_u24 v1, 10240, v1
v_and_b32 v2, 3, v0
v_lshl_add_u32 v181, v2, 4, v1
s_mul_i32 s11, s{sWAVE}, {64*10240}
s_lshl_b32 s12, s{sCBASE}, 4
s_add_u32 s11, s11, s12
s_add_u32 s13, s11, {XNB}
v_mul_u32_u24 v2, {USLOT}, v2
v_lshrrev_b32 v3, 2, v0
v_lshl_add_u32 v2, v3, 4, v2
s_lshl_b32 s12, s{sWAVE}, 10
s_add_u32 s12, s12, {L_U + 256}
v_add_u32 v182, s12, v2
s_mov_b32 s74, 0x00003f80
s_mov_b32 s75, 0x3f800000
v_bfe_u32 v1, v0, 4, 1
v_mul_u32_u24 v1, {48*1024}, v1
v_and_b32 v3, 15, v0
v_lshl_add_u32 v1, v3, 4, v1
v_lshrrev_b32 v3, 5, v0
v_lshl_add_u32 v183, v3, 8, v1
s_lshl_b32 s11, s{sRB}, 3
s_lshl_b32 s12, s{sWAVE}, 1
s_add_u32 s11, s11, s12
s_mul_i32 s11, s11, 48
s_mul_i32 s12, s{sCB}, 3
s_add_u32 s11, s11, s12
s_lshl_b32 s11, s11, 10
s_add_u32 s79, s11, {HB}
s_lshl_b32 s11, s{sRB}, 2
s_add_u32 s11, s11, s{sWAVE}
s_lshl_b32 s11, s11, 4
s_add_u32 s11, s11, s{sCB}
s_lshl_b32 s11, s11, 2
s_add_u32 s80, s11, {FH}""")
vCA = 4; vCP = 68; vKB = 76; vR = 188; vU, vK, vKn = 92, 93, 94
vNON, vZ = 95, 96
vW2O = 97
vW2R = 102
vUl, vKl, vYl = 103, 104, 105
for i in range(5):
    F(f"""v_add_u32 v1, {64*i}, v0
v_mul_u32_u24 v2, 0xcccd, v1
v_lshrrev_b32 v2, 19, v2
v_mul_u32_u24 v3, 10, v2
v_sub_u32 v3, v1, v3
v_mul_u32_u24 v2, 1280, v2
v_lshl_add_u32 v{vW2O+i}, v3, 4, v2""")
F(f"""s_mul_i32 s81, s{sWAVE}, {384*1280}
s_mul_i32 s11, s{sCB2}, 160
s_add_u32 s81, s81, s11
s_mul_i32 s82, s{sWAVE}, {W2W}
v_lshrrev_b32 v1, 5, v0
v_lshlrev_b32 v1, 4, v1
v_bfe_u32 v2, v0, 4, 1
v_lshl_add_u32 v1, v2, 2, v1
v_bfe_u32 v2, v0, 2, 2
v_add_u32 v1, v1, v2
v_mul_u32_u24 v1, 160, v1
v_and_b32 v2, 3, v0
v_lshl_add_u32 v1, v2, 3, v1
v_add_u32 v{vW2R}, s82, v1
v_mov_b32 v{vNON}, s{sNONCE}
v_mov_b32 v{vZ}, 0
v_and_b32 v1, 15, v0
v_lshrrev_b32 v2, 4, v0
v_add_u32 v3, v1, v2
v_lshlrev_b32 v{vUl}, 4, v3
v_add_u32 v{vUl}, {L_U + 16}, v{vUl}
v_and_b32 v3, 7, v0
v_sub_u32 v{vKl}, 8, v3
v_lshrrev_b32 v{vKl}, 1, v{vKl}
v_lshl_add_u32 v{vKl}, v2, 2, v{vKl}
v_lshlrev_b32 v{vKl}, 2, v{vKl}
v_and_b32 v3, 1, v0
v_sub_u32 v3, 1, v3
v_mul_u32_u24 v3, {OOFF}, v3
v_add_u32 v{vKl}, v{vKl}, v3
v_bfe_u32 v3, v0, 3, 1
v_sub_u32 v3, 1, v3
v_mul_u32_u24 v3, 1056, v3
v_add_u32 v{vKl}, v{vKl}, v3
v_add_u32 v{vKl}, {L_K}, v{vKl}
v_lshlrev_b32 v{vYl}, 4, v1
v_bfe_u32 v3, v0, 4, 1
v_lshl_add_u32 v{vYl}, v3, 8, v{vYl}
v_lshrrev_b32 v3, 5, v0
v_lshl_add_u32 v{vYl}, v3, 10, v{vYl}""")
spread(F, 12, 88, plan)
F = Stream()
flag_check(F, UF)
F("s_mov_b32 exec_lo, 0x77777777\ns_mov_b32 exec_hi, 0x77777777")
for k in range(4):
    F(f"buffer_load_dwordx4 {vr(vUL+4*k,4)}, v181, {SRD_WS}, s13 offen sc1")
    if k < 3: F(f"s_add_u32 s13, s13, {16*10240}")
F("s_mov_b64 exec, -1")
plan.setdefault(91, Stream()).ext(F)
S.ext(weave(Sg, plan))
stamp(S, 'g1')
for ft in range(3):
    tp = 120 + 8 * ft
    for k in range(8):
        a = vAC + 16*ft + 2*k; b = vB1 + 16*ft + 2*k
        S(f"v_cvt_pk_bf16_f32 v{tp+k}, v{a}, v{a+1}")
        S(f"v_dot2_f32_bf16 v{a}, v{tp+k}, s74, v{b}")
        S(f"v_dot2_f32_bf16 v{a+1}, v{tp+k}, s75, v{b+1}")
    for k in range(8):
        a = vAC + 16*ft + 2*k
        S(f"v_cvt_pk_bf16_f32 v{tp+k}, v{a}, v{a+1}")
        S(f"v_pk_max_i16 v{tp+k}, v{tp+k}, 0")
        S(f"v_lshlrev_b32 v{a}, 16, v{tp+k}")
        S(f"v_and_b32 v{a+1}, 0xffff0000, v{tp+k}")
        S(f"v_pk_mul_f32 {vp(a)}, {vp(a)}, {vp(a)}")
        S(f"v_cvt_pk_bf16_f32 v{tp+k}, v{a}, v{a+1}")
    for jp in range(2):
        th = S(f"buffer_store_dwordx4 {vr(tp+4*jp,4)}, v183, {SRD_WS}, s79 offen offset:{1024*ft + 512*jp} sc0 sc1")
S("s_mov_b32 exec_lo, 0x77777777\ns_mov_b32 exec_hi, 0x77777777")
for k in range(4):
    S(f"ds_write_b128 v182, {vr(vUL+4*k,4)} offset:{256*k}")
S("s_mov_b64 exec, -1")
S(f"""s_add_u32 s11, s{sPAR}, s{sWAVE}
s_cmp_eq_u32 s{sWAVE}, 2
s_cselect_b32 s11, s{sPAR}, s11
s_cselect_b32 s83, 1, 0
s_add_u32 s15, s{sPAR}, 1
s_lshl_b32 s12, s{sPAR}, 1
s_sub_u32 s12, 2, s12
s_cmp_eq_u32 s{sWAVE}, 3
s_cselect_b32 s83, s{sPAR}, s83
s_cselect_b32 s11, s12, s11
s_cselect_b32 s15, 0, s15""")
def unit_addr(s, sslot):
    s(f"""s_mul_i32 s12, s{sslot}, {USLOT}
v_add_u32 v{vU}, s12, v{vUl}
s_mul_i32 s12, s{sslot}, {KSLOT}
s_mul_i32 s13, s83, 2112
s_add_u32 s12, s12, s13
v_add_u32 v{vK}, s12, v{vKl}
v_add_u32 v{vKn}, 1056, v{vK}
s_add_u32 s12, s{sCBASE}, s{sslot}
s_lshl_b32 s14, s12, 3
s_lshl_b32 s12, s12, 12
s_lshl_b32 s13, s83, 11
s_sub_u32 s12, s12, s13
s_add_u32 s{sYB}, s12, {YT + 2048}
s_lshl_b32 s13, s83, 2
s_sub_u32 s14, s14, s13
s_add_u32 s{sYF}, s14, {FY + 4}""")
unit_addr(S, 11)
S("s_waitcnt lgkmcnt(0)")
S("s_barrier")
stamp(S, 'g1ep')

def w2_dma(s, k):
    t = None
    for i in range(5):
        s(f"s_add_u32 m0, s82, {(k%6)*5120 + i*1024}")
        t = s(f"buffer_load_dwordx4 v{vW2O+i}, {SRD_W2}, s81 offen lds")
    if k < 11: s(f"s_add_u32 s81, s81, {32*1280}")
    return t
def w2_read(s, k, tok, areg):
    s.wait(tok)
    t = None
    for dt in range(5):
        for r in range(2):
            t = s(f"ds_read_b64_tr_b16 {ar((k*5+dt)*4 + 2*r, 2)}, v{areg} offset:{(k%6)*5120 + r*1280 + dt*32}")
    return t
def conv_load(s, sg):
    s(f"ds_read_b128 {vr(vR + 4*(sg & 15), 4)}, v{vU} offset:{64*sg}")
    base, o = (vK, 16*sg) if sg < 16 else (vKn, 16*(sg-16))
    kb = vKB + 4*(sg & 3)
    s(f"ds_read2_b32 {vr(kb,2)}, v{base} offset0:{o} offset1:{o+1}")
    s(f"ds_read2_b32 {vr(kb+2,2)}, v{base} offset0:{o+2} offset1:{o+3}")
def conv_block(ramp, last=False):
    s = Stream()
    for sg in range(16):
        ld = Stream()
        if not (last and sg + 3 >= 16): conv_load(ld, sg + 3)
        n = 0
        for rt in (3, 2, 1, 0):
            first = 12 - 4*rt
            if ramp and sg < first: continue
            c = "0" if (ramp and sg == first) else vr(vCA + 4*rt, 4)
            s(f"v_mfma_f32_16x16x32_bf16 {vr(vCA+4*rt,4)}, {vr(vKB + 4*(sg&3),4)}, {vr(vR + 4*((sg+4+4*rt)&15),4)}, {c}")
            if ld.l: s.l.append(ld.l.pop(0))
        s.ext(ld)
    if not last:
        s(f"v_add_u32 v{vU}, 1024, v{vU}\nv_add_u32 v{vK}, 1056, v{vK}\nv_add_u32 v{vKn}, 1056, v{vKn}")
    return s
def conv_save(s):
    for rt in (3, 2, 1, 0):
        for h in range(2):
            s(f"v_cvt_pk_bf16_f32 v{vCP + 4*(rt>>1) + 2*(rt&1) + h}, v{vCA+4*rt+2*h}, v{vCA+4*rt+2*h+1}")
def conv_fin(s):
    s("s_mov_b32 exec_lo, 0")
    conv_save(s)
    s("s_mov_b32 exec_lo, -1")
    t = None
    for pr in range(2):
        b = vCP + 4*pr
        s(f"v_permlane16_swap_b32 v{b}, v{b+2}")
        s(f"v_permlane16_swap_b32 v{b+1}, v{b+3}")
        t = s(f"buffer_store_dwordx4 {vr(b,4)}, v{vYl}, {SRD_WS}, s{sYB} offen offset:{512*pr} sc0 sc1")
    return t
for sg in range(3): conv_load(S, sg)
tw = {}
F = Stream()
for k in range(3): tw[k] = w2_dma(F, k)
S.ext(weave(conv_block(True), spread(F, 0, 39)))
stamp(S, 'cv_b0')
conv_save(S)
F = Stream()
F.wait(th)
F(f"buffer_store_dword v{vNON}, v{vZ}, {SRD_WS}, s80 offen sc0 sc1")
for k in range(3, 6): tw[k] = w2_dma(F, k)
for k in range(0, 3): w2_read(F, k, tw[k], vW2R)
S.ext(weave(conv_block(False), spread(F, 0, 63)))
stamp(S, 'cv_b1')
S("s_cmp_eq_u32 s83, 1")
S.save('b2')
S("s_cbranch_scc1 .Lb2x")
def b2_fill(F):
    for k in range(3, 6): w2_read(F, k, tw[k], vW2R)
    for k in range(6, 9): w2_dma(F, k)
F = Stream(); b2_fill(F)
S.ext(weave(conv_block(False), spread(F, 0, 63)))
S("s_waitcnt lgkmcnt(0)")
S.endpath()
S("s_branch .Lb3")
S.label(".Lb2x")
S.restore('b2')
ty = conv_fin(S)
S(f"s_mov_b32 s{sYF2}, s{sYF}")
unit_addr(S, 15)
for sg in range(3): conv_load(S, sg)
F = Stream(); b2_fill(F); F.wait(ty)
F(f"buffer_store_dword v{vNON}, v{vZ}, {SRD_WS}, s{sYF2} offen sc0 sc1")
S.ext(weave(conv_block(True), spread(F, 0, 39)))
S("s_waitcnt lgkmcnt(0)")
S.endpath()
S.label(".Lb3")
stamp(S, 'cv_b2')
conv_save(S)
vH = 108
vHO = 252
HF = [(106, 1, 107, 0)]
F = Stream()
F(f"""s_lshr_b32 s11, s{sRB2}, 1
s_lshl_b32 s11, s11, 2
s_and_b32 s12, s{sRB2}, 1
s_lshl_b32 s12, s12, 1
s_add_u32 s11, s11, s12
s_lshl_b32 s11, s11, 4
s_lshl_b32 s12, s{sWAVE}, 2
s_add_u32 s11, s11, s12
s_lshl_b32 s11, s11, 2
s_add_u32 s11, s11, {FH}
v_bfe_u32 v1, v0, 2, 1
v_lshlrev_b32 v1, 6, v1
v_and_b32 v2, 3, v0
v_lshl_add_u32 v1, v2, 2, v1
v_add_u32 v107, s11, v1""")
flag_load(F, HF)
for k in range(9, 12): tw[k] = w2_dma(F, k)
F(f"v_lshlrev_b32 v{vHO}, 4, v0\nv_add_u32 v{vHO+1}, 4096, v{vHO}\nv_add_u32 v{vHO+2}, 8192, v{vHO}")
F(f"s_add_u32 s78, s{sWAVE}, s{sCB2}\ns_and_b32 s78, s78, 3")
for p in range(4):
    F(f"""s_add_u32 s11, s78, {p+1}
s_and_b32 s11, s11, 3
s_lshl_b32 s12, s{sRB2}, 2
s_add_u32 s11, s11, s12
s_mul_i32 s11, s11, 48
s_mul_i32 s12, s{sWAVE}, 12
s_add_u32 s11, s11, s12
s_lshl_b32 s11, s11, 10
s_add_u32 s{71+p}, s11, {HB}""")
plan = spread(F, 0, 44)
NH = 36
def hreg(n): return vH + 4 * (n % NH)
def h_load(s, n):
    p, k = divmod(n, 12)
    s(f"buffer_load_dwordx4 {vr(hreg(n), 4)}, v{vHO + k//4}, {SRD_WS}, s{71+p} offen offset:{1024*(k%4)} sc1")
F = Stream(); flag_check(F, HF); plan.setdefault(46, Stream()).ext(F)
HPRE = 10
F = Stream()
for n in range(HPRE): h_load(F, n)
spread(F, 47, 63, plan)
S.ext(weave(conv_block(False, last=True), plan))
stamp(S, 'cv_b3')
ty = conv_fin(S)
stamp(S, 'conv')

vG2 = 4
vRW = 255
S(f"v_add_u32 v{vRW}, s82, v{vHO}")
def g2_pass(p):
    s = Stream()
    ac = vG2 + 20*(p & 1)
    for k in range(12):
        for dt in range(5):
            c = "0" if k == 0 else vr(ac + 4*dt, 4)
            s(f"v_mfma_f32_16x16x32_bf16 {vr(ac+4*dt,4)}, {ar((k*5+dt)*4,4)}, {vr(hreg(12*p+k), 4)}, {c}")
            if dt == 0 and 12*p + k + HPRE < 48: h_load(s, 12*p + k + HPRE)
    return s
def g2_dump(s, p):
    ac = vG2 + 20*(p & 1)
    for dt in range(5):
        s(f"ds_write_b128 v{vRW}, {vr(ac+4*dt,4)} offset:{p*5120 + dt*1024}")
F = Stream()
for k in range(6, 12): w2_read(F, k, tw[11] if k == 6 else None, vW2R)
S.ext(weave(g2_pass(0), spread(F, 0, 33)))
stamp(S, 'g2_p0')
vEX, vEN, vEB, vED = 44, 54, 64, 74
vOO = 84
F = Stream()
g2_dump(F, 0)
F.wait(ty)
F(f"buffer_store_dword v{vNON}, v{vZ}, {SRD_WS}, s{sYF} offen sc0 sc1")
F(f"""v_and_b32 v1, 15, v0
v_lshrrev_b32 v2, 4, v0
s_lshl_b32 s11, s{sRB2}, 6
s_lshl_b32 s12, s78, 4
s_add_u32 s11, s11, s12
v_add_u32 v{vOO}, s11, v1
v_mul_u32_u24 v{vOO}, 1280, v{vOO}
v_lshl_add_u32 v{vOO}, v2, 3, v{vOO}
s_mul_i32 s12, s{sCB2}, 160
v_add_u32 v{vOO}, s12, v{vOO}
v_lshl_add_u32 v85, v2, 3, s12
s_lshr_b32 s13, s11, 5
s_mul_i32 s13, s13, 40
s_mul_i32 s14, s{sCB2}, 5
s_add_u32 s13, s13, s14
s_lshl_b32 s13, s13, 10
s_and_b32 s14, s11, 31
s_lshl_b32 s14, s14, 4
s_add_u32 s13, s13, s14
s_add_u32 s14, s13, 4096
v_lshlrev_b32 v86, 4, v1
v_lshrrev_b32 v3, 1, v2
v_lshl_add_u32 v86, v3, 9, v86
v_and_b32 v3, 1, v2
v_lshl_add_u32 v86, v3, 3, v86""")
for dt in range(5):
    F(f"buffer_load_dwordx2 {vr(vEN+2*dt,2)}, v86, {SRD_WS}, s{13 if dt<4 else 14} offen offset:{1024*(dt%4)} sc1")
    F(f"global_load_dwordx2 {vr(vED+2*dt,2)}, v85, {P(pDSK)} offset:{32*dt}")
S.ext(weave(g2_pass(1), spread(F, 3, 59)))
YF = [(87, 1, 88, 0), (89, 1, 90, 0)]
F = Stream()
g2_dump(F, 1)
F(f"""s_mul_i32 s11, s{sCB2}, 640
s_lshr_b32 s12, s{sRB2}, 4
s_lshl_b32 s12, s12, 2
s_add_u32 s11, s11, s12
s_add_u32 s11, s11, {FY}
v_lshl_add_u32 v88, v0, 3, s11
v_and_b32 v2, 15, v0
v_lshlrev_b32 v2, 3, v2
s_add_u32 s11, s11, 512
v_add_u32 v90, s11, v2""")
flag_load(F, YF)
for dt in range(5):
    F(f"buffer_load_dwordx2 {vr(vEX+2*dt,2)}, v{vOO}, {SRD_X}, 0 offen offset:{32*dt}")
    F(f"global_load_dwordx2 {vr(vEB+2*dt,2)}, v85, {P(pB2)} offset:{32*dt}")
F(f"""v_lshrrev_b32 v1, 1, v0
v_lshlrev_b32 v1, 12, v1
v_and_b32 v2, 1, v0
v_lshl_add_u32 v91, v2, 4, v1
s_mul_i32 s11, s{sCB2}, {80*4096}
s_lshl_b32 s12, s{sRB2}, 7
s_add_u32 s11, s11, s12
s_lshl_b32 s12, s78, 5
s_add_u32 s11, s11, s12
s_add_u32 s11, s11, {YT}
s_add_u32 s12, s11, {32*4096}
s_add_u32 s13, s11, {64*4096}
v_lshrrev_b32 v93, 2, v0
v_lshlrev_b32 v93, 5, v93
v_and_b32 v1, 3, v0
v_lshl_add_u32 v93, v1, 3, v93
v_add_u32 v93, s82, v93""")
plan = spread(F, 3, 40)
vY = 96
F = Stream(); flag_check(F, YF)
F(f"buffer_load_dwordx4 {vr(vY,4)}, v91, {SRD_WS}, s11 offen sc1")
F(f"buffer_load_dwordx4 {vr(vY+4,4)}, v91, {SRD_WS}, s12 offen sc1")
F("s_mov_b32 exec_hi, 0")
F(f"buffer_load_dwordx4 {vr(vY+8,4)}, v91, {SRD_WS}, s13 offen sc1")
F("s_mov_b32 exec_hi, -1")
plan.setdefault(56, Stream()).ext(F)
S.ext(weave(g2_pass(2), plan))
stamp(S, 'g2_p2')
vS = 156
vT2 = 176
F = Stream()
g2_dump(F, 2)
F("s_mov_b32 s74, 0x00003f80\ns_mov_b32 s75, 0x3f800000")
for k in range(10):
    a = vS + 2*k; t = vT2 + 2*(k & 1)
    F(f"""v_lshlrev_b32 v{a}, 16, v{vEN+k}
v_and_b32 v{a+1}, 0xffff0000, v{vEN+k}
v_lshlrev_b32 v{t}, 16, v{vED+k}
v_and_b32 v{t+1}, 0xffff0000, v{vED+k}
v_pk_mul_f32 {vp(a)}, {vp(a)}, {vp(t)}
v_cvt_pk_bf16_f32 v{vEN+k}, v{a}, v{a+1}""")
plan = spread(F, 3, 45)
F = Stream()
YST = 3 * 5120
F(f"ds_write_b128 v{vRW}, {vr(vY,4)} offset:{YST}")
F(f"ds_write_b128 v{vRW}, {vr(vY+4,4)} offset:{YST+1024}")
F("s_mov_b32 exec_hi, 0")
F(f"ds_write_b128 v{vRW}, {vr(vY+8,4)} offset:{YST+2048}")
F("s_mov_b32 exec_hi, -1")
plan.setdefault(50, Stream()).ext(F)
F = Stream()
vYT = 180
for dt in range(5):
    F(f"ds_read_b64_tr_b16 {vr(vYT+2*dt,2)}, v93 offset:{YST + 512*dt}")
spread(F, 52, 58, plan)
S.ext(weave(g2_pass(3), plan))
stamp(S, 'g2')
vPS = 192
for p in range(3):
    S(f"s_sub_u32 s11, s{sWAVE}, {p+1}\ns_and_b32 s11, s11, 3\ns_mul_i32 s11, s11, {W2W}\nv_add_u32 v{87+p}, s11, v{vHO}")
S("s_waitcnt lgkmcnt(0)")
S("s_barrier")
stamp(S, 'e_bar')
for p in range(3):
    for dt in range(5):
        S(f"ds_read_b128 {vr(vPS + 20*p + 4*dt, 4)}, v{87+p} offset:{p*5120 + dt*1024}")
vB2 = 108; vXf = 128
for k in range(10):
    a = vS + 2*k
    S(f"""v_lshlrev_b32 v{a}, 16, v{vYT+k}
v_and_b32 v{a+1}, 0xffff0000, v{vYT+k}
v_dot2_f32_bf16 v{a}, v{vEN+k}, s74, v{a}
v_dot2_f32_bf16 v{a+1}, v{vEN+k}, s75, v{a+1}
v_lshlrev_b32 v{vB2+2*k}, 16, v{vEB+k}
v_and_b32 v{vB2+2*k+1}, 0xffff0000, v{vEB+k}""")
for k in range(10):
    a = vS + 2*k
    S(f"""v_cvt_pk_bf16_f32 v{vEN+k}, v{a}, v{a+1}
v_lshlrev_b32 v{vXf+2*k}, 16, v{vEX+k}
v_and_b32 v{vXf+2*k+1}, 0xffff0000, v{vEX+k}
v_lshlrev_b32 v{a}, 16, v{vEN+k}
v_and_b32 v{a+1}, 0xffff0000, v{vEN+k}""")
ac = vG2 + 20
for p in range(3):
    for k in range(10):
        S(f"v_pk_add_f32 {vp(ac+2*k)}, {vp(ac+2*k)}, {vp(vPS+20*p+2*k)}")
S(f"s_mov_b32 s12, {f32(-LOG2E)}\ns_mov_b32 s13, {f32(-LOG2E)}\ns_mov_b32 s14, 1.0\ns_mov_b32 s15, 1.0")
T = lambda k: 192 + 2*k
def stage(fn):
    for k in range(10): fn(k, ac + 2*k, T(k))
stage(lambda k, a, t: S(f"v_cvt_pk_bf16_f32 v{t}, v{a}, v{a+1}"))
stage(lambda k, a, t: S(f"v_dot2_f32_bf16 v{a}, v{t}, s74, v{vB2+2*k}\nv_dot2_f32_bf16 v{a+1}, v{t}, s75, v{vB2+2*k+1}"))
stage(lambda k, a, t: S(f"v_cvt_pk_bf16_f32 v{t}, v{a}, v{a+1}"))
stage(lambda k, a, t: S(f"v_lshlrev_b32 v{a}, 16, v{t}\nv_and_b32 v{a+1}, 0xffff0000, v{t}\nv_pk_mul_f32 {vp(t)}, {vp(a)}, s[12:13]"))
stage(lambda k, a, t: S(f"v_exp_f32 v{t}, v{t}\nv_exp_f32 v{t+1}, v{t+1}"))
stage(lambda k, a, t: S(f"v_pk_add_f32 {vp(t)}, {vp(t)}, s[14:15]"))
stage(lambda k, a, t: S(f"v_rcp_f32 v{t}, v{t}\nv_rcp_f32 v{t+1}, v{t+1}"))
stage(lambda k, a, t: S(f"v_pk_mul_f32 {vp(a)}, {vp(a)}, {vp(t)}"))
stage(lambda k, a, t: S(f"v_cvt_pk_bf16_f32 v{t}, v{a}, v{a+1}\nv_lshlrev_b32 v{a}, 16, v{t}\nv_and_b32 v{a+1}, 0xffff0000, v{t}\nv_pk_mul_f32 {vp(a)}, {vp(a)}, {vp(vS+2*k)}\nv_cvt_pk_bf16_f32 v{t}, v{a}, v{a+1}"))
stage(lambda k, a, t: S(f"v_dot2_f32_bf16 v{a}, v{t}, s74, v{vXf+2*k}\nv_dot2_f32_bf16 v{a+1}, v{t}, s75, v{vXf+2*k+1}"))
for k in range(10):
    a = ac + 2*k
    S(f"v_cvt_pk_bf16_f32 v{vEX+k}, v{a}, v{a+1}")
    if k & 1:
        S(f"buffer_store_dwordx2 {vr(vEX+k-1,2)}, v{vOO}, {SRD_OUT}, 0 offen offset:{32*(k//2)}")
stamp(S, 'end')
if opt['stamps']:
    S("s_memrealtime s[68:69]\ns_waitcnt lgkmcnt(0)\nv_accvgpr_write_b32 a253, s68")
    S(f"s_lshl_b32 s11, s{sWG}, 2\ns_add_u32 s11, s11, s{sWAVE}\ns_lshl_b32 s11, s11, 7\ns_add_u32 s11, s11, {STAMP}\nv_mov_b32 v1, 0")
    for k in range(8):
        for j in range(4):
            n = 4*k + j
            if k < 4: S(f"v_mov_b32 v{4+n}, s{84+n}")
            elif n < 30: S(f"v_accvgpr_read_b32 v{4+n}, a{240+n-16}")
            else: S(f"v_accvgpr_read_b32 v{4+n}, a{252+n-30}")
        S(f"buffer_store_dwordx4 {vr(4+4*k,4)}, v1, {SRD_WS}, s11 offen offset:{16*k}")
S.label(".Lend")
S("s_endpgm")

body = finalize(S) + finalize(COLD)
hdr = open('cdna_kernels/' + NAME + '.s.ref').read().split('\n')
out = []
for l in hdr:
    if l.startswith('; @launch'): out.append(f"; @launch grid=(256,1,1) block=(256,1,1) lds={LDS_BYTES}"); break
    out.append(l)
out.append(f""".amdgcn_target "amdgcn-amd-amdhsa--gfx950"
.text
.globl {NAME}_kernel
.p2align 8
.type {NAME}_kernel,@function
{NAME}_kernel:""")
out += body
kb = max(32, (opt['code_kb'] + 7) // 8 * 8)
out.append(f"""    s_endpgm
.fill ({kb*1024 + 256} - (. - {NAME}_kernel)) / 4, 4, 0xbf800000
.section .rodata,"a"
.p2align 6
.amdhsa_kernel {NAME}_kernel
  .amdhsa_next_free_vgpr 512
  .amdhsa_next_free_sgpr 102
  .amdhsa_accum_offset 256
  .amdhsa_group_segment_fixed_size 0
  .amdhsa_kernarg_size 120
  .amdhsa_user_sgpr_count 2
  .amdhsa_user_sgpr_kernarg_segment_ptr 1
  .amdhsa_system_sgpr_workgroup_id_x 1
.end_amdhsa_kernel""")
if opt['stamps']: out.insert(0, "; stamps: " + ",".join(stamp_names))
print('\n'.join(out))
```

```python
import re

REG_RE = re.compile(r'^(-|\|)?(abs\()?([vas])(\d+|\[(\d+):(\d+)\])\)?\|?$')

def parse_regs(tok):
    tok = tok.strip()
    if tok in ('vcc', 'exec', 'm0', 'scc'):
        return [tok]
    if tok in ('vcc_lo', 'vcc_hi'): return ['vcc']
    if tok in ('exec_lo', 'exec_hi'): return ['exec']
    m = REG_RE.match(tok)
    if not m: return []
    k = m.group(3)
    if m.group(5) is not None:
        return [(k, i) for i in range(int(m.group(5)), int(m.group(6)) + 1)]
    return [(k, int(m.group(4)))]

TRANS = ('v_exp_f32', 'v_log_f32', 'v_rcp_f32', 'v_rsq_f32', 'v_sqrt_f32', 'v_sin_f32', 'v_cos_f32')

class Ins:
    __slots__ = ('text', 'mn', 'kind', 'dst', 'src', 'tok', 'need', 'ops', 'srcC', 'srcAB', 'passes', 'dpp', 'wide', 'data', 'ldsdma', 'cost')
    def __init__(self, text):
        self.text = text
        self.tok = None; self.need = []
        self.dst = []; self.src = []; self.srcC = []; self.srcAB = []; self.passes = 0
        self.dpp = False; self.wide = False; self.data = []; self.ldsdma = False
        t = text.split(';')[0].strip()
        if t.endswith(':'):
            self.kind = 'label'; self.mn = t; return
        parts = t.split(None, 1)
        mn = parts[0]; self.mn = mn
        rest = parts[1] if len(parts) > 1 else ''
        ops = []; depth = 0; cur = ''
        for ch in rest:
            if ch in '[(': depth += 1
            if ch in '])': depth -= 1
            if ch == ',' and depth == 0:
                ops.append(cur.strip()); cur = ''
            else: cur += ch
        if cur.strip(): ops.append(cur.strip())
        mods = ''
        if ops:
            sp = ops[-1].split(None, 1)
            ops[-1] = sp[0]
            if len(sp) > 1: mods = sp[1]
        self.ops = ops
        R = [parse_regs(o) for o in ops]
        flat = lambda L: [r for x in L for r in x]
        if mn.startswith('v_mfma'):
            self.kind = 'mfma'
            self.dst = R[0]; self.srcAB = R[1] + R[2]; self.srcC = R[3]; self.src = self.srcAB + self.srcC
            self.passes = 8 if '32x32x16' in mn else 4
            assert ('32x32x16' in mn) or ('16x16x32' in mn)
        elif mn.startswith('v_'):
            self.kind = 'trans' if mn.replace('_e32', '').replace('_e64', '') in TRANS else 'valu'
            if mn.startswith('v_cmp'):
                self.dst = R[0]; self.src = flat(R[1:])
                if mn.startswith('v_cmpx'): self.dst = self.dst + ['exec']
            elif mn.startswith('v_permlane') and 'swap' in mn:
                self.dst = R[0] + R[1]; self.src = R[0] + R[1]
            elif '_co_' in mn:
                self.dst = R[0] + R[1]; self.src = flat(R[2:])
            elif mn == 'v_nop':
                pass
            else:
                self.dst = R[0]; self.src = flat(R[1:])
                if mn.startswith(('v_fmac', 'v_dot2c', 'v_writelane', 'v_pk_fmac')): self.src = self.src + R[0]
                if mn.startswith('v_cndmask') and len(ops) == 3: self.src = self.src + ['vcc']
            if 'dpp' in mn or 'row_' in mods or 'quad_perm' in mods or 'wave_' in mods:
                self.dpp = True
                self.src = self.src + R[0]
            if 'sdwa' in mn: self.src = self.src + R[0]
        elif mn.startswith('ds_'):
            self.kind = 'ds'
            if mn.startswith(('ds_read', 'ds_bpermute', 'ds_permute', 'ds_swizzle')) or '_rtn' in mn:
                self.dst = R[0]; self.src = flat(R[1:])
            else:
                self.src = flat(R)
            if 'addtid' in mn: self.src = self.src + ['m0']; self.ldsdma = True
        elif mn.startswith(('buffer_', 'global_')):
            self.kind = 'vmem'
            lds = re.search(r'\blds\b', mods) is not None or '_lds_' in mn
            if lds:
                self.ldsdma = True; self.src = flat(R) + ['m0']
            elif '_load' in mn:
                self.dst = R[0]; self.src = flat(R[1:])
                if 'd16' in mn: self.src = self.src + R[0]
            elif mn in ('buffer_inv', 'buffer_wbl2'):
                pass
            else:
                self.src = flat(R)
                if mn.startswith('buffer_'): self.data = R[0]
                else: self.data = R[1]
                self.wide = ('x4' in mn) or ('x3' in mn)
                if 'atomic' in mn and re.search(r'\bsc0\b', mods): self.dst = self.data
        elif mn.startswith(('s_load', 's_buffer_load', 's_memtime', 's_memrealtime')):
            self.kind = 'smem'; self.dst = R[0]; self.src = flat(R[1:])
        elif mn.startswith(('s_cbranch', 's_branch', 's_setpc', 's_swappc', 's_endpgm')):
            self.kind = 'branch'; self.src = flat(R)
        elif mn in ('s_waitcnt', 's_nop', 's_barrier', 's_sleep', 's_setprio'):
            self.kind = 'other'
        elif mn.startswith('s_'):
            self.kind = 'salu'
            if mn.startswith(('s_cmp', 's_bitcmp')):
                self.src = flat(R)
            else:
                self.dst = R[0]; self.src = flat(R[1:])
                if 'saveexec' in mn: self.dst = self.dst + ['exec']
        else:
            raise ValueError("unknown instr: " + text)

class Tok:
    def __init__(self, cls): self.cls = cls; self.done = False

class Stream:
    def __init__(self): self.l = []
    def __call__(self, text, need=None, tok=False):
        for line in text.split('\n'):
            line = line.strip()
            if not line or line.startswith(';'): continue
            i = Ins(line)
            if need: i.need = list(need) if isinstance(need, (list, tuple)) else [need]; need = None
            if i.kind in ('vmem', 'ds'):
                i.tok = Tok('vm' if i.kind == 'vmem' else 'lgkm')
            self.l.append(i)
        return self.l[-1].tok
    def junk(self, text):
        t = self(text); self.l[-1].dst = []; return t
    def wait(self, *toks):
        i = Ins('s_nop 0'); i.kind = 'waitonly'; i.need = [t for t in toks if t is not None]
        self.l.append(i)
    def ext(self, other):
        self.l.extend(other.l if isinstance(other, Stream) else other)
    def label(self, name): self(name + ':')
    def pseudo(self, kind, name=None):
        i = Ins('s_nop 0'); i.kind = kind; i.text = name; self.l.append(i)
    def save(self, name): self.pseudo('save', name)
    def restore(self, name): self.pseudo('restore', name)
    def assume(self, regs):
        i = Ins('s_nop 0'); i.kind = 'assume'; i.dst = list(regs); self.l.append(i)
    def endpath(self, keep=()):
        self.pseudo('endpath' if keep is not None else 'forget'); self.l[-1].dst = list(keep or ())
    def endpath_old(self): self.pseudo('endpath')

def interleave(main, fillers, per_gap, start=0, is_anchor=lambda i: i.kind == 'mfma', flush=True):
    out = Stream(); f = list(fillers.l); n = 0; acc = 0.0
    for ins in main.l:
        out.l.append(ins)
        if is_anchor(ins):
            if n >= start:
                acc += per_gap
                while acc >= 1.0 and f:
                    x = f.pop(0); out.l.append(x)
                    if x.kind != 'waitonly': acc -= 1.0
                if not f: acc = 0.0
            n += 1
    if flush: out.l.extend(f); f = []
    rest = Stream(); rest.l = f
    return (out, rest) if not flush else out

def sprinkle(main, groups, every, start=0):
    out = Stream(); g = list(groups); n = 0; nxt = start + every
    for ins in main.l:
        out.l.append(ins)
        if ins.kind in ('waitonly', 'label', 'save', 'restore', 'endpath', 'assume', 'forget'): continue
        n += 1
        if n >= nxt and g:
            out.ext(g.pop(0)); nxt += every
    for x in g: out.ext(x)
    return out

def weave(main, plan, is_anchor=lambda i: i.kind == 'mfma'):
    out = Stream(); n = 0; used = set()
    for ins in main.l:
        out.l.append(ins)
        if is_anchor(ins):
            if n in plan: out.ext(plan[n]); used.add(n)
            n += 1
    for k in sorted(plan):
        if k not in used: out.ext(plan[k])
    return out

def spread(fill, first, last, plan=None):
    plan = {} if plan is None else plan
    L = list(fill.l); real = [i for i in L if i.kind != 'waitonly']
    n = last - first + 1; tot = len(real); k = 0
    for ins in L:
        a = first + min(n - 1, (k * n) // max(tot, 1))
        plan.setdefault(a, Stream()).l.append(ins)
        if ins.kind != 'waitonly': k += 1
    return plan

def finalize(stream, verbose=False):
    out = []
    q = {'vm': [], 'lgkm': []}
    saved = {}; lost = set(); issued = set()
    def emit_wait(vm=None, lg=None):
        parts = []
        if vm is not None: parts.append(f'vmcnt({min(vm,63)})')
        if lg is not None: parts.append(f'lgkmcnt({min(lg,15)})')
        out.append(Ins('s_waitcnt ' + ' '.join(parts)))
    def retire(cls, n):
        L = q[cls]
        while len(L) > n:
            L.pop(0)
    for ins in stream.l:
        if ins.kind == 'label':
            out.append(ins); continue
        if ins.kind == 'forget':
            for cls in q:
                for x in q[cls]:
                    if x[0] is not None: lost.add(id(x[0]))
                q[cls][:] = []
            continue
        if ins.kind == 'assume':
            q['vm'].append((None, set(ins.dst), False)); continue
        if ins.kind == 'save':
            saved[ins.text] = {c: list(q[c]) for c in q}; continue
        if ins.kind == 'restore':
            for c in q: q[c][:] = list(saved[ins.text][c])
            continue
        if ins.kind == 'endpath':
            for cls in q:
                pend = [x for x in q[cls] if x[1] - set(ins.dst)]
                if ins.dst and cls == 'vm': assert q[cls][-1][1] == set(ins.dst), "kept load must be the youngest"
                if pend:
                    raise RuntimeError(f"pending loads at endpath: {[(sorted(map(str,x[1])))[:4] for x in pend]}")
                for x in q[cls]:
                    if x[0] is not None: lost.add(id(x[0]))
                q[cls][:] = []
            continue
        if ins.mn == 's_waitcnt' and ins.kind == 'other':
            m = re.search(r'vmcnt\((\d+)\)', ins.text)
            if m: retire('vm', int(m.group(1)))
            m = re.search(r'lgkmcnt\((\d+)\)', ins.text)
            if m: retire('lgkm', int(m.group(1)))
            out.append(ins); continue
        need = {'vm': None, 'lgkm': None}
        touched = set(ins.src) | set(ins.dst)
        for cls in q:
            L = q[cls]
            idx = -1
            for k, (tok, dst, sm) in enumerate(L):
                if (dst & touched) or (tok is not None and tok in ins.need):
                    idx = k
            if idx >= 0:
                n = len(L) - 1 - idx
                if cls == 'lgkm' and any(x[2] for x in L): n = 0
                need[cls] = n
        for t in ins.need:
            if id(t) not in issued or (id(t) in lost and not any(t is x[0] for x in q[t.cls])):
                raise RuntimeError("token not in flight (issued later or lost): " + ins.text)
        if need['vm'] is not None or need['lgkm'] is not None:
            emit_wait(need['vm'], need['lgkm'])
            if need['vm'] is not None: retire('vm', min(need['vm'], 63))
            if need['lgkm'] is not None: retire('lgkm', min(need['lgkm'], 15))
        if ins.kind == 'waitonly': continue
        if ins.kind == 'vmem' and len(q['vm']) >= 58:
            emit_wait(50, None); retire('vm', 50)
        out.append(ins)
        if ins.tok is not None: issued.add(id(ins.tok))
        if ins.kind == 'vmem':
            q['vm'].append((ins.tok, set(ins.dst), False))
            if len(q['vm']) > 63: raise RuntimeError("more than 63 vmem outstanding")
        elif ins.kind == 'ds': q['lgkm'].append((ins.tok, set(ins.dst), False))
        elif ins.kind == 'smem': q['lgkm'].append((None, set(ins.dst), True))
    res = []
    nnop = 0
    def states(i):
        if i.kind == 'label': return 0
        if i.mn == 's_nop': return int(i.ops[0], 0) + 1
        return 1
    isv = lambda r: isinstance(r, tuple) and r[0] in 'va'
    iss = lambda r: (isinstance(r, tuple) and r[0] == 's') or r == 'vcc'
    for ins in out:
        req = 0
        if ins.kind not in ('label',):
            dist = 0
            S = set(ins.src); D = set(ins.dst)
            for p in reversed(res):
                if dist >= 20: break
                if p.kind == 'label':
                    continue
                need = 0
                PD = set(p.dst)
                pv = p.kind in ('valu', 'trans')
                cv = ins.kind in ('valu', 'trans')
                if pv and ins.kind == 'mfma' and (PD & S): need = max(need, 2)
                if pv and 'exec' in PD and ins.kind == 'mfma': need = max(need, 4)
                if p.kind == 'mfma':
                    big = {4: 8, 8: 12}[p.passes]
                    if ins.kind == 'mfma':
                        if PD & set(ins.srcAB): need = max(need, big)
                        if PD & set(ins.srcC):
                            if list(p.dst) == list(ins.srcC) and p.passes == ins.passes: pass
                            else: need = max(need, big - 2)
                        elif PD & D: need = max(need, big - 2)
                    elif ins.kind in ('valu', 'trans', 'ds', 'vmem'):
                        if PD & (S | D): need = max(need, big)
                        if (set(p.srcC) & D): need = max(need, {4: 3, 8: 7}[p.passes])
                if p.kind == 'trans' and cv and (PD & S): need = max(need, 1)
                if p.mn.startswith('v_dot') and (PD & (S | D)): need = max(need, 3)
                if pv and ins.dpp and any(isv(r) for r in PD & S): need = max(need, 2)
                if pv and 'exec' in PD and ins.dpp: need = max(need, 5)
                if pv and ins.mn.startswith('v_permlane') and (PD & S): need = max(need, 2)
                if pv and ins.mn.startswith(('v_readlane', 'v_readfirstlane')) and any(isv(r) for r in PD & S): need = max(need, 1)
                if pv and 'exec' in PD and ins.mn.startswith(('v_readlane', 'v_readfirstlane', 'v_writelane', 'v_permlane')): need = max(need, 4)
                if pv and any(iss(r) for r in PD & S):
                    if cv: need = max(need, 4 if ins.mn.startswith(('v_readlane', 'v_writelane')) else 2)
                    if ins.kind == 'vmem': need = max(need, 5)
                    if ins.kind in ('salu', 'branch'): need = max(need, 1)
                if pv and 'vcc' in PD and ins.mn.startswith('s_cbranch_vcc'): need = max(need, 1)
                if p.kind == 'salu' and 'm0' in PD and ins.ldsdma: need = max(need, 1)
                if p.kind == 'vmem' and p.wide and (set(p.data) & D): need = max(need, 2)
                if pv and ('sdwa' in p.mn or 'op_sel' in p.text) and not p.mn.startswith('v_pk') and cv and (PD & (S | D)): need = max(need, 1)
                if need - dist > req: req = need - dist
                dist += states(p)
        while req > 0:
            k = min(req, 16)
            res.append(Ins(f's_nop {k-1}')); req -= k; nnop += 1
        res.append(ins)
    if verbose: print(f"; finalize: {len(res)} instrs, {nnop} nops inserted")
    return [('' if i.kind == 'label' else '    ') + i.text for i in res]

import subprocess, tempfile, os
def align_pass(lines, head, minrun=5):
    src = head + '\n' + '\n'.join(lines) + '\n'
    with tempfile.TemporaryDirectory() as d:
        open(d + '/a.s', 'w').write(src)
        r = subprocess.run(['clang', '-x', 'assembler', '-target', 'amdgcn-amd-amdhsa', '-mcpu=gfx950', '-c', d + '/a.s', '-o', d + '/a.o'], capture_output=True, text=True)
        assert r.returncode == 0, r.stderr
        dis = subprocess.run(['llvm-objdump', '-d', '--mcpu=gfx950', d + '/a.o'], capture_output=True, text=True).stdout
    sizes = []
    for l in dis.splitlines():
        m = re.search(r'// [0-9A-F]{12}: ((?:[0-9A-F]{8} ?)+)', l)
        if m: sizes.append(4 * len(m.group(1).split()))
    idx = [i for i, l in enumerate(lines) if not l.strip().endswith(':')]
    assert len(idx) == len(sizes), (len(idx), len(sizes))
    size = dict(zip(idx, sizes))
    out = []; off = 0; prev = None; nfix = [0, 0]
    for pos, i in enumerate(range(len(lines))):
        if i not in size:
            out.append(lines[i]); prev = None; continue
        if size[i] == 8 and off % 8 == 4:
            run = 0; j = i
            while j < len(lines) and (j not in size or size[j] == 8):
                if j in size: run += 1
                j += 1
            if run >= minrun:
                mn = out[prev].split()[0] if prev is not None else ''
                if prev is not None and mn.startswith('v_') and psize == 4 and not mn.endswith(('_e64', '_dpp', '_sdwa')) and not mn.startswith(('v_readfirstlane', 'v_permlane', 'v_nop', 'v_accvgpr')):
                    out[prev] = out[prev].replace(mn, mn + '_e64', 1); nfix[0] += 1
                else:
                    out.append('    s_nop 0'); nfix[1] += 1
                off += 4
        out.append(lines[i]); prev = len(out) - 1; psize = size[i]; off += size[i]
    return out, off, nfix
```

```python
import sys, math, struct
sys.path.insert(0, 'gen')
from emit import *

NAME = "recurrent_scan__ssm_conv_s4d__dense_activation_squared_relu__prompt"
opt = dict(xev=2, xlead=30, dtlb=1, w3cap=48, stamps=0, spin=20000, code_kb=34, align=1, b0=8, b2a=2, b2b=4, b2c=6, xf0=3, xf1=5,
           g1pre=8, g1d=10, uw=45, wa0=40, wan=20, wep=9, wb0=14, wb1=17,
           hlast=0, hfl=8, tail10=10, stg=20, ypub=50, hchk=8, hgap=4, hgapx=2, hpre=12, hd=12, yfl=40, ychk=2)
for a in sys.argv[1:]:
    k, v = a.split('='); opt[k] = int(v)

def f32(x): return struct.unpack('<I', struct.pack('<f', x))[0]
def vr(b, n=1): return f"v{b}" if n == 1 else f"v[{b}:{b+n-1}]"
def ar(b, n=1): return f"a{b}" if n == 1 else f"a[{b}:{b+n-1}]"
def vp(b): return f"v[{b}:{b+1}]"
def flat(gs):
    s = Stream()
    for g in gs: s.ext(g)
    return s

XNA = 0; XNB = 0x400000; HB = 0x800000; YT = 0x1000000
FX = 0x1500000; FB = FX + 0x8000; FH = FX + 0x10000; FY = FX + 0x40000
W2R = 0x1600000
STAMP = 0x1800000
XAS = 65536; XBS = 16384; HBS = 64; YS = 8192
L_W = 40960
SCR_W = 8704; TROW = 272
KSLOT = SCR_W; OOFF = 4284
L_U = 3 * KSLOT; USLOT = 4352
L_LN = L_U; LNROW = 1344
L_E = L_W + 61440
L_Y = L_E + 4 * 6144
L_P = L_W + 37 * 3072
L_F = L_W - 64
L_V = L_U + 3 * USLOT
LDS_BYTES = 163840
assert L_U + 3 * USLOT <= L_W and L_LN + 8 * LNROW <= L_W
sWG, sWAVE, sRB, sCB, sRB2, sCB2, sCBASE, sPAR, sNONCE = 2, 3, 4, 5, 6, 7, 8, 9, 10
P = lambda k: f"s[{16+2*k}:{17+2*k}]"
pX, pLOGA, pAIM, pCR, pCI, pLOGDT, pDSK, pBX, pW1, pB1, pW2, pB2, pOUT, pDBG, pWS = range(15)
SRD_X, SRD_W1, SRD_W2, SRD_WS, SRD_OUT = "s[48:51]", "s[52:55]", "s[56:59]", "s[60:63]", "s[64:67]"
sXB, sXC, sSCR, sW2B, sROT, sSRC, sRG, sXH = 76, 77, 78, 79, 80, 81, 82, 83
sOWN, sUB, sEN0, sEN1, sHST, sHFL = 84, 85, 86, 87, 88, 89
sHB = 90
sYL = 94
sSL0, sSL1, sISX, sYF2, sJ = 97, 98, 99, 100, 101
sYB, sYF = 74, 75
SPIN_MAX = opt['spin']
JUNK = "a255"
LOG2E = 1.4426950408889634
vU, vK, vKn = 92, 93, 94
vXD, vEA = 95, 98
vW2R, vUl, vKl, vYl, vOO, vUG, vUW = 100, 101, 102, 103, 104, 105, 106
vST = 107
vXF, vW1O, vBD, vB1A, vHS, vENA, vE0, vE1 = 240, 241, 244, 245, 246, 247, 248, 249
vHF, vYG, vL1, vL0, vA0, vA1 = 250, 251, 252, 253, 254, 255

S = Stream()
COLD = Stream()
stamp_names = []
SKIP = set('w3_b0 w3_ln ln_st idle ln k_u0 e_bar ep0 ep1 ep2'.split())
def stamp(s, name):
    if not opt['stamps'] or name in SKIP: return
    if name not in stamp_names: stamp_names.append(name)
    idx = stamp_names.index(name)
    assert 0 < idx < 29
    s(f"s_memtime s[68:69]\ns_waitcnt lgkmcnt(0)\nv_writelane_b32 v{vST}, s68, {idx}")

def bf16_round(s, dst, src):
    s(f"v_cvt_pk_bf16_f32 {dst}, {src}, {src}")
    s(f"v_and_b32 {dst}, 0xffff0000, {dst}")

def flag_load(s, loads, nonce=None):
    for vd, vo, *n in loads:
        s(f"buffer_load_dword{'x4' if n else ''} {vr(vd, 4 if n else 1)}, v{vo}, {SRD_WS}, 0 offen sc0 sc1")
    if nonce: s(f"global_load_dword v{nonce[0]}, v{nonce[1]}, {P(pDBG)} sc0 sc1")
def flag_test(s, loads, nonce=None):
    regs = [vd + k for vd, vo, *n in loads for k in range(4 if n else 1)]
    if nonce: s(f"v_readfirstlane_b32 s{sNONCE}, v{nonce[0]}")
    for r in regs: s(f"v_xor_b32 v{r}, s{sNONCE}, v{r}")
    for r in regs[1:]: s(f"v_or_b32 v{regs[0]}, v{regs[0]}, v{r}")
    if nonce:
        s(f"v_cmp_eq_u32 vcc, 0, v{nonce[0]}")
        s(f"v_cndmask_b32 v{regs[0]}, v{regs[0]}, 1, vcc")
    s(f"v_cmp_ne_u32 vcc, 0, v{regs[0]}")
uid = [0]
def spin(L, loads, nonce=None, pre="", post=None):
    c = COLD
    c.label(f"{L}s")
    c("s_mov_b32 s70, 0")
    if pre: c(pre)
    c.label(f"{L}l")
    flag_load(c, loads, nonce)
    c("s_waitcnt vmcnt(0)")
    flag_test(c, loads, nonce)
    c(f"s_add_u32 s70, s70, 1\ns_cmp_gt_u32 s70, {SPIN_MAX}\ns_cbranch_scc1 {L}x\ns_cbranch_vccz {L}x\ns_sleep 4\ns_branch {L}l")
    c.label(f"{L}x")
    if post: c.ext(post); c("s_waitcnt vmcnt(0)")
    c(f"s_nop 4\ns_branch {L}b")
def flag_check(s, loads):
    uid[0] += 1; L = f".Lc{uid[0]}"
    flag_test(s, loads)
    s(f"s_cbranch_vccnz {L}s")
    s.label(f"{L}b")
    spin(L, loads)

if opt['stamps']:
    S("s_memtime s[70:71]"); stamp_names.append('start')
S(f"s_cmp_ge_u32 s{sWG}, 256")
S("s_cbranch_scc1 .Lend")
S("s_load_dwordx16 s[16:31], s[0:1], 0")
S("s_load_dwordx8 s[32:39], s[0:1], 64")
S("s_load_dwordx4 s[40:43], s[0:1], 96")
S("s_load_dwordx2 s[44:45], s[0:1], 112")
vX = 20; vRAW = 120
S(f"""s_getpc_b64 s[72:73]
s_and_b32 s11, s{sWG}, 7
s_lshr_b32 s{sJ}, s{sWG}, 3
s_lshl_b32 s{sRG}, s11, 5
s_add_u32 s{sRG}, s{sRG}, s{sJ}
v_lshrrev_b32 v4, 4, v0
v_lshl_add_u32 v2, s{sRG}, 3, v4
v_mul_u32_u24 v2, 1280, v2
v_and_b32 v7, 15, v0
v_lshl_add_u32 v2, v7, 4, v2
v_lshrrev_b32 v3, 6, v0
v_and_b32 v0, 63, v0
v_readfirstlane_b32 s{sWAVE}, v3
s_and_b32 s{sPAR}, s{sJ}, 1
s_lshl_b32 s{sCBASE}, s11, 4
s_lshr_b32 s15, s{sJ}, 1
s_add_u32 s{sCBASE}, s{sCBASE}, s15
s_mul_i32 s{sCBASE}, s{sCBASE}, 5
s_lshl_b32 s15, s{sPAR}, 1
s_add_u32 s{sCBASE}, s{sCBASE}, s15
s_min_u32 s12, s{sWAVE}, 2
s_add_u32 s12, s12, s{sCBASE}
s_mul_i32 s15, s12, 384
s_lshl_b32 s12, s12, 1
s_and_b32 s13, s12, -4
s_lshl_b32 s46, s12, 3
v_mul_u32_u24 v6, 6, v0
v_and_b32 v6, -4, v6
v_add_u32 v6, s15, v6
v_mov_b32 v10, {L_F}
v_mov_b32 v12, 0
v_mov_b32 v13, 0
ds_write_b64 v10, v[12:13]
s_cmp_ge_u32 s{sWAVE}, 2
s_waitcnt lgkmcnt(0)
s_cbranch_scc1 .Lnox""")
for j in range(5):
    S(f"global_load_dwordx4 {vr(vX+4*j,4)}, v2, {P(pX)} offset:{256*j}")
S.label(".Lnox")
if opt['stamps']:
    S(f"v_mov_b32 v{vST}, 0\nv_writelane_b32 v{vST}, s70, 0\ns_memrealtime s[68:69]\ns_waitcnt lgkmcnt(0)\nv_writelane_b32 v{vST}, s68, 30")
S(f"s_load_dword s47, {P(pLOGDT)}, s13")
S("s_barrier")
S(f"s_cmp_eq_u32 s{sWAVE}, 3\ns_cbranch_scc1 .Lnopar")
for k, p in enumerate((pLOGA, pAIM, pCR, pCI)):
    S(f"global_load_dwordx2 {vr(vRAW+2*k,2)}, v6, {P(p)}")
S.label(".Lnopar")
def srd(name, p, nbytes):
    b = int(name[2:name.index(':')])
    S(f"s_mov_b32 s{b}, s{16+2*p}\ns_mov_b32 s{b+1}, s{17+2*p}\ns_mov_b32 s{b+2}, {nbytes}\ns_mov_b32 s{b+3}, 0x20000")
S(f"""v_min_u32 v10, 2, v0
v_mul_u32_u24 v10, 10, v10
v_min_u32 v11, 1, v0
v_lshlrev_b32 v11, 1, v11
v_cmp_lt_u32 vcc, 1, v0
s_lshr_b32 s12, s{sRG}, 7
v_add_u32 v11, s12, v11
v_cndmask_b32 v10, v11, 10, vcc
v_cmp_lt_u32 vcc, 2, v0
v_cndmask_b32 v10, v10, 11, vcc
v_lshlrev_b32 v10, 21, v10
v_add_u32 v10, 0x1fff80, v10
v_mov_b32 v12, 0x80
s_mul_i32 s12, s{sJ}, {opt['code_kb'] * 32}
v_lshl_add_u32 v1, v0, 5, s12
s_cmp_eq_u32 s{sWAVE}, 1
s_cbranch_scc1 .Ltlb1
s_cmp_eq_u32 s{sWAVE}, 2
s_cbranch_scc1 .Ltlb2
s_cmp_eq_u32 s{sWAVE}, 3
s_cbranch_scc1 .Ltlb3""")
S.junk(f"global_load_dword {JUNK}, v1, s[72:73]"); S.l[-1].kind = 'other'
S("s_branch .Ltlbd")
S.label(".Ltlb1")
if opt['dtlb']:
    S(f"""s_lshl_b32 s12, s{sJ}, 21
s_add_u32 s12, s12, 0x1fff80
s_mov_b64 s[68:69], {P(pWS)}""")
    for n, (p_, off) in enumerate(((pB1, 0x80), (pX, 0), (pX, 0x200000), (pB2, 0x80), (pDSK, 0x80), (pOUT, 0), (pOUT, 0x200000))):
        S(f"s_cmp_eq_u32 s{sJ}, {12+n}\ns_cselect_b64 s[68:69], {P(p_)}, s[68:69]\ns_cselect_b32 s12, {off}, s12")
    S(f"v_mov_b32 v12, s12\ns_cmp_ge_u32 s{sJ}, 19\ns_cbranch_scc1 .Ltlbd")
    S.junk(f"global_load_dword {JUNK}, v12, s[68:69]"); S.l[-1].kind = 'other'
S("s_branch .Ltlbd")
S.label(".Ltlb3")
S.junk(f"global_load_dword {JUNK}, v10, {P(pWS)}"); S.l[-1].kind = 'other'
S("s_branch .Ltlbd")
S.label(".Ltlb2")
S.junk(f"global_load_dword {JUNK}, v12, {P(pDBG)}"); S.l[-1].kind = 'other'
S(f"""s_cmp_lg_u32 s{sWG}, 0
s_cbranch_scc1 .Ltlbd
s_memrealtime s[68:69]
s_waitcnt lgkmcnt(0)
s_lshl_b32 s68, s68, 1
s_or_b32 s68, s68, 1
v_mov_b32 v1, s68
v_mov_b32 v2, 0
global_store_dword v2, v1, {P(pDBG)} sc0 sc1""")
S.l[-1].kind = 'other'
S.label(".Ltlbd")
srd(SRD_W1, pW1, 640*1536*2)
srd(SRD_W2, pW2, 640*1536*2)
srd(SRD_WS, pWS, 0x10000000)
srd(SRD_X, pX, 2048*640*2)
srd(SRD_OUT, pOUT, 2048*640*2)
S(f"""s_lshr_b32 s13, s11, 1
s_and_b32 s{sXH}, s11, 1
s_lshl_b32 s{sRB}, s13, 2
s_and_b32 s15, s{sJ}, 3
s_add_u32 s{sRB}, s{sRB}, s15
s_lshl_b32 s{sCB}, s{sXH}, 3
s_lshr_b32 s12, s{sJ}, 2
s_add_u32 s{sCB}, s{sCB}, s12
s_lshl_b32 s15, s15, 1
s_add_u32 s{sROT}, s15, s{sCB}
s_lshl_b32 s{sRB2}, s13, 3
s_and_b32 s15, s{sJ}, 7
s_add_u32 s{sRB2}, s{sRB2}, s15
s_lshl_b32 s{sCB2}, s{sXH}, 2
s_lshr_b32 s15, s{sJ}, 3
s_add_u32 s{sCB2}, s{sCB2}, s15
s_mov_b32 s{sNONCE}, 0
s_mul_i32 s{sSCR}, s{sWAVE}, {SCR_W}
s_mul_i32 s{sW2B}, s{sWAVE}, 15360
s_add_u32 s{sW2B}, s{sW2B}, {L_W}
s_mul_i32 s{sSRC}, s{sCB}, 192
s_mov_b32 s70, {L_W}
s_and_b32 s12, s{sROT}, 7
s_mul_i32 s71, s12, {5*49152}
s_add_u32 s71, s71, s{sSRC}
s_add_u32 s74, s{sSRC}, {40*49152}""")
def divmod_off(dst, i, magic, div, stride):
    S(f"""v_add_u32 v15, {64*i}, v0
v_mul_u32_u24 v2, {magic}, v15
v_lshrrev_b32 v2, 19, v2
v_mul_u32_u24 v3, {div}, v2
v_sub_u32 v3, v15, v3
v_mul_u32_u24 v2, {stride}, v2
v_lshl_add_u32 v{dst}, v3, 4, v2""")
def w1_slot(s):
    for i in range(3):
        s(f"s_add_u32 m0, s70, {i*1024}")
        s(f"buffer_load_dwordx4 v{vW1O+i}, {SRD_W1}, s71 offen lds")
    s(f"""s_add_u32 s70, s70, 3072
s_add_u32 s71, s71, 49152
s_cmp_eq_u32 s71, s74
s_cselect_b32 s71, s{sSRC}, s71""")
def w1_upto(s, n):
    uid[0] += 1; L = f".Lw1_{uid[0]}"
    s(f"s_cmp_ge_u32 s70, {L_W + 3072*n}\ns_cbranch_scc1 {L}x")
    s.label(L)
    s(f"s_waitcnt vmcnt({opt['w3cap']})"); s.l[-1].mn = 's_waitcnt_raw'
    k = len(s.l)
    w1_slot(s)
    for i in s.l[k:]:
        if i.kind == 'vmem': i.kind = 'other'
    s(f"s_cmp_lt_u32 s70, {L_W + 3072*n}\ns_cbranch_scc1 {L}")
    s.label(L + "x")
def w1_slots(s, n, counted=True):
    if n <= 0: return
    uid[0] += 1; L = f".Lw1_{uid[0]}"
    s(f"s_mov_b32 s75, {n}")
    s.label(L)
    s(f"s_waitcnt vmcnt({opt['w3cap']})"); s.l[-1].mn = 's_waitcnt_raw'
    k = len(s.l)
    w1_slot(s)
    s(f"s_sub_u32 s75, s75, 1\ns_cmp_lg_u32 s75, 0\ns_cbranch_scc1 {L}")
    if counted:
        for _ in range(min(3 * (n - 1), 40)): s.assume([])
    else:
        for i in s.l[k:]:
            if i.kind == 'vmem': i.kind = 'other'
for i in range(3): divmod_off(vW1O + i, i, 0xaaab, 12, 3072)
S(f"""s_nop 0
s_lshl_b32 s11, s{sRB}, 2
s_add_u32 s11, s11, s{sWAVE}
s_mul_i32 s{sXB}, s11, {XAS}
s_lshl_b32 s12, s11, 4
s_add_u32 s12, s12, s{sCB}
s_lshl_b32 s12, s12, 7
s_add_u32 s{sHFL}, s12, {FH}
s_lshl_b32 s12, s11, 9
s_add_u32 s12, s12, {FX}
v_and_b32 v1, 3, v0
v_lshl_add_u32 v{vXF}, v1, 7, s12
s_lshl_b32 s11, s11, 1
s_mul_i32 s11, s11, {HBS}
s_mul_i32 s12, s{sCB}, 3
s_add_u32 s11, s11, s12
s_lshl_b32 s11, s11, 10
s_add_u32 s{sHST}, s11, {HB}
s_add_u32 s{sOWN}, s{sWAVE}, s{sCB2}
s_and_b32 s{sOWN}, s{sOWN}, 3
s_mul_i32 s11, s{sWAVE}, {64*XBS}
s_lshl_b32 s12, s{sCBASE}, 4
s_add_u32 s11, s11, s12
s_add_u32 s{sUB}, s11, {XNB}
s_lshl_b32 s14, s{sRB2}, 6
s_lshl_b32 s12, s{sOWN}, 4
s_add_u32 s14, s14, s12
s_lshr_b32 s13, s14, 5
s_mul_i32 s13, s13, {XAS//1024}
s_mul_i32 s12, s{sCB2}, 5
s_add_u32 s13, s13, s12
s_lshl_b32 s13, s13, 10
s_and_b32 s12, s14, 31
s_lshl_b32 s12, s12, 4
s_add_u32 s{sEN0}, s13, s12
s_mul_i32 s{sEN1}, s14, 1280
s_mul_i32 s12, s{sCB2}, 160
s_add_u32 s{sEN1}, s{sEN1}, s12
s_mul_i32 s11, s{sCB2}, {80*YS}
s_lshl_b32 s12, s14, 1
s_add_u32 s11, s11, s12
s_add_u32 s{sYL}, s11, {YT}
s_add_u32 s{sYL+1}, s{sYL}, {32*YS}
s_add_u32 s{sYL+2}, s{sYL}, {48*YS}
s_add_u32 s{sSL0}, s{sPAR}, s{sWAVE}
s_cmp_eq_u32 s{sWAVE}, 2
s_cselect_b32 s{sSL0}, s{sPAR}, s{sSL0}
s_cselect_b32 s{sISX}, 1, 0
s_add_u32 s{sSL1}, s{sPAR}, 1
s_lshl_b32 s12, s{sPAR}, 1
s_sub_u32 s12, 2, s12
s_cmp_eq_u32 s{sWAVE}, 3
s_cselect_b32 s{sISX}, s{sPAR}, s{sISX}
s_cselect_b32 s{sSL0}, s12, s{sSL0}
s_cselect_b32 s{sSL1}, 0, s{sSL1}""")
for p in range(4):
    S(f"""s_add_u32 s11, s{sOWN}, {p+1}
s_and_b32 s11, s11, 3
s_lshl_b32 s12, s{sRB2}, 2
s_add_u32 s11, s11, s12
s_mul_i32 s11, s11, {HBS}
s_mul_i32 s12, s{sWAVE}, 12
s_add_u32 s11, s11, s12
s_lshl_b32 s11, s11, 10
s_add_u32 s{sHB+p}, s11, {HB}""")
for i in range(3): divmod_off(vXD + i, i, 0xcccd, 10, 1280)
S(f"""v_and_b32 v5, 31, v0
v_lshrrev_b32 v8, 4, v0
v_lshrrev_b32 v9, 5, v0
v_and_b32 v13, 1, v8
v_and_b32 v1, 3, v0
v_lshrrev_b32 v14, 2, v0
v_lshlrev_b32 v{vL0}, 4, v0
v_add_u32 v{vL1}, 1024, v{vL0}
v_lshlrev_b32 v{vB1A}, 3, v9
v_add_u32 v{vB1A}, {L_V}, v{vB1A}
v_add_u32 v{vOO}, s14, v7
v_mul_u32_u24 v{vOO}, 1280, v{vOO}
s_mul_i32 s12, s{sCB2}, 160
v_lshl_add_u32 v{vBD}, v8, 3, s12
v_add_u32 v{vOO}, v{vOO}, v{vBD}
v_lshlrev_b32 v{vBD}, 3, v8
v_add_u32 v{vBD}, {L_V + 256}, v{vBD}
v_lshrrev_b32 v2, 2, v7
v_lshl_add_u32 v3, v9, 3, v2
v_mul_u32_u24 v{vA0}, 192, v3
v_lshl_add_u32 v{vA0}, v1, 3, v{vA0}
v_lshl_add_u32 v{vA0}, v13, 5, v{vA0}
v_add_u32 v{vA0}, {L_W}, v{vA0}
v_add_u32 v{vA1}, 61440, v{vA0}
v_lshl_add_u32 v3, v13, 2, v2
v_lshl_add_u32 v3, v9, 4, v3
v_lshlrev_b32 v3, 8, v3
v_lshl_add_u32 v3, v1, 3, v3
v_add_u32 v{vW2R}, {L_P}, v3
v_mul_u32_u24 v3, {XBS}, v14
v_lshl_add_u32 v{vUG}, v1, 4, v3
v_mul_u32_u24 v3, {USLOT}, v1
v_lshl_add_u32 v3, v14, 4, v3
s_lshl_b32 s12, s{sWAVE}, 10
s_add_u32 s12, s12, {L_U + 256}
v_add_u32 v{vUW}, s12, v3
v_lshlrev_b32 v2, 4, v7
v_lshl_add_u32 v{vENA}, v8, 9, v2
s_mul_i32 s12, s{sWAVE}, 6144
s_add_u32 s12, s12, {L_E}
v_mul_u32_u24 v3, 160, v7
v_lshl_add_u32 v3, v8, 3, v3
v_add_u32 v{vEA}, s12, v3
v_lshl_add_u32 v3, v9, 8, v2
v_lshl_add_u32 v3, v13, 3, v3
v_add_u32 v{vEA+1}, s12, v3
v_mul_u32_u24 v3, {HBS*1024}, v13
v_add_u32 v3, v3, v2
v_lshl_add_u32 v{vHS}, v9, 8, v3
v_lshl_add_u32 v3, v13, 8, v2
v_lshl_add_u32 v{vYl}, v9, 10, v3
v_add_u32 v3, v7, v8
v_lshlrev_b32 v3, 4, v3
v_add_u32 v{vUl}, {L_U + 16}, v3
v_and_b32 v3, 7, v0
v_sub_u32 v3, 8, v3
v_lshrrev_b32 v3, 1, v3
v_lshl_add_u32 v3, v8, 2, v3
v_lshlrev_b32 v{vKl}, 2, v3
v_and_b32 v2, 1, v0
v_sub_u32 v3, 1, v2
v_mul_u32_u24 v3, {OOFF}, v3
v_add_u32 v{vKl}, v{vKl}, v3
v_bfe_u32 v3, v0, 3, 1
v_sub_u32 v3, 1, v3
v_mul_u32_u24 v3, 1056, v3
v_add_u32 v{vKl}, v{vKl}, v3
v_lshrrev_b32 v3, 1, v0
v_mul_u32_u24 v3, {YS}, v3
v_lshl_add_u32 v{vYG}, v2, 4, v3
s_lshr_b32 s11, s{sRB2}, 1
s_lshl_b32 s11, s11, 2
s_and_b32 s12, s{sRB2}, 1
s_lshl_b32 s12, s12, 1
s_add_u32 s11, s11, s12
s_lshl_b32 s11, s11, 4
s_lshl_b32 s12, s{sWAVE}, 2
s_add_u32 s11, s11, s12
s_lshl_b32 s11, s11, 7
s_add_u32 s11, s11, {FH}
v_and_b32 v3, 1, v14
v_lshlrev_b32 v3, 11, v3
v_lshl_add_u32 v3, v1, 7, v3
v_add_u32 v{vHF}, s11, v3
v_sub_u32 v2, 31, v5
v_lshl_add_u32 v2, v2, 4, s{sSCR}
v_sub_u32 v3, 1, v9
v_lshl_add_u32 v{vE0}, v3, 9, v2
v_mul_u32_u24 v3, 1056, v3
v_add_u32 v{vE1}, v3, v2
v_mul_u32_u24 v1, {LNROW}, v4
v_lshl_add_u32 v1, v7, 4, v1
v_add_u32 v1, {L_LN}, v1""")
def unit_addr(s, sslot):
    s(f"""s_mul_i32 s12, s{sslot}, {USLOT}
v_add_u32 v{vU}, s12, v{vUl}
s_mul_i32 s12, s{sslot}, {KSLOT}
s_mul_i32 s13, s{sISX}, 2112
s_add_u32 s12, s12, s13
v_add_u32 v{vK}, s12, v{vKl}
v_add_u32 v{vKn}, 1056, v{vK}
s_add_u32 s12, s{sCBASE}, s{sslot}
s_lshl_b32 s14, s12, 8
s_mul_i32 s12, s12, {YS}
s_lshl_b32 s13, s{sISX}, 11
s_sub_u32 s12, s12, s13
s_add_u32 s{sYB}, s12, {YT + 2048}
s_lshl_b32 s13, s{sISX}, 7
s_sub_u32 s14, s14, s13
s_add_u32 s{sYF}, s14, {FY + 128}""")
def xreg(i): return ar(120 + 4 * (i % 30), 4)
def xn_load(s, i):
    if i % 5 == 0:
        s(f"s_add_u32 s{sXC}, s{sROT}, {i//5}\ns_and_b32 s{sXC}, s{sXC}, 7\ns_mul_i32 s{sXC}, s{sXC}, 5120\ns_add_u32 s{sXC}, s{sXC}, s{sXB}")
    k = i % 5
    s(f"buffer_load_dwordx4 {xreg(i)}, v{vL0 if k < 4 else vL1}, {SRD_WS}, s{sXC} offen offset:{1024*min(k,3)} sc1")
G1PRE = opt['g1pre']
XF = [(1, vXF)]; XN = (2, 3)
def xn_try(s, tag):
    flag_test(s, XF, XN)
    s("s_mov_b64 s[46:47], vcc")
    out = []
    for n in range(G1PRE):
        x = Stream(); x(f"s_cbranch_vccnz .Lxs{tag}{n}"); xn_load(x, n); x.label(f".Lxs{tag}{n}"); out.append(x)
    return out

stamp(S, 'idle')
S(f"s_cmp_eq_u32 s{sWAVE}, 3\ns_cbranch_scc1 .Lw3\ns_cmp_eq_u32 s{sWAVE}, 2")
S.save('role')
S("s_cbranch_scc1 .Lkgen")
S("s_waitcnt vmcnt(4)")
vF = 40; NX = 20; vA = 80
for k in range(NX):
    S(f"v_lshlrev_b32 v{vF+2*k}, 16, v{vX+k}")
    S(f"v_and_b32 v{vF+2*k+1}, 0xffff0000, v{vX+k}")
    if k == 3:
        S(f"v_pk_add_f32 {vp(vA)}, {vp(vF)}, {vp(vF+2)}")
        S(f"v_pk_add_f32 {vp(vA+2)}, {vp(vF+4)}, {vp(vF+6)}")
    elif k > 3:
        a = vA + 2 * (k & 1)
        S(f"v_pk_add_f32 {vp(a)}, {vp(a)}, {vp(vF+2*k)}")
stamp(S, 'x_in')
S(f"v_pk_add_f32 {vp(vA)}, {vp(vA)}, {vp(vA+2)}")
S(f"v_add_f32 v{vA}, v{vA}, v{vA+1}")
def rowsum(s, r):
    for sh in (8, 4, 2, 1):
        s(f"v_add_f32_dpp v{r}, v{r}, v{r} row_ror:{sh} row_mask:0xf bank_mask:0xf")
rowsum(S, vA)
S(f"v_mul_f32 v{vA+4}, {f32(-1.0/640)}, v{vA}")
bf16_round(S, f"v{vA}", f"v{vA+4}")
S(f"v_mov_b32 v{vA+1}, v{vA}")
S(f"v_sub_f32 v{vA+4}, v{vA+4}, v{vA}")
for k in range(NX):
    a = vA + 2 + 4 * (k & 1)
    S(f"v_pk_add_f32 {vp(vF+2*k)}, {vp(vF+2*k)}, {vp(vA)}")
    S(f"v_cvt_pk_bf16_f32 v{vX+k}, v{vF+2*k}, v{vF+2*k+1}")
    if k < 2: S(f"v_pk_mul_f32 {vp(a)}, {vp(vF+2*k)}, {vp(vF+2*k)}")
    else: S(f"v_pk_fma_f32 {vp(a)}, {vp(vF+2*k)}, {vp(vF+2*k)}, {vp(a)}")
r_ = vA + 2
S(f"v_pk_add_f32 {vp(r_)}, {vp(r_)}, {vp(vA+6)}")
S(f"v_add_f32 v{r_}, v{r_}, v{r_+1}")
R = Stream(); rowsum(R, r_)
R(f"v_mul_f32 v{vA+4}, v{vA+4}, v{vA+4}\nv_mul_f32 v{r_}, {f32(1.0/640)}, v{r_}\nv_sub_f32 v{r_}, v{r_}, v{vA+4}\nv_max_f32 v{r_}, 0, v{r_}")
bf16_round(R, f"v{r_}", f"v{r_}")
R(f"v_add_f32 v{r_}, {f32(1e-5)}, v{r_}")
bf16_round(R, f"v{r_}", f"v{r_}")
R(f"v_sqrt_f32 v{r_}, v{r_}")
bf16_round(R, f"v{r_}", f"v{r_}")
R(f"v_rcp_f32 v{r_}, v{r_}")
U = []
for k in range(NX):
    g = Stream(); g(f"v_lshlrev_b32 v{vF+2*k}, 16, v{vX+k}\nv_and_b32 v{vF+2*k+1}, 0xffff0000, v{vX+k}"); U.append(g)
S.ext(sprinkle(R, U, 1))
S(f"v_mov_b32 v{r_+1}, v{r_}\ns_lshl_b32 s12, s{sWAVE}, 2\ns_add_u32 s12, s12, {L_F}\nv_mov_b32 v2, s12\nv_mov_b32 v3, 1")
for k in range(NX):
    S(f"v_pk_mul_f32 {vp(vF+2*k)}, {vp(vF+2*k)}, {vp(r_)}")
for k in range(NX):
    S(f"v_cvt_pk_bf16_f32 v{vX+k}, v{vF+2*k}, v{vF+2*k+1}")
for j in range(5):
    S(f"ds_write_b128 v1, {vr(vX+4*j,4)} offset:{256*j}")
S("ds_write_b32 v2, v3")
stamp(S, 'ln')
S("s_branch .Lkgen")
S.label(".Lw3")
S.endpath(keep=None)
w1_slots(S, opt['b0'], False)
S(f"""v_lshrrev_b32 v5, 3, v0
v_and_b32 v6, 7, v0
v_mul_u32_u24 v10, {LNROW}, v6
v_lshl_add_u32 v10, v5, 4, v10
v_add_u32 v10, {L_LN}, v10
v_and_b32 v12, 3, v14
v_mul_u32_u24 v12, {LNROW}, v12
v_and_b32 v4, 3, v0
v_lshl_add_u32 v12, v4, 3, v12
v_lshl_add_u32 v12, v8, 5, v12
v_add_u32 v12, {L_LN}, v12
v_lshlrev_b32 v11, 10, v8
v_and_b32 v5, 1, v5
v_lshl_add_u32 v11, v5, 9, v11
v_lshl_add_u32 v11, v6, 4, v11
v_mul_u32_u24 v6, 1280, v8
v_lshl_add_u32 v6, v7, 4, v6
v_mov_b32 v2, {L_F}
v_mov_b32 v3, 0
s_min_u32 s12, s{sRG}, 239
s_mul_i32 s13, s12, 52429
s_lshr_b32 s13, s13, 18
s_mul_i32 s14, s13, 5
s_sub_u32 s14, s12, s14
s_mul_i32 s15, s13, {32*1280}
s_lshl_b32 s12, s14, 8
s_add_u32 s15, s15, s12
s_mul_i32 s13, s13, 40
s_lshl_b32 s14, s14, 3
s_add_u32 s13, s13, s14
s_lshl_b32 s13, s13, 10
s_add_u32 s14, s13, {W2R}
s_lshr_b32 s12, s{sRG}, 2
s_mul_i32 s12, s12, {XAS}
s_and_b32 s13, s{sRG}, 3
s_lshl_b32 s13, s13, 7
s_add_u32 s12, s12, s13
s_mul_i32 s13, s{sRG}, {XBS}
s_add_u32 s13, s13, {XNB}
s_mov_b32 s11, 0""")
stamp(S, 'w3_b0')
S.label(".Llnw")
S(f"""ds_read_b64 v[16:17], v2
s_waitcnt lgkmcnt(0)
v_and_b32 v16, v16, v17
s_add_u32 s11, s11, 1
v_readfirstlane_b32 s75, v16
s_cmp_gt_u32 s11, {SPIN_MAX*16}
s_cbranch_scc1 .Llnwx
s_cmp_eq_u32 s75, 0
s_cbranch_scc1 .Llnw""")
S.label(".Llnwx")
stamp(S, 'w3_ln')
for j in range(10):
    S(f"ds_read_b128 {vr(20+4*j,4)}, v10 offset:{128*j}")
S(f"global_load_dword v15, v3, {P(pDBG)} sc0 sc1")
for it in range(10):
    S(f"ds_read_b64_tr_b16 {vr(130+4*it,2)}, v12 offset:{128*it}")
    S(f"ds_read_b64_tr_b16 {vr(132+4*it,2)}, v12 offset:{128*it + 4*LNROW}")
for j in range(10):
    tl = S(f"buffer_store_dwordx4 {vr(20+4*j,4)}, v11, {SRD_WS}, s12 offen sc0 sc1")
    if j < 9: S("s_add_u32 s12, s12, 4096")
stamp(S, 'ln_st')
for i in range(8):
    S(f"s_mov_b32 m0, {L_P + 1024*i}")
    tp_ = S(f"buffer_load_dwordx4 v6, {SRD_W2}, s15 offen lds")
    if i < 7: S(f"s_add_u32 s15, s15, {4*1280}")
S(f"""s_mul_i32 s11, s{sCB2}, 160
v_add_u32 v18, s{sSRC}, v{vL0}
v_add_u32 v19, s11, v{vL0}
s_mov_b32 exec_hi, 0
s_mov_b32 exec_lo, 0xfff
s_mov_b32 m0, {L_V}
global_load_lds_dwordx4 v18, {P(pB1)}
s_mov_b32 exec_lo, 0x3ff
s_mov_b32 m0, {L_V + 256}
global_load_lds_dwordx4 v19, {P(pB2)}
s_mov_b32 m0, {L_V + 512}
global_load_lds_dwordx4 v19, {P(pDSK)}
s_mov_b64 exec, -1""")
w1_slots(S, opt['b2a'])
S(f"""v_readfirstlane_b32 s{sNONCE}, v15
v_mul_u32_u24 v1, {USLOT}, v8
v_lshl_add_u32 v1, v7, 4, v1
v_mov_b32 v16, 0
v_mov_b32 v17, 0
v_mov_b32 v18, 0
v_mov_b32 v19, 0
s_mov_b32 exec_hi, 0xffff
s_waitcnt lgkmcnt(0)
ds_write_b128 v1, v[16:19] offset:{L_U}
s_mov_b64 exec, -1""")
S(f"s_cmp_eq_u32 s{sNONCE}, 0\ns_cbranch_scc1 .Lnonce_s")
S.label(".Lnonce_b")
COLD.label(".Lnonce_s")
COLD(f"s_mov_b32 s11, 0")
COLD.label(".Lnonce_l")
COLD(f"global_load_dword v15, v3, {P(pDBG)} sc0 sc1\ns_waitcnt vmcnt(0)\nv_readfirstlane_b32 s{sNONCE}, v15\ns_add_u32 s11, s11, 1\ns_cmp_gt_u32 s11, {SPIN_MAX}\ns_cbranch_scc1 .Lnonce_b\ns_cmp_eq_u32 s{sNONCE}, 0\ns_cbranch_scc1 .Lnonce_l\ns_branch .Lnonce_b")
S(f"""s_lshl_b32 s12, s{sRG}, 7
s_add_u32 s12, s12, {FX}
v_mov_b32 v15, s{sNONCE}""")
S.wait(tl)
S(f"buffer_store_dword v15, v3, {SRD_WS}, s12 offen sc0 sc1")
stamp(S, 'ln_flag')
for it in range(10):
    S(f"buffer_store_dwordx4 {vr(130+4*it,4)}, v{vL0}, {SRD_WS}, s13 offen offset:{1024*(it%4)} sc0 sc1")
    if it % 4 == 3: S("s_add_u32 s13, s13, 4096")
w1_slots(S, opt['b2b'])
S.wait(tp_)
for dt in range(8):
    for r in range(2):
        S(f"ds_read_b64_tr_b16 {vr(180+4*dt+2*r,2)}, v{vW2R} offset:{r*2048 + dt*32}")
S(f"""v_add_u32 v{vW2R}, 4096, v{vL0}
s_lshr_b32 s11, s{sRG}, 2
s_lshl_b32 s11, s11, 7
s_and_b32 s12, s{sRG}, 3
s_lshl_b32 s12, s12, 2
s_add_u32 s11, s11, s12
s_add_u32 s11, s11, {FB}
v_lshlrev_b32 v8, 7, v0
v_add_u32 v8, {FB}, v8""")
for dt in range(8):
    tl = S(f"buffer_store_dwordx4 {vr(180+4*dt,4)}, v{vL0 if dt < 4 else vW2R}, {SRD_WS}, s14 offen offset:{1024*(dt%4)} sc0 sc1")
w1_slots(S, opt['b2c'])
S.wait(tl)
S(f"buffer_store_dword v15, v3, {SRD_WS}, s11 offen sc0 sc1")
stamp(S, 'fb')
w1_slots(S, 40 - opt['b0'] - opt['b2a'] - opt['b2b'] - opt['b2c'] - opt['tail10'])
UF = [(4, 8, 4)]
flag_load(S, UF)
flag_load(S, XF, XN)
w1_slots(S, opt['tail10'])
stamp(S, 'w1_iss')
flag_check(S, UF)
gs = xn_try(S, 'a')
stamp(S, 'xnpoll')
S.ext(flat(gs))
S(f"s_waitcnt vmcnt({G1PRE})"); S.l[-1].mn = 's_waitcnt_raw'
S("s_cmp_eq_u64 s[46:47], 0\ns_cbranch_scc1 .Lk3\ns_waitcnt vmcnt(0)"); S.l[-1].mn = 's_waitcnt_raw'
S("s_branch .Lk3")

S.label(".Lkgen")
S.restore('role')
S("s_waitcnt vmcnt(0) lgkmcnt(0)")
vD = 4; vT = 52
vFs = 120; vPK = 184
vFO = 192
vGOl = [224, 228, 232, 236, 76, 80, 84, 88]
vSR, vONE, vDT = 20, 21, 22
vPE = 108
S(f"""s_mov_b32 m0, s{sSCR}
v_mul_u32_u24 v{vSR}, {TROW}, v5
v_lshl_add_u32 v{vSR}, v9, 4, v{vSR}
v_add_u32 v{vSR}, s{sSCR}, v{vSR}
v_mov_b32 v{vONE}, 0x3f80
s_lshr_b32 s47, s47, s46
s_lshl_b32 s47, s47, 16
v_mov_b32 v{vDT}, {f32(LOG2E)}
v_mul_f32 v{vDT}, s47, v{vDT}
v_exp_f32 v{vDT}, v{vDT}
v_and_b32 v1, 1, v0
v_lshlrev_b32 v1, 4, v1
v_mov_b32 v3, 0""")
bf16_round(S, f"v{vDT}", f"v{vDT}")
for k in range(4):
    d0, d1 = vRAW + 2*k, vRAW + 2*k + 1
    S(f"""v_alignbit_b32 v{d0}, v{d1}, v{d0}, v1
v_lshrrev_b32 v{d1}, v1, v{d1}
v_lshlrev_b32 v{vPE+k}, 16, v{d0}
v_and_b32 v{vPE+4+k}, 0xffff0000, v{d0}
v_lshlrev_b32 v{vPE+8+k}, 16, v{d1}""")
S(f"v_add_f32 v{vDT+1}, v{vDT}, v{vDT}\ns_mov_b32 s15, {f32(1.0 / (2 * math.pi))}")
def cmuls(s, lst):
    for d, x, y in lst:
        assert d != x and d != y
        s(f"v_pk_mul_f32 {vp(d)}, {vp(x)}, {vp(y)} op_sel:[0,0] op_sel_hi:[1,0]")
    for d, x, y in lst:
        s(f"v_pk_fma_f32 {vp(d)}, {vp(x)}, {vp(y)}, {vp(d)} op_sel:[1,1,0] op_sel_hi:[0,1,1] neg_lo:[0,1,0]")
I2PI = 1.0 / (2 * math.pi)
i2pi_hi = struct.unpack('<f', struct.pack('<f', I2PI))[0]
i2pi_lo = I2PI - i2pi_hi
hi0 = [0,1,2,3,4,5,6,7,8, 512,516,520, 1024,1032, 1280,1288]
hi1 = [256,256,258,260,260,260,262,264,264, 768,772,776, 1536,1544, 1792,1800]
rowhi = [(hi0, hi1)[(p >> 2) & 1][4 * (p >> 3) + (p & 3)] for p in range(32)]
def k_mfmas(u):
    out = []
    for s_ in range(8):
        x = Stream()
        c = "0" if (s_ == 0 and u == 0) else vr(vD, 16)
        x(f"v_mfma_f32_32x32x16_bf16 {vr(vD,16)}, {vr(vGOl[s_],4)}, {vr(vFO+4*s_,4)}, {c}")
        out.append(x)
    return out
pkc = [0]
def put(s, items, neg, mf=None):
    regs = []
    if mf: s.ext(mf.pop(0))
    for r, rows in items:
        b = vPK + (pkc[0] & 7); pkc[0] += 1
        s(f"v_cvt_pk_bf16_f32 v{b}, v{r}, {'-' if neg else ''}v{r+1}")
        regs.append((b, rows))
    if mf: s.ext(mf.pop(0))
    for b, rows in regs:
        for p in rows: s(f"ds_write_addtid_b32 v{b} offset:{p*TROW}")
    s.pseudo('slot')
def kgen_unit(u):
    A = Stream(); B = Stream()
    pa, pb, pc, pd = range(vPE + 4*u, vPE + 4*u + 4)
    va, vbh, vbl = vT, vT+1, vT+2
    vW1, vW8, vW256, vW2, vW4, vG0 = vT+4, vT+6, vT+8, vT+10, vT+12, vT+14
    G = lambda k: vFs + 2 * k
    A(f"""v_mul_f32 v{va}, {f32(LOG2E)}, v{pa}
v_mul_f32 v{pb}, v{pb}, v{vDT}
v_exp_f32 v{va}, v{va}
v_mul_f32 v{vbh}, s15, v{pb}
v_cvt_pk_bf16_f32 v{va}, v{va}, v{va}
v_fma_f32 v{vbl}, v{pb}, s15, -v{vbh}
v_and_b32 v{va}, 0xffff0000, v{va}
v_fmac_f32 v{vbl}, {f32(i2pi_lo)}, v{pb}
v_mul_f32 v{va}, v{va}, v{vDT}
v_mul_f32 v{va}, {f32(-LOG2E)}, v{va}""")
    t0 = vT + 16
    m8, a8, m1, a1, m2, a2 = range(t0, t0 + 6)
    A(f"""v_mul_f32 v{a8}, {f32(8.0)}, v{vbh}
v_mul_f32 v{m8}, {f32(8.0)}, v{va}
v_fract_f32 v{a8}, v{a8}
v_exp_f32 v{m8}, v{m8}
v_fmac_f32 v{a8}, {f32(8.0)}, v{vbl}
v_exp_f32 v{m1}, v{va}
v_fract_f32 v{a1}, v{vbh}
v_cos_f32 v{vW8}, v{a8}
v_add_f32 v{a1}, v{a1}, v{vbl}
v_sin_f32 v{vW8+1}, v{a8}
v_mul_f32 v{m2}, {f32(256.0)}, v{va}
v_cos_f32 v{vW1}, v{a1}
v_mul_f32 v{a2}, {f32(256.0)}, v{vbh}
v_sin_f32 v{vW1+1}, v{a1}
v_fract_f32 v{a2}, v{a2}
v_exp_f32 v{m2}, v{m2}
v_fmac_f32 v{a2}, {f32(256.0)}, v{vbl}
v_pk_mul_f32 {vp(vW8)}, {vp(vW8)}, {vp(m8)} op_sel:[0,0] op_sel_hi:[1,0]
v_cos_f32 v{vW256}, v{a2}
v_pk_mul_f32 {vp(vW1)}, {vp(vW1)}, {vp(m1)} op_sel:[0,0] op_sel_hi:[1,0]
v_sin_f32 v{vW256+1}, v{a2}""")
    F = lambda k: vW8 if k == 1 else G(k)
    cmuls(A, [(F(2), F(1), F(1)), (vW2, vW1, vW1)])
    A(f"v_mul_f32 v{vG0}, v{pc}, v{vDT+1}\nv_mul_f32 v{vG0+1}, v{pd}, v{vDT+1}")
    cmuls(A, [(F(3), F(2), F(1)), (F(4), F(2), F(2)), (vW4, vW2, vW2)])
    A(f"v_pk_mul_f32 {vp(vW256)}, {vp(vW256)}, {vp(m2)} op_sel:[0,0] op_sel_hi:[1,0]")
    mf = k_mfmas(u - 1) if u > 0 else None
    for lo in range(5, 32, 8):
        cmuls(A, [(F(k), F(k-4), F(4)) for k in range(lo, min(lo+4, 32))])
        cmuls(A, [(F(k), F(k-4), F(4)) for k in range(lo+4, min(lo+8, 32))])
        if lo == 29: A(f"ds_write_addtid_b32 v{vONE}")
        put(A, [(F(k), [k]) for k in range(lo-4, min(lo+4, 32))], False, mf)
    assert not mf
    A.l.pop()
    for s_ in range(8):
        A(f"ds_read_b128 {vr(vFO+4*s_,4)}, v{vSR} offset:{32*s_}")
    A.pseudo('slot')
    his = sorted(set(hi0 + hi1))
    gi = {h: G(n) for n, h in enumerate(his)}; gi[0] = vG0
    rows = lambda h: [p for p in range(32) if rowhi[p] == h]
    steps = [[(1,0,vW1), (2,0,vW2), (4,0,vW4), (8,0,vW8), (256,0,vW256)],
             [(3,2,vW1), (5,4,vW1), (258,256,vW2), (512,256,vW256)],
             [(6,4,vW2), (260,256,vW4), (264,256,vW8), (768,512,vW256)],
             [(7,6,vW1), (262,260,vW2), (516,512,vW4), (1024,768,vW256)],
             [(520,512,vW8), (772,768,vW4), (776,768,vW8), (1280,1024,vW256)],
             [(1032,1024,vW8), (1288,1280,vW8), (1536,1280,vW256)],
             [(1544,1536,vW8), (1792,1536,vW256)],
             [(1800,1792,vW8)]]
    pend = [0]
    for n, st in enumerate(steps):
        cmuls(B, [(gi[d_], gi[x_], y_) for d_, x_, y_ in st])
        if n in (1, 3, 5):
            k = min(8, len(pend))
            put(B, [(gi[h], rows(h)) for h in pend[:k]], True); pend = pend[k:]
        pend += [d_ for d_, x_, y_ in st]
    assert len(pend) <= 8, pend
    put(B, [(gi[h], rows(h)) for h in pend], True)
    B.l.pop()
    for s_ in range(8):
        B(f"ds_read_b128 {vr(vGOl[s_],4)}, v{vSR} offset:{32*s_}")
    s = Stream(); s.ext(A); s.ext(B)
    segs = [Stream()]
    for i in s.l:
        if i.kind == 'slot': segs.append(Stream())
        else: segs[-1].l.append(i)
    return segs
S.ext(flat(kgen_unit(0)))
stamp(S, 'k_u0')
U1 = kgen_unit(1); U2 = kgen_unit(2)
S.ext(flat(U1))
stamp(S, 'k_u1')
S.ext(flat(U2[:opt['xf0']]))
flag_load(S, XF, XN)
S.ext(flat(U2[opt['xf0']:opt['xf1']]))
gs = xn_try(S, 'b')
stamp(S, 'xnpoll')
seg = flat(U2[opt['xf1']:])
S.ext(sprinkle(seg, gs, max(1, len(seg.l) // (len(gs) + 1))))
for x in k_mfmas(2): S.ext(x)
stamp(S, 'kgen')
X = S
vXT = 156
d = lambda k: f"v{vD+k}"
X(f"v_and_b32 v24, 1, v0\nv_cmp_eq_u32 vcc, 1, v24")
def wo(s, b, aE, off):
    s(f"v_add_u32 v24, {off + OOFF}, v{aE}")
    s(f"ds_write2_b32 v24, v{b}, v{b+1} offset0:0 offset1:1")
    s(f"ds_write2_b32 v24, v{b+2}, v{b+3} offset0:2 offset1:3")
def build(e_pairs, o_pairs, base, aE, imm):
    for j, (a, b) in enumerate(e_pairs): X(f"v_cvt_pk_bf16_f32 v{base+j}, {a}, {b}")
    for j, (a, b) in enumerate(o_pairs): X(f"v_cvt_pk_bf16_f32 v{base+4+j}, {a}, {b}")
    X(f"v_add_u32 v24, {imm + OOFF}, v{aE}")
    X(f"ds_write_b128 v{aE}, {vr(base,4)} offset:{imm}")
    X(f"ds_write2_b32 v24, v{base+4}, v{base+5} offset0:0 offset1:1")
    X(f"ds_write2_b32 v24, v{base+6}, v{base+7} offset0:2 offset1:3")
build([(d(7),d(6)),(d(5),d(4)),(d(3),d(2)),(d(1),d(0))], [(d(8),d(7)),(d(6),d(5)),(d(4),d(3)),(d(2),d(1))], vXT, vE0, 3*1056)
build([(d(11),d(11)),(d(10),d(10)),(d(10),d(9)),(d(9),d(9))], [(d(11),d(11)),(d(11),d(10)),(d(10),d(10)),(d(9),d(9))], vXT+8, vE0, 2*1056)
for n, (r0, imm) in enumerate(((12, 512), (14, 0))):
    X(f"v_cndmask_b32 v25, {d(r0)}, {d(r0+1)}, vcc")
    V0, V1 = d(r0), d(r0+1)
    build([(V1,V1),(V1,'v25'),(V0,V0),(V0,V0)], [(V1,V1),(V1,V1),('v25',V0),(V0,V0)], vXT+16+8*n, vE1, imm)
z = vXT + 16
X(f"v_mov_b32 v{z}, 0\nv_mov_b32 v{z+1}, 0\nv_mov_b32 v{z+2}, 0\nv_mov_b32 v{z+3}, 0\nv_cvt_pk_bf16_f32 v{z+4}, {d(0)}, 0\nv_mov_b32 v25, s{sSCR}\nv_subrev_u32 v{vE1}, 32, v{vE1}")
X("s_mov_b32 exec_lo, 0\ns_mov_b32 exec_hi, 0x80000000")
X(f"ds_write_b128 v{vE0}, {vr(vXT,4)} offset:{3*1056-32}")
X(f"ds_write_b128 v{vE0}, {vr(vXT+8,4)} offset:{2*1056-32}")
wo(X, vXT+4, vE0, 3*1056-32)
wo(X, vXT+12, vE0, 2*1056-32)
X("s_mov_b32 exec_lo, 0x80000000\ns_mov_b32 exec_hi, 0")
X(f"ds_write_b128 v{vE1}, {vr(vXT+24,4)}")
wo(X, vXT+28, vE1, 0)
X("s_mov_b32 exec_lo, 1")
X(f"ds_write_b128 v25, {vr(z,4)} offset:{(3*264+256)*4}")
X(f"v_add_u32 v25, {OOFF + (3*264+256)*4}, v25")
X(f"ds_write2_b32 v25, v{z+4}, v{z} offset0:0 offset1:1\nds_write2_b32 v25, v{z}, v{z} offset0:2 offset1:3")
X("s_mov_b64 exec, -1")
stamp(S, 'exp')
S.label(".Lk3")
S("s_barrier")
stamp(S, 'bar1')
S("s_cmp_lg_u64 s[46:47], 0\ns_cbranch_scc1 .Lxs")
S.label(".Lxb")
X = Stream()
for i in range(G1PRE): xn_load(X, i)
spin(".Lx", XF, XN, post=X)

vAC = 20; vAR = 120
vB1P = 68; vB1 = 188
vUL = 160
vEX, vED, vEB = 4, 68, 78
EN = lambda k: 14 + k if k < 6 else 82 + k
L_E = L_W + 61440
L_Y = L_E + 4 * 6144
STG = opt['stg']
order = [(ks, ft) for ks in range(40 - STG) for ft in range(3)] + [(ks, ft) for ft in range(3) for ks in range(40 - STG, 40)]
NAR = 9
def g1_read(s, n):
    ks, ft = order[n]
    for r in range(2):
        base, k = (vA0, ks) if ks < 20 else (vA1, ks - 20)
        s(f"ds_read_b64_tr_b16 {vr(vAR + 4*(n % NAR) + 2*r, 2)}, v{base} offset:{k*3072 + r*768 + ft*64}")
S("s_mov_b32 exec_lo, 0x77777777\ns_mov_b32 exec_hi, 0x77777777")
for k in range(4):
    S(f"buffer_load_dwordx4 {vr(vUL+4*k,4)}, v{vUG}, {SRD_WS}, s{sUB} offen sc1")
    if k < 3: S(f"s_add_u32 s{sUB}, s{sUB}, {16*XBS}")
S("s_mov_b64 exec, -1")
for n in range(6): g1_read(S, n)
sKO = 18
S(f"""s_mul_i32 s{sSRC}, s{sWAVE}, {12*40*1024}
s_mul_i32 s11, s{sCB2}, 5120
s_add_u32 s{sSRC}, s{sSRC}, s11
s_add_u32 s{sSRC}, s{sSRC}, {W2R}
s_and_b32 s11, s{sRB2}, 7
s_mul_i32 s11, s11, 3
s_lshr_b32 s11, s11, 1
s_lshl_b32 s{sKO}, s11, 10""")
for k in range(1, 12):
    S(f"s_add_u32 s{sKO+k}, s{sKO+k-1}, 1024\ns_cmp_eq_u32 s{sKO+k}, 12288\ns_cselect_b32 s{sKO+k}, 0, s{sKO+k}")
G1D = opt['g1d']
Sg = Stream(); nxt = G1PRE
first_use = {}
for n, (ks, ft) in enumerate(order): first_use.setdefault(ks, n)
for n, (ks, ft) in enumerate(order):
    if n in (3, 30, 60, 90): stamp(Sg, f'g1_{n//3}')
    c = vr(vAC + 16*ft, 16) if ks > 0 else "0"
    Sg(f"v_mfma_f32_32x32x16_bf16 {vr(vAC+16*ft,16)}, {vr(vAR + 4*(n % NAR), 4)}, {xreg(ks)}, {c}")
    if n + 6 < 120: g1_read(Sg, n + 6)
    if nxt < 40 and n % opt['xev'] == 0 and first_use[nxt] <= n + 3 * G1D + (opt['xlead'] if nxt >= 40 - STG else 0):
        assert nxt < 30 or max(m for m, o in enumerate(order) if o[0] == nxt - 30) <= n
        xn_load(Sg, nxt); nxt += 1
assert nxt == 40
plan = {}
vCA = 20; vCP = 36; vKB = 44; vR = 176
vNON, vZ = 241, 242
sKO = 18
def w2_load(s, n):
    k, dt = divmod(n, 5)
    if dt == 0: s(f"s_mul_i32 s70, s{sKO+k}, 40\ns_add_u32 s70, s70, s{sSRC}")
    s(f"buffer_load_dwordx4 {ar(4*n,4)}, v{vL0 if dt < 4 else vL1}, {SRD_WS}, s70 offen offset:{1024*min(dt,3)} sc1")
wn = [0]
def w2_next(s, cnt):
    for _ in range(cnt):
        if wn[0] < 60: w2_load(s, wn[0]); wn[0] += 1
F = Stream()
F(f"v_mov_b32 v{vNON}, s{sNONCE}\nv_mov_b32 v{vZ}, 0")
plan.setdefault(40, Stream()).ext(F)
F = Stream()
for k in range(12):
    F(f"ds_read_b64 {vr(vB1P+2*k,2)}, v{vB1A} offset:{16*k}")
spread(F, 3, 26, plan)
F = Stream()
F(f"""s_mov_b32 s72, 0x00003f80
s_mov_b32 s73, 0x3f800000""")
unit_addr(F, sSL0)
spread(F, 14, 35, plan)
F = Stream()
for k in range(24):
    F(f"v_lshlrev_b32 v{vB1+2*k}, 16, v{vB1P+k}\nv_and_b32 v{vB1+2*k+1}, 0xffff0000, v{vB1P+k}")
spread(F, 30, 62, plan)
F = Stream()
for dt in range(5):
    F(f"ds_read_b64 {vr(vEB+2*dt,2)}, v{vBD} offset:{32*dt}")
    F(f"ds_read_b64 {vr(vED+2*dt,2)}, v{vBD} offset:{256+32*dt}")
spread(F, 64, 84, plan)
F = Stream()
F("s_mov_b32 exec_lo, 0x77777777\ns_mov_b32 exec_hi, 0x77777777")
for k in range(4):
    F(f"ds_write_b128 v{vUW}, {vr(vUL+4*k,4)} offset:{256*k}")
F("s_mov_b64 exec, -1")
plan.setdefault(opt['uw'], Stream()).ext(F)
F = Stream(); w2_next(F, opt['wan'])
spread(F, opt['wa0'], 119, plan)
def g1_epi(ft, packed):
    E = Stream()
    tp = 156 + 8 * ft
    for k in range(8):
        a = vAC + 16*ft + 2*k; b = vB1 + 16*ft + 2*k
        E(f"v_cvt_pk_bf16_f32 v{tp+k}, v{a}, v{a+1}")
        E(f"v_dot2_f32_bf16 v{a}, v{tp+k}, s72, v{b}")
        E(f"v_dot2_f32_bf16 v{a+1}, v{tp+k}, s73, v{b+1}")
    for k in range(8):
        a = vAC + 16*ft + 2*k
        E(f"v_cvt_pk_bf16_f32 v{tp+k}, v{a}, v{a+1}")
        E(f"v_pk_max_i16 v{tp+k}, v{tp+k}, 0")
        E(f"v_lshlrev_b32 v{a}, 16, v{tp+k}")
        E(f"v_and_b32 v{a+1}, 0xffff0000, v{tp+k}")
        if packed: E(f"v_pk_mul_f32 {vp(a)}, {vp(a)}, {vp(a)}")
        else: E(f"v_mul_f32 v{a}, v{a}, v{a}\nv_mul_f32 v{a+1}, v{a+1}, v{a+1}")
        E(f"v_cvt_pk_bf16_f32 v{tp+k}, v{a}, v{a+1}")
    t = None
    for jp in range(2):
        t = E(f"buffer_store_dwordx4 {vr(tp+4*jp,4)}, v{vHS}, {SRD_WS}, s{sHST} offen offset:{1024*ft + 512*jp} sc0 sc1")
    return E, t
rest = []
for ft in range(3):
    if STG >= 10 and ft < 2:
        E, th = g1_epi(ft, False)
        a0 = 120 - (2 - ft) * STG
        spread(E, a0 + 2, a0 + STG - 1, plan)
    else: rest.append(ft)
S.ext(weave(Sg, plan))
stamp(S, 'g1')
for ft in rest:
    E, th = g1_epi(ft, True)
    gs = []
    for _ in range(opt['wep'] // len(rest)):
        g = Stream(); w2_next(g, 1); gs.append(g)
    if gs: E = sprinkle(E, gs, len(E.l) // (len(gs) + 1))
    S.ext(E)
S("s_waitcnt lgkmcnt(0)")
S("s_barrier")
stamp(S, 'g1ep')

def conv_load(s, sg):
    s(f"ds_read_b128 {vr(vR + 4*(sg & 15), 4)}, v{vU} offset:{64*sg}")
    base, o = (vK, 16*sg) if sg < 16 else (vKn, 16*(sg-16))
    kb = vKB + 4*(sg & 3)
    s(f"ds_read2_b32 {vr(kb,2)}, v{base} offset0:{o} offset1:{o+1}")
    s(f"ds_read2_b32 {vr(kb+2,2)}, v{base} offset0:{o+2} offset1:{o+3}")
def conv_block(ramp, last=False):
    s = Stream()
    for sg in range(16):
        ld = Stream()
        if not (last and sg + 3 >= 16): conv_load(ld, sg + 3)
        for rt in (3, 2, 1, 0):
            first = 12 - 4*rt
            if ramp and sg < first: continue
            c = "0" if (ramp and sg == first) else vr(vCA + 4*rt, 4)
            s(f"v_mfma_f32_16x16x32_bf16 {vr(vCA+4*rt,4)}, {vr(vKB + 4*(sg&3),4)}, {vr(vR + 4*((sg+4+4*rt)&15),4)}, {c}")
            if ld.l: s.l.append(ld.l.pop(0))
        s.ext(ld)
    if not last:
        s(f"v_add_u32 v{vU}, 1024, v{vU}\nv_add_u32 v{vK}, 1056, v{vK}\nv_add_u32 v{vKn}, 1056, v{vKn}")
    return s
def conv_save(s):
    for rt in (3, 2, 1, 0):
        for h in range(2):
            s(f"v_cvt_pk_bf16_f32 v{vCP + 4*(rt>>1) + 2*(rt&1) + h}, v{vCA+4*rt+2*h}, v{vCA+4*rt+2*h+1}")
def conv_fin(s):
    s("s_mov_b32 exec_lo, 0")
    conv_save(s)
    s("s_mov_b32 exec_lo, -1")
    t = None
    for pr in range(2):
        b = vCP + 4*pr
        s(f"v_permlane16_swap_b32 v{b}, v{b+2}")
        s(f"v_permlane16_swap_b32 v{b+1}, v{b+3}")
        t = s(f"buffer_store_dwordx4 {vr(b,4)}, v{vYl}, {SRD_WS}, s{sYB} offen offset:{512*pr} sc0 sc1")
    return t
for sg in range(3): conv_load(S, sg)
F = Stream(); w2_next(F, opt['wb0'])
S.ext(weave(conv_block(True), spread(F, 4, 39)))
stamp(S, 'cv_b0')
conv_save(S)
F = Stream()
F.wait(th)
F(f"buffer_store_dword v{vNON}, v{vZ}, {SRD_WS}, s{sHFL} offen sc0 sc1")
w2_next(F, opt['wb1'])
F(f"s_mul_i32 s11, s{sWAVE}, 6144\ns_add_u32 s11, s11, {L_E}")
for i in range(3):
    F(f"s_add_u32 m0, s11, {1024*i}")
    F(f"buffer_load_dwordx4 v{vXD+i}, {SRD_X}, s{sEN1} offen lds")
for i in range(3):
    F(f"s_add_u32 m0, s11, {3072 + 1024*i - 2048*i}")
    F(f"buffer_load_dwordx4 v{vENA}, {SRD_WS}, s{sEN0} offen offset:{2048*i} sc1 lds") if i < 2 else None
F.l.pop()
F(f"s_add_u32 m0, s11, {3072 + 2048}\ns_add_u32 s{sEN0}, s{sEN0}, 4096")
F(f"buffer_load_dwordx4 v{vENA}, {SRD_WS}, s{sEN0} offen sc1 lds")
vH = 108
HF = [(62, vHF)]
assert wn[0] == 60
flag_load(F, HF)
P1 = spread(F, opt['hfl'], 63)
S.ext(weave(conv_block(False), P1))
stamp(S, 'cv_b1')
NH = 33
def hreg(n): return vH + 4 * (n % NH)
def h_load(s, n):
    p, k = divmod(n, 12)
    s(f"s_add_u32 s70, s{sHB+p}, s{sKO+k}")
    s(f"buffer_load_dwordx4 {vr(hreg(n), 4)}, v{vL0}, {SRD_WS}, s70 offen sc1")
HPRE = opt['hpre']
def h_first(tag, first, gap):
    plan = {}
    F = Stream()
    flag_test(F, HF)
    F("s_mov_b64 s[46:47], vcc")
    plan[first] = F
    for n in range(HPRE):
        F = Stream()
        F(f"s_cbranch_vccnz .Lhskip{tag}{n}")
        h_load(F, n)
        F.label(f".Lhskip{tag}{n}")
        plan.setdefault(first + 1 + n * gap, Stream()).ext(F)
    return plan
S(f"s_cmp_eq_u32 s{sISX}, 1\ns_mov_b32 s{sYF2}, s{sYF}")
S.save('b2')
S("s_cbranch_scc1 .Lb2x")
S.ext(weave(conv_block(False), h_first('a', opt['hchk'], opt['hgap'])))
S("s_waitcnt lgkmcnt(0)")
S.endpath(keep=None)
S("s_branch .Lb3")
S.label(".Lb2x")
S.restore('b2')
conv_fin(S)
unit_addr(S, sSL1)
for sg in range(3): conv_load(S, sg)
S.ext(weave(conv_block(True), h_first('b', 2, opt['hgapx'])))
S("s_waitcnt lgkmcnt(0)")
S.endpath(keep=None)
S.label(".Lb3")
for n in range(HPRE): S.assume([('v', hreg(n) + r) for r in range(4)])
stamp(S, 'cv_b2')
conv_save(S)
plan = {}
F = Stream()
for dt in range(5):
    F(f"ds_read_b64 {vr(vEX+2*dt,2)}, v{vEA} offset:{32*dt}")
    F(f"ds_read_b64 {vr(EN(2*dt),2)}, v{vEA+1} offset:{3072 + 512*dt}")
spread(F, 4, 40, plan)
S.ext(weave(conv_block(False, last=True), plan))
ty = conv_fin(S)
S("s_cmp_lg_u64 s[46:47], 0\ns_cbranch_scc1 .Lhs")
S.label(".Lhb")
X = Stream()
for n in range(HPRE): h_load(X, n)
spin(".Lh", HF, post=X)
stamp(S, 'conv')

vG2 = 20
vRW = vL1
S(f"v_add_u32 v{vRW}, s{sW2B}, v{vL0}")
HD = opt['hd']
hn = [HPRE]
def g2_pass(p):
    s = Stream()
    ac = vG2 + 20*(p & 1)
    for k in range(12):
        for dt in range(5):
            c = "0" if k == 0 else vr(ac + 4*dt, 4)
            s(f"v_mfma_f32_16x16x32_bf16 {vr(ac+4*dt,4)}, {ar((k*5+dt)*4,4)}, {vr(hreg(12*p+k), 4)}, {c}")
            if dt in (0, 2) and hn[0] < 48 and hn[0] <= 12*p + k + HD: h_load(s, hn[0]); hn[0] += 1
    return s
def g2_dump(s, p):
    ac = vG2 + 20*(p & 1)
    for dt in range(5):
        s(f"ds_write_b128 v{vRW}, {vr(ac+4*dt,4)} offset:{p*5120 + dt*1024}")
F = Stream()
F.wait(ty)
F(f"buffer_store_dword v{vNON}, v{vZ}, {SRD_WS}, s{sYF} offen sc0 sc1")
F(f"buffer_store_dword v{vNON}, v{vZ}, {SRD_WS}, s{sYF2} offen sc0 sc1")
S.ext(weave(g2_pass(0), {opt['ypub']: F}))
stamp(S, 'g2_p0')
F = Stream()
g2_dump(F, 0)
for k in range(10):
    a = 60 + 4*(k & 1)
    F(f"""v_lshlrev_b32 v{a}, 16, v{EN(k)}
v_and_b32 v{a+1}, 0xffff0000, v{EN(k)}
v_lshlrev_b32 v{a+2}, 16, v{vED+k}
v_and_b32 v{a+3}, 0xffff0000, v{vED+k}
v_mul_f32 v{a}, v{a}, v{a+2}
v_mul_f32 v{a+1}, v{a+1}, v{a+3}
v_cvt_pk_bf16_f32 v{EN(k)}, v{a}, v{a+1}""")
YF = [(60, 61), (62, 63)]
F(f"""s_mul_i32 s11, s{sCB2}, {80*256}
s_lshr_b32 s12, s{sRB2}, 4
s_lshl_b32 s12, s12, 7
s_add_u32 s11, s11, s12
s_add_u32 s11, s11, {FY}
v_lshl_add_u32 v61, v0, 8, s11
v_and_b32 v2, 15, v0
v_lshlrev_b32 v2, 8, v2
s_add_u32 s11, s11, {64*256}
v_add_u32 v63, s11, v2""")
S.ext(weave(g2_pass(1), spread(F, 3, 59)))
stamp(S, 'g2_p1')
vB2 = 168; vXf = [188 + 2*k if k < 8 else 92 + 2*(k-8) for k in range(10)]
F = Stream()
g2_dump(F, 1)
F(f"""v_lshrrev_b32 v65, 2, v0
v_lshlrev_b32 v65, 5, v65
v_and_b32 v1, 3, v0
v_lshl_add_u32 v65, v1, 3, v65
s_mul_i32 s11, s{sWAVE}, 2560
s_add_u32 s11, s11, {L_Y}
v_add_u32 v65, s11, v65""")
for k in range(10):
    F(f"""v_lshlrev_b32 v{vB2+2*k}, 16, v{vEB+k}
v_and_b32 v{vB2+2*k+1}, 0xffff0000, v{vEB+k}
v_lshlrev_b32 v{vXf[k]}, 16, v{vEX+k}
v_and_b32 v{vXf[k]+1}, 0xffff0000, v{vEX+k}""")
plan = spread(F, 3, 50)
F = Stream(); flag_load(F, YF)
plan.setdefault(opt['yfl'], Stream()).ext(F)
S.ext(weave(g2_pass(2), plan))
stamp(S, 'g2_p2')
assert hn[0] == 48
vY = 68
vS = 204
vYT = 224
F = Stream(); flag_check(F, YF)
F(f"s_mul_i32 s70, s{sWAVE}, 2560\ns_add_u32 s70, s70, {L_Y}")
for i, o in enumerate((0, 1024, 1536)):
    F(f"s_add_u32 m0, s70, {o}")
    tyl = F(f"buffer_load_dwordx4 v{vYG}, {SRD_WS}, s{sYL+i} offen sc1 lds")
plan = {opt['ychk']: F}
F = Stream()
g2_dump(F, 2)
vPA = [66, 67, 64]
for p in range(3):
    F(f"s_sub_u32 s11, s{sWAVE}, {p+1}\ns_and_b32 s11, s11, 3\ns_mul_i32 s11, s11, 15360\ns_add_u32 s11, s11, {L_W}\nv_add_u32 v{vPA[p]}, s11, v{vL0}")
F(f"s_mov_b32 s12, {f32(-LOG2E)}\ns_mov_b32 s13, {f32(-LOG2E)}\ns_mov_b32 s14, 1.0\ns_mov_b32 s15, 1.0")
spread(F, opt['ychk'] + 3, opt['ychk'] + 30, plan)
S.ext(weave(g2_pass(3), plan))
stamp(S, 'g2')
S("s_waitcnt lgkmcnt(0)")
S("s_barrier")
stamp(S, 'e_bar')
PS = lambda p, dt: 108 + 20*p + 4*dt
for p in range(3):
    for dt in range(5):
        S(f"ds_read_b128 {vr(PS(p, dt), 4)}, v{vPA[p]} offset:{p*5120 + dt*1024}")
ac = vG2 + 20
for p in range(3):
    for k in range(10):
        S(f"v_pk_add_f32 {vp(ac+2*k)}, {vp(ac+2*k)}, {vp(PS(p, k//2) + 2*(k&1))}")
T = lambda k: 108 + 2*k
def stage(fn):
    for k in range(10): fn(k, ac + 2*k, T(k))
stage(lambda k, a, t: S(f"v_cvt_pk_bf16_f32 v{t}, v{a}, v{a+1}"))
stage(lambda k, a, t: S(f"v_dot2_f32_bf16 v{a}, v{t}, s72, v{vB2+2*k}\nv_dot2_f32_bf16 v{a+1}, v{t}, s73, v{vB2+2*k+1}"))
stage(lambda k, a, t: S(f"v_cvt_pk_bf16_f32 v{t}, v{a}, v{a+1}"))
stage(lambda k, a, t: S(f"v_lshlrev_b32 v{a}, 16, v{t}\nv_and_b32 v{a+1}, 0xffff0000, v{t}\nv_pk_mul_f32 {vp(t)}, {vp(a)}, s[12:13]"))
stage(lambda k, a, t: S(f"v_exp_f32 v{t}, v{t}\nv_exp_f32 v{t+1}, v{t+1}"))
stage(lambda k, a, t: S(f"v_pk_add_f32 {vp(t)}, {vp(t)}, s[14:15]"))
stage(lambda k, a, t: S(f"v_rcp_f32 v{t}, v{t}\nv_rcp_f32 v{t+1}, v{t+1}"))
S.wait(tyl)
for dt in range(5):
    S(f"ds_read_b64_tr_b16 {vr(vYT+2*dt,2)}, v65 offset:{512*dt}")
stage(lambda k, a, t: S(f"v_pk_mul_f32 {vp(a)}, {vp(a)}, {vp(t)}"))
stage(lambda k, a, t: S(f"v_cvt_pk_bf16_f32 v{t}, v{a}, v{a+1}\nv_lshlrev_b32 v{a}, 16, v{t}\nv_and_b32 v{a+1}, 0xffff0000, v{t}"))
stage(lambda k, a, t: S(f"v_lshlrev_b32 v{vS+2*k}, 16, v{vYT+k}\nv_and_b32 v{vS+2*k+1}, 0xffff0000, v{vYT+k}\nv_dot2_f32_bf16 v{vS+2*k}, v{EN(k)}, s72, v{vS+2*k}\nv_dot2_f32_bf16 v{vS+2*k+1}, v{EN(k)}, s73, v{vS+2*k+1}"))
stage(lambda k, a, t: S(f"v_cvt_pk_bf16_f32 v{t}, v{vS+2*k}, v{vS+2*k+1}\nv_lshlrev_b32 v{vS+2*k}, 16, v{t}\nv_and_b32 v{vS+2*k+1}, 0xffff0000, v{t}\nv_pk_mul_f32 {vp(a)}, {vp(a)}, {vp(vS+2*k)}\nv_cvt_pk_bf16_f32 v{t}, v{a}, v{a+1}"))
stage(lambda k, a, t: S(f"v_dot2_f32_bf16 v{a}, v{t}, s72, v{vXf[k]}\nv_dot2_f32_bf16 v{a+1}, v{t}, s73, v{vXf[k]+1}"))
for k in range(10):
    a = ac + 2*k
    S(f"v_cvt_pk_bf16_f32 v{vEX+k}, v{a}, v{a+1}")
    if k & 1:
        S(f"buffer_store_dwordx2 {vr(vEX+k-1,2)}, v{vOO}, {SRD_OUT}, 0 offen offset:{32*(k//2)}")
stamp(S, 'end')
if opt['stamps']:
    S(f"s_memrealtime s[68:69]\ns_waitcnt lgkmcnt(0)\nv_writelane_b32 v{vST}, s68, 31")
    S(f"s_lshl_b32 s11, s{sWG}, 2\ns_add_u32 s11, s11, s{sWAVE}\ns_lshl_b32 s11, s11, 7\ns_add_u32 s11, s11, {STAMP}\nv_lshlrev_b32 v1, 2, v0\ns_mov_b32 exec_hi, 0")
    S(f"buffer_store_dword v{vST}, v1, {SRD_WS}, s11 offen")
S.label(".Lend")
S("s_endpgm")

body = finalize(S) + finalize(COLD) + ["    s_endpgm"]
H2 = f""".amdgcn_target "amdgcn-amd-amdhsa--gfx950"
.text
.globl {NAME}_kernel
.p2align 8
.type {NAME}_kernel,@function
{NAME}_kernel:"""
body, nbytes, nfix = align_pass(body, H2, minrun=5 if opt['align'] else 100000)
sys.stderr.write(f"code bytes {nbytes}, alignment fixes {nfix}\n")
hdr = open('cdna_kernels/' + NAME + '.s.ref').read().split('\n')
out = []
for l in hdr:
    if l.startswith('; @launch'): out.append(f"; @launch grid=(256,1,1) block=(256,1,1) lds={LDS_BYTES}"); break
    out.append(l)
out.append(H2)
out += body
kb = opt['code_kb']
assert nbytes <= kb * 1024
out.append(f""".fill ({kb*1024 + 2304} - (. - {NAME}_kernel)) / 4, 4, 0xbf800000
.section .rodata,"a"
.p2align 6
.amdhsa_kernel {NAME}_kernel
  .amdhsa_next_free_vgpr 512
  .amdhsa_next_free_sgpr 102
  .amdhsa_accum_offset 256
  .amdhsa_group_segment_fixed_size 0
  .amdhsa_kernarg_size 120
  .amdhsa_user_sgpr_count 2
  .amdhsa_user_sgpr_kernarg_segment_ptr 1
  .amdhsa_system_sgpr_workgroup_id_x 1
.end_amdhsa_kernel""")
if opt['stamps']: out.insert(0, "; stamps: " + ",".join(stamp_names))
print('\n'.join(out))
```

```python
import sys, math, struct
sys.path.insert(0, 'gen')
from emit import *

NAME = "recurrent_scan__ssm_conv_s4d__dense_activation_squared_relu__prompt"
opt = dict(lsp=2, dtlb=1, w3cap=48, stamps=0, spin=20000, code_kb=34, align=1, b0=8, b2a=2, xf0=3, xf1=5,
           g1pre=8, g1d=11, fb=27, uf=60, uc=88, wa0=100, wep=12, wb0=12, wb1=18,
           hlast=0, hfl=24, hchk=6, hgap=3, hpre=10, hd=12, yfl=40, ychk=2)
for a in sys.argv[1:]:
    k, v = a.split('='); opt[k] = int(v)

def f32(x): return struct.unpack('<I', struct.pack('<f', x))[0]
def vr(b, n=1): return f"v{b}" if n == 1 else f"v[{b}:{b+n-1}]"
def ar(b, n=1): return f"a{b}" if n == 1 else f"a[{b}:{b+n-1}]"
def vp(b): return f"v[{b}:{b+1}]"
def flat(gs):
    s = Stream()
    for g in gs: s.ext(g)
    return s

XNA = 0; XNB = 0x400000; HB = 0x800000; YT = 0x1000000
FX = 0x1500000; FB = FX + 0x8000; FH = FX + 0x10000; FY = FX + 0x40000
W2R = 0x1600000
STAMP = 0x1800000
XAS = 65536; XBS = 16384; HBS = 64; YS = 8192
L_W = 40960
SCR_W = 8704; TROW = 272
KSLOT = SCR_W; OOFF = 4284
L_U = 3 * KSLOT; USLOT = 4352
L_LN = L_U; LNROW = 1344
L_E = L_W + 61440
L_Y = L_E + 4 * 6144
L_P = L_W + 37 * 3072
L_F = L_W - 64
L_V = L_U + 3 * USLOT
LDS_BYTES = 163840
assert L_U + 3 * USLOT <= L_W and L_LN + 8 * LNROW <= L_W
sWG, sWAVE, sRB, sCB, sRB2, sCB2, sCBASE, sPAR, sNONCE = 2, 3, 4, 5, 6, 7, 8, 9, 10
P = lambda k: f"s[{16+2*k}:{17+2*k}]"
pX, pLOGA, pAIM, pCR, pCI, pLOGDT, pDSK, pBX, pW1, pB1, pW2, pB2, pOUT, pDBG, pWS = range(15)
SRD_X, SRD_W1, SRD_W2, SRD_WS, SRD_OUT = "s[48:51]", "s[52:55]", "s[56:59]", "s[60:63]", "s[64:67]"
sXB, sXC, sSCR, sW2B, sROT, sSRC, sRG, sXH = 76, 77, 78, 79, 80, 81, 82, 83
sOWN, sUB, sEN0, sEN1, sHST, sHFL = 84, 85, 86, 87, 88, 89
sHB = 90
sYL = 94
sSL0, sSL1, sISX, sYF2, sJ = 97, 98, 99, 100, 101
sYB, sYF = 74, 75
SPIN_MAX = opt['spin']
JUNK = "a255"
LOG2E = 1.4426950408889634
vU, vK, vKn = 92, 93, 94
vXD, vEA = 95, 98
vW2R, vUl, vKl, vYl, vOO, vUG, vUW = 100, 101, 102, 103, 104, 105, 106
vST = 107
vXF, vW1O, vBD, vB1A, vHS, vENA, vE0, vE1 = 240, 241, 244, 245, 246, 247, 248, 249
vHF, vYG, vL1, vL0, vA0, vA1 = 250, 251, 252, 253, 254, 255

S = Stream()
COLD = Stream()
stamp_names = []
SKIP = set('g1_10 w3_b0 w3_ln ln_st idle ln k_u0 e_bar'.split())
def stamp(s, name):
    if not opt['stamps'] or name in SKIP: return
    if name not in stamp_names: stamp_names.append(name)
    idx = stamp_names.index(name)
    assert 0 < idx < 29
    s(f"s_memtime s[68:69]\ns_waitcnt lgkmcnt(0)\nv_writelane_b32 v{vST}, s68, {idx}")

def bf16_round(s, dst, src):
    s(f"v_cvt_pk_bf16_f32 {dst}, {src}, {src}")
    s(f"v_and_b32 {dst}, 0xffff0000, {dst}")

def flag_load(s, loads, nonce=None):
    for vd, vo, *n in loads:
        s(f"buffer_load_dword{'x4' if n else ''} {vr(vd, 4 if n else 1)}, v{vo}, {SRD_WS}, 0 offen sc0 sc1")
    if nonce: s(f"global_load_dword v{nonce[0]}, v{nonce[1]}, {P(pDBG)} sc0 sc1")
def flag_test(s, loads, nonce=None):
    regs = [vd + k for vd, vo, *n in loads for k in range(4 if n else 1)]
    if nonce: s(f"v_readfirstlane_b32 s{sNONCE}, v{nonce[0]}")
    for r in regs: s(f"v_xor_b32 v{r}, s{sNONCE}, v{r}")
    for r in regs[1:]: s(f"v_or_b32 v{regs[0]}, v{regs[0]}, v{r}")
    if nonce:
        s(f"v_cmp_eq_u32 vcc, 0, v{nonce[0]}")
        s(f"v_cndmask_b32 v{regs[0]}, v{regs[0]}, 1, vcc")
    s(f"v_cmp_ne_u32 vcc, 0, v{regs[0]}")
uid = [0]
def spin(L, loads, nonce=None, pre="", post=None):
    c = COLD
    c.label(f"{L}s")
    c("s_mov_b32 s70, 0")
    if pre: c(pre)
    c.label(f"{L}l")
    flag_load(c, loads, nonce)
    c("s_waitcnt vmcnt(0)")
    flag_test(c, loads, nonce)
    c(f"s_add_u32 s70, s70, 1\ns_cmp_gt_u32 s70, {SPIN_MAX}\ns_cbranch_scc1 {L}x\ns_cbranch_vccz {L}x\ns_sleep 4\ns_branch {L}l")
    c.label(f"{L}x")
    if post: c.ext(post); c("s_waitcnt vmcnt(0)")
    c(f"s_nop 4\ns_branch {L}b")
def flag_check(s, loads):
    uid[0] += 1; L = f".Lc{uid[0]}"
    flag_test(s, loads)
    s(f"s_cbranch_vccnz {L}s")
    s.label(f"{L}b")
    spin(L, loads)

if opt['stamps']:
    S("s_memtime s[70:71]"); stamp_names.append('start')
S(f"s_cmp_ge_u32 s{sWG}, 256")
S("s_cbranch_scc1 .Lend")
S("s_load_dwordx16 s[16:31], s[0:1], 0")
S("s_load_dwordx8 s[32:39], s[0:1], 64")
S("s_load_dwordx4 s[40:43], s[0:1], 96")
S("s_load_dwordx2 s[44:45], s[0:1], 112")
vX = 20; vRAW = 120
S(f"""s_getpc_b64 s[72:73]
s_and_b32 s11, s{sWG}, 7
s_lshr_b32 s{sJ}, s{sWG}, 3
s_lshl_b32 s{sRG}, s11, 5
s_add_u32 s{sRG}, s{sRG}, s{sJ}
v_lshrrev_b32 v4, 4, v0
v_lshl_add_u32 v2, s{sRG}, 3, v4
v_mul_u32_u24 v2, 1280, v2
v_and_b32 v7, 15, v0
v_lshl_add_u32 v2, v7, 4, v2
v_lshrrev_b32 v3, 6, v0
v_and_b32 v0, 63, v0
v_readfirstlane_b32 s{sWAVE}, v3
s_and_b32 s{sPAR}, s{sJ}, 1
s_lshl_b32 s{sCBASE}, s11, 4
s_lshr_b32 s15, s{sJ}, 1
s_add_u32 s{sCBASE}, s{sCBASE}, s15
s_mul_i32 s{sCBASE}, s{sCBASE}, 5
s_lshl_b32 s15, s{sPAR}, 1
s_add_u32 s{sCBASE}, s{sCBASE}, s15
s_min_u32 s12, s{sWAVE}, 2
s_add_u32 s12, s12, s{sCBASE}
s_mul_i32 s15, s12, 384
s_lshl_b32 s12, s12, 1
s_and_b32 s13, s12, -4
s_lshl_b32 s46, s12, 3
v_mul_u32_u24 v6, 6, v0
v_and_b32 v6, -4, v6
v_add_u32 v6, s15, v6
v_mov_b32 v10, {L_F}
v_mov_b32 v12, 0
v_mov_b32 v13, 0
ds_write_b64 v10, v[12:13]
s_cmp_ge_u32 s{sWAVE}, 2
s_waitcnt lgkmcnt(0)
s_cbranch_scc1 .Lnox""")
for j in range(5):
    S(f"global_load_dwordx4 {vr(vX+4*j,4)}, v2, {P(pX)} offset:{256*j}")
S.label(".Lnox")
if opt['stamps']:
    S(f"v_mov_b32 v{vST}, 0\nv_writelane_b32 v{vST}, s70, 0\ns_memrealtime s[68:69]\ns_waitcnt lgkmcnt(0)\nv_writelane_b32 v{vST}, s68, 30")
S(f"s_load_dword s47, {P(pLOGDT)}, s13")
S("s_barrier")
S(f"s_cmp_eq_u32 s{sWAVE}, 3\ns_cbranch_scc1 .Lnopar")
for k, p in enumerate((pLOGA, pAIM, pCR, pCI)):
    S(f"global_load_dwordx2 {vr(vRAW+2*k,2)}, v6, {P(p)}")
S.label(".Lnopar")
def srd(name, p, nbytes):
    b = int(name[2:name.index(':')])
    S(f"s_mov_b32 s{b}, s{16+2*p}\ns_mov_b32 s{b+1}, s{17+2*p}\ns_mov_b32 s{b+2}, {nbytes}\ns_mov_b32 s{b+3}, 0x20000")
S(f"""v_min_u32 v10, 2, v0
v_mul_u32_u24 v10, 10, v10
v_min_u32 v11, 1, v0
v_lshlrev_b32 v11, 1, v11
v_cmp_lt_u32 vcc, 1, v0
s_lshr_b32 s12, s{sRG}, 7
v_add_u32 v11, s12, v11
v_cndmask_b32 v10, v11, 10, vcc
v_cmp_lt_u32 vcc, 2, v0
v_cndmask_b32 v10, v10, 11, vcc
v_lshlrev_b32 v10, 21, v10
v_add_u32 v10, 0x1fff80, v10
v_mov_b32 v12, 0x80
s_mul_i32 s12, s{sJ}, {opt['code_kb'] * 32}
v_lshl_add_u32 v1, v0, 5, s12
s_cmp_eq_u32 s{sWAVE}, 1
s_cbranch_scc1 .Ltlb1
s_cmp_eq_u32 s{sWAVE}, 2
s_cbranch_scc1 .Ltlb2
s_cmp_eq_u32 s{sWAVE}, 3
s_cbranch_scc1 .Ltlb3""")
S.junk(f"global_load_dword {JUNK}, v1, s[72:73]"); S.l[-1].kind = 'other'
S("s_branch .Ltlbd")
S.label(".Ltlb1")
if opt['dtlb']:
    S(f"""s_lshl_b32 s12, s{sJ}, 21
s_add_u32 s12, s12, 0x1fff80
s_mov_b64 s[68:69], {P(pWS)}""")
    for n, (p_, off) in enumerate(((pB1, 0x80), (pX, 0), (pX, 0x200000), (pB2, 0x80), (pDSK, 0x80), (pOUT, 0), (pOUT, 0x200000))):
        S(f"s_cmp_eq_u32 s{sJ}, {12+n}\ns_cselect_b64 s[68:69], {P(p_)}, s[68:69]\ns_cselect_b32 s12, {off}, s12")
    S(f"v_mov_b32 v12, s12\ns_cmp_ge_u32 s{sJ}, 19\ns_cbranch_scc1 .Ltlbd")
    S.junk(f"global_load_dword {JUNK}, v12, s[68:69]"); S.l[-1].kind = 'other'
S("s_branch .Ltlbd")
S.label(".Ltlb3")
S.junk(f"global_load_dword {JUNK}, v10, {P(pWS)}"); S.l[-1].kind = 'other'
S("s_branch .Ltlbd")
S.label(".Ltlb2")
S.junk(f"global_load_dword {JUNK}, v12, {P(pDBG)}"); S.l[-1].kind = 'other'
S(f"""s_cmp_lg_u32 s{sWG}, 0
s_cbranch_scc1 .Ltlbd
s_memrealtime s[68:69]
s_waitcnt lgkmcnt(0)
s_lshl_b32 s68, s68, 1
s_or_b32 s68, s68, 1
v_mov_b32 v1, s68
v_mov_b32 v2, 0
global_store_dword v2, v1, {P(pDBG)} sc0 sc1""")
S.l[-1].kind = 'other'
S.label(".Ltlbd")
srd(SRD_W1, pW1, 640*1536*2)
srd(SRD_W2, pW2, 640*1536*2)
srd(SRD_WS, pWS, 0x10000000)
srd(SRD_X, pX, 2048*640*2)
srd(SRD_OUT, pOUT, 2048*640*2)
S(f"""s_lshr_b32 s13, s11, 1
s_and_b32 s{sXH}, s11, 1
s_lshl_b32 s{sRB}, s13, 2
s_and_b32 s15, s{sJ}, 3
s_add_u32 s{sRB}, s{sRB}, s15
s_lshl_b32 s{sCB}, s{sXH}, 3
s_lshr_b32 s12, s{sJ}, 2
s_add_u32 s{sCB}, s{sCB}, s12
s_lshl_b32 s15, s15, 1
s_add_u32 s{sROT}, s15, s{sCB}
s_lshl_b32 s{sRB2}, s13, 3
s_and_b32 s15, s{sJ}, 7
s_add_u32 s{sRB2}, s{sRB2}, s15
s_lshl_b32 s{sCB2}, s{sXH}, 2
s_lshr_b32 s15, s{sJ}, 3
s_add_u32 s{sCB2}, s{sCB2}, s15
s_mov_b32 s{sNONCE}, 0
s_mul_i32 s{sSCR}, s{sWAVE}, {SCR_W}
s_mul_i32 s{sW2B}, s{sWAVE}, 15360
s_add_u32 s{sW2B}, s{sW2B}, {L_W}
s_mul_i32 s{sSRC}, s{sCB}, 192
s_mov_b32 s70, {L_W}
s_and_b32 s12, s{sROT}, 7
s_mul_i32 s71, s12, {5*49152}
s_add_u32 s71, s71, s{sSRC}
s_add_u32 s74, s{sSRC}, {40*49152}""")
def divmod_off(dst, i, magic, div, stride):
    S(f"""v_add_u32 v15, {64*i}, v0
v_mul_u32_u24 v2, {magic}, v15
v_lshrrev_b32 v2, 19, v2
v_mul_u32_u24 v3, {div}, v2
v_sub_u32 v3, v15, v3
v_mul_u32_u24 v2, {stride}, v2
v_lshl_add_u32 v{dst}, v3, 4, v2""")
def w1_slot(s):
    for i in range(3):
        s(f"s_add_u32 m0, s70, {i*1024}")
        s(f"buffer_load_dwordx4 v{vW1O+i}, {SRD_W1}, s71 offen lds")
    s(f"""s_add_u32 s70, s70, 3072
s_add_u32 s71, s71, 49152
s_cmp_eq_u32 s71, s74
s_cselect_b32 s71, s{sSRC}, s71""")
def w1_upto(s, n):
    uid[0] += 1; L = f".Lw1_{uid[0]}"
    s(f"s_cmp_ge_u32 s70, {L_W + 3072*n}\ns_cbranch_scc1 {L}x")
    s.label(L)
    s(f"s_waitcnt vmcnt({opt['w3cap']})"); s.l[-1].mn = 's_waitcnt_raw'
    k = len(s.l)
    w1_slot(s)
    for i in s.l[k:]:
        if i.kind == 'vmem': i.kind = 'other'
    s(f"s_cmp_lt_u32 s70, {L_W + 3072*n}\ns_cbranch_scc1 {L}")
    s.label(L + "x")
def w1_slots(s, n, counted=True):
    if n <= 0: return
    uid[0] += 1; L = f".Lw1_{uid[0]}"
    s(f"s_mov_b32 s75, {n}")
    s.label(L)
    s(f"s_waitcnt vmcnt({opt['w3cap']})"); s.l[-1].mn = 's_waitcnt_raw'
    k = len(s.l)
    w1_slot(s)
    s(f"s_sub_u32 s75, s75, 1\ns_cmp_lg_u32 s75, 0\ns_cbranch_scc1 {L}")
    if counted:
        for _ in range(min(3 * (n - 1), 40)): s.assume([])
    else:
        for i in s.l[k:]:
            if i.kind == 'vmem': i.kind = 'other'
for i in range(3): divmod_off(vW1O + i, i, 0xaaab, 12, 3072)
S(f"""s_nop 0
s_lshl_b32 s11, s{sRB}, 2
s_add_u32 s11, s11, s{sWAVE}
s_mul_i32 s{sXB}, s11, {XAS}
s_lshl_b32 s12, s11, 4
s_add_u32 s12, s12, s{sCB}
s_lshl_b32 s12, s12, 7
s_add_u32 s{sHFL}, s12, {FH}
s_lshl_b32 s12, s11, 9
s_add_u32 s12, s12, {FX}
v_and_b32 v1, 3, v0
v_lshl_add_u32 v{vXF}, v1, 7, s12
s_lshl_b32 s11, s11, 1
s_mul_i32 s11, s11, {HBS}
s_mul_i32 s12, s{sCB}, 3
s_add_u32 s11, s11, s12
s_lshl_b32 s11, s11, 10
s_add_u32 s{sHST}, s11, {HB}
s_add_u32 s{sOWN}, s{sWAVE}, s{sCB2}
s_and_b32 s{sOWN}, s{sOWN}, 3
s_mul_i32 s11, s{sWAVE}, {64*XBS}
s_lshl_b32 s12, s{sCBASE}, 4
s_add_u32 s11, s11, s12
s_add_u32 s{sUB}, s11, {XNB}
s_lshl_b32 s14, s{sRB2}, 6
s_lshl_b32 s12, s{sOWN}, 4
s_add_u32 s14, s14, s12
s_lshr_b32 s13, s14, 5
s_mul_i32 s13, s13, {XAS//1024}
s_mul_i32 s12, s{sCB2}, 5
s_add_u32 s13, s13, s12
s_lshl_b32 s13, s13, 10
s_and_b32 s12, s14, 31
s_lshl_b32 s12, s12, 4
s_add_u32 s{sEN0}, s13, s12
s_mul_i32 s{sEN1}, s14, 1280
s_mul_i32 s12, s{sCB2}, 160
s_add_u32 s{sEN1}, s{sEN1}, s12
s_mul_i32 s11, s{sCB2}, {80*YS}
s_lshl_b32 s12, s{sRB2}, 7
s_add_u32 s11, s11, s12
s_mul_i32 s12, s{sWAVE}, {20*YS}
s_add_u32 s11, s11, s12
s_add_u32 s{sYL}, s11, {YT}
s_add_u32 s{sYL+1}, s{sYL}, {8*YS}
s_add_u32 s{sYL+2}, s{sYL}, {12*YS}
s_add_u32 s{sSL0}, s{sPAR}, s{sWAVE}
s_cmp_eq_u32 s{sWAVE}, 2
s_cselect_b32 s{sSL0}, s{sPAR}, s{sSL0}
s_cselect_b32 s{sISX}, 1, 0
s_add_u32 s{sSL1}, s{sPAR}, 1
s_lshl_b32 s12, s{sPAR}, 1
s_sub_u32 s12, 2, s12
s_cmp_eq_u32 s{sWAVE}, 3
s_cselect_b32 s{sISX}, s{sPAR}, s{sISX}
s_cselect_b32 s{sSL0}, s12, s{sSL0}
s_cselect_b32 s{sSL1}, 0, s{sSL1}""")
for p in range(4):
    S(f"""s_add_u32 s11, s{sOWN}, {p+1}
s_and_b32 s11, s11, 3
s_lshl_b32 s12, s{sRB2}, 2
s_add_u32 s11, s11, s12
s_mul_i32 s11, s11, {HBS}
s_mul_i32 s12, s{sWAVE}, 12
s_add_u32 s11, s11, s12
s_lshl_b32 s11, s11, 10
s_add_u32 s{sHB+p}, s11, {HB}""")
for i in range(3): divmod_off(vXD + i, i, 0xcccd, 10, 1280)
S(f"""v_and_b32 v5, 31, v0
v_lshrrev_b32 v8, 4, v0
v_lshrrev_b32 v9, 5, v0
v_and_b32 v13, 1, v8
v_and_b32 v1, 3, v0
v_lshrrev_b32 v14, 2, v0
v_lshlrev_b32 v{vL0}, 4, v0
v_add_u32 v{vL1}, 1024, v{vL0}
v_lshlrev_b32 v{vB1A}, 3, v9
v_add_u32 v{vB1A}, {L_V}, v{vB1A}
v_add_u32 v{vOO}, s14, v7
v_mul_u32_u24 v{vOO}, 1280, v{vOO}
s_mul_i32 s12, s{sCB2}, 160
v_lshl_add_u32 v{vBD}, v8, 3, s12
v_add_u32 v{vOO}, v{vOO}, v{vBD}
v_lshlrev_b32 v{vBD}, 3, v8
v_add_u32 v{vBD}, {L_V + 256}, v{vBD}
v_lshrrev_b32 v2, 2, v7
v_lshl_add_u32 v3, v9, 3, v2
v_mul_u32_u24 v{vA0}, 192, v3
v_lshl_add_u32 v{vA0}, v1, 3, v{vA0}
v_lshl_add_u32 v{vA0}, v13, 5, v{vA0}
v_add_u32 v{vA0}, {L_W}, v{vA0}
v_add_u32 v{vA1}, 61440, v{vA0}
v_lshl_add_u32 v3, v13, 2, v2
v_lshl_add_u32 v3, v9, 4, v3
v_lshlrev_b32 v3, 8, v3
v_lshl_add_u32 v3, v1, 3, v3
v_add_u32 v{vW2R}, {L_P}, v3
v_mul_u32_u24 v3, {XBS}, v14
v_lshl_add_u32 v{vUG}, v1, 4, v3
v_mul_u32_u24 v3, {USLOT}, v1
v_lshl_add_u32 v3, v14, 4, v3
s_lshl_b32 s12, s{sWAVE}, 10
s_add_u32 s12, s12, {L_U + 256}
v_add_u32 v{vUW}, s12, v3
v_lshlrev_b32 v2, 4, v7
v_lshl_add_u32 v{vENA}, v8, 9, v2
s_mul_i32 s12, s{sWAVE}, 6144
s_add_u32 s12, s12, {L_E}
v_mul_u32_u24 v3, 160, v7
v_lshl_add_u32 v3, v8, 3, v3
v_add_u32 v{vEA}, s12, v3
v_lshl_add_u32 v3, v9, 8, v2
v_lshl_add_u32 v3, v13, 3, v3
v_add_u32 v{vEA+1}, s12, v3
v_mul_u32_u24 v3, {HBS*1024}, v13
v_add_u32 v3, v3, v2
v_lshl_add_u32 v{vHS}, v9, 8, v3
v_lshl_add_u32 v3, v13, 8, v2
v_lshl_add_u32 v{vYl}, v9, 10, v3
v_add_u32 v3, v7, v8
v_lshlrev_b32 v3, 4, v3
v_add_u32 v{vUl}, {L_U + 16}, v3
v_and_b32 v3, 7, v0
v_sub_u32 v3, 8, v3
v_lshrrev_b32 v3, 1, v3
v_lshl_add_u32 v3, v8, 2, v3
v_lshlrev_b32 v{vKl}, 2, v3
v_and_b32 v2, 1, v0
v_sub_u32 v3, 1, v2
v_mul_u32_u24 v3, {OOFF}, v3
v_add_u32 v{vKl}, v{vKl}, v3
v_bfe_u32 v3, v0, 3, 1
v_sub_u32 v3, 1, v3
v_mul_u32_u24 v3, 1056, v3
v_add_u32 v{vKl}, v{vKl}, v3
v_lshrrev_b32 v3, 3, v0
v_mul_u32_u24 v3, {YS}, v3
v_and_b32 v2, 7, v0
v_lshl_add_u32 v{vYG}, v2, 4, v3
s_lshr_b32 s11, s{sRB2}, 1
s_lshl_b32 s11, s11, 2
s_and_b32 s12, s{sRB2}, 1
s_lshl_b32 s12, s12, 1
s_add_u32 s11, s11, s12
s_lshl_b32 s11, s11, 4
s_lshl_b32 s12, s{sWAVE}, 2
s_add_u32 s11, s11, s12
s_lshl_b32 s11, s11, 7
s_add_u32 s11, s11, {FH}
v_and_b32 v3, 1, v14
v_lshlrev_b32 v3, 11, v3
v_lshl_add_u32 v3, v1, 7, v3
v_add_u32 v{vHF}, s11, v3
v_sub_u32 v2, 31, v5
v_lshl_add_u32 v2, v2, 4, s{sSCR}
v_sub_u32 v3, 1, v9
v_lshl_add_u32 v{vE0}, v3, 9, v2
v_mul_u32_u24 v3, 1056, v3
v_add_u32 v{vE1}, v3, v2
v_mul_u32_u24 v1, {LNROW}, v4
v_lshl_add_u32 v1, v7, 4, v1
v_add_u32 v1, {L_LN}, v1""")
def unit_addr(s, sslot):
    s(f"""s_mul_i32 s12, s{sslot}, {USLOT}
v_add_u32 v{vU}, s12, v{vUl}
s_mul_i32 s12, s{sslot}, {KSLOT}
s_mul_i32 s13, s{sISX}, 2112
s_add_u32 s12, s12, s13
v_add_u32 v{vK}, s12, v{vKl}
v_add_u32 v{vKn}, 1056, v{vK}
s_add_u32 s12, s{sCBASE}, s{sslot}
s_lshl_b32 s14, s12, 8
s_mul_i32 s12, s12, {YS}
s_lshl_b32 s13, s{sISX}, 11
s_sub_u32 s12, s12, s13
s_add_u32 s{sYB}, s12, {YT + 2048}
s_lshl_b32 s13, s{sISX}, 7
s_sub_u32 s14, s14, s13
s_add_u32 s{sYF}, s14, {FY + 128}""")
def xreg(i): return ar(120 + 4 * (i % 30), 4)
def xn_load(s, i):
    if i % 5 == 0:
        s(f"s_add_u32 s{sXC}, s{sROT}, {i//5}\ns_and_b32 s{sXC}, s{sXC}, 7\ns_mul_i32 s{sXC}, s{sXC}, 5120\ns_add_u32 s{sXC}, s{sXC}, s{sXB}")
    k = i % 5
    s(f"buffer_load_dwordx4 {xreg(i)}, v{vL0 if k < 4 else vL1}, {SRD_WS}, s{sXC} offen offset:{1024*min(k,3)} sc1")
G1PRE = opt['g1pre']
XF = [(1, vXF)]; XN = (2, 3)
def xn_try(s, tag):
    flag_test(s, XF, XN)
    s("s_mov_b64 s[46:47], vcc")
    out = []
    for n in range(G1PRE):
        x = Stream(); x(f"s_cbranch_vccnz .Lxs{tag}{n}"); xn_load(x, n); x.label(f".Lxs{tag}{n}"); out.append(x)
    return out

stamp(S, 'idle')
S(f"s_cmp_eq_u32 s{sWAVE}, 3\ns_cbranch_scc1 .Lw3\ns_cmp_eq_u32 s{sWAVE}, 2")
S.save('role')
S("s_cbranch_scc1 .Lkgen")
S("s_waitcnt vmcnt(4)")
vF = 40; NX = 20; vA = 80
for k in range(NX):
    S(f"v_lshlrev_b32 v{vF+2*k}, 16, v{vX+k}")
    S(f"v_and_b32 v{vF+2*k+1}, 0xffff0000, v{vX+k}")
    if k == 3:
        S(f"v_pk_add_f32 {vp(vA)}, {vp(vF)}, {vp(vF+2)}")
        S(f"v_pk_add_f32 {vp(vA+2)}, {vp(vF+4)}, {vp(vF+6)}")
    elif k > 3:
        a = vA + 2 * (k & 1)
        S(f"v_pk_add_f32 {vp(a)}, {vp(a)}, {vp(vF+2*k)}")
stamp(S, 'x_in')
S(f"v_pk_add_f32 {vp(vA)}, {vp(vA)}, {vp(vA+2)}")
S(f"v_add_f32 v{vA}, v{vA}, v{vA+1}")
def rowsum(s, r):
    for sh in (8, 4, 2, 1):
        s(f"v_add_f32_dpp v{r}, v{r}, v{r} row_ror:{sh} row_mask:0xf bank_mask:0xf")
rowsum(S, vA)
S(f"v_mul_f32 v{vA+4}, {f32(-1.0/640)}, v{vA}")
bf16_round(S, f"v{vA}", f"v{vA+4}")
S(f"v_mov_b32 v{vA+1}, v{vA}")
S(f"v_sub_f32 v{vA+4}, v{vA+4}, v{vA}")
for k in range(NX):
    a = vA + 2 + 4 * (k & 1)
    S(f"v_pk_add_f32 {vp(vF+2*k)}, {vp(vF+2*k)}, {vp(vA)}")
    S(f"v_cvt_pk_bf16_f32 v{vX+k}, v{vF+2*k}, v{vF+2*k+1}")
    if k < 2: S(f"v_pk_mul_f32 {vp(a)}, {vp(vF+2*k)}, {vp(vF+2*k)}")
    else: S(f"v_pk_fma_f32 {vp(a)}, {vp(vF+2*k)}, {vp(vF+2*k)}, {vp(a)}")
r_ = vA + 2
S(f"v_pk_add_f32 {vp(r_)}, {vp(r_)}, {vp(vA+6)}")
S(f"v_add_f32 v{r_}, v{r_}, v{r_+1}")
R = Stream(); rowsum(R, r_)
R(f"v_mul_f32 v{vA+4}, v{vA+4}, v{vA+4}\nv_mul_f32 v{r_}, {f32(1.0/640)}, v{r_}\nv_sub_f32 v{r_}, v{r_}, v{vA+4}\nv_max_f32 v{r_}, 0, v{r_}")
bf16_round(R, f"v{r_}", f"v{r_}")
R(f"v_add_f32 v{r_}, {f32(1e-5)}, v{r_}")
bf16_round(R, f"v{r_}", f"v{r_}")
R(f"v_sqrt_f32 v{r_}, v{r_}")
bf16_round(R, f"v{r_}", f"v{r_}")
R(f"v_rcp_f32 v{r_}, v{r_}")
U = []
for k in range(NX):
    g = Stream(); g(f"v_lshlrev_b32 v{vF+2*k}, 16, v{vX+k}\nv_and_b32 v{vF+2*k+1}, 0xffff0000, v{vX+k}"); U.append(g)
S.ext(sprinkle(R, U, 1))
S(f"v_mov_b32 v{r_+1}, v{r_}\ns_lshl_b32 s12, s{sWAVE}, 2\ns_add_u32 s12, s12, {L_F}\nv_mov_b32 v2, s12\nv_mov_b32 v3, 1")
for k in range(NX):
    S(f"v_pk_mul_f32 {vp(vF+2*k)}, {vp(vF+2*k)}, {vp(r_)}")
for k in range(NX):
    S(f"v_cvt_pk_bf16_f32 v{vX+k}, v{vF+2*k}, v{vF+2*k+1}")
for j in range(5):
    S(f"ds_write_b128 v1, {vr(vX+4*j,4)} offset:{256*j}")
S("ds_write_b32 v2, v3")
stamp(S, 'ln')
S("s_branch .Lkgen")
S.label(".Lw3")
S.endpath(keep=None)
w1_slots(S, opt['b0'], False)
S(f"""v_lshrrev_b32 v5, 3, v0
v_and_b32 v6, 7, v0
v_mul_u32_u24 v10, {LNROW}, v6
v_lshl_add_u32 v10, v5, 4, v10
v_add_u32 v10, {L_LN}, v10
v_and_b32 v12, 3, v14
v_mul_u32_u24 v12, {LNROW}, v12
v_and_b32 v4, 3, v0
v_lshl_add_u32 v12, v4, 3, v12
v_lshl_add_u32 v12, v8, 5, v12
v_add_u32 v12, {L_LN}, v12
v_lshlrev_b32 v11, 10, v8
v_and_b32 v5, 1, v5
v_lshl_add_u32 v11, v5, 9, v11
v_lshl_add_u32 v11, v6, 4, v11
v_mul_u32_u24 v6, 1280, v8
v_lshl_add_u32 v6, v7, 4, v6
v_mov_b32 v2, {L_F}
v_mov_b32 v3, 0
s_min_u32 s12, s{sRG}, 239
s_mul_i32 s13, s12, 52429
s_lshr_b32 s13, s13, 18
s_mul_i32 s14, s13, 5
s_sub_u32 s14, s12, s14
s_mul_i32 s15, s13, {32*1280}
s_lshl_b32 s12, s14, 8
s_add_u32 s15, s15, s12
s_mul_i32 s13, s13, 40
s_lshl_b32 s14, s14, 3
s_add_u32 s13, s13, s14
s_lshl_b32 s13, s13, 10
s_add_u32 s14, s13, {W2R}
s_lshr_b32 s12, s{sRG}, 2
s_mul_i32 s12, s12, {XAS}
s_and_b32 s13, s{sRG}, 3
s_lshl_b32 s13, s13, 7
s_add_u32 s12, s12, s13
s_mul_i32 s13, s{sRG}, {XBS}
s_add_u32 s13, s13, {XNB}
s_mov_b32 s11, 0""")
stamp(S, 'w3_b0')
S.label(".Llnw")
S(f"""ds_read_b64 v[16:17], v2
s_waitcnt lgkmcnt(0)
v_and_b32 v16, v16, v17
s_add_u32 s11, s11, 1
v_readfirstlane_b32 s75, v16
s_cmp_gt_u32 s11, {SPIN_MAX*16}
s_cbranch_scc1 .Llnwx
s_cmp_eq_u32 s75, 0
s_cbranch_scc1 .Llnw""")
S.label(".Llnwx")
stamp(S, 'w3_ln')
for j in range(10):
    S(f"ds_read_b128 {vr(20+4*j,4)}, v10 offset:{128*j}")
S(f"global_load_dword v15, v3, {P(pDBG)} sc0 sc1")
for it in range(10):
    S(f"ds_read_b64_tr_b16 {vr(130+4*it,2)}, v12 offset:{128*it}")
    S(f"ds_read_b64_tr_b16 {vr(132+4*it,2)}, v12 offset:{128*it + 4*LNROW}")
for j in range(10):
    tl = S(f"buffer_store_dwordx4 {vr(20+4*j,4)}, v11, {SRD_WS}, s12 offen sc0 sc1")
    if j < 9: S("s_add_u32 s12, s12, 4096")
stamp(S, 'ln_st')
for i in range(8):
    S(f"s_mov_b32 m0, {L_P + 1024*i}")
    tp_ = S(f"buffer_load_dwordx4 v6, {SRD_W2}, s15 offen lds")
    if i < 7: S(f"s_add_u32 s15, s15, {4*1280}")
S(f"""s_mul_i32 s11, s{sCB2}, 160
v_add_u32 v18, s{sSRC}, v{vL0}
v_add_u32 v19, s11, v{vL0}
s_mov_b32 exec_hi, 0
s_mov_b32 exec_lo, 0xfff
s_mov_b32 m0, {L_V}
global_load_lds_dwordx4 v18, {P(pB1)}
s_mov_b32 exec_lo, 0x3ff
s_mov_b32 m0, {L_V + 256}
global_load_lds_dwordx4 v19, {P(pB2)}
s_mov_b32 m0, {L_V + 512}
global_load_lds_dwordx4 v19, {P(pDSK)}
s_mov_b64 exec, -1""")
w1_slots(S, opt['b2a'])
S(f"""v_readfirstlane_b32 s{sNONCE}, v15
v_mul_u32_u24 v1, {USLOT}, v8
v_lshl_add_u32 v1, v7, 4, v1
v_mov_b32 v16, 0
v_mov_b32 v17, 0
v_mov_b32 v18, 0
v_mov_b32 v19, 0
s_mov_b32 exec_hi, 0xffff
s_waitcnt lgkmcnt(0)
ds_write_b128 v1, v[16:19] offset:{L_U}
s_mov_b64 exec, -1""")
S(f"s_cmp_eq_u32 s{sNONCE}, 0\ns_cbranch_scc1 .Lnonce_s")
S.label(".Lnonce_b")
COLD.label(".Lnonce_s")
COLD(f"s_mov_b32 s11, 0")
COLD.label(".Lnonce_l")
COLD(f"global_load_dword v15, v3, {P(pDBG)} sc0 sc1\ns_waitcnt vmcnt(0)\nv_readfirstlane_b32 s{sNONCE}, v15\ns_add_u32 s11, s11, 1\ns_cmp_gt_u32 s11, {SPIN_MAX}\ns_cbranch_scc1 .Lnonce_b\ns_cmp_eq_u32 s{sNONCE}, 0\ns_cbranch_scc1 .Lnonce_l\ns_branch .Lnonce_b")
S(f"""s_lshl_b32 s12, s{sRG}, 7
s_add_u32 s12, s12, {FX}
v_mov_b32 v15, s{sNONCE}""")
S.wait(tl)
S(f"buffer_store_dword v15, v3, {SRD_WS}, s12 offen sc0 sc1")
stamp(S, 'ln_flag')
w1_slots(S, 8)
S.wait(tp_)
for dt in range(8):
    for r in range(2):
        S(f"ds_read_b64_tr_b16 {vr(180+4*dt+2*r,2)}, v{vW2R} offset:{r*2048 + dt*32}")
S("s_waitcnt lgkmcnt(0)")
w1_slots(S, 40 - 8 - opt['b0'] - opt['b2a'])
stamp(S, 'w1_iss')
def late_stores(s):
    for it in range(10):
        s(f"buffer_store_dwordx4 {vr(130+4*it,4)}, v{vL0}, {SRD_WS}, s13 offen offset:{1024*(it%4)} sc0 sc1"); s.l[-1].kind = 'other'
        if it % 4 == 3: s("s_add_u32 s13, s13, 4096")
    s(f"v_add_u32 v{vW2R}, 4096, v{vL0}")
    for dt in range(8):
        s(f"buffer_store_dwordx4 {vr(180+4*dt,4)}, v{vL0 if dt < 4 else vW2R}, {SRD_WS}, s14 offen offset:{1024*(dt%4)} sc0 sc1"); s.l[-1].kind = 'other'
if opt['lsp'] == 0: late_stores(S)
flag_load(S, XF, XN)
if opt['lsp'] == 1: late_stores(S); S("s_waitcnt vmcnt(18)")
gs = xn_try(S, 'a')
stamp(S, 'xnpoll')
S.ext(flat(gs))
if opt['lsp'] == 2: late_stores(S)
S("s_nop 1")
S("s_branch .Lk3")

S.label(".Lkgen")
S.restore('role')
S("s_waitcnt vmcnt(0) lgkmcnt(0)")
vD = 4; vT = 52
vFs = 120; vPK = 184
vFO = 192
vGOl = [224, 228, 232, 236, 76, 80, 84, 88]
vSR, vONE, vDT = 20, 21, 22
vPE = 108
S(f"""s_mov_b32 m0, s{sSCR}
v_mul_u32_u24 v{vSR}, {TROW}, v5
v_lshl_add_u32 v{vSR}, v9, 4, v{vSR}
v_add_u32 v{vSR}, s{sSCR}, v{vSR}
v_mov_b32 v{vONE}, 0x3f80
s_lshr_b32 s47, s47, s46
s_lshl_b32 s47, s47, 16
v_mov_b32 v{vDT}, {f32(LOG2E)}
v_mul_f32 v{vDT}, s47, v{vDT}
v_exp_f32 v{vDT}, v{vDT}
v_and_b32 v1, 1, v0
v_lshlrev_b32 v1, 4, v1
v_mov_b32 v3, 0""")
bf16_round(S, f"v{vDT}", f"v{vDT}")
for k in range(4):
    d0, d1 = vRAW + 2*k, vRAW + 2*k + 1
    S(f"""v_alignbit_b32 v{d0}, v{d1}, v{d0}, v1
v_lshrrev_b32 v{d1}, v1, v{d1}
v_lshlrev_b32 v{vPE+k}, 16, v{d0}
v_and_b32 v{vPE+4+k}, 0xffff0000, v{d0}
v_lshlrev_b32 v{vPE+8+k}, 16, v{d1}""")
S(f"v_add_f32 v{vDT+1}, v{vDT}, v{vDT}\ns_mov_b32 s15, {f32(1.0 / (2 * math.pi))}")
def cmuls(s, lst):
    for d, x, y in lst:
        assert d != x and d != y
        s(f"v_pk_mul_f32 {vp(d)}, {vp(x)}, {vp(y)} op_sel:[0,0] op_sel_hi:[1,0]")
    for d, x, y in lst:
        s(f"v_pk_fma_f32 {vp(d)}, {vp(x)}, {vp(y)}, {vp(d)} op_sel:[1,1,0] op_sel_hi:[0,1,1] neg_lo:[0,1,0]")
I2PI = 1.0 / (2 * math.pi)
i2pi_hi = struct.unpack('<f', struct.pack('<f', I2PI))[0]
i2pi_lo = I2PI - i2pi_hi
hi0 = [0,1,2,3,4,5,6,7,8, 512,516,520, 1024,1032, 1280,1288]
hi1 = [256,256,258,260,260,260,262,264,264, 768,772,776, 1536,1544, 1792,1800]
rowhi = [(hi0, hi1)[(p >> 2) & 1][4 * (p >> 3) + (p & 3)] for p in range(32)]
def k_mfmas(u):
    out = []
    for s_ in range(8):
        x = Stream()
        c = "0" if (s_ == 0 and u == 0) else vr(vD, 16)
        x(f"v_mfma_f32_32x32x16_bf16 {vr(vD,16)}, {vr(vGOl[s_],4)}, {vr(vFO+4*s_,4)}, {c}")
        out.append(x)
    return out
pkc = [0]
def put(s, items, neg, mf=None):
    regs = []
    if mf: s.ext(mf.pop(0))
    for r, rows in items:
        b = vPK + (pkc[0] & 7); pkc[0] += 1
        s(f"v_cvt_pk_bf16_f32 v{b}, v{r}, {'-' if neg else ''}v{r+1}")
        regs.append((b, rows))
    if mf: s.ext(mf.pop(0))
    for b, rows in regs:
        for p in rows: s(f"ds_write_addtid_b32 v{b} offset:{p*TROW}")
    s.pseudo('slot')
def kgen_unit(u):
    A = Stream(); B = Stream()
    pa, pb, pc, pd = range(vPE + 4*u, vPE + 4*u + 4)
    va, vbh, vbl = vT, vT+1, vT+2
    vW1, vW8, vW256, vW2, vW4, vG0 = vT+4, vT+6, vT+8, vT+10, vT+12, vT+14
    G = lambda k: vFs + 2 * k
    A(f"""v_mul_f32 v{va}, {f32(LOG2E)}, v{pa}
v_mul_f32 v{pb}, v{pb}, v{vDT}
v_exp_f32 v{va}, v{va}
v_mul_f32 v{vbh}, s15, v{pb}
v_cvt_pk_bf16_f32 v{va}, v{va}, v{va}
v_fma_f32 v{vbl}, v{pb}, s15, -v{vbh}
v_and_b32 v{va}, 0xffff0000, v{va}
v_fmac_f32 v{vbl}, {f32(i2pi_lo)}, v{pb}
v_mul_f32 v{va}, v{va}, v{vDT}
v_mul_f32 v{va}, {f32(-LOG2E)}, v{va}""")
    t0 = vT + 16
    m8, a8, m1, a1, m2, a2 = range(t0, t0 + 6)
    A(f"""v_mul_f32 v{a8}, {f32(8.0)}, v{vbh}
v_mul_f32 v{m8}, {f32(8.0)}, v{va}
v_fract_f32 v{a8}, v{a8}
v_exp_f32 v{m8}, v{m8}
v_fmac_f32 v{a8}, {f32(8.0)}, v{vbl}
v_exp_f32 v{m1}, v{va}
v_fract_f32 v{a1}, v{vbh}
v_cos_f32 v{vW8}, v{a8}
v_add_f32 v{a1}, v{a1}, v{vbl}
v_sin_f32 v{vW8+1}, v{a8}
v_mul_f32 v{m2}, {f32(256.0)}, v{va}
v_cos_f32 v{vW1}, v{a1}
v_mul_f32 v{a2}, {f32(256.0)}, v{vbh}
v_sin_f32 v{vW1+1}, v{a1}
v_fract_f32 v{a2}, v{a2}
v_exp_f32 v{m2}, v{m2}
v_fmac_f32 v{a2}, {f32(256.0)}, v{vbl}
v_pk_mul_f32 {vp(vW8)}, {vp(vW8)}, {vp(m8)} op_sel:[0,0] op_sel_hi:[1,0]
v_cos_f32 v{vW256}, v{a2}
v_pk_mul_f32 {vp(vW1)}, {vp(vW1)}, {vp(m1)} op_sel:[0,0] op_sel_hi:[1,0]
v_sin_f32 v{vW256+1}, v{a2}""")
    F = lambda k: vW8 if k == 1 else G(k)
    cmuls(A, [(F(2), F(1), F(1)), (vW2, vW1, vW1)])
    A(f"v_mul_f32 v{vG0}, v{pc}, v{vDT+1}\nv_mul_f32 v{vG0+1}, v{pd}, v{vDT+1}")
    cmuls(A, [(F(3), F(2), F(1)), (F(4), F(2), F(2)), (vW4, vW2, vW2)])
    A(f"v_pk_mul_f32 {vp(vW256)}, {vp(vW256)}, {vp(m2)} op_sel:[0,0] op_sel_hi:[1,0]")
    mf = k_mfmas(u - 1) if u > 0 else None
    for lo in range(5, 32, 8):
        cmuls(A, [(F(k), F(k-4), F(4)) for k in range(lo, min(lo+4, 32))])
        cmuls(A, [(F(k), F(k-4), F(4)) for k in range(lo+4, min(lo+8, 32))])
        if lo == 29: A(f"ds_write_addtid_b32 v{vONE}")
        put(A, [(F(k), [k]) for k in range(lo-4, min(lo+4, 32))], False, mf)
    assert not mf
    A.l.pop()
    for s_ in range(8):
        A(f"ds_read_b128 {vr(vFO+4*s_,4)}, v{vSR} offset:{32*s_}")
    A.pseudo('slot')
    his = sorted(set(hi0 + hi1))
    gi = {h: G(n) for n, h in enumerate(his)}; gi[0] = vG0
    rows = lambda h: [p for p in range(32) if rowhi[p] == h]
    steps = [[(1,0,vW1), (2,0,vW2), (4,0,vW4), (8,0,vW8), (256,0,vW256)],
             [(3,2,vW1), (5,4,vW1), (258,256,vW2), (512,256,vW256)],
             [(6,4,vW2), (260,256,vW4), (264,256,vW8), (768,512,vW256)],
             [(7,6,vW1), (262,260,vW2), (516,512,vW4), (1024,768,vW256)],
             [(520,512,vW8), (772,768,vW4), (776,768,vW8), (1280,1024,vW256)],
             [(1032,1024,vW8), (1288,1280,vW8), (1536,1280,vW256)],
             [(1544,1536,vW8), (1792,1536,vW256)],
             [(1800,1792,vW8)]]
    pend = [0]
    for n, st in enumerate(steps):
        cmuls(B, [(gi[d_], gi[x_], y_) for d_, x_, y_ in st])
        if n in (1, 3, 5):
            k = min(8, len(pend))
            put(B, [(gi[h], rows(h)) for h in pend[:k]], True); pend = pend[k:]
        pend += [d_ for d_, x_, y_ in st]
    assert len(pend) <= 8, pend
    put(B, [(gi[h], rows(h)) for h in pend], True)
    B.l.pop()
    for s_ in range(8):
        B(f"ds_read_b128 {vr(vGOl[s_],4)}, v{vSR} offset:{32*s_}")
    s = Stream(); s.ext(A); s.ext(B)
    segs = [Stream()]
    for i in s.l:
        if i.kind == 'slot': segs.append(Stream())
        else: segs[-1].l.append(i)
    return segs
S.ext(flat(kgen_unit(0)))
stamp(S, 'k_u0')
U1 = kgen_unit(1); U2 = kgen_unit(2)
S.ext(flat(U1))
stamp(S, 'k_u1')
S.ext(flat(U2[:opt['xf0']]))
flag_load(S, XF, XN)
S.ext(flat(U2[opt['xf0']:opt['xf1']]))
gs = xn_try(S, 'b')
stamp(S, 'xnpoll')
seg = flat(U2[opt['xf1']:])
S.ext(sprinkle(seg, gs, max(1, len(seg.l) // (len(gs) + 1))))
for x in k_mfmas(2): S.ext(x)
stamp(S, 'kgen')
X = S
vXT = 156
d = lambda k: f"v{vD+k}"
X(f"v_and_b32 v24, 1, v0\nv_cmp_eq_u32 vcc, 1, v24")
def wo(s, b, aE, off):
    s(f"v_add_u32 v24, {off + OOFF}, v{aE}")
    s(f"ds_write2_b32 v24, v{b}, v{b+1} offset0:0 offset1:1")
    s(f"ds_write2_b32 v24, v{b+2}, v{b+3} offset0:2 offset1:3")
def build(e_pairs, o_pairs, base, aE, imm):
    for j, (a, b) in enumerate(e_pairs): X(f"v_cvt_pk_bf16_f32 v{base+j}, {a}, {b}")
    for j, (a, b) in enumerate(o_pairs): X(f"v_cvt_pk_bf16_f32 v{base+4+j}, {a}, {b}")
    X(f"v_add_u32 v24, {imm + OOFF}, v{aE}")
    X(f"ds_write_b128 v{aE}, {vr(base,4)} offset:{imm}")
    X(f"ds_write2_b32 v24, v{base+4}, v{base+5} offset0:0 offset1:1")
    X(f"ds_write2_b32 v24, v{base+6}, v{base+7} offset0:2 offset1:3")
build([(d(7),d(6)),(d(5),d(4)),(d(3),d(2)),(d(1),d(0))], [(d(8),d(7)),(d(6),d(5)),(d(4),d(3)),(d(2),d(1))], vXT, vE0, 3*1056)
build([(d(11),d(11)),(d(10),d(10)),(d(10),d(9)),(d(9),d(9))], [(d(11),d(11)),(d(11),d(10)),(d(10),d(10)),(d(9),d(9))], vXT+8, vE0, 2*1056)
for n, (r0, imm) in enumerate(((12, 512), (14, 0))):
    X(f"v_cndmask_b32 v25, {d(r0)}, {d(r0+1)}, vcc")
    V0, V1 = d(r0), d(r0+1)
    build([(V1,V1),(V1,'v25'),(V0,V0),(V0,V0)], [(V1,V1),(V1,V1),('v25',V0),(V0,V0)], vXT+16+8*n, vE1, imm)
z = vXT + 16
X(f"v_mov_b32 v{z}, 0\nv_mov_b32 v{z+1}, 0\nv_mov_b32 v{z+2}, 0\nv_mov_b32 v{z+3}, 0\nv_cvt_pk_bf16_f32 v{z+4}, {d(0)}, 0\nv_mov_b32 v25, s{sSCR}\nv_subrev_u32 v{vE1}, 32, v{vE1}")
X("s_mov_b32 exec_lo, 0\ns_mov_b32 exec_hi, 0x80000000")
X(f"ds_write_b128 v{vE0}, {vr(vXT,4)} offset:{3*1056-32}")
X(f"ds_write_b128 v{vE0}, {vr(vXT+8,4)} offset:{2*1056-32}")
wo(X, vXT+4, vE0, 3*1056-32)
wo(X, vXT+12, vE0, 2*1056-32)
X("s_mov_b32 exec_lo, 0x80000000\ns_mov_b32 exec_hi, 0")
X(f"ds_write_b128 v{vE1}, {vr(vXT+24,4)}")
wo(X, vXT+28, vE1, 0)
X("s_mov_b32 exec_lo, 1")
X(f"ds_write_b128 v25, {vr(z,4)} offset:{(3*264+256)*4}")
X(f"v_add_u32 v25, {OOFF + (3*264+256)*4}, v25")
X(f"ds_write2_b32 v25, v{z+4}, v{z} offset0:0 offset1:1\nds_write2_b32 v25, v{z}, v{z} offset0:2 offset1:3")
X("s_mov_b64 exec, -1")
stamp(S, 'exp')
S.label(".Lk3")
S("s_barrier")
stamp(S, 'bar1')
S("s_cmp_lg_u64 s[46:47], 0\ns_cbranch_scc1 .Lxs")
S.label(".Lxb")
X = Stream()
for i in range(G1PRE): xn_load(X, i)
spin(".Lx", XF, XN, post=X)

vAC = 20; vAR = 120
vB1P = 68; vB1 = 188
vUL = 160
vEX, vED, vEB = 4, 68, 78
EN = lambda k: 14 + k if k < 6 else 82 + k
L_E = L_W + 61440
L_Y = L_E + 4 * 6144
def g1_read(s, ks, ft):
    for r in range(2):
        base, k = (vA0, ks) if ks < 20 else (vA1, ks - 20)
        s(f"ds_read_b64_tr_b16 {vr(vAR + 12*(ks%3) + 4*ft + 2*r, 2)}, v{base} offset:{k*3072 + r*768 + ft*64}")
for ks in range(2):
    for ft in range(3): g1_read(S, ks, ft)
G1D = opt['g1d']
Sg = Stream(); nxt = G1PRE
for ks in range(40):
    if ks in (1, 10, 20, 30): stamp(Sg, f'g1_{ks}')
    for ft in range(3):
        c = vr(vAC + 16*ft, 16) if ks > 0 else "0"
        Sg(f"v_mfma_f32_32x32x16_bf16 {vr(vAC+16*ft,16)}, {vr(vAR + 12*(ks%3) + 4*ft, 4)}, {xreg(ks)}, {c}")
        if ks + 2 < 40: g1_read(Sg, ks + 2, ft)
        if ft < 2 and nxt < 40 and nxt <= ks + G1D: xn_load(Sg, nxt); nxt += 1
plan = {}
vCA = 20; vCP = 36; vKB = 44; vR = 176
vNON, vZ = 241, 242
sKO = 18
def w2_load(s, n):
    k, dt = divmod(n, 5)
    if dt == 0: s(f"s_mul_i32 s70, s{sKO+k}, 40\ns_add_u32 s70, s70, s{sSRC}")
    s(f"buffer_load_dwordx4 {ar(4*n,4)}, v{vL0 if dt < 4 else vL1}, {SRD_WS}, s70 offen offset:{1024*min(dt,3)} sc1")
wn = [0]
def w2_next(s, cnt):
    for _ in range(cnt):
        if wn[0] < 60: w2_load(s, wn[0]); wn[0] += 1
UF = [(156, 176, 4)]
F = Stream()
F(f"""v_mov_b32 v{vNON}, s{sNONCE}
v_mov_b32 v{vZ}, 0
s_cmp_lg_u32 s{sWAVE}, 3
s_cbranch_scc1 .Lnofb
s_lshr_b32 s70, s{sRG}, 2
s_lshl_b32 s70, s70, 7
s_and_b32 s71, s{sRG}, 3
s_lshl_b32 s71, s71, 2
s_add_u32 s70, s70, s71
s_add_u32 s70, s70, {FB}
buffer_store_dword v{vNON}, v{vZ}, {SRD_WS}, s70 offen sc0 sc1""")
F.l[-1].kind = 'other'
F.label(".Lnofb")
assert opt['fb'] > 3 * G1PRE
plan.setdefault(opt['fb'], Stream()).ext(F)
F = Stream()
for k in range(12):
    F(f"ds_read_b64 {vr(vB1P+2*k,2)}, v{vB1A} offset:{16*k}")
spread(F, 3, 26, plan)
F = Stream()
F(f"""s_mul_i32 s{sSRC}, s{sWAVE}, {12*40*1024}
s_mul_i32 s11, s{sCB2}, 5120
s_add_u32 s{sSRC}, s{sSRC}, s11
s_add_u32 s{sSRC}, s{sSRC}, {W2R}
s_and_b32 s11, s{sRB2}, 7
s_mul_i32 s11, s11, 3
s_lshr_b32 s11, s11, 1
s_lshl_b32 s{sKO}, s11, 10""")
G = Stream()
for k in range(1, 12):
    G(f"s_add_u32 s{sKO+k}, s{sKO+k-1}, 1024\ns_cmp_eq_u32 s{sKO+k}, 12288\ns_cselect_b32 s{sKO+k}, 0, s{sKO+k}")
for k in range(11):
    plan.setdefault(52 + k, Stream()).l.extend(G.l[3*k:3*k+3])
F(f"""v_lshlrev_b32 v176, 7, v0
v_add_u32 v176, {FB}, v176
s_mov_b32 s72, 0x00003f80
s_mov_b32 s73, 0x3f800000""")
unit_addr(F, sSL0)
spread(F, 14, 35, plan)
F = Stream()
F(f"s_cmp_lg_u32 s{sWAVE}, 3\ns_cbranch_scc1 .Lnouf")
flag_load(F, UF)
F.l[-1].kind = 'other'
F.label(".Lnouf")
plan.setdefault(opt['uf'], Stream()).ext(F)
F = Stream()
for k in range(24):
    F(f"v_lshlrev_b32 v{vB1+2*k}, 16, v{vB1P+k}\nv_and_b32 v{vB1+2*k+1}, 0xffff0000, v{vB1P+k}")
spread(F, 30, 62, plan)
F = Stream()
for dt in range(5):
    F(f"ds_read_b64 {vr(vEB+2*dt,2)}, v{vBD} offset:{32*dt}")
    F(f"ds_read_b64 {vr(vED+2*dt,2)}, v{vBD} offset:{256+32*dt}")
spread(F, 64, 84, plan)
F = Stream()
F(f"s_cmp_lg_u32 s{sWAVE}, 3\ns_cbranch_scc1 .Lnouc")
F("s_waitcnt vmcnt(UFN)"); F.l[-1].mn = 's_waitcnt_raw'; UFW = F.l[-1]
flag_check(F, UF)
F.label(".Lnouc")
F("s_barrier")
F("s_mov_b32 exec_lo, 0x77777777\ns_mov_b32 exec_hi, 0x77777777")
for k in range(4):
    F(f"buffer_load_dwordx4 {vr(vUL+4*k,4)}, v{vUG}, {SRD_WS}, s{sUB} offen sc1")
    if k < 3: F(f"s_add_u32 s{sUB}, s{sUB}, {16*XBS}")
F("s_mov_b64 exec, -1")
plan.setdefault(opt['uc'], Stream()).ext(F)
F = Stream(); w2_next(F, (119 - opt['wa0']) // 2)
spread(F, opt['wa0'], 119, plan)
G1S = weave(Sg, plan)
i0 = [n for n, i in enumerate(G1S.l) if i.text and i.text.startswith(".Lnouf")][0]; i1 = G1S.l.index(UFW)
UFW.text = f"s_waitcnt vmcnt({sum(1 for i in G1S.l[i0:i1] if i.kind == 'vmem')})"
S.ext(G1S)
stamp(S, 'g1')
for ft in range(3):
    E = Stream()
    tp = 120 + 8 * ft
    for k in range(8):
        a = vAC + 16*ft + 2*k; b = vB1 + 16*ft + 2*k
        E(f"v_cvt_pk_bf16_f32 v{tp+k}, v{a}, v{a+1}")
        E(f"v_dot2_f32_bf16 v{a}, v{tp+k}, s72, v{b}")
        E(f"v_dot2_f32_bf16 v{a+1}, v{tp+k}, s73, v{b+1}")
    for k in range(8):
        a = vAC + 16*ft + 2*k
        E(f"v_cvt_pk_bf16_f32 v{tp+k}, v{a}, v{a+1}")
        E(f"v_pk_max_i16 v{tp+k}, v{tp+k}, 0")
        E(f"v_lshlrev_b32 v{a}, 16, v{tp+k}")
        E(f"v_and_b32 v{a+1}, 0xffff0000, v{tp+k}")
        E(f"v_pk_mul_f32 {vp(a)}, {vp(a)}, {vp(a)}")
        E(f"v_cvt_pk_bf16_f32 v{tp+k}, v{a}, v{a+1}")
    gs = []
    for _ in range(opt['wep'] // 3):
        g = Stream(); w2_next(g, 1); gs.append(g)
    if gs: E = sprinkle(E, gs, len(E.l) // (len(gs) + 1))
    S.ext(E)
    stamp(S, f'ep{ft}')
    if opt['hlast'] == 0 or ft == 2:
        for f2 in (range(3) if opt['hlast'] else (ft,)):
            for jp in range(2):
                th = S(f"buffer_store_dwordx4 {vr(120+8*f2+4*jp,4)}, v{vHS}, {SRD_WS}, s{sHST} offen offset:{1024*f2 + 512*jp} sc0 sc1")
stamp(S, 'ep3')
S("s_mov_b32 exec_lo, 0x77777777\ns_mov_b32 exec_hi, 0x77777777")
for k in range(4):
    S(f"ds_write_b128 v{vUW}, {vr(vUL+4*k,4)} offset:{256*k}")
S("s_mov_b64 exec, -1")
S("s_waitcnt lgkmcnt(0)")
S("s_barrier")
stamp(S, 'g1ep')

def conv_load(s, sg):
    s(f"ds_read_b128 {vr(vR + 4*(sg & 15), 4)}, v{vU} offset:{64*sg}")
    base, o = (vK, 16*sg) if sg < 16 else (vKn, 16*(sg-16))
    kb = vKB + 4*(sg & 3)
    s(f"ds_read2_b32 {vr(kb,2)}, v{base} offset0:{o} offset1:{o+1}")
    s(f"ds_read2_b32 {vr(kb+2,2)}, v{base} offset0:{o+2} offset1:{o+3}")
def conv_block(ramp, last=False):
    s = Stream()
    for sg in range(16):
        ld = Stream()
        if not (last and sg + 3 >= 16): conv_load(ld, sg + 3)
        for rt in (3, 2, 1, 0):
            first = 12 - 4*rt
            if ramp and sg < first: continue
            c = "0" if (ramp and sg == first) else vr(vCA + 4*rt, 4)
            s(f"v_mfma_f32_16x16x32_bf16 {vr(vCA+4*rt,4)}, {vr(vKB + 4*(sg&3),4)}, {vr(vR + 4*((sg+4+4*rt)&15),4)}, {c}")
            if ld.l: s.l.append(ld.l.pop(0))
        s.ext(ld)
    if not last:
        s(f"v_add_u32 v{vU}, 1024, v{vU}\nv_add_u32 v{vK}, 1056, v{vK}\nv_add_u32 v{vKn}, 1056, v{vKn}")
    return s
def conv_save(s):
    for rt in (3, 2, 1, 0):
        for h in range(2):
            s(f"v_cvt_pk_bf16_f32 v{vCP + 4*(rt>>1) + 2*(rt&1) + h}, v{vCA+4*rt+2*h}, v{vCA+4*rt+2*h+1}")
def conv_fin(s):
    s("s_mov_b32 exec_lo, 0")
    conv_save(s)
    s("s_mov_b32 exec_lo, -1")
    t = None
    for pr in range(2):
        b = vCP + 4*pr
        s(f"v_permlane16_swap_b32 v{b}, v{b+2}")
        s(f"v_permlane16_swap_b32 v{b+1}, v{b+3}")
        t = s(f"buffer_store_dwordx4 {vr(b,4)}, v{vYl}, {SRD_WS}, s{sYB} offen offset:{512*pr} sc0 sc1")
    return t
for sg in range(3): conv_load(S, sg)
F = Stream(); w2_next(F, opt['wb0'])
S.ext(weave(conv_block(True), spread(F, 4, 39)))
stamp(S, 'cv_b0')
conv_save(S)
F = Stream()
F.wait(th)
F(f"buffer_store_dword v{vNON}, v{vZ}, {SRD_WS}, s{sHFL} offen sc0 sc1")
w2_next(F, opt['wb1'])
F(f"s_mul_i32 s11, s{sWAVE}, 6144\ns_add_u32 s11, s11, {L_E}")
for i in range(3):
    F(f"s_add_u32 m0, s11, {1024*i}")
    F(f"buffer_load_dwordx4 v{vXD+i}, {SRD_X}, s{sEN1} offen lds")
for i in range(3):
    F(f"s_add_u32 m0, s11, {3072 + 1024*i - 2048*i}")
    F(f"buffer_load_dwordx4 v{vENA}, {SRD_WS}, s{sEN0} offen offset:{2048*i} sc1 lds") if i < 2 else None
F.l.pop()
F(f"s_add_u32 m0, s11, {3072 + 2048}\ns_add_u32 s{sEN0}, s{sEN0}, 4096")
F(f"buffer_load_dwordx4 v{vENA}, {SRD_WS}, s{sEN0} offen sc1 lds")
P1 = spread(F, opt['hfl'], 63)
S.ext(weave(conv_block(False), P1))
stamp(S, 'cv_b1')
vH = 108
HF = [(62, vHF)]
wb2 = wn[0]
def b2_fill(F):
    wn[0] = wb2
    w2_next(F, 60)
    F("s_waitcnt vmcnt(0)") if False else None
AK = [('a', r) for r in range(240)]
S(f"s_cmp_eq_u32 s{sISX}, 1")
S.save('b2')
S("s_cbranch_scc1 .Lb2x")
F = Stream(); b2_fill(F); flag_load(F, HF)
S.ext(weave(conv_block(False), spread(F, 0, 50)))
S("s_waitcnt lgkmcnt(0)")
S.endpath(keep=None)
S("s_branch .Lb3")
S.label(".Lb2x")
S.restore('b2')
ty = conv_fin(S)
S(f"s_mov_b32 s{sYF2}, s{sYF}")
unit_addr(S, sSL1)
for sg in range(3): conv_load(S, sg)
F = Stream(); b2_fill(F); F.wait(ty)
F(f"buffer_store_dword v{vNON}, v{vZ}, {SRD_WS}, s{sYF2} offen sc0 sc1")
flag_load(F, HF)
S.ext(weave(conv_block(True), spread(F, 0, 36)))
S("s_waitcnt lgkmcnt(0)")
S.endpath(keep=None)
S.label(".Lb3")
S.assume([('v', 62)])
stamp(S, 'cv_b2')
conv_save(S)
plan = {}
NH = 33
def hreg(n): return vH + 4 * (n % NH)
def h_load(s, n):
    p, k = divmod(n, 12)
    s(f"s_add_u32 s70, s{sHB+p}, s{sKO+k}")
    s(f"buffer_load_dwordx4 {vr(hreg(n), 4)}, v{vL0}, {SRD_WS}, s70 offen sc1")
HPRE = opt['hpre']
F = Stream()
flag_test(F, HF)
F("s_mov_b64 s[46:47], vcc")
plan.setdefault(opt['hchk'], Stream()).ext(F)
for n in range(HPRE):
    F = Stream()
    F(f"s_cbranch_vccnz .Lhskip{n}")
    h_load(F, n)
    F.label(f".Lhskip{n}")
    plan.setdefault(opt['hchk'] + 1 + n * opt['hgap'], Stream()).ext(F)
F = Stream()
for dt in range(5):
    F(f"ds_read_b64 {vr(vEX+2*dt,2)}, v{vEA} offset:{32*dt}")
    F(f"ds_read_b64 {vr(EN(2*dt),2)}, v{vEA+1} offset:{3072 + 512*dt}")
spread(F, 52, 63, plan)
S.ext(weave(conv_block(False, last=True), plan))
ty = conv_fin(S)
S("s_cmp_lg_u64 s[46:47], 0\ns_cbranch_scc1 .Lhs")
S.label(".Lhb")
X = Stream()
for n in range(HPRE): h_load(X, n)
spin(".Lh", HF, post=X)
stamp(S, 'conv')

vG2 = 20
vRW = vL1
S(f"v_add_u32 v{vRW}, s{sW2B}, v{vL0}")
HD = opt['hd']
hn = [HPRE]
def g2_pass(p):
    s = Stream()
    ac = vG2 + 20*(p & 1)
    for k in range(12):
        for dt in range(5):
            c = "0" if k == 0 else vr(ac + 4*dt, 4)
            s(f"v_mfma_f32_16x16x32_bf16 {vr(ac+4*dt,4)}, {ar((k*5+dt)*4,4)}, {vr(hreg(12*p+k), 4)}, {c}")
            if dt in (0, 2) and hn[0] < 48 and hn[0] <= 12*p + k + HD: h_load(s, hn[0]); hn[0] += 1
    return s
def g2_dump(s, p):
    ac = vG2 + 20*(p & 1)
    for dt in range(5):
        s(f"ds_write_b128 v{vRW}, {vr(ac+4*dt,4)} offset:{p*5120 + dt*1024}")
S.ext(g2_pass(0))
stamp(S, 'g2_p0')
F = Stream()
F.wait(ty)
F(f"buffer_store_dword v{vNON}, v{vZ}, {SRD_WS}, s{sYF} offen sc0 sc1")
g2_dump(F, 0)
for k in range(10):
    a = 60 + 4*(k & 1)
    F(f"""v_lshlrev_b32 v{a}, 16, v{EN(k)}
v_and_b32 v{a+1}, 0xffff0000, v{EN(k)}
v_lshlrev_b32 v{a+2}, 16, v{vED+k}
v_and_b32 v{a+3}, 0xffff0000, v{vED+k}
v_mul_f32 v{a}, v{a}, v{a+2}
v_mul_f32 v{a+1}, v{a+1}, v{a+3}
v_cvt_pk_bf16_f32 v{EN(k)}, v{a}, v{a+1}""")
YF = [(60, 61), (62, 63)]
F(f"""s_mul_i32 s11, s{sCB2}, {80*256}
s_lshr_b32 s12, s{sRB2}, 4
s_lshl_b32 s12, s12, 7
s_add_u32 s11, s11, s12
s_add_u32 s11, s11, {FY}
v_lshl_add_u32 v61, v0, 8, s11
v_and_b32 v2, 15, v0
v_lshlrev_b32 v2, 8, v2
s_add_u32 s11, s11, {64*256}
v_add_u32 v63, s11, v2""")
S.ext(weave(g2_pass(1), spread(F, 3, 59)))
stamp(S, 'g2_p1')
vB2 = 168; vXf = [188 + 2*k if k < 8 else 92 + 2*(k-8) for k in range(10)]
F = Stream()
g2_dump(F, 1)
F(f"""v_lshrrev_b32 v65, 2, v0
v_lshlrev_b32 v65, 7, v65
v_and_b32 v1, 3, v0
v_lshl_add_u32 v65, v1, 3, v65
s_lshl_b32 s11, s{sOWN}, 5
s_add_u32 s11, s11, {L_Y}
v_add_u32 v65, s11, v65""")
for k in range(10):
    F(f"""v_lshlrev_b32 v{vB2+2*k}, 16, v{vEB+k}
v_and_b32 v{vB2+2*k+1}, 0xffff0000, v{vEB+k}
v_lshlrev_b32 v{vXf[k]}, 16, v{vEX+k}
v_and_b32 v{vXf[k]+1}, 0xffff0000, v{vEX+k}""")
plan = spread(F, 3, 50)
F = Stream(); flag_load(F, YF)
plan.setdefault(opt['yfl'], Stream()).ext(F)
S.ext(weave(g2_pass(2), plan))
stamp(S, 'g2_p2')
assert hn[0] == 48
vY = 68
vS = 204
vYT = 224
F = Stream(); flag_check(F, YF)
F(f"s_mul_i32 s70, s{sWAVE}, 2560\ns_add_u32 s70, s70, {L_Y}")
for i, o in enumerate((0, 1024, 1536)):
    F(f"s_add_u32 m0, s70, {o}")
    F(f"buffer_load_dwordx4 v{vYG}, {SRD_WS}, s{sYL+i} offen sc1 lds")
plan = {opt['ychk']: F}
F = Stream()
g2_dump(F, 2)
vPA = [66, 67, 64]
for p in range(3):
    F(f"s_sub_u32 s11, s{sWAVE}, {p+1}\ns_and_b32 s11, s11, 3\ns_mul_i32 s11, s11, 15360\ns_add_u32 s11, s11, {L_W}\nv_add_u32 v{vPA[p]}, s11, v{vL0}")
F(f"s_mov_b32 s12, {f32(-LOG2E)}\ns_mov_b32 s13, {f32(-LOG2E)}\ns_mov_b32 s14, 1.0\ns_mov_b32 s15, 1.0")
spread(F, opt['ychk'] + 3, opt['ychk'] + 30, plan)
S.ext(weave(g2_pass(3), plan))
stamp(S, 'g2')
S("s_waitcnt vmcnt(0) lgkmcnt(0)")
S("s_barrier")
stamp(S, 'e_bar')
PS = lambda p, dt: 108 + 20*p + 4*dt
for p in range(3):
    for dt in range(5):
        S(f"ds_read_b128 {vr(PS(p, dt), 4)}, v{vPA[p]} offset:{p*5120 + dt*1024}")
for dt in range(5):
    S(f"ds_read_b64_tr_b16 {vr(vYT+2*dt,2)}, v65 offset:{2048*dt}")
ac = vG2 + 20
for p in range(3):
    for k in range(10):
        S(f"v_pk_add_f32 {vp(ac+2*k)}, {vp(ac+2*k)}, {vp(PS(p, k//2) + 2*(k&1))}")
T = lambda k: 108 + 2*k
def stage(fn):
    for k in range(10): fn(k, ac + 2*k, T(k))
stage(lambda k, a, t: S(f"v_cvt_pk_bf16_f32 v{t}, v{a}, v{a+1}"))
stage(lambda k, a, t: S(f"v_dot2_f32_bf16 v{a}, v{t}, s72, v{vB2+2*k}\nv_dot2_f32_bf16 v{a+1}, v{t}, s73, v{vB2+2*k+1}"))
stage(lambda k, a, t: S(f"v_cvt_pk_bf16_f32 v{t}, v{a}, v{a+1}"))
stage(lambda k, a, t: S(f"v_lshlrev_b32 v{a}, 16, v{t}\nv_and_b32 v{a+1}, 0xffff0000, v{t}\nv_pk_mul_f32 {vp(t)}, {vp(a)}, s[12:13]"))
stage(lambda k, a, t: S(f"v_exp_f32 v{t}, v{t}\nv_exp_f32 v{t+1}, v{t+1}"))
stage(lambda k, a, t: S(f"v_lshlrev_b32 v{vS+2*k}, 16, v{vYT+k}\nv_and_b32 v{vS+2*k+1}, 0xffff0000, v{vYT+k}\nv_pk_add_f32 {vp(t)}, {vp(t)}, s[14:15]"))
stage(lambda k, a, t: S(f"v_rcp_f32 v{t}, v{t}\nv_dot2_f32_bf16 v{vS+2*k}, v{EN(k)}, s72, v{vS+2*k}\nv_rcp_f32 v{t+1}, v{t+1}\nv_dot2_f32_bf16 v{vS+2*k+1}, v{EN(k)}, s73, v{vS+2*k+1}"))
stage(lambda k, a, t: S(f"v_pk_mul_f32 {vp(a)}, {vp(a)}, {vp(t)}\nv_cvt_pk_bf16_f32 v{EN(k)}, v{vS+2*k}, v{vS+2*k+1}"))
stage(lambda k, a, t: S(f"v_cvt_pk_bf16_f32 v{t}, v{a}, v{a+1}\nv_lshlrev_b32 v{vS+2*k}, 16, v{EN(k)}\nv_and_b32 v{vS+2*k+1}, 0xffff0000, v{EN(k)}\nv_lshlrev_b32 v{a}, 16, v{t}\nv_and_b32 v{a+1}, 0xffff0000, v{t}\nv_pk_mul_f32 {vp(a)}, {vp(a)}, {vp(vS+2*k)}\nv_cvt_pk_bf16_f32 v{t}, v{a}, v{a+1}"))
stage(lambda k, a, t: S(f"v_dot2_f32_bf16 v{a}, v{t}, s72, v{vXf[k]}\nv_dot2_f32_bf16 v{a+1}, v{t}, s73, v{vXf[k]+1}"))
for k in range(10):
    a = ac + 2*k
    S(f"v_cvt_pk_bf16_f32 v{vEX+k}, v{a}, v{a+1}")
    if k & 1:
        S(f"buffer_store_dwordx2 {vr(vEX+k-1,2)}, v{vOO}, {SRD_OUT}, 0 offen offset:{32*(k//2)}" + ["", " nt", " sc0 sc1", " sc1"][opt.get('outf', 0)])
stamp(S, 'end')
if opt['stamps']:
    S(f"s_memrealtime s[68:69]\ns_waitcnt lgkmcnt(0)\nv_writelane_b32 v{vST}, s68, 31")
    S(f"s_lshl_b32 s11, s{sWG}, 2\ns_add_u32 s11, s11, s{sWAVE}\ns_lshl_b32 s11, s11, 7\ns_add_u32 s11, s11, {STAMP}\nv_lshlrev_b32 v1, 2, v0\ns_mov_b32 exec_hi, 0")
    S(f"buffer_store_dword v{vST}, v1, {SRD_WS}, s11 offen")
    if opt.get('dbgwg') is not None:
        S(f"s_cmp_lg_u32 s{sWG}, {opt['dbgwg']}\ns_cbranch_scc1 .Lend\ns_cmp_lg_u32 s{sWAVE}, {opt.get('dbgwave', 0)}\ns_cbranch_scc1 .Lend")
        S(f"v_readlane_b32 s12, v{vST}, 0\nv_mov_b32 v4, 0")
        sel = [n for n in 'x_in k_u1 xnpoll exp bar1 g1_1 g1 g1ep cv_b1 cv_b2 conv g2_p0 g2 end'.split()]
        for n, nm in enumerate(sel):
            S(f"v_readlane_b32 s13, v{vST}, {stamp_names.index(nm)}\ns_sub_u32 s13, s13, s12\nv_writelane_b32 v4, s13, {n+1}")
        S(f"v_readlane_b32 s13, v{vST}, 31\nv_readlane_b32 s12, v{vST}, 30\ns_sub_u32 s13, s13, s12\nv_writelane_b32 v4, s13, 15")
        S(f"s_mov_b32 exec_lo, 0xfffe\nglobal_store_dword v1, v4, {P(pDBG)}")

S.label(".Lend")
S("s_endpgm")

body = finalize(S) + finalize(COLD) + ["    s_endpgm"]
H2 = f""".amdgcn_target "amdgcn-amd-amdhsa--gfx950"
.text
.globl {NAME}_kernel
.p2align 8
.type {NAME}_kernel,@function
{NAME}_kernel:"""
body, nbytes, nfix = align_pass(body, H2, minrun=5 if opt['align'] else 100000)
sys.stderr.write(f"code bytes {nbytes}, alignment fixes {nfix}\n")
hdr = open('cdna_kernels/' + NAME + '.s.ref').read().split('\n')
out = []
for l in hdr:
    if l.startswith('; @launch'): out.append(f"; @launch grid=(256,1,1) block=(256,1,1) lds={LDS_BYTES}"); break
    out.append(l)
out.append(H2)
out += body
kb = opt['code_kb']
assert nbytes <= kb * 1024
out.append(f""".fill ({kb*1024 + 2304} - (. - {NAME}_kernel)) / 4, 4, 0xbf800000
.section .rodata,"a"
.p2align 6
.amdhsa_kernel {NAME}_kernel
  .amdhsa_next_free_vgpr 512
  .amdhsa_next_free_sgpr 102
  .amdhsa_accum_offset 256
  .amdhsa_group_segment_fixed_size 0
  .amdhsa_kernarg_size 120
  .amdhsa_user_sgpr_count 2
  .amdhsa_user_sgpr_kernarg_segment_ptr 1
  .amdhsa_system_sgpr_workgroup_id_x 1
.end_amdhsa_kernel""")
if opt['stamps']: out.insert(0, "; stamps: " + ",".join(stamp_names))
print('\n'.join(out))
```

```python
import sys, math, struct
sys.path.insert(0, 'gen')
from emit import *

NAME = "recurrent_scan__ssm_conv_s4d__dense_activation_squared_relu__prompt"
opt = dict(xev=2, xlead=30, dtlb=1, w3cap=48, stamps=0, spin=20000, code_kb=34, align=1, b0=8, b2a=2, b2b=4, b2c=6, xf0=3, xf1=5,
           g1pre=8, g1d=10, uw=45, wa0=40, wan=20, wep=9, wb0=14, wb1=17,
           hlast=0, hfl=8, tail10=0, stg=0, hrot=1, wrot=1, xrot=1, hb3=0, fast=1, ypub=50, hchk=8, hgap=4, hgapx=2, hpre=12, hd=12, yfl=40, ychk=2)
for a in sys.argv[1:]:
    k, v = a.split('='); opt[k] = int(v)

def f32(x): return struct.unpack('<I', struct.pack('<f', x))[0]
def vr(b, n=1): return f"v{b}" if n == 1 else f"v[{b}:{b+n-1}]"
def ar(b, n=1): return f"a{b}" if n == 1 else f"a[{b}:{b+n-1}]"
def vp(b): return f"v[{b}:{b+1}]"
def flat(gs):
    s = Stream()
    for g in gs: s.ext(g)
    return s

XNA = 0; XNB = 0x400000; HB = 0x800000; YT = 0x1000000
FX = 0x1500000; FB = FX + 0x8000; FH = FX + 0x10000; FY = FX + 0x40000
W2R = 0x1600000
STAMP = 0x1800000
XAS = 65536; XBS = 16384; HBS = 64; YS = 8192
L_W = 40960
SCR_W = 8704; TROW = 272
KSLOT = SCR_W; OOFF = 4284
L_U = 3 * KSLOT; USLOT = 4352
L_LN = L_U; LNROW = 1344
L_E = L_W + 61440
L_Y = L_E + 4 * 6144
L_P = L_W + 37 * 3072
L_F = L_W - 64
L_V = L_U + 3 * USLOT
LDS_BYTES = 163840
assert L_U + 3 * USLOT <= L_W and L_LN + 8 * LNROW <= L_W
sWG, sWAVE, sRB, sCB, sRB2, sCB2, sCBASE, sPAR, sNONCE = 2, 3, 4, 5, 6, 7, 8, 9, 10
P = lambda k: f"s[{16+2*k}:{17+2*k}]"
pX, pLOGA, pAIM, pCR, pCI, pLOGDT, pDSK, pBX, pW1, pB1, pW2, pB2, pOUT, pDBG, pWS = range(15)
SRD_X, SRD_W1, SRD_W2, SRD_WS, SRD_OUT = "s[48:51]", "s[52:55]", "s[56:59]", "s[60:63]", "s[64:67]"
sXB, sXC, sSCR, sW2B, sROT, sSRC, sRG, sXH = 76, 77, 78, 79, 80, 81, 82, 83
sOWN, sUB, sEN0, sEN1, sHST, sHFL = 84, 85, 86, 87, 88, 89
sHB = 90
sYL = 94
sSL0, sSL1, sISX, sYF2, sJ = 97, 98, 99, 100, 101
sYB, sYF = 74, 75
SPIN_MAX = opt['spin']
JUNK = "a255"
LOG2E = 1.4426950408889634
vU, vK, vKn = 92, 93, 94
vXD, vEA = 95, 98
vW2R, vUl, vKl, vYl, vOO, vUG, vUW = 100, 101, 102, 103, 104, 105, 106
vST = 107
vXF, vW1O, vBD, vB1A, vHS, vENA, vE0, vE1 = 240, 241, 244, 245, 246, 247, 248, 249
vHF, vYG, vL1, vL0, vA0, vA1 = 250, 251, 252, 253, 254, 255

S = Stream()
COLD = Stream()
stamp_names = []
SKIP = set('w3_b0 w3_ln ln_st idle ln k_u0 e_bar ep0 ep1 ep2'.split())
def stamp(s, name):
    if not opt['stamps'] or name in SKIP: return
    if name not in stamp_names: stamp_names.append(name)
    idx = stamp_names.index(name)
    assert 0 < idx < 29
    s(f"s_memtime s[68:69]\ns_waitcnt lgkmcnt(0)\nv_writelane_b32 v{vST}, s68, {idx}")

def bf16_round(s, dst, src):
    s(f"v_cvt_pk_bf16_f32 {dst}, {src}, {src}")
    s(f"v_and_b32 {dst}, 0xffff0000, {dst}")

def flag_load(s, loads, nonce=None):
    for vd, vo, *n in loads:
        s(f"buffer_load_dword{'x4' if n else ''} {vr(vd, 4 if n else 1)}, v{vo}, {SRD_WS}, 0 offen sc0 sc1")
    if nonce: s(f"global_load_dword v{nonce[0]}, v{nonce[1]}, {P(pDBG)} sc0 sc1")
def flag_test(s, loads, nonce=None):
    regs = [vd + k for vd, vo, *n in loads for k in range(4 if n else 1)]
    if nonce: s(f"v_readfirstlane_b32 s{sNONCE}, v{nonce[0]}")
    for r in regs: s(f"v_xor_b32 v{r}, s{sNONCE}, v{r}")
    for r in regs[1:]: s(f"v_or_b32 v{regs[0]}, v{regs[0]}, v{r}")
    if nonce:
        s(f"v_cmp_eq_u32 vcc, 0, v{nonce[0]}")
        s(f"v_cndmask_b32 v{regs[0]}, v{regs[0]}, 1, vcc")
    s(f"v_cmp_ne_u32 vcc, 0, v{regs[0]}")
uid = [0]
def spin(L, loads, nonce=None, pre="", post=None):
    c = COLD
    c.label(f"{L}s")
    c("s_mov_b32 s70, 0")
    if pre: c(pre)
    c.label(f"{L}l")
    flag_load(c, loads, nonce)
    c("s_waitcnt vmcnt(0)")
    flag_test(c, loads, nonce)
    c(f"s_add_u32 s70, s70, 1\ns_cmp_gt_u32 s70, {SPIN_MAX}\ns_cbranch_scc1 {L}x\ns_cbranch_vccz {L}x\ns_sleep 4\ns_branch {L}l")
    c.label(f"{L}x")
    if post: c.ext(post); c("s_waitcnt vmcnt(0)")
    c(f"s_nop 4\ns_branch {L}b")
def flag_check(s, loads):
    uid[0] += 1; L = f".Lc{uid[0]}"
    flag_test(s, loads)
    s(f"s_cbranch_vccnz {L}s")
    s.label(f"{L}b")
    spin(L, loads)

if opt['stamps']:
    S("s_memtime s[70:71]"); stamp_names.append('start')
S(f"s_cmp_ge_u32 s{sWG}, 256")
S("s_cbranch_scc1 .Lend")
S("s_load_dwordx16 s[16:31], s[0:1], 0")
S("s_load_dwordx8 s[32:39], s[0:1], 64")
S("s_load_dwordx4 s[40:43], s[0:1], 96")
S("s_load_dwordx2 s[44:45], s[0:1], 112")
vX = 20; vRAW = 120
S(f"""s_getpc_b64 s[72:73]
s_and_b32 s11, s{sWG}, 7
s_lshr_b32 s{sJ}, s{sWG}, 3
s_lshl_b32 s{sRG}, s11, 5
s_add_u32 s{sRG}, s{sRG}, s{sJ}
v_lshrrev_b32 v4, 4, v0
v_lshl_add_u32 v2, s{sRG}, 3, v4
v_mul_u32_u24 v2, 1280, v2
v_and_b32 v7, 15, v0
v_lshl_add_u32 v2, v7, 4, v2
v_lshrrev_b32 v3, 6, v0
v_and_b32 v0, 63, v0
v_readfirstlane_b32 s{sWAVE}, v3
s_and_b32 s{sPAR}, s{sJ}, 1
s_lshl_b32 s{sCBASE}, s11, 4
s_lshr_b32 s15, s{sJ}, 1
s_add_u32 s{sCBASE}, s{sCBASE}, s15
s_mul_i32 s{sCBASE}, s{sCBASE}, 5
s_lshl_b32 s15, s{sPAR}, 1
s_add_u32 s{sCBASE}, s{sCBASE}, s15
s_min_u32 s12, s{sWAVE}, 2
s_add_u32 s12, s12, s{sCBASE}
s_mul_i32 s15, s12, 384
s_lshl_b32 s12, s12, 1
s_and_b32 s13, s12, -4
s_lshl_b32 s46, s12, 3
v_mul_u32_u24 v6, 6, v0
v_and_b32 v6, -4, v6
v_add_u32 v6, s15, v6
v_mov_b32 v10, {L_F}
v_mov_b32 v12, 0
v_mov_b32 v13, 0
ds_write_b64 v10, v[12:13]
s_cmp_ge_u32 s{sWAVE}, 2
s_waitcnt lgkmcnt(0)
s_cbranch_scc1 .Lnox""")
for j in range(5):
    S(f"global_load_dwordx4 {vr(vX+4*j,4)}, v2, {P(pX)} offset:{256*j}")
S.label(".Lnox")
if opt['stamps']:
    S(f"v_mov_b32 v{vST}, 0\nv_writelane_b32 v{vST}, s70, 0\ns_memrealtime s[68:69]\ns_waitcnt lgkmcnt(0)\nv_writelane_b32 v{vST}, s68, 30")
S(f"s_load_dword s47, {P(pLOGDT)}, s13")
S("s_barrier")
S(f"s_cmp_eq_u32 s{sWAVE}, 3\ns_cbranch_scc1 .Lnopar")
for k, p in enumerate((pLOGA, pAIM, pCR, pCI)):
    S(f"global_load_dwordx2 {vr(vRAW+2*k,2)}, v6, {P(p)}")
S.label(".Lnopar")
def srd(name, p, nbytes):
    b = int(name[2:name.index(':')])
    S(f"s_mov_b32 s{b}, s{16+2*p}\ns_mov_b32 s{b+1}, s{17+2*p}\ns_mov_b32 s{b+2}, {nbytes}\ns_mov_b32 s{b+3}, 0x20000")
S(f"""v_min_u32 v10, 2, v0
v_mul_u32_u24 v10, 10, v10
v_min_u32 v11, 1, v0
v_lshlrev_b32 v11, 1, v11
v_cmp_lt_u32 vcc, 1, v0
s_lshr_b32 s12, s{sRG}, 7
v_add_u32 v11, s12, v11
v_cndmask_b32 v10, v11, 10, vcc
v_cmp_lt_u32 vcc, 2, v0
v_cndmask_b32 v10, v10, 11, vcc
v_lshlrev_b32 v10, 21, v10
v_add_u32 v10, 0x1fff80, v10
v_mov_b32 v12, 0x80
s_mul_i32 s12, s{sJ}, {opt['code_kb'] * 32}
v_lshl_add_u32 v1, v0, 5, s12
s_cmp_eq_u32 s{sWAVE}, 1
s_cbranch_scc1 .Ltlb1
s_cmp_eq_u32 s{sWAVE}, 2
s_cbranch_scc1 .Ltlb2
s_cmp_eq_u32 s{sWAVE}, 3
s_cbranch_scc1 .Ltlb3""")
S.junk(f"global_load_dword {JUNK}, v1, s[72:73]"); S.l[-1].kind = 'other'
S("s_branch .Ltlbd")
S.label(".Ltlb1")
if opt['dtlb']:
    S(f"""s_lshl_b32 s12, s{sJ}, 21
s_add_u32 s12, s12, 0x1fff80
s_mov_b64 s[68:69], {P(pWS)}""")
    for n, (p_, off) in enumerate(((pB1, 0x80), (pX, 0), (pX, 0x200000), (pB2, 0x80), (pDSK, 0x80), (pOUT, 0), (pOUT, 0x200000))):
        S(f"s_cmp_eq_u32 s{sJ}, {12+n}\ns_cselect_b64 s[68:69], {P(p_)}, s[68:69]\ns_cselect_b32 s12, {off}, s12")
    S(f"v_mov_b32 v12, s12\ns_cmp_ge_u32 s{sJ}, 19\ns_cbranch_scc1 .Ltlbd")
    S.junk(f"global_load_dword {JUNK}, v12, s[68:69]"); S.l[-1].kind = 'other'
S("s_branch .Ltlbd")
S.label(".Ltlb3")
S.junk(f"global_load_dword {JUNK}, v10, {P(pWS)}"); S.l[-1].kind = 'other'
S("s_branch .Ltlbd")
S.label(".Ltlb2")
S.junk(f"global_load_dword {JUNK}, v12, {P(pDBG)}"); S.l[-1].kind = 'other'
S(f"""s_cmp_lg_u32 s{sWG}, 0
s_cbranch_scc1 .Ltlbd
s_memrealtime s[68:69]
s_waitcnt lgkmcnt(0)
s_lshl_b32 s68, s68, 1
s_or_b32 s68, s68, 1
v_mov_b32 v1, s68
v_mov_b32 v2, 0
global_store_dword v2, v1, {P(pDBG)} sc0 sc1""")
S.l[-1].kind = 'other'
S.label(".Ltlbd")
srd(SRD_W1, pW1, 640*1536*2)
srd(SRD_W2, pW2, 640*1536*2)
srd(SRD_WS, pWS, 0x10000000)
srd(SRD_X, pX, 2048*640*2)
srd(SRD_OUT, pOUT, 2048*640*2)
S(f"""s_lshr_b32 s13, s11, 1
s_and_b32 s{sXH}, s11, 1
s_lshl_b32 s{sRB}, s13, 2
s_and_b32 s15, s{sJ}, 3
s_add_u32 s{sRB}, s{sRB}, s15
s_lshl_b32 s{sCB}, s{sXH}, 3
s_lshr_b32 s12, s{sJ}, 2
s_add_u32 s{sCB}, s{sCB}, s12
s_lshl_b32 s15, s15, 1
s_mul_i32 s{sROT}, s{sCB}, {opt['xrot']}
s_add_u32 s{sROT}, s15, s{sROT}
s_lshl_b32 s{sRB2}, s13, 3
s_and_b32 s15, s{sJ}, 7
s_add_u32 s{sRB2}, s{sRB2}, s15
s_lshl_b32 s{sCB2}, s{sXH}, 2
s_lshr_b32 s15, s{sJ}, 3
s_add_u32 s{sCB2}, s{sCB2}, s15
s_mov_b32 s{sNONCE}, 0
s_mul_i32 s{sSCR}, s{sWAVE}, {SCR_W}
s_mul_i32 s{sW2B}, s{sWAVE}, 15360
s_add_u32 s{sW2B}, s{sW2B}, {L_W}
s_mul_i32 s{sSRC}, s{sCB}, 192
s_mov_b32 s70, {L_W}
s_and_b32 s12, s{sROT}, 7
s_mul_i32 s71, s12, {5*49152}
s_add_u32 s71, s71, s{sSRC}
s_add_u32 s74, s{sSRC}, {40*49152}""")
def divmod_off(dst, i, magic, div, stride):
    S(f"""v_add_u32 v15, {64*i}, v0
v_mul_u32_u24 v2, {magic}, v15
v_lshrrev_b32 v2, 19, v2
v_mul_u32_u24 v3, {div}, v2
v_sub_u32 v3, v15, v3
v_mul_u32_u24 v2, {stride}, v2
v_lshl_add_u32 v{dst}, v3, 4, v2""")
def w1_slot(s):
    for i in range(3):
        s(f"s_add_u32 m0, s70, {i*1024}")
        s(f"buffer_load_dwordx4 v{vW1O+i}, {SRD_W1}, s71 offen lds")
    s(f"""s_add_u32 s70, s70, 3072
s_add_u32 s71, s71, 49152
s_cmp_eq_u32 s71, s74
s_cselect_b32 s71, s{sSRC}, s71""")
def w1_upto(s, n):
    uid[0] += 1; L = f".Lw1_{uid[0]}"
    s(f"s_cmp_ge_u32 s70, {L_W + 3072*n}\ns_cbranch_scc1 {L}x")
    s.label(L)
    s(f"s_waitcnt vmcnt({opt['w3cap']})"); s.l[-1].mn = 's_waitcnt_raw'
    k = len(s.l)
    w1_slot(s)
    for i in s.l[k:]:
        if i.kind == 'vmem': i.kind = 'other'
    s(f"s_cmp_lt_u32 s70, {L_W + 3072*n}\ns_cbranch_scc1 {L}")
    s.label(L + "x")
def w1_slots(s, n, counted=True):
    if n <= 0: return
    uid[0] += 1; L = f".Lw1_{uid[0]}"
    s(f"s_mov_b32 s75, {n}")
    s.label(L)
    s(f"s_waitcnt vmcnt({opt['w3cap']})"); s.l[-1].mn = 's_waitcnt_raw'
    k = len(s.l)
    w1_slot(s)
    s(f"s_sub_u32 s75, s75, 1\ns_cmp_lg_u32 s75, 0\ns_cbranch_scc1 {L}")
    if counted:
        for _ in range(min(3 * (n - 1), 40)): s.assume([])
    else:
        for i in s.l[k:]:
            if i.kind == 'vmem': i.kind = 'other'
for i in range(3): divmod_off(vW1O + i, i, 0xaaab, 12, 3072)
S(f"""s_nop 0
s_lshl_b32 s11, s{sRB}, 2
s_add_u32 s11, s11, s{sWAVE}
s_mul_i32 s{sXB}, s11, {XAS}
s_lshl_b32 s12, s11, 4
s_add_u32 s12, s12, s{sCB}
s_lshl_b32 s12, s12, 7
s_add_u32 s{sHFL}, s12, {FH}
s_lshl_b32 s12, s11, 9
s_add_u32 s12, s12, {FX}
v_and_b32 v1, 3, v0
v_lshl_add_u32 v{vXF}, v1, 7, s12
s_lshl_b32 s11, s11, 1
s_mul_i32 s11, s11, {HBS}
s_mul_i32 s12, s{sCB}, 3
s_add_u32 s11, s11, s12
s_lshl_b32 s11, s11, 10
s_add_u32 s{sHST}, s11, {HB}
s_mul_i32 s{sOWN}, s{sCB2}, {opt['hrot']}
s_add_u32 s{sOWN}, s{sWAVE}, s{sOWN}
s_and_b32 s{sOWN}, s{sOWN}, 3
s_mul_i32 s11, s{sWAVE}, {64*XBS}
s_lshl_b32 s12, s{sCBASE}, 4
s_add_u32 s11, s11, s12
s_add_u32 s{sUB}, s11, {XNB}
s_lshl_b32 s14, s{sRB2}, 6
s_lshl_b32 s12, s{sOWN}, 4
s_add_u32 s14, s14, s12
s_lshr_b32 s13, s14, 5
s_mul_i32 s13, s13, {XAS//1024}
s_mul_i32 s12, s{sCB2}, 5
s_add_u32 s13, s13, s12
s_lshl_b32 s13, s13, 10
s_and_b32 s12, s14, 31
s_lshl_b32 s12, s12, 4
s_add_u32 s{sEN0}, s13, s12
s_mul_i32 s{sEN1}, s14, 1280
s_mul_i32 s12, s{sCB2}, 160
s_add_u32 s{sEN1}, s{sEN1}, s12
s_mul_i32 s11, s{sCB2}, {80*YS}
s_lshl_b32 s12, s{sRB2}, 7
s_add_u32 s11, s11, s12
s_mul_i32 s12, s{sWAVE}, {20*YS}
s_add_u32 s11, s11, s12
s_add_u32 s{sYL}, s11, {YT}
s_add_u32 s{sYL+1}, s{sYL}, {8*YS}
s_add_u32 s{sYL+2}, s{sYL}, {12*YS}
s_add_u32 s{sSL0}, s{sPAR}, s{sWAVE}
s_cmp_eq_u32 s{sWAVE}, 2
s_cselect_b32 s{sSL0}, s{sPAR}, s{sSL0}
s_cselect_b32 s{sISX}, 1, 0
s_add_u32 s{sSL1}, s{sPAR}, 1
s_lshl_b32 s12, s{sPAR}, 1
s_sub_u32 s12, 2, s12
s_cmp_eq_u32 s{sWAVE}, 3
s_cselect_b32 s{sISX}, s{sPAR}, s{sISX}
s_cselect_b32 s{sSL0}, s12, s{sSL0}
s_cselect_b32 s{sSL1}, 0, s{sSL1}""")
for p in range(4):
    S(f"""s_add_u32 s11, s{sOWN}, {p+1}
s_and_b32 s11, s11, 3
s_lshl_b32 s12, s{sRB2}, 2
s_add_u32 s11, s11, s12
s_mul_i32 s11, s11, {HBS}
s_mul_i32 s12, s{sWAVE}, 12
s_add_u32 s11, s11, s12
s_lshl_b32 s11, s11, 10
s_add_u32 s{sHB+p}, s11, {HB}""")
for i in range(3): divmod_off(vXD + i, i, 0xcccd, 10, 1280)
S(f"""v_and_b32 v5, 31, v0
v_lshrrev_b32 v8, 4, v0
v_lshrrev_b32 v9, 5, v0
v_and_b32 v13, 1, v8
v_and_b32 v1, 3, v0
v_lshrrev_b32 v14, 2, v0
v_lshlrev_b32 v{vL0}, 4, v0
v_add_u32 v{vL1}, 1024, v{vL0}
v_lshlrev_b32 v{vB1A}, 3, v9
v_add_u32 v{vB1A}, {L_V}, v{vB1A}
v_add_u32 v{vOO}, s14, v7
v_mul_u32_u24 v{vOO}, 1280, v{vOO}
s_mul_i32 s12, s{sCB2}, 160
v_lshl_add_u32 v{vBD}, v8, 3, s12
v_add_u32 v{vOO}, v{vOO}, v{vBD}
v_lshlrev_b32 v{vBD}, 3, v8
v_add_u32 v{vBD}, {L_V + 256}, v{vBD}
v_lshrrev_b32 v2, 2, v7
v_lshl_add_u32 v3, v9, 3, v2
v_mul_u32_u24 v{vA0}, 192, v3
v_lshl_add_u32 v{vA0}, v1, 3, v{vA0}
v_lshl_add_u32 v{vA0}, v13, 5, v{vA0}
v_add_u32 v{vA0}, {L_W}, v{vA0}
v_add_u32 v{vA1}, 61440, v{vA0}
v_lshl_add_u32 v3, v13, 2, v2
v_lshl_add_u32 v3, v9, 4, v3
v_lshlrev_b32 v3, 8, v3
v_lshl_add_u32 v3, v1, 3, v3
v_add_u32 v{vW2R}, {L_P}, v3
v_mul_u32_u24 v3, {XBS}, v14
v_lshl_add_u32 v{vUG}, v1, 4, v3
v_mul_u32_u24 v3, {USLOT}, v1
v_lshl_add_u32 v3, v14, 4, v3
s_lshl_b32 s12, s{sWAVE}, 10
s_add_u32 s12, s12, {L_U + 256}
v_add_u32 v{vUW}, s12, v3
v_lshlrev_b32 v2, 4, v7
v_lshl_add_u32 v{vENA}, v8, 9, v2
s_mul_i32 s12, s{sWAVE}, 6144
s_add_u32 s12, s12, {L_E}
v_mul_u32_u24 v3, 160, v7
v_lshl_add_u32 v3, v8, 3, v3
v_add_u32 v{vEA}, s12, v3
v_lshl_add_u32 v3, v9, 8, v2
v_lshl_add_u32 v3, v13, 3, v3
v_add_u32 v{vEA+1}, s12, v3
v_mul_u32_u24 v3, {HBS*1024}, v13
v_add_u32 v3, v3, v2
v_lshl_add_u32 v{vHS}, v9, 8, v3
v_lshl_add_u32 v3, v13, 8, v2
v_lshl_add_u32 v{vYl}, v9, 10, v3
v_add_u32 v3, v7, v8
v_lshlrev_b32 v3, 4, v3
v_add_u32 v{vUl}, {L_U + 16}, v3
v_and_b32 v3, 7, v0
v_sub_u32 v3, 8, v3
v_lshrrev_b32 v3, 1, v3
v_lshl_add_u32 v3, v8, 2, v3
v_lshlrev_b32 v{vKl}, 2, v3
v_and_b32 v2, 1, v0
v_sub_u32 v3, 1, v2
v_mul_u32_u24 v3, {OOFF}, v3
v_add_u32 v{vKl}, v{vKl}, v3
v_bfe_u32 v3, v0, 3, 1
v_sub_u32 v3, 1, v3
v_mul_u32_u24 v3, 1056, v3
v_add_u32 v{vKl}, v{vKl}, v3
v_lshrrev_b32 v3, 3, v0
v_mul_u32_u24 v3, {YS}, v3
v_and_b32 v2, 7, v0
v_lshl_add_u32 v{vYG}, v2, 4, v3
s_lshr_b32 s11, s{sRB2}, 1
s_lshl_b32 s11, s11, 2
s_and_b32 s12, s{sRB2}, 1
s_lshl_b32 s12, s12, 1
s_add_u32 s11, s11, s12
s_lshl_b32 s11, s11, 4
s_lshl_b32 s12, s{sWAVE}, 2
s_add_u32 s11, s11, s12
s_lshl_b32 s11, s11, 7
s_add_u32 s11, s11, {FH}
v_and_b32 v3, 1, v14
v_lshlrev_b32 v3, 11, v3
v_lshl_add_u32 v3, v1, 7, v3
v_add_u32 v{vHF}, s11, v3
v_sub_u32 v2, 31, v5
v_lshl_add_u32 v2, v2, 4, s{sSCR}
v_sub_u32 v3, 1, v9
v_lshl_add_u32 v{vE0}, v3, 9, v2
v_mul_u32_u24 v3, 1056, v3
v_add_u32 v{vE1}, v3, v2
v_mul_u32_u24 v1, {LNROW}, v4
v_lshl_add_u32 v1, v7, 4, v1
v_add_u32 v1, {L_LN}, v1""")
def unit_addr(s, sslot):
    s(f"""s_mul_i32 s12, s{sslot}, {USLOT}
v_add_u32 v{vU}, s12, v{vUl}
s_mul_i32 s12, s{sslot}, {KSLOT}
s_mul_i32 s13, s{sISX}, 2112
s_add_u32 s12, s12, s13
v_add_u32 v{vK}, s12, v{vKl}
v_add_u32 v{vKn}, 1056, v{vK}
s_add_u32 s12, s{sCBASE}, s{sslot}
s_mul_i32 s12, s12, {YS}
s_lshl_b32 s13, s{sISX}, 11
s_sub_u32 s12, s12, s13
s_add_u32 s{sYB}, s12, {YT + 2048}
s_nop 0""")
def xreg(i): return ar(120 + 4 * (i % 30), 4)
def xn_load(s, i):
    if i % 5 == 0:
        s(f"s_add_u32 s{sXC}, s{sROT}, {i//5}\ns_and_b32 s{sXC}, s{sXC}, 7\ns_mul_i32 s{sXC}, s{sXC}, 5120\ns_add_u32 s{sXC}, s{sXC}, s{sXB}")
    k = i % 5
    s(f"buffer_load_dwordx4 {xreg(i)}, v{vL0 if k < 4 else vL1}, {SRD_WS}, s{sXC} offen offset:{1024*min(k,3)} sc1")
G1PRE = opt['g1pre']
XF = [(1, vXF)]; XN = (2, 3)
def xn_try(s, tag):
    flag_test(s, XF, XN)
    s("s_mov_b64 s[46:47], vcc")
    out = []
    for n in range(G1PRE):
        x = Stream(); x(f"s_cbranch_vccnz .Lxs{tag}{n}"); xn_load(x, n); x.label(f".Lxs{tag}{n}"); out.append(x)
    return out

stamp(S, 'idle')
S(f"s_cmp_eq_u32 s{sWAVE}, 3\ns_cbranch_scc1 .Lw3\ns_cmp_eq_u32 s{sWAVE}, 2")
S.save('role')
S("s_cbranch_scc1 .Lkgen")
S("s_waitcnt vmcnt(4)")
vF = 40; NX = 20; vA = 80
for k in range(NX):
    S(f"v_lshlrev_b32 v{vF+2*k}, 16, v{vX+k}")
    S(f"v_and_b32 v{vF+2*k+1}, 0xffff0000, v{vX+k}")
    if k == 3:
        S(f"v_pk_add_f32 {vp(vA)}, {vp(vF)}, {vp(vF+2)}")
        S(f"v_pk_add_f32 {vp(vA+2)}, {vp(vF+4)}, {vp(vF+6)}")
    elif k > 3:
        a = vA + 2 * (k & 1)
        S(f"v_pk_add_f32 {vp(a)}, {vp(a)}, {vp(vF+2*k)}")
stamp(S, 'x_in')
S(f"v_pk_add_f32 {vp(vA)}, {vp(vA)}, {vp(vA+2)}")
S(f"v_add_f32 v{vA}, v{vA}, v{vA+1}")
def rowsum(s, r):
    for sh in (8, 4, 2, 1):
        s(f"v_add_f32_dpp v{r}, v{r}, v{r} row_ror:{sh} row_mask:0xf bank_mask:0xf")
rowsum(S, vA)
S(f"v_mul_f32 v{vA+4}, {f32(-1.0/640)}, v{vA}")
bf16_round(S, f"v{vA}", f"v{vA+4}")
S(f"v_mov_b32 v{vA+1}, v{vA}")
S(f"v_sub_f32 v{vA+4}, v{vA+4}, v{vA}")
for k in range(NX):
    a = vA + 2 + 4 * (k & 1)
    S(f"v_pk_add_f32 {vp(vF+2*k)}, {vp(vF+2*k)}, {vp(vA)}")
    S(f"v_cvt_pk_bf16_f32 v{vX+k}, v{vF+2*k}, v{vF+2*k+1}")
    if k < 2: S(f"v_pk_mul_f32 {vp(a)}, {vp(vF+2*k)}, {vp(vF+2*k)}")
    else: S(f"v_pk_fma_f32 {vp(a)}, {vp(vF+2*k)}, {vp(vF+2*k)}, {vp(a)}")
r_ = vA + 2
S(f"v_pk_add_f32 {vp(r_)}, {vp(r_)}, {vp(vA+6)}")
S(f"v_add_f32 v{r_}, v{r_}, v{r_+1}")
R = Stream(); rowsum(R, r_)
R(f"v_mul_f32 v{vA+4}, v{vA+4}, v{vA+4}\nv_mul_f32 v{r_}, {f32(1.0/640)}, v{r_}\nv_sub_f32 v{r_}, v{r_}, v{vA+4}\nv_max_f32 v{r_}, 0, v{r_}")
bf16_round(R, f"v{r_}", f"v{r_}")
R(f"v_add_f32 v{r_}, {f32(1e-5)}, v{r_}")
bf16_round(R, f"v{r_}", f"v{r_}")
R(f"v_sqrt_f32 v{r_}, v{r_}")
bf16_round(R, f"v{r_}", f"v{r_}")
R(f"v_rcp_f32 v{r_}, v{r_}")
U = []
for k in range(NX):
    g = Stream(); g(f"v_lshlrev_b32 v{vF+2*k}, 16, v{vX+k}\nv_and_b32 v{vF+2*k+1}, 0xffff0000, v{vX+k}"); U.append(g)
S.ext(sprinkle(R, U, 1))
S(f"v_mov_b32 v{r_+1}, v{r_}\ns_lshl_b32 s12, s{sWAVE}, 2\ns_add_u32 s12, s12, {L_F}\nv_mov_b32 v2, s12\nv_mov_b32 v3, 1")
for k in range(NX):
    S(f"v_pk_mul_f32 {vp(vF+2*k)}, {vp(vF+2*k)}, {vp(r_)}")
for k in range(NX):
    S(f"v_cvt_pk_bf16_f32 v{vX+k}, v{vF+2*k}, v{vF+2*k+1}")
for j in range(5):
    S(f"ds_write_b128 v1, {vr(vX+4*j,4)} offset:{256*j}")
S("ds_write_b32 v2, v3")
stamp(S, 'ln')
S("s_branch .Lkgen")
S.label(".Lw3")
S.endpath(keep=None)
w1_slots(S, opt['b0'], False)
S(f"""v_lshrrev_b32 v5, 3, v0
v_and_b32 v6, 7, v0
v_mul_u32_u24 v10, {LNROW}, v6
v_lshl_add_u32 v10, v5, 4, v10
v_add_u32 v10, {L_LN}, v10
v_and_b32 v12, 3, v14
v_mul_u32_u24 v12, {LNROW}, v12
v_and_b32 v4, 3, v0
v_lshl_add_u32 v12, v4, 3, v12
v_lshl_add_u32 v12, v8, 5, v12
v_add_u32 v12, {L_LN}, v12
v_lshlrev_b32 v11, 10, v8
v_and_b32 v5, 1, v5
v_lshl_add_u32 v11, v5, 9, v11
v_lshl_add_u32 v11, v6, 4, v11
v_mul_u32_u24 v6, 1280, v8
v_lshl_add_u32 v6, v7, 4, v6
v_mov_b32 v2, {L_F}
v_mov_b32 v3, 0
s_min_u32 s12, s{sRG}, 239
s_mul_i32 s13, s12, 52429
s_lshr_b32 s13, s13, 18
s_mul_i32 s14, s13, 5
s_sub_u32 s14, s12, s14
s_mul_i32 s15, s13, {32*1280}
s_lshl_b32 s12, s14, 8
s_add_u32 s15, s15, s12
s_mul_i32 s13, s13, 40
s_lshl_b32 s14, s14, 3
s_add_u32 s13, s13, s14
s_lshl_b32 s13, s13, 10
s_add_u32 s14, s13, {W2R}
s_lshr_b32 s12, s{sRG}, 2
s_mul_i32 s12, s12, {XAS}
s_and_b32 s13, s{sRG}, 3
s_lshl_b32 s13, s13, 7
s_add_u32 s12, s12, s13
s_mul_i32 s13, s{sRG}, {XBS}
s_add_u32 s13, s13, {XNB}
s_mov_b32 s11, 0""")
stamp(S, 'w3_b0')
S.label(".Llnw")
S(f"""ds_read_b64 v[16:17], v2
s_waitcnt lgkmcnt(0)
v_and_b32 v16, v16, v17
s_add_u32 s11, s11, 1
v_readfirstlane_b32 s75, v16
s_cmp_gt_u32 s11, {SPIN_MAX*16}
s_cbranch_scc1 .Llnwx
s_cmp_eq_u32 s75, 0
s_cbranch_scc1 .Llnw""")
S.label(".Llnwx")
stamp(S, 'w3_ln')
for j in range(10):
    S(f"ds_read_b128 {vr(20+4*j,4)}, v10 offset:{128*j}")
S(f"global_load_dword v15, v3, {P(pDBG)} sc0 sc1")
for it in range(10):
    S(f"ds_read_b64_tr_b16 {vr(130+4*it,2)}, v12 offset:{128*it}")
    S(f"ds_read_b64_tr_b16 {vr(132+4*it,2)}, v12 offset:{128*it + 4*LNROW}")
for j in range(10):
    tl = S(f"buffer_store_dwordx4 {vr(20+4*j,4)}, v11, {SRD_WS}, s12 offen sc0 sc1")
    if j < 9: S("s_add_u32 s12, s12, 4096")
stamp(S, 'ln_st')
for i in range(8):
    S(f"s_mov_b32 m0, {L_P + 1024*i}")
    tp_ = S(f"buffer_load_dwordx4 v6, {SRD_W2}, s15 offen lds")
    if i < 7: S(f"s_add_u32 s15, s15, {4*1280}")
S(f"""s_mul_i32 s11, s{sCB2}, 160
v_add_u32 v18, s{sSRC}, v{vL0}
v_add_u32 v19, s11, v{vL0}
s_mov_b32 exec_hi, 0
s_mov_b32 exec_lo, 0xfff
s_mov_b32 m0, {L_V}
global_load_lds_dwordx4 v18, {P(pB1)}
s_mov_b32 exec_lo, 0x3ff
s_mov_b32 m0, {L_V + 256}
global_load_lds_dwordx4 v19, {P(pB2)}
s_mov_b32 m0, {L_V + 512}
global_load_lds_dwordx4 v19, {P(pDSK)}
s_mov_b64 exec, -1""")
w1_slots(S, opt['b2a'])
S(f"""v_readfirstlane_b32 s{sNONCE}, v15
v_mul_u32_u24 v1, {USLOT}, v8
v_lshl_add_u32 v1, v7, 4, v1
v_mov_b32 v16, 0
v_mov_b32 v17, 0
v_mov_b32 v18, 0
v_mov_b32 v19, 0
s_mov_b32 exec_hi, 0xffff
s_waitcnt lgkmcnt(0)
ds_write_b128 v1, v[16:19] offset:{L_U}
s_mov_b64 exec, -1""")
S(f"s_cmp_eq_u32 s{sNONCE}, 0\ns_cbranch_scc1 .Lnonce_s")
S.label(".Lnonce_b")
COLD.label(".Lnonce_s")
COLD(f"s_mov_b32 s11, 0")
COLD.label(".Lnonce_l")
COLD(f"global_load_dword v15, v3, {P(pDBG)} sc0 sc1\ns_waitcnt vmcnt(0)\nv_readfirstlane_b32 s{sNONCE}, v15\ns_add_u32 s11, s11, 1\ns_cmp_gt_u32 s11, {SPIN_MAX}\ns_cbranch_scc1 .Lnonce_b\ns_cmp_eq_u32 s{sNONCE}, 0\ns_cbranch_scc1 .Lnonce_l\ns_branch .Lnonce_b")
S(f"""s_lshl_b32 s12, s{sRG}, 7
s_add_u32 s12, s12, {FX}
v_mov_b32 v15, s{sNONCE}""")
S.wait(tl)
S(f"buffer_store_dword v15, v3, {SRD_WS}, s12 offen sc0 sc1")
stamp(S, 'ln_flag')
for it in range(10):
    S(f"buffer_store_dwordx4 {vr(130+4*it,4)}, v{vL0}, {SRD_WS}, s13 offen offset:{1024*(it%4)} sc0 sc1")
    if it % 4 == 3: S("s_add_u32 s13, s13, 4096")
w1_slots(S, opt['b2b'])
S.wait(tp_)
for dt in range(8):
    for r in range(2):
        S(f"ds_read_b64_tr_b16 {vr(180+4*dt+2*r,2)}, v{vW2R} offset:{r*2048 + dt*32}")
S(f"""v_add_u32 v{vW2R}, 4096, v{vL0}
s_lshr_b32 s11, s{sRG}, 2
s_lshl_b32 s11, s11, 7
s_and_b32 s12, s{sRG}, 3
s_lshl_b32 s12, s12, 2
s_add_u32 s11, s11, s12
s_add_u32 s11, s11, {FB}
v_lshlrev_b32 v8, 7, v0
v_add_u32 v8, {FB}, v8""")
for dt in range(8):
    tl = S(f"buffer_store_dwordx4 {vr(180+4*dt,4)}, v{vL0 if dt < 4 else vW2R}, {SRD_WS}, s14 offen offset:{1024*(dt%4)} sc0 sc1")
w1_slots(S, opt['b2c'])
S.wait(tl)
S(f"buffer_store_dword v15, v3, {SRD_WS}, s11 offen sc0 sc1")
stamp(S, 'fb')
w1_slots(S, 40 - opt['b0'] - opt['b2a'] - opt['b2b'] - opt['b2c'] - opt['tail10'])
UF = [(4, 8, 4)]
flag_load(S, UF)
flag_load(S, XF, XN)
w1_slots(S, opt['tail10'])
stamp(S, 'w1_iss')
flag_check(S, UF)
gs = xn_try(S, 'a')
stamp(S, 'xnpoll')
S.ext(flat(gs))
S(f"s_waitcnt vmcnt({G1PRE})"); S.l[-1].mn = 's_waitcnt_raw'
S("s_cmp_eq_u64 s[46:47], 0\ns_cbranch_scc1 .Lk3\ns_waitcnt vmcnt(0)"); S.l[-1].mn = 's_waitcnt_raw'
S("s_branch .Lk3")

S.label(".Lkgen")
S.restore('role')
S("s_waitcnt vmcnt(0) lgkmcnt(0)")
vD = 4; vT = 52
vFs = 120; vPK = 184
vFO = 192
vGOl = [224, 228, 232, 236, 76, 80, 84, 88]
vSR, vONE, vDT = 20, 21, 22
vPE = 108
S(f"""s_mov_b32 m0, s{sSCR}
v_mul_u32_u24 v{vSR}, {TROW}, v5
v_lshl_add_u32 v{vSR}, v9, 4, v{vSR}
v_add_u32 v{vSR}, s{sSCR}, v{vSR}
v_mov_b32 v{vONE}, 0x3f80
s_lshr_b32 s47, s47, s46
s_lshl_b32 s47, s47, 16
v_mov_b32 v{vDT}, {f32(LOG2E)}
v_mul_f32 v{vDT}, s47, v{vDT}
v_exp_f32 v{vDT}, v{vDT}
v_and_b32 v1, 1, v0
v_lshlrev_b32 v1, 4, v1
v_mov_b32 v3, 0""")
bf16_round(S, f"v{vDT}", f"v{vDT}")
for k in range(4):
    d0, d1 = vRAW + 2*k, vRAW + 2*k + 1
    S(f"""v_alignbit_b32 v{d0}, v{d1}, v{d0}, v1
v_lshrrev_b32 v{d1}, v1, v{d1}
v_lshlrev_b32 v{vPE+k}, 16, v{d0}
v_and_b32 v{vPE+4+k}, 0xffff0000, v{d0}
v_lshlrev_b32 v{vPE+8+k}, 16, v{d1}""")
S(f"v_add_f32 v{vDT+1}, v{vDT}, v{vDT}\ns_mov_b32 s15, {f32(1.0 / (2 * math.pi))}")
def cmuls(s, lst):
    for d, x, y in lst:
        assert d != x and d != y
        s(f"v_pk_mul_f32 {vp(d)}, {vp(x)}, {vp(y)} op_sel:[0,0] op_sel_hi:[1,0]")
    for d, x, y in lst:
        s(f"v_pk_fma_f32 {vp(d)}, {vp(x)}, {vp(y)}, {vp(d)} op_sel:[1,1,0] op_sel_hi:[0,1,1] neg_lo:[0,1,0]")
I2PI = 1.0 / (2 * math.pi)
i2pi_hi = struct.unpack('<f', struct.pack('<f', I2PI))[0]
i2pi_lo = I2PI - i2pi_hi
hi0 = [0,1,2,3,4,5,6,7,8, 512,516,520, 1024,1032, 1280,1288]
hi1 = [256,256,258,260,260,260,262,264,264, 768,772,776, 1536,1544, 1792,1800]
rowhi = [(hi0, hi1)[(p >> 2) & 1][4 * (p >> 3) + (p & 3)] for p in range(32)]
def k_mfmas(u):
    out = []
    for s_ in range(8):
        x = Stream()
        c = "0" if (s_ == 0 and u == 0) else vr(vD, 16)
        x(f"v_mfma_f32_32x32x16_bf16 {vr(vD,16)}, {vr(vGOl[s_],4)}, {vr(vFO+4*s_,4)}, {c}")
        out.append(x)
    return out
pkc = [0]
def put(s, items, neg, mf=None):
    regs = []
    if mf: s.ext(mf.pop(0))
    for r, rows in items:
        b = vPK + (pkc[0] & 7); pkc[0] += 1
        s(f"v_cvt_pk_bf16_f32 v{b}, v{r}, {'-' if neg else ''}v{r+1}")
        regs.append((b, rows))
    if mf: s.ext(mf.pop(0))
    for b, rows in regs:
        for p in rows: s(f"ds_write_addtid_b32 v{b} offset:{p*TROW}")
    s.pseudo('slot')
def kgen_unit(u):
    A = Stream(); B = Stream()
    pa, pb, pc, pd = range(vPE + 4*u, vPE + 4*u + 4)
    va, vbh, vbl = vT, vT+1, vT+2
    vW1, vW8, vW256, vW2, vW4, vG0 = vT+4, vT+6, vT+8, vT+10, vT+12, vT+14
    G = lambda k: vFs + 2 * k
    A(f"""v_mul_f32 v{va}, {f32(LOG2E)}, v{pa}
v_mul_f32 v{pb}, v{pb}, v{vDT}
v_exp_f32 v{va}, v{va}
v_mul_f32 v{vbh}, s15, v{pb}
v_cvt_pk_bf16_f32 v{va}, v{va}, v{va}
v_fma_f32 v{vbl}, v{pb}, s15, -v{vbh}
v_and_b32 v{va}, 0xffff0000, v{va}
v_fmac_f32 v{vbl}, {f32(i2pi_lo)}, v{pb}
v_mul_f32 v{va}, v{va}, v{vDT}
v_mul_f32 v{va}, {f32(-LOG2E)}, v{va}""")
    t0 = vT + 16
    m8, a8, m1, a1, m2, a2 = range(t0, t0 + 6)
    A(f"""v_mul_f32 v{a8}, {f32(8.0)}, v{vbh}
v_mul_f32 v{m8}, {f32(8.0)}, v{va}
v_fract_f32 v{a8}, v{a8}
v_exp_f32 v{m8}, v{m8}
v_fmac_f32 v{a8}, {f32(8.0)}, v{vbl}
v_exp_f32 v{m1}, v{va}
v_fract_f32 v{a1}, v{vbh}
v_cos_f32 v{vW8}, v{a8}
v_add_f32 v{a1}, v{a1}, v{vbl}
v_sin_f32 v{vW8+1}, v{a8}
v_mul_f32 v{m2}, {f32(256.0)}, v{va}
v_cos_f32 v{vW1}, v{a1}
v_mul_f32 v{a2}, {f32(256.0)}, v{vbh}
v_sin_f32 v{vW1+1}, v{a1}
v_fract_f32 v{a2}, v{a2}
v_exp_f32 v{m2}, v{m2}
v_fmac_f32 v{a2}, {f32(256.0)}, v{vbl}
v_pk_mul_f32 {vp(vW8)}, {vp(vW8)}, {vp(m8)} op_sel:[0,0] op_sel_hi:[1,0]
v_cos_f32 v{vW256}, v{a2}
v_pk_mul_f32 {vp(vW1)}, {vp(vW1)}, {vp(m1)} op_sel:[0,0] op_sel_hi:[1,0]
v_sin_f32 v{vW256+1}, v{a2}""")
    F = lambda k: vW8 if k == 1 else G(k)
    cmuls(A, [(F(2), F(1), F(1)), (vW2, vW1, vW1)])
    A(f"v_mul_f32 v{vG0}, v{pc}, v{vDT+1}\nv_mul_f32 v{vG0+1}, v{pd}, v{vDT+1}")
    cmuls(A, [(F(3), F(2), F(1)), (F(4), F(2), F(2)), (vW4, vW2, vW2)])
    A(f"v_pk_mul_f32 {vp(vW256)}, {vp(vW256)}, {vp(m2)} op_sel:[0,0] op_sel_hi:[1,0]")
    mf = k_mfmas(u - 1) if u > 0 else None
    for lo in range(5, 32, 8):
        cmuls(A, [(F(k), F(k-4), F(4)) for k in range(lo, min(lo+4, 32))])
        cmuls(A, [(F(k), F(k-4), F(4)) for k in range(lo+4, min(lo+8, 32))])
        if lo == 29: A(f"ds_write_addtid_b32 v{vONE}")
        put(A, [(F(k), [k]) for k in range(lo-4, min(lo+4, 32))], False, mf)
    assert not mf
    A.l.pop()
    for s_ in range(8):
        A(f"ds_read_b128 {vr(vFO+4*s_,4)}, v{vSR} offset:{32*s_}")
    A.pseudo('slot')
    his = sorted(set(hi0 + hi1))
    gi = {h: G(n) for n, h in enumerate(his)}; gi[0] = vG0
    rows = lambda h: [p for p in range(32) if rowhi[p] == h]
    steps = [[(1,0,vW1), (2,0,vW2), (4,0,vW4), (8,0,vW8), (256,0,vW256)],
             [(3,2,vW1), (5,4,vW1), (258,256,vW2), (512,256,vW256)],
             [(6,4,vW2), (260,256,vW4), (264,256,vW8), (768,512,vW256)],
             [(7,6,vW1), (262,260,vW2), (516,512,vW4), (1024,768,vW256)],
             [(520,512,vW8), (772,768,vW4), (776,768,vW8), (1280,1024,vW256)],
             [(1032,1024,vW8), (1288,1280,vW8), (1536,1280,vW256)],
             [(1544,1536,vW8), (1792,1536,vW256)],
             [(1800,1792,vW8)]]
    pend = [0]
    for n, st in enumerate(steps):
        cmuls(B, [(gi[d_], gi[x_], y_) for d_, x_, y_ in st])
        if n in (1, 3, 5):
            k = min(8, len(pend))
            put(B, [(gi[h], rows(h)) for h in pend[:k]], True); pend = pend[k:]
        pend += [d_ for d_, x_, y_ in st]
    assert len(pend) <= 8, pend
    put(B, [(gi[h], rows(h)) for h in pend], True)
    B.l.pop()
    for s_ in range(8):
        B(f"ds_read_b128 {vr(vGOl[s_],4)}, v{vSR} offset:{32*s_}")
    s = Stream(); s.ext(A); s.ext(B)
    segs = [Stream()]
    for i in s.l:
        if i.kind == 'slot': segs.append(Stream())
        else: segs[-1].l.append(i)
    return segs
S.ext(flat(kgen_unit(0)))
stamp(S, 'k_u0')
U1 = kgen_unit(1); U2 = kgen_unit(2)
S.ext(flat(U1))
stamp(S, 'k_u1')
S.ext(flat(U2[:opt['xf0']]))
flag_load(S, XF, XN)
S.ext(flat(U2[opt['xf0']:opt['xf1']]))
gs = xn_try(S, 'b')
stamp(S, 'xnpoll')
seg = flat(U2[opt['xf1']:])
S.ext(sprinkle(seg, gs, max(1, len(seg.l) // (len(gs) + 1))))
for x in k_mfmas(2): S.ext(x)
stamp(S, 'kgen')
X = S
vXT = 156
d = lambda k: f"v{vD+k}"
X(f"v_and_b32 v24, 1, v0\nv_cmp_eq_u32 vcc, 1, v24")
def wo(s, b, aE, off):
    s(f"v_add_u32 v24, {off + OOFF}, v{aE}")
    s(f"ds_write2_b32 v24, v{b}, v{b+1} offset0:0 offset1:1")
    s(f"ds_write2_b32 v24, v{b+2}, v{b+3} offset0:2 offset1:3")
def build(e_pairs, o_pairs, base, aE, imm):
    for j, (a, b) in enumerate(e_pairs): X(f"v_cvt_pk_bf16_f32 v{base+j}, {a}, {b}")
    for j, (a, b) in enumerate(o_pairs): X(f"v_cvt_pk_bf16_f32 v{base+4+j}, {a}, {b}")
    X(f"v_add_u32 v24, {imm + OOFF}, v{aE}")
    X(f"ds_write_b128 v{aE}, {vr(base,4)} offset:{imm}")
    X(f"ds_write2_b32 v24, v{base+4}, v{base+5} offset0:0 offset1:1")
    X(f"ds_write2_b32 v24, v{base+6}, v{base+7} offset0:2 offset1:3")
build([(d(7),d(6)),(d(5),d(4)),(d(3),d(2)),(d(1),d(0))], [(d(8),d(7)),(d(6),d(5)),(d(4),d(3)),(d(2),d(1))], vXT, vE0, 3*1056)
build([(d(11),d(11)),(d(10),d(10)),(d(10),d(9)),(d(9),d(9))], [(d(11),d(11)),(d(11),d(10)),(d(10),d(10)),(d(9),d(9))], vXT+8, vE0, 2*1056)
for n, (r0, imm) in enumerate(((12, 512), (14, 0))):
    X(f"v_cndmask_b32 v25, {d(r0)}, {d(r0+1)}, vcc")
    V0, V1 = d(r0), d(r0+1)
    build([(V1,V1),(V1,'v25'),(V0,V0),(V0,V0)], [(V1,V1),(V1,V1),('v25',V0),(V0,V0)], vXT+16+8*n, vE1, imm)
z = vXT + 16
X(f"v_mov_b32 v{z}, 0\nv_mov_b32 v{z+1}, 0\nv_mov_b32 v{z+2}, 0\nv_mov_b32 v{z+3}, 0\nv_cvt_pk_bf16_f32 v{z+4}, {d(0)}, 0\nv_mov_b32 v25, s{sSCR}\nv_subrev_u32 v{vE1}, 32, v{vE1}")
X("s_mov_b32 exec_lo, 0\ns_mov_b32 exec_hi, 0x80000000")
X(f"ds_write_b128 v{vE0}, {vr(vXT,4)} offset:{3*1056-32}")
X(f"ds_write_b128 v{vE0}, {vr(vXT+8,4)} offset:{2*1056-32}")
wo(X, vXT+4, vE0, 3*1056-32)
wo(X, vXT+12, vE0, 2*1056-32)
X("s_mov_b32 exec_lo, 0x80000000\ns_mov_b32 exec_hi, 0")
X(f"ds_write_b128 v{vE1}, {vr(vXT+24,4)}")
wo(X, vXT+28, vE1, 0)
X("s_mov_b32 exec_lo, 1")
X(f"ds_write_b128 v25, {vr(z,4)} offset:{(3*264+256)*4}")
X(f"v_add_u32 v25, {OOFF + (3*264+256)*4}, v25")
X(f"ds_write2_b32 v25, v{z+4}, v{z} offset0:0 offset1:1\nds_write2_b32 v25, v{z}, v{z} offset0:2 offset1:3")
X("s_mov_b64 exec, -1")
stamp(S, 'exp')
S.label(".Lk3")
S("s_barrier")
stamp(S, 'bar1')
S("s_cmp_lg_u64 s[46:47], 0\ns_cbranch_scc1 .Lxs")
S.label(".Lxb")
X = Stream()
for i in range(G1PRE): xn_load(X, i)
spin(".Lx", XF, XN, post=X)

vAC = 20; vAR = 120
vB1P = 68; vB1 = 188
vUL = 160
vEX, vED, vEB = 4, 68, 78
EN = lambda k: 14 + k if k < 6 else 82 + k
L_E = L_W + 61440
L_Y = L_E + 4 * 6144
STG = opt['stg']
order = [(ks, ft) for ks in range(40 - STG) for ft in range(3)] + [(ks, ft) for ft in range(3) for ks in range(40 - STG, 40)]
NAR = 9
def g1_read(s, n):
    ks, ft = order[n]
    for r in range(2):
        base, k = (vA0, ks) if ks < 20 else (vA1, ks - 20)
        s(f"ds_read_b64_tr_b16 {vr(vAR + 4*(n % NAR) + 2*r, 2)}, v{base} offset:{k*3072 + r*768 + ft*64}")
S("s_mov_b32 exec_lo, 0x77777777\ns_mov_b32 exec_hi, 0x77777777")
for k in range(4):
    S(f"buffer_load_dwordx4 {vr(vUL+4*k,4)}, v{vUG}, {SRD_WS}, s{sUB} offen sc1")
    if k < 3: S(f"s_add_u32 s{sUB}, s{sUB}, {16*XBS}")
S("s_mov_b64 exec, -1")
for n in range(6): g1_read(S, n)
sKO = 18
S(f"""s_mul_i32 s{sSRC}, s{sWAVE}, {12*40*1024}
s_mul_i32 s11, s{sCB2}, 5120
s_add_u32 s{sSRC}, s{sSRC}, s11
s_add_u32 s{sSRC}, s{sSRC}, {W2R}
s_and_b32 s11, s{sRB2}, 7
s_mul_i32 s11, s11, {3*opt['wrot']}
s_lshr_b32 s11, s11, 1
s_lshl_b32 s{sKO}, s11, 10""")
for k in range(1, 12):
    S(f"s_add_u32 s{sKO+k}, s{sKO+k-1}, 1024\ns_cmp_eq_u32 s{sKO+k}, 12288\ns_cselect_b32 s{sKO+k}, 0, s{sKO+k}")
G1D = opt['g1d']
Sg = Stream(); nxt = G1PRE
first_use = {}
for n, (ks, ft) in enumerate(order): first_use.setdefault(ks, n)
for n, (ks, ft) in enumerate(order):
    if n in (3, 30, 60, 90): stamp(Sg, f'g1_{n//3}')
    c = vr(vAC + 16*ft, 16) if ks > 0 else "0"
    Sg(f"v_mfma_f32_32x32x16_bf16 {vr(vAC+16*ft,16)}, {vr(vAR + 4*(n % NAR), 4)}, {xreg(ks)}, {c}")
    if n + 6 < 120: g1_read(Sg, n + 6)
    if nxt < 40 and n % opt['xev'] == 0 and first_use[nxt] <= n + 3 * G1D + (opt['xlead'] if nxt >= 40 - STG else 0):
        assert nxt < 30 or max(m for m, o in enumerate(order) if o[0] == nxt - 30) <= n
        xn_load(Sg, nxt); nxt += 1
assert nxt == 40
plan = {}
vCA = 20; vCP = 36; vKB = 44; vR = 176
vNON, vZ = 241, 242
sKO = 18
def w2_load(s, n):
    k, dt = divmod(n, 5)
    if dt == 0: s(f"s_mul_i32 s70, s{sKO+k}, 40\ns_add_u32 s70, s70, s{sSRC}")
    s(f"buffer_load_dwordx4 {ar(4*n,4)}, v{vL0 if dt < 4 else vL1}, {SRD_WS}, s70 offen offset:{1024*min(dt,3)} sc1")
wn = [0]
def w2_next(s, cnt):
    for _ in range(cnt):
        if wn[0] < 60: w2_load(s, wn[0]); wn[0] += 1
F = Stream()
F(f"v_mov_b32 v{vNON}, s{sNONCE}\nv_mov_b32 v{vZ}, 0")
plan.setdefault(40, Stream()).ext(F)
F = Stream()
for k in range(12):
    F(f"ds_read_b64 {vr(vB1P+2*k,2)}, v{vB1A} offset:{16*k}")
spread(F, 3, 26, plan)
F = Stream()
F(f"""s_mov_b32 s72, 0x00003f80
s_mov_b32 s73, 0x3f800000""")
unit_addr(F, sSL0)
spread(F, 14, 35, plan)
F = Stream()
for k in range(24):
    F(f"v_lshlrev_b32 v{vB1+2*k}, 16, v{vB1P+k}\nv_and_b32 v{vB1+2*k+1}, 0xffff0000, v{vB1P+k}")
spread(F, 30, 62, plan)
F = Stream()
for dt in range(5):
    F(f"ds_read_b64 {vr(vEB+2*dt,2)}, v{vBD} offset:{32*dt}")
    F(f"ds_read_b64 {vr(vED+2*dt,2)}, v{vBD} offset:{256+32*dt}")
spread(F, 64, 84, plan)
F = Stream()
F("s_mov_b32 exec_lo, 0x77777777\ns_mov_b32 exec_hi, 0x77777777")
for k in range(4):
    F(f"ds_write_b128 v{vUW}, {vr(vUL+4*k,4)} offset:{256*k}")
F("s_mov_b64 exec, -1")
plan.setdefault(opt['uw'], Stream()).ext(F)
F = Stream(); w2_next(F, opt['wan'])
spread(F, opt['wa0'], 119, plan)
def g1_epi(ft, packed):
    E = Stream()
    tp = 156 + 8 * ft
    for k in range(8):
        a = vAC + 16*ft + 2*k; b = vB1 + 16*ft + 2*k
        E(f"v_cvt_pk_bf16_f32 v{tp+k}, v{a}, v{a+1}")
        E(f"v_dot2_f32_bf16 v{a}, v{tp+k}, s72, v{b}")
        E(f"v_dot2_f32_bf16 v{a+1}, v{tp+k}, s73, v{b+1}")
    for k in range(8):
        a = vAC + 16*ft + 2*k
        E(f"v_cvt_pk_bf16_f32 v{tp+k}, v{a}, v{a+1}")
        E(f"v_pk_max_i16 v{tp+k}, v{tp+k}, 0")
        E(f"v_lshlrev_b32 v{a}, 16, v{tp+k}")
        E(f"v_and_b32 v{a+1}, 0xffff0000, v{tp+k}")
        if packed: E(f"v_pk_mul_f32 {vp(a)}, {vp(a)}, {vp(a)}")
        else: E(f"v_mul_f32 v{a}, v{a}, v{a}\nv_mul_f32 v{a+1}, v{a+1}, v{a+1}")
        E(f"v_cvt_pk_bf16_f32 v{tp+k}, v{a}, v{a+1}")
    t = None
    for jp in range(2):
        t = E(f"buffer_store_dwordx4 {vr(tp+4*jp,4)}, v{vHS}, {SRD_WS}, s{sHST} offen offset:{1024*ft + 512*jp} sc0 sc1")
    return E, t
rest = []
for ft in range(3):
    if STG >= 10 and ft < 2:
        E, th = g1_epi(ft, False)
        a0 = 120 - (2 - ft) * STG
        spread(E, a0 + 2, a0 + STG - 1, plan)
    else: rest.append(ft)
S.ext(weave(Sg, plan))
stamp(S, 'g1')
for ft in rest:
    E, th = g1_epi(ft, True)
    gs = []
    for _ in range(opt['wep'] // len(rest)):
        g = Stream(); w2_next(g, 1); gs.append(g)
    if gs: E = sprinkle(E, gs, len(E.l) // (len(gs) + 1))
    S.ext(E)
S("s_waitcnt lgkmcnt(0)")
S("s_barrier")
stamp(S, 'g1ep')

def conv_load(s, sg):
    s(f"ds_read_b128 {vr(vR + 4*(sg & 15), 4)}, v{vU} offset:{64*sg}")
    base, o = (vK, 16*sg) if sg < 16 else (vKn, 16*(sg-16))
    kb = vKB + 4*(sg & 3)
    s(f"ds_read2_b32 {vr(kb,2)}, v{base} offset0:{o} offset1:{o+1}")
    s(f"ds_read2_b32 {vr(kb+2,2)}, v{base} offset0:{o+2} offset1:{o+3}")
def conv_block(ramp, last=False):
    s = Stream()
    for sg in range(16):
        ld = Stream()
        if not (last and sg + 3 >= 16): conv_load(ld, sg + 3)
        for rt in (3, 2, 1, 0):
            first = 12 - 4*rt
            if ramp and sg < first: continue
            c = "0" if (ramp and sg == first) else vr(vCA + 4*rt, 4)
            s(f"v_mfma_f32_16x16x32_bf16 {vr(vCA+4*rt,4)}, {vr(vKB + 4*(sg&3),4)}, {vr(vR + 4*((sg+4+4*rt)&15),4)}, {c}")
            if ld.l: s.l.append(ld.l.pop(0))
        s.ext(ld)
    if not last:
        s(f"v_add_u32 v{vU}, 1024, v{vU}\nv_add_u32 v{vK}, 1056, v{vK}\nv_add_u32 v{vKn}, 1056, v{vKn}")
    return s
def conv_save(s):
    for rt in (3, 2, 1, 0):
        for h in range(2):
            s(f"v_cvt_pk_bf16_f32 v{vCP + 4*(rt>>1) + 2*(rt&1) + h}, v{vCA+4*rt+2*h}, v{vCA+4*rt+2*h+1}")
def conv_fin(s):
    s("s_mov_b32 exec_lo, 0")
    conv_save(s)
    s("s_mov_b32 exec_lo, -1")
    t = None
    for pr in range(2):
        b = vCP + 4*pr
        s(f"v_permlane16_swap_b32 v{b}, v{b+2}")
        s(f"v_permlane16_swap_b32 v{b+1}, v{b+3}")
        t = s(f"buffer_store_dwordx4 {vr(b,4)}, v{vYl}, {SRD_WS}, s{sYB} offen offset:{512*pr} sc0 sc1")
    return t
for sg in range(3): conv_load(S, sg)
F = Stream(); w2_next(F, opt['wb0'])
S.ext(weave(conv_block(True), spread(F, 4, 39)))
stamp(S, 'cv_b0')
conv_save(S)
F = Stream()
F.wait(th)
F(f"buffer_store_dword v{vNON}, v{vZ}, {SRD_WS}, s{sHFL} offen sc0 sc1")
w2_next(F, opt['wb1'])
F(f"s_mul_i32 s11, s{sWAVE}, 6144\ns_add_u32 s11, s11, {L_E}")
for i in range(3):
    F(f"s_add_u32 m0, s11, {1024*i}")
    F(f"buffer_load_dwordx4 v{vXD+i}, {SRD_X}, s{sEN1} offen lds")
for i in range(3):
    F(f"s_add_u32 m0, s11, {3072 + 1024*i - 2048*i}")
    F(f"buffer_load_dwordx4 v{vENA}, {SRD_WS}, s{sEN0} offen offset:{2048*i} sc1 lds") if i < 2 else None
F.l.pop()
F(f"s_add_u32 m0, s11, {3072 + 2048}\ns_add_u32 s{sEN0}, s{sEN0}, 4096")
F(f"buffer_load_dwordx4 v{vENA}, {SRD_WS}, s{sEN0} offen sc1 lds")
vH = 108
HF = [(62, vHF)]
assert wn[0] == 60
flag_load(F, HF)
P1 = spread(F, opt['hfl'], 63)
S.ext(weave(conv_block(False), P1))
stamp(S, 'cv_b1')
NH = 33
def hreg(n): return vH + 4 * (n % NH)
def h_load(s, n):
    p, k = divmod(n, 12)
    s(f"s_add_u32 s70, s{sHB+p}, s{sKO+k}")
    s(f"buffer_load_dwordx4 {vr(hreg(n), 4)}, v{vL0}, {SRD_WS}, s70 offen sc1")
HPRE = opt['hpre']
def h_first(tag, first, gap):
    plan = {}
    F = Stream()
    flag_test(F, HF)
    F("s_mov_b64 s[46:47], vcc")
    plan[first] = F
    for n in range(HPRE):
        F = Stream()
        F(f"s_cbranch_vccnz .Lhskip{tag}{n}")
        h_load(F, n)
        F.label(f".Lhskip{tag}{n}")
        plan.setdefault(first + 1 + n * gap, Stream()).ext(F)
    return plan
S(f"s_lshl_b32 s{sYF}, s{sRG}, 7\ns_lshl_b32 s12, s{sWAVE}, 2\ns_add_u32 s{sYF}, s{sYF}, s12\ns_add_u32 s{sYF}, s{sYF}, {FY}\ns_cmp_eq_u32 s{sISX}, 1")
S.save('b2')
S("s_cbranch_scc1 .Lb2x")
S.ext(weave(conv_block(False), h_first('a', opt['hchk'], opt['hgap'])))
S("s_waitcnt lgkmcnt(0)")
S.endpath(keep=None)
S("s_branch .Lb3")
S.label(".Lb2x")
S.restore('b2')
conv_fin(S)
unit_addr(S, sSL1)
for sg in range(3): conv_load(S, sg)
S.ext(weave(conv_block(True), h_first('b', 2, opt['hgapx'])))
S("s_waitcnt lgkmcnt(0)")
S.endpath(keep=None)
S.label(".Lb3")
for n in range(HPRE): S.assume([('v', hreg(n) + r) for r in range(4)])
stamp(S, 'cv_b2')
conv_save(S)
plan = {}
F = Stream()
for dt in range(5):
    F(f"ds_read_b64 {vr(vEX+2*dt,2)}, v{vEA} offset:{32*dt}")
    F(f"ds_read_b64 {vr(EN(2*dt),2)}, v{vEA+1} offset:{3072 + 512*dt}")
spread(F, 4, 40, plan)
HB3 = opt['hb3']
for n in range(HPRE, HPRE + HB3):
    F = Stream()
    F(f"s_cbranch_vccnz .Lhskipc{n}")
    h_load(F, n)
    F.label(f".Lhskipc{n}")
    plan.setdefault(2 + (n - HPRE) * opt['hgap'], Stream()).ext(F)
HPRE += HB3
assert HPRE <= 17
S.ext(weave(conv_block(False, last=True), plan))
ty = conv_fin(S)
S("s_cmp_lg_u64 s[46:47], 0\ns_cbranch_scc1 .Lhs")
S.label(".Lhb")
X = Stream()
for n in range(HPRE): h_load(X, n)
spin(".Lh", HF, post=X)
stamp(S, 'conv')

vG2 = 20
vRW = vL1
S(f"v_add_u32 v{vRW}, s{sW2B}, v{vL0}")
HD = opt['hd']
hn = [HPRE]
def g2_pass(p):
    s = Stream()
    ac = vG2 + 20*(p & 1)
    for k in range(12):
        for dt in range(5):
            c = ("0" if not (p == 3 and opt['fast']) else vr(168 + 4*dt, 4)) if k == 0 else vr(ac + 4*dt, 4)
            s(f"v_mfma_f32_16x16x32_bf16 {vr(ac+4*dt,4)}, {ar((k*5+dt)*4,4)}, {vr(hreg(12*p+k), 4)}, {c}")
            if dt in (0, 2) and hn[0] < 48 and hn[0] <= 12*p + k + HD: h_load(s, hn[0]); hn[0] += 1
    return s
def g2_dump(s, p):
    ac = vG2 + 20*(p & 1)
    for dt in range(5):
        s(f"ds_write_b128 v{vRW}, {vr(ac+4*dt,4)} offset:{p*5120 + dt*1024}")
F = Stream()
F.wait(ty)
F(f"buffer_store_dword v{vNON}, v{vZ}, {SRD_WS}, s{sYF} offen sc0 sc1")
S.ext(weave(g2_pass(0), {opt['ypub']: F}))
stamp(S, 'g2_p0')
F = Stream()
g2_dump(F, 0)
vXD2 = [148 + 2*k for k in range(4)] + [156 + 2*k for k in range(6)]
if not opt['fast']:
    for k in range(10):
        a = 60 + 4*(k & 1)
        F(f"""v_lshlrev_b32 v{a}, 16, v{EN(k)}
v_and_b32 v{a+1}, 0xffff0000, v{EN(k)}
v_lshlrev_b32 v{a+2}, 16, v{vED+k}
v_and_b32 v{a+3}, 0xffff0000, v{vED+k}
v_mul_f32 v{a}, v{a}, v{a+2}
v_mul_f32 v{a+1}, v{a+1}, v{a+3}
v_cvt_pk_bf16_f32 v{EN(k)}, v{a}, v{a+1}""")
YF = [(60, 64, 4)]
F(f"""s_lshl_b32 s11, s{sCB2}, 12
s_add_u32 s11, s11, {FY}
v_and_b32 v2, 31, v0
v_lshl_add_u32 v64, v2, 7, s11""")
S.ext(weave(g2_pass(1), spread(F, 3, 59)))
stamp(S, 'g2_p1')
vB2 = 168; vXf = [188 + 2*k if k < 8 else 92 + 2*(k-8) for k in range(10)]
F = Stream()
g2_dump(F, 1)
F(f"""v_lshrrev_b32 v65, 2, v0
v_lshlrev_b32 v65, 7, v65
v_and_b32 v1, 3, v0
v_lshl_add_u32 v65, v1, 3, v65
s_lshl_b32 s11, s{sOWN}, 5
s_add_u32 s11, s11, {L_Y}
v_add_u32 v65, s11, v65""")
for k in range(10):
    F(f"""v_lshlrev_b32 v{vB2+2*k}, 16, v{vEB+k}
v_and_b32 v{vB2+2*k+1}, 0xffff0000, v{vEB+k}
v_lshlrev_b32 v{vXf[k]}, 16, v{vEX+k}
v_and_b32 v{vXf[k]+1}, 0xffff0000, v{vEX+k}""")
plan = spread(F, 3, 50)
F = Stream(); flag_load(F, YF)
plan.setdefault(opt['yfl'], Stream()).ext(F)
S.ext(weave(g2_pass(2), plan))
stamp(S, 'g2_p2')
assert hn[0] == 48
vY = 68
vS = 204
vYT = 224
F = Stream(); flag_check(F, YF)
F(f"s_mul_i32 s70, s{sWAVE}, 2560\ns_add_u32 s70, s70, {L_Y}")
for i, o in enumerate((0, 1024, 1536)):
    F(f"s_add_u32 m0, s70, {o}")
    tyl = F(f"buffer_load_dwordx4 v{vYG}, {SRD_WS}, s{sYL+i} offen sc1 lds")
plan = {opt['ychk']: F}
F = Stream()
g2_dump(F, 2)
vPA = [66, 67, 1]
for p in range(3):
    F(f"s_sub_u32 s11, s{sWAVE}, {p+1}\ns_and_b32 s11, s11, 3\ns_mul_i32 s11, s11, 15360\ns_add_u32 s11, s11, {L_W}\nv_add_u32 v{vPA[p]}, s11, v{vL0}")
F(f"s_mov_b32 s12, {f32(-LOG2E)}\ns_mov_b32 s13, {f32(-LOG2E)}\ns_mov_b32 s14, 1.0\ns_mov_b32 s15, 1.0")
if opt['fast']:
    for k in range(10):
        a = vS + 2*k
        F(f"""v_lshlrev_b32 v{a}, 16, v{EN(k)}
v_and_b32 v{a+1}, 0xffff0000, v{EN(k)}
v_lshlrev_b32 v2, 16, v{vED+k}
v_and_b32 v3, 0xffff0000, v{vED+k}
v_mul_f32 v{a}, v{a}, v2
v_mul_f32 v{a+1}, v{a+1}, v3""")
spread(F, 3, 58, plan)
S.ext(weave(g2_pass(3), plan))
stamp(S, 'g2')
S("s_waitcnt lgkmcnt(0)")
S("s_barrier")
stamp(S, 'e_bar')
PS = lambda p, dt: 108 + 20*p + 4*dt
for p in range(3):
    for dt in range(5):
        S(f"ds_read_b128 {vr(PS(p, dt), 4)}, v{vPA[p]} offset:{p*5120 + dt*1024}")
ac = vG2 + 20
for p in range(3):
    for k in range(10):
        S(f"v_pk_add_f32 {vp(ac+2*k)}, {vp(ac+2*k)}, {vp(PS(p, k//2) + 2*(k&1))}")
T = lambda k: 108 + 2*k
def stage(fn):
    for k in range(10): fn(k, ac + 2*k, T(k))
def y_in():
    S.wait(tyl)
    S("s_barrier")
    for dt in range(5):
        S(f"ds_read_b64_tr_b16 {vr(vYT+2*dt,2)}, v65 offset:{2048*dt}")
if opt['fast']:
    stage(lambda k, a, t: S(f"v_pk_mul_f32 {vp(t)}, {vp(a)}, s[12:13]"))
    stage(lambda k, a, t: S(f"v_exp_f32 v{t}, v{t}\nv_exp_f32 v{t+1}, v{t+1}"))
    stage(lambda k, a, t: S(f"v_pk_add_f32 {vp(t)}, {vp(t)}, s[14:15]"))
    stage(lambda k, a, t: S(f"v_rcp_f32 v{t}, v{t}\nv_rcp_f32 v{t+1}, v{t+1}"))
    y_in()
    stage(lambda k, a, t: S(f"v_pk_mul_f32 {vp(a)}, {vp(a)}, {vp(t)}"))
    stage(lambda k, a, t: S(f"v_dot2_f32_bf16 v{vS+2*k}, v{vYT+k}, s72, v{vS+2*k}\nv_dot2_f32_bf16 v{vS+2*k+1}, v{vYT+k}, s73, v{vS+2*k+1}"))
    stage(lambda k, a, t: S(f"v_pk_fma_f32 {vp(a)}, {vp(a)}, {vp(vS+2*k)}, {vp(vXf[k])}"))
else:
    stage(lambda k, a, t: S(f"v_cvt_pk_bf16_f32 v{t}, v{a}, v{a+1}"))
    stage(lambda k, a, t: S(f"v_dot2_f32_bf16 v{a}, v{t}, s72, v{vB2+2*k}\nv_dot2_f32_bf16 v{a+1}, v{t}, s73, v{vB2+2*k+1}"))
    stage(lambda k, a, t: S(f"v_cvt_pk_bf16_f32 v{t}, v{a}, v{a+1}"))
    stage(lambda k, a, t: S(f"v_lshlrev_b32 v{a}, 16, v{t}\nv_and_b32 v{a+1}, 0xffff0000, v{t}\nv_pk_mul_f32 {vp(t)}, {vp(a)}, s[12:13]"))
    stage(lambda k, a, t: S(f"v_exp_f32 v{t}, v{t}\nv_exp_f32 v{t+1}, v{t+1}"))
    stage(lambda k, a, t: S(f"v_pk_add_f32 {vp(t)}, {vp(t)}, s[14:15]"))
    stage(lambda k, a, t: S(f"v_rcp_f32 v{t}, v{t}\nv_rcp_f32 v{t+1}, v{t+1}"))
    y_in()
    stage(lambda k, a, t: S(f"v_pk_mul_f32 {vp(a)}, {vp(a)}, {vp(t)}"))
    stage(lambda k, a, t: S(f"v_cvt_pk_bf16_f32 v{t}, v{a}, v{a+1}\nv_lshlrev_b32 v{a}, 16, v{t}\nv_and_b32 v{a+1}, 0xffff0000, v{t}"))
    stage(lambda k, a, t: S(f"v_lshlrev_b32 v{vS+2*k}, 16, v{vYT+k}\nv_and_b32 v{vS+2*k+1}, 0xffff0000, v{vYT+k}\nv_dot2_f32_bf16 v{vS+2*k}, v{EN(k)}, s72, v{vS+2*k}\nv_dot2_f32_bf16 v{vS+2*k+1}, v{EN(k)}, s73, v{vS+2*k+1}"))
    stage(lambda k, a, t: S(f"v_cvt_pk_bf16_f32 v{t}, v{vS+2*k}, v{vS+2*k+1}\nv_lshlrev_b32 v{vS+2*k}, 16, v{t}\nv_and_b32 v{vS+2*k+1}, 0xffff0000, v{t}\nv_pk_mul_f32 {vp(a)}, {vp(a)}, {vp(vS+2*k)}\nv_cvt_pk_bf16_f32 v{t}, v{a}, v{a+1}"))
    stage(lambda k, a, t: S(f"v_dot2_f32_bf16 v{a}, v{t}, s72, v{vXf[k]}\nv_dot2_f32_bf16 v{a+1}, v{t}, s73, v{vXf[k]+1}"))
for k in range(10):
    a = ac + 2*k
    S(f"v_cvt_pk_bf16_f32 v{vEX+k}, v{a}, v{a+1}")
    if k & 1:
        S(f"buffer_store_dwordx2 {vr(vEX+k-1,2)}, v{vOO}, {SRD_OUT}, 0 offen offset:{32*(k//2)}")
stamp(S, 'end')
if opt['stamps']:
    S(f"s_memrealtime s[68:69]\ns_waitcnt lgkmcnt(0)\nv_writelane_b32 v{vST}, s68, 31")
    S(f"s_lshl_b32 s11, s{sWG}, 2\ns_add_u32 s11, s11, s{sWAVE}\ns_lshl_b32 s11, s11, 7\ns_add_u32 s11, s11, {STAMP}\nv_lshlrev_b32 v1, 2, v0\ns_mov_b32 exec_hi, 0")
    S(f"buffer_store_dword v{vST}, v1, {SRD_WS}, s11 offen")
S.label(".Lend")
S("s_endpgm")

body = finalize(S) + finalize(COLD) + ["    s_endpgm"]
H2 = f""".amdgcn_target "amdgcn-amd-amdhsa--gfx950"
.text
.globl {NAME}_kernel
.p2align 8
.type {NAME}_kernel,@function
{NAME}_kernel:"""
body, nbytes, nfix = align_pass(body, H2, minrun=5 if opt['align'] else 100000)
sys.stderr.write(f"code bytes {nbytes}, alignment fixes {nfix}\n")
hdr = open('cdna_kernels/' + NAME + '.s.ref').read().split('\n')
out = []
for l in hdr:
    if l.startswith('; @launch'): out.append(f"; @launch grid=(256,1,1) block=(256,1,1) lds={LDS_BYTES}"); break
    out.append(l)
out.append(H2)
out += body
kb = opt['code_kb']
assert nbytes <= kb * 1024
out.append(f""".fill ({kb*1024 + 2304} - (. - {NAME}_kernel)) / 4, 4, 0xbf800000
.section .rodata,"a"
.p2align 6
.amdhsa_kernel {NAME}_kernel
  .amdhsa_next_free_vgpr 512
  .amdhsa_next_free_sgpr 102
  .amdhsa_accum_offset 256
  .amdhsa_group_segment_fixed_size 0
  .amdhsa_kernarg_size 120
  .amdhsa_user_sgpr_count 2
  .amdhsa_user_sgpr_kernarg_segment_ptr 1
  .amdhsa_system_sgpr_workgroup_id_x 1
.end_amdhsa_kernel""")
if opt['stamps']: out.insert(0, "; stamps: " + ",".join(stamp_names))
print('\n'.join(out))
```

```python
import re

REG_RE = re.compile(r'^(-|\|)?(abs\()?([vas])(\d+|\[(\d+):(\d+)\])\)?\|?$')

def parse_regs(tok):
    tok = tok.strip()
    if tok in ('vcc', 'exec', 'm0', 'scc'):
        return [tok]
    if tok in ('vcc_lo', 'vcc_hi'): return ['vcc']
    if tok in ('exec_lo', 'exec_hi'): return ['exec']
    m = REG_RE.match(tok)
    if not m: return []
    k = m.group(3)
    if m.group(5) is not None:
        return [(k, i) for i in range(int(m.group(5)), int(m.group(6)) + 1)]
    return [(k, int(m.group(4)))]

TRANS = ('v_exp_f32', 'v_log_f32', 'v_rcp_f32', 'v_rsq_f32', 'v_sqrt_f32', 'v_sin_f32', 'v_cos_f32')

class Ins:
    __slots__ = ('maybe', 'text', 'mn', 'kind', 'dst', 'src', 'tok', 'need', 'ops', 'srcC', 'srcAB', 'passes', 'dpp', 'wide', 'data', 'ldsdma', 'cost')
    def __init__(self, text):
        self.text = text
        self.maybe = False
        self.tok = None; self.need = []
        self.dst = []; self.src = []; self.srcC = []; self.srcAB = []; self.passes = 0
        self.dpp = False; self.wide = False; self.data = []; self.ldsdma = False
        t = text.split(';')[0].strip()
        if t.endswith(':'):
            self.kind = 'label'; self.mn = t; return
        parts = t.split(None, 1)
        mn = parts[0]; self.mn = mn
        rest = parts[1] if len(parts) > 1 else ''
        ops = []; depth = 0; cur = ''
        for ch in rest:
            if ch in '[(': depth += 1
            if ch in '])': depth -= 1
            if ch == ',' and depth == 0:
                ops.append(cur.strip()); cur = ''
            else: cur += ch
        if cur.strip(): ops.append(cur.strip())
        mods = ''
        if ops:
            sp = ops[-1].split(None, 1)
            ops[-1] = sp[0]
            if len(sp) > 1: mods = sp[1]
        self.ops = ops
        R = [parse_regs(o) for o in ops]
        flat = lambda L: [r for x in L for r in x]
        if mn.startswith('v_mfma'):
            self.kind = 'mfma'
            self.dst = R[0]; self.srcAB = R[1] + R[2]; self.srcC = R[3]; self.src = self.srcAB + self.srcC
            self.passes = 8 if '32x32x16' in mn else 4
            assert ('32x32x16' in mn) or ('16x16x32' in mn)
        elif mn.startswith('v_'):
            self.kind = 'trans' if mn.replace('_e32', '').replace('_e64', '') in TRANS else 'valu'
            if mn.startswith('v_cmp'):
                self.dst = R[0]; self.src = flat(R[1:])
                if mn.startswith('v_cmpx'): self.dst = self.dst + ['exec']
            elif mn.startswith('v_permlane') and 'swap' in mn:
                self.dst = R[0] + R[1]; self.src = R[0] + R[1]
            elif '_co_' in mn:
                self.dst = R[0] + R[1]; self.src = flat(R[2:])
            elif mn == 'v_nop':
                pass
            else:
                self.dst = R[0]; self.src = flat(R[1:])
                if mn.startswith(('v_fmac', 'v_dot2c', 'v_writelane', 'v_pk_fmac')): self.src = self.src + R[0]
                if mn.startswith('v_cndmask') and len(ops) == 3: self.src = self.src + ['vcc']
            if 'dpp' in mn or 'row_' in mods or 'quad_perm' in mods or 'wave_' in mods:
                self.dpp = True
                self.src = self.src + R[0]
            if 'sdwa' in mn: self.src = self.src + R[0]
        elif mn.startswith('ds_'):
            self.kind = 'ds'
            if mn.startswith(('ds_read', 'ds_bpermute', 'ds_permute', 'ds_swizzle')) or '_rtn' in mn:
                self.dst = R[0]; self.src = flat(R[1:])
            else:
                self.src = flat(R)
            if 'addtid' in mn: self.src = self.src + ['m0']; self.ldsdma = True
        elif mn.startswith(('buffer_', 'global_')):
            self.kind = 'vmem'
            lds = re.search(r'\blds\b', mods) is not None or '_lds_' in mn
            if lds:
                self.ldsdma = True; self.src = flat(R) + ['m0']
            elif '_load' in mn:
                self.dst = R[0]; self.src = flat(R[1:])
                if 'd16' in mn: self.src = self.src + R[0]
            elif mn in ('buffer_inv', 'buffer_wbl2'):
                pass
            else:
                self.src = flat(R)
                if mn.startswith('buffer_'): self.data = R[0]
                else: self.data = R[1]
                self.wide = ('x4' in mn) or ('x3' in mn)
                if 'atomic' in mn and re.search(r'\bsc0\b', mods): self.dst = self.data
        elif mn.startswith(('s_load', 's_buffer_load', 's_memtime', 's_memrealtime')):
            self.kind = 'smem'; self.dst = R[0]; self.src = flat(R[1:])
        elif mn.startswith(('s_cbranch', 's_branch', 's_setpc', 's_swappc', 's_endpgm')):
            self.kind = 'branch'; self.src = flat(R)
        elif mn in ('s_waitcnt', 's_nop', 's_barrier', 's_sleep', 's_setprio'):
            self.kind = 'other'
        elif mn.startswith('s_'):
            self.kind = 'salu'
            if mn.startswith(('s_cmp', 's_bitcmp')):
                self.src = flat(R)
            else:
                self.dst = R[0]; self.src = flat(R[1:])
                if 'saveexec' in mn: self.dst = self.dst + ['exec']
        else:
            raise ValueError("unknown instr: " + text)

class Tok:
    def __init__(self, cls): self.cls = cls; self.done = False

class Stream:
    def __init__(self): self.l = []
    def __call__(self, text, need=None, tok=False):
        for line in text.split('\n'):
            line = line.strip()
            if not line or line.startswith(';'): continue
            i = Ins(line)
            if need: i.need = list(need) if isinstance(need, (list, tuple)) else [need]; need = None
            if i.kind in ('vmem', 'ds'):
                i.tok = Tok('vm' if i.kind == 'vmem' else 'lgkm')
            self.l.append(i)
        return self.l[-1].tok
    def junk(self, text):
        t = self(text); self.l[-1].dst = []; return t
    def wait(self, *toks):
        i = Ins('s_nop 0'); i.kind = 'waitonly'; i.need = [t for t in toks if t is not None]
        self.l.append(i)
    def ext(self, other):
        self.l.extend(other.l if isinstance(other, Stream) else other)
    def label(self, name): self(name + ':')
    def pseudo(self, kind, name=None):
        i = Ins('s_nop 0'); i.kind = kind; i.text = name; self.l.append(i)
    def save(self, name): self.pseudo('save', name)
    def restore(self, name): self.pseudo('restore', name)
    def assume(self, regs):
        i = Ins('s_nop 0'); i.kind = 'assume'; i.dst = list(regs); i.tok = Tok('vm'); self.l.append(i); return i.tok
    def endpath(self, keep=()):
        self.pseudo('endpath' if keep is not None else 'forget'); self.l[-1].dst = list(keep or ())
    def endpath_old(self): self.pseudo('endpath')

def interleave(main, fillers, per_gap, start=0, is_anchor=lambda i: i.kind == 'mfma', flush=True):
    out = Stream(); f = list(fillers.l); n = 0; acc = 0.0
    for ins in main.l:
        out.l.append(ins)
        if is_anchor(ins):
            if n >= start:
                acc += per_gap
                while acc >= 1.0 and f:
                    x = f.pop(0); out.l.append(x)
                    if x.kind != 'waitonly': acc -= 1.0
                if not f: acc = 0.0
            n += 1
    if flush: out.l.extend(f); f = []
    rest = Stream(); rest.l = f
    return (out, rest) if not flush else out

def sprinkle(main, groups, every, start=0):
    out = Stream(); g = list(groups); n = 0; nxt = start + every
    for ins in main.l:
        out.l.append(ins)
        if ins.kind in ('waitonly', 'label', 'save', 'restore', 'endpath', 'assume', 'forget'): continue
        n += 1
        if n >= nxt and g:
            out.ext(g.pop(0)); nxt += every
    for x in g: out.ext(x)
    return out

def weave(main, plan, is_anchor=lambda i: i.kind == 'mfma'):
    out = Stream(); n = 0; used = set()
    for ins in main.l:
        out.l.append(ins)
        if is_anchor(ins):
            if n in plan: out.ext(plan[n]); used.add(n)
            n += 1
    for k in sorted(plan):
        if k not in used: out.ext(plan[k])
    return out

def spread(fill, first, last, plan=None):
    plan = {} if plan is None else plan
    L = list(fill.l); real = [i for i in L if i.kind != 'waitonly']
    n = last - first + 1; tot = len(real); k = 0
    for ins in L:
        a = first + min(n - 1, (k * n) // max(tot, 1))
        plan.setdefault(a, Stream()).l.append(ins)
        if ins.kind != 'waitonly': k += 1
    return plan

def finalize(stream, verbose=False):
    out = []
    q = {'vm': [], 'lgkm': []}
    saved = {}; lost = set(); issued = set()
    def emit_wait(vm=None, lg=None):
        parts = []
        if vm is not None: parts.append(f'vmcnt({min(vm,63)})')
        if lg is not None: parts.append(f'lgkmcnt({min(lg,15)})')
        out.append(Ins('s_waitcnt ' + ' '.join(parts)))
    def retire(cls, n):
        L = q[cls]
        while len(L) > n:
            L.pop(0)
    for ins in stream.l:
        if ins.kind == 'label':
            out.append(ins); continue
        if ins.kind == 'forget':
            for cls in q:
                for x in q[cls]:
                    if x[0] is not None: lost.add(id(x[0]))
                q[cls][:] = []
            continue
        if ins.kind == 'assume':
            q['vm'].append((ins.tok, set(ins.dst), False)); issued.add(id(ins.tok)); continue
        if ins.kind == 'save':
            saved[ins.text] = {c: list(q[c]) for c in q}; continue
        if ins.kind == 'restore':
            for c in q: q[c][:] = list(saved[ins.text][c])
            continue
        if ins.kind == 'endpath':
            for cls in q:
                pend = [x for x in q[cls] if x[1] - set(ins.dst)]
                if ins.dst and cls == 'vm': assert q[cls][-1][1] == set(ins.dst), "kept load must be the youngest"
                if pend:
                    raise RuntimeError(f"pending loads at endpath: {[(sorted(map(str,x[1])))[:4] for x in pend]}")
                for x in q[cls]:
                    if x[0] is not None: lost.add(id(x[0]))
                q[cls][:] = []
            continue
        if ins.mn == 's_waitcnt' and ins.kind == 'other':
            m = re.search(r'vmcnt\((\d+)\)', ins.text)
            if m: retire('vm', int(m.group(1)))
            m = re.search(r'lgkmcnt\((\d+)\)', ins.text)
            if m: retire('lgkm', int(m.group(1)))
            out.append(ins); continue
        need = {'vm': None, 'lgkm': None}
        touched = set(ins.src) | set(ins.dst)
        for cls in q:
            L = q[cls]
            idx = -1
            for k, (tok, dst, sm) in enumerate(L):
                if (dst & touched) or (tok is not None and tok in ins.need):
                    idx = k
            if idx >= 0:
                n = len(L) - 1 - idx
                if cls == 'lgkm' and any(x[2] for x in L): n = 0
                need[cls] = n
        for t in ins.need:
            if id(t) not in issued or (id(t) in lost and not any(t is x[0] for x in q[t.cls])):
                raise RuntimeError("token not in flight (issued later or lost): " + ins.text)
        if need['vm'] is not None or need['lgkm'] is not None:
            emit_wait(need['vm'], need['lgkm'])
            if need['vm'] is not None: retire('vm', min(need['vm'], 63))
            if need['lgkm'] is not None: retire('lgkm', min(need['lgkm'], 15))
        if ins.kind == 'waitonly': continue
        if ins.kind == 'vmem' and len(q['vm']) >= 58:
            emit_wait(50, None); retire('vm', 50)
        out.append(ins)
        if ins.tok is not None: issued.add(id(ins.tok))
        if ins.kind == 'vmem':
            q['vm'].append((ins.tok, set(ins.dst), False))
            if len(q['vm']) > 63: raise RuntimeError("more than 63 vmem outstanding")
        elif ins.kind == 'ds': q['lgkm'].append((ins.tok, set(ins.dst), False))
        elif ins.kind == 'smem': q['lgkm'].append((None, set(ins.dst), True))
    for n, ins in enumerate(out):
        if ins.kind == 'branch' and ins.mn.startswith('s_cbranch'):
            tgt = ins.ops[0] + ':'
            for m in range(n + 1, min(n + 80, len(out))):
                if out[m].kind == 'label' and out[m].mn == tgt:
                    for x in out[n+1:m]: x.maybe = True
                    break
    res = []
    nnop = 0
    def states(i):
        if i.kind == 'label': return 0
        if i.mn == 's_nop': return int(i.ops[0], 0) + 1
        return 1
    isv = lambda r: isinstance(r, tuple) and r[0] in 'va'
    iss = lambda r: (isinstance(r, tuple) and r[0] == 's') or r == 'vcc'
    for ins in out:
        req = 0
        if ins.kind not in ('label',):
            dist = 0
            S = set(ins.src); D = set(ins.dst)
            for p in reversed(res):
                if dist >= 20: break
                if p.kind == 'label':
                    continue
                need = 0
                PD = set(p.dst)
                pv = p.kind in ('valu', 'trans')
                cv = ins.kind in ('valu', 'trans')
                if pv and ins.kind == 'mfma' and (PD & S): need = max(need, 2)
                if pv and 'exec' in PD and ins.kind == 'mfma': need = max(need, 4)
                if p.kind == 'mfma':
                    big = {4: 8, 8: 12}[p.passes]
                    if ins.kind == 'mfma':
                        if PD & set(ins.srcAB): need = max(need, big)
                        if PD & set(ins.srcC):
                            if list(p.dst) == list(ins.srcC) and p.passes == ins.passes: pass
                            else: need = max(need, big - 2)
                        elif PD & D: need = max(need, big - 2)
                    elif ins.kind in ('valu', 'trans', 'ds', 'vmem'):
                        if PD & (S | D): need = max(need, big)
                        if (set(p.srcC) & D): need = max(need, {4: 3, 8: 7}[p.passes])
                if p.kind == 'trans' and cv and (PD & S): need = max(need, 1)
                if p.mn.startswith('v_dot') and (PD & (S | D)) and not (p.mn == ins.mn and p.mn.startswith('v_dot2c') and PD == D and not (PD & set(r for o in ins.ops[1:] for r in parse_regs(o)))): need = max(need, 3)
                if pv and ins.dpp and any(isv(r) for r in PD & S): need = max(need, 2)
                if pv and 'exec' in PD and ins.dpp: need = max(need, 5)
                if pv and ins.mn.startswith('v_permlane') and (PD & S): need = max(need, 2)
                if pv and ins.mn.startswith(('v_readlane', 'v_readfirstlane')) and any(isv(r) for r in PD & S): need = max(need, 1)
                if pv and 'exec' in PD and ins.mn.startswith(('v_readlane', 'v_readfirstlane', 'v_writelane', 'v_permlane')): need = max(need, 4)
                if pv and any(iss(r) for r in PD & S):
                    if cv: need = max(need, 4 if ins.mn.startswith(('v_readlane', 'v_writelane')) else 2)
                    if ins.kind == 'vmem': need = max(need, 5)
                    if ins.kind in ('salu', 'branch'): need = max(need, 1)
                if pv and 'vcc' in PD and ins.mn.startswith('s_cbranch_vcc'): need = max(need, 1)
                if p.kind == 'salu' and 'm0' in PD and ins.ldsdma: need = max(need, 1)
                if p.kind == 'vmem' and p.wide and (set(p.data) & D): need = max(need, 2)
                if pv and ('sdwa' in p.mn or 'op_sel' in p.text) and not p.mn.startswith('v_pk') and cv and (PD & (S | D)): need = max(need, 1)
                if need - dist > req: req = need - dist
                if not (p.maybe and not ins.maybe): dist += states(p)
        while req > 0:
            k = min(req, 16)
            res.append(Ins(f's_nop {k-1}')); req -= k; nnop += 1
        res.append(ins)
    if verbose: print(f"; finalize: {len(res)} instrs, {nnop} nops inserted")
    return [('' if i.kind == 'label' else '    ') + i.text for i in res]

import subprocess, tempfile, os
def align_pass(lines, head, minrun=5):
    src = head + '\n' + '\n'.join(lines) + '\n'
    with tempfile.TemporaryDirectory() as d:
        open(d + '/a.s', 'w').write(src)
        r = subprocess.run(['clang', '-x', 'assembler', '-target', 'amdgcn-amd-amdhsa', '-mcpu=gfx950', '-c', d + '/a.s', '-o', d + '/a.o'], capture_output=True, text=True)
        assert r.returncode == 0, r.stderr
        dis = subprocess.run(['llvm-objdump', '-d', '--mcpu=gfx950', d + '/a.o'], capture_output=True, text=True).stdout
    sizes = []
    for l in dis.splitlines():
        m = re.search(r'// [0-9A-F]{12}: ((?:[0-9A-F]{8} ?)+)', l)
        if m: sizes.append(4 * len(m.group(1).split()))
    idx = [i for i, l in enumerate(lines) if not l.strip().endswith(':')]
    assert len(idx) == len(sizes), (len(idx), len(sizes))
    size = dict(zip(idx, sizes))
    out = []; off = 0; prev = None; nfix = [0, 0]
    for pos, i in enumerate(range(len(lines))):
        if i not in size:
            out.append(lines[i]); prev = None; continue
        if size[i] == 8 and off % 8 == 4:
            run = 0; j = i
            while j < len(lines) and (j not in size or size[j] == 8):
                if j in size: run += 1
                j += 1
            if run >= minrun:
                mn = out[prev].split()[0] if prev is not None else ''
                if prev is not None and mn.startswith('v_') and psize == 4 and not mn.endswith(('_e64', '_dpp', '_sdwa')) and not mn.startswith(('v_readfirstlane', 'v_permlane', 'v_nop', 'v_accvgpr')):
                    out[prev] = out[prev].replace(mn, mn + '_e64', 1); nfix[0] += 1
                else:
                    out.append('    s_nop 0'); nfix[1] += 1
                off += 4
        out.append(lines[i]); prev = len(out) - 1; psize = size[i]; off += size[i]
    return out, off, nfix
```

```python
import sys, math, struct
sys.path.insert(0, 'gen')
from emit import *

NAME = "recurrent_scan__ssm_conv_s4d__dense_activation_squared_relu__prompt"
opt = dict(xev=2, xlead=30, dtlb=1, w3cap=48, stamps=0, spin=2000000, code_kb=35, align=1, b0=8, b2a=2, b2b=2, b2c=4, xf0=3, xf1=5,
           g1pre=8, g1d=10, uw=45, wa0=40, wan=20, wep=9, wb0=14, wb1=17, tpos=1, xpos=0,
           hfl=8, tail10=0, stg=0, hrot=0, wrot=0, xrot=0, hb3=8, fast=0, ypub=50, hchk=8, hgap=6, hgapx=4, hpre=9, hd=12, yfl=55, ychk=20)
for a in sys.argv[1:]:
    k, v = a.split('='); opt[k] = int(v)

def f32(x): return struct.unpack('<I', struct.pack('<f', x))[0]
def vr(b, n=1): return f"v{b}" if n == 1 else f"v[{b}:{b+n-1}]"
def ar(b, n=1): return f"a{b}" if n == 1 else f"a[{b}:{b+n-1}]"
def vp(b): return f"v[{b}:{b+1}]"
def flat(gs):
    s = Stream()
    for g in gs: s.ext(g)
    return s

XNA = 0; XNB = 0x400000; HB = 0x800000; YT = 0x1000000
FX = 0x1500000; FB = FX + 0x8000; FH = FX + 0x10000; FY = FX + 0x40000
W2R = 0x1600000
STAMP = 0x1800000
XAS = 65536; XBS = 16384; HBS = 64; YS = 8192
L_W = 40960
SCR_W = 8704; TROW = 272
KSLOT = SCR_W; OOFF = 4284
L_U = 3 * KSLOT; USLOT = 4352
L_LN = L_U; LNROW = 1344
L_E = L_W + 61440
L_Y = L_E + 4 * 6144
L_P = L_W + 37 * 3072
L_F = L_W - 64
L_V = L_U + 3 * USLOT
LDS_BYTES = 163840
assert L_U + 3 * USLOT <= L_W and L_LN + 8 * LNROW <= L_W
sWG, sWAVE, sRB, sCB, sRB2, sCB2, sCBASE, sPAR, sNONCE = 2, 3, 4, 5, 6, 7, 8, 9, 10
P = lambda k: f"s[{16+2*k}:{17+2*k}]"
pX, pLOGA, pAIM, pCR, pCI, pLOGDT, pDSK, pBX, pW1, pB1, pW2, pB2, pOUT, pDBG, pWS = range(15)
SRD_X, SRD_W1, SRD_W2, SRD_WS, SRD_OUT = "s[48:51]", "s[52:55]", "s[56:59]", "s[60:63]", "s[64:67]"
sXB, sXC, sSCR, sW2B, sROT, sSRC, sRG, sXH = 76, 77, 78, 79, 80, 81, 82, 83
sOWN, sUB, sEN0, sEN1, sHST, sHFL = 84, 85, 86, 87, 88, 89
sHB = 90
sYL = 94
sSL0, sSL1, sISX, sYF2, sJ = 97, 98, 99, 100, 101
sYB, sYF = 74, 75
SPIN_MAX = opt['spin']
JUNK = "a255"
LOG2E = 1.4426950408889634
vU, vK, vKn = 92, 93, 94
vXD, vEA = 95, 98
vW2R, vUl, vKl, vYl, vOO, vUG, vUW = 100, 101, 102, 103, 104, 105, 106
vST = 107
vXF, vW1O, vBD, vB1A, vHS, vENA, vE0, vE1 = 240, 241, 244, 245, 246, 247, 248, 249
vHF, vYG, vL1, vL0, vA0, vA1 = 250, 251, 252, 253, 254, 255

S = Stream()
COLD = Stream()
stamp_names = []
SKIP = set('w3_b0 w3_ln ln_st idle ln k_u0 e_bar ep0 ep1 ep2'.split())
def stamp(s, name):
    if not opt['stamps'] or name in SKIP: return
    if name not in stamp_names: stamp_names.append(name)
    idx = stamp_names.index(name)
    assert 0 < idx < 29
    s(f"s_memtime s[68:69]\ns_waitcnt lgkmcnt(0)\nv_writelane_b32 v{vST}, s68, {idx}")

def bf16_round(s, dst, src):
    s(f"v_cvt_pk_bf16_f32 {dst}, {src}, {src}")
    s(f"v_and_b32 {dst}, 0xffff0000, {dst}")

def flag_load(s, loads, nonce=None):
    for vd, vo, *n in loads:
        s(f"buffer_load_dword{'x4' if n else ''} {vr(vd, 4 if n else 1)}, v{vo}, {SRD_WS}, 0 offen sc0 sc1")
    if nonce: s(f"global_load_dword v{nonce[0]}, v{nonce[1]}, {P(pDBG)} sc0 sc1")
def flag_test(s, loads, nonce=None):
    regs = [vd + k for vd, vo, *n in loads for k in range(4 if n else 1)]
    if nonce: s(f"v_readfirstlane_b32 s{sNONCE}, v{nonce[0]}")
    for r in regs: s(f"v_xor_b32 v{r}, s{sNONCE}, v{r}")
    for r in regs[1:]: s(f"v_or_b32 v{regs[0]}, v{regs[0]}, v{r}")
    if nonce:
        s(f"v_cmp_eq_u32 vcc, 0, v{nonce[0]}")
        s(f"v_cndmask_b32 v{regs[0]}, v{regs[0]}, 1, vcc")
    s(f"v_cmp_ne_u32 vcc, 0, v{regs[0]}")
uid = [0]
def spin(L, loads, nonce=None, pre="", post=None):
    c = COLD
    c.label(f"{L}s")
    c("s_mov_b32 s70, 0")
    if pre: c(pre)
    c.label(f"{L}l")
    flag_load(c, loads, nonce)
    c("s_waitcnt vmcnt(0)")
    flag_test(c, loads, nonce)
    c(f"s_add_u32 s70, s70, 1\ns_cmp_gt_u32 s70, {SPIN_MAX}\ns_cbranch_scc1 {L}x\ns_cbranch_vccz {L}x\ns_sleep 4\ns_branch {L}l")
    c.label(f"{L}x")
    if post: c.ext(post); c("s_waitcnt vmcnt(0)")
    c(f"s_nop 4\ns_branch {L}b")
def flag_check(s, loads):
    uid[0] += 1; L = f".Lc{uid[0]}"
    flag_test(s, loads)
    s(f"s_cbranch_vccnz {L}s")
    s.label(f"{L}b")
    spin(L, loads)

if opt['stamps']:
    S("s_memtime s[70:71]"); stamp_names.append('start')
S(f"s_cmp_ge_u32 s{sWG}, 256")
S("s_cbranch_scc1 .Lend")
S("s_load_dwordx16 s[16:31], s[0:1], 0")
S("s_load_dwordx8 s[32:39], s[0:1], 64")
S("s_load_dwordx4 s[40:43], s[0:1], 96")
S("s_load_dwordx2 s[44:45], s[0:1], 112")
vX = 20; vRAW = 120
S(f"""s_getpc_b64 s[72:73]
s_and_b32 s11, s{sWG}, 7
s_lshr_b32 s{sJ}, s{sWG}, 3
s_lshl_b32 s{sRG}, s11, 5
s_add_u32 s{sRG}, s{sRG}, s{sJ}
v_lshrrev_b32 v4, 4, v0
v_lshl_add_u32 v2, s{sRG}, 3, v4
v_mul_u32_u24 v2, 1280, v2
v_and_b32 v7, 15, v0
v_lshl_add_u32 v2, v7, 4, v2
v_lshrrev_b32 v3, 6, v0
v_and_b32 v0, 63, v0
v_readfirstlane_b32 s{sWAVE}, v3
s_and_b32 s{sPAR}, s{sJ}, 1
s_lshl_b32 s{sCBASE}, s11, 4
s_lshr_b32 s15, s{sJ}, 1
s_add_u32 s{sCBASE}, s{sCBASE}, s15
s_mul_i32 s{sCBASE}, s{sCBASE}, 5
s_lshl_b32 s15, s{sPAR}, 1
s_add_u32 s{sCBASE}, s{sCBASE}, s15
s_min_u32 s12, s{sWAVE}, 2
s_add_u32 s12, s12, s{sCBASE}
s_mul_i32 s15, s12, 384
s_lshl_b32 s12, s12, 1
s_and_b32 s13, s12, -4
s_lshl_b32 s46, s12, 3
v_mul_u32_u24 v6, 6, v0
v_and_b32 v6, -4, v6
v_add_u32 v6, s15, v6
v_mov_b32 v10, {L_F}
v_mov_b32 v12, 0
v_mov_b32 v13, 0
ds_write_b64 v10, v[12:13]
s_cmp_ge_u32 s{sWAVE}, 2
s_waitcnt lgkmcnt(0)
s_cbranch_scc1 .Lnox""")
for j in range(5):
    S(f"global_load_dwordx4 {vr(vX+4*j,4)}, v2, {P(pX)} offset:{256*j}")
S.label(".Lnox")
if opt['stamps']:
    S(f"v_mov_b32 v{vST}, 0\nv_writelane_b32 v{vST}, s70, 0\ns_memrealtime s[68:69]\ns_waitcnt lgkmcnt(0)\nv_writelane_b32 v{vST}, s68, 30")
S(f"s_load_dword s47, {P(pLOGDT)}, s13")
S("s_barrier")
S(f"s_cmp_eq_u32 s{sWAVE}, 3\ns_cbranch_scc1 .Lnopar")
for k, p in enumerate((pLOGA, pAIM, pCR, pCI)):
    S(f"global_load_dwordx2 {vr(vRAW+2*k,2)}, v6, {P(p)}")
S.label(".Lnopar")
def srd(name, p, nbytes):
    b = int(name[2:name.index(':')])
    S(f"s_mov_b32 s{b}, s{16+2*p}\ns_mov_b32 s{b+1}, s{17+2*p}\ns_mov_b32 s{b+2}, {nbytes}\ns_mov_b32 s{b+3}, 0x20000")
S(f"""v_min_u32 v10, 2, v0
v_mul_u32_u24 v10, 10, v10
v_min_u32 v11, 1, v0
v_lshlrev_b32 v11, 1, v11
v_cmp_lt_u32 vcc, 1, v0
s_lshr_b32 s12, s{sRG}, 7
v_add_u32 v11, s12, v11
v_cndmask_b32 v10, v11, 10, vcc
v_cmp_lt_u32 vcc, 2, v0
v_cndmask_b32 v10, v10, 11, vcc
v_lshlrev_b32 v10, 21, v10
v_add_u32 v10, 0x1fff80, v10
v_mov_b32 v12, 0x80
s_mul_i32 s12, s{sJ}, {opt['code_kb'] * 32}
v_lshl_add_u32 v1, v0, 5, s12
s_cmp_eq_u32 s{sWAVE}, 1
s_cbranch_scc1 .Ltlb1
s_cmp_eq_u32 s{sWAVE}, 2
s_cbranch_scc1 .Ltlb2
s_cmp_eq_u32 s{sWAVE}, 3
s_cbranch_scc1 .Ltlb3""")
S.junk(f"global_load_dword {JUNK}, v1, s[72:73]"); S.l[-1].kind = 'other'
S("s_branch .Ltlbd")
S.label(".Ltlb1")
if opt['dtlb']:
    S(f"""s_lshl_b32 s12, s{sJ}, 21
s_add_u32 s12, s12, 0x1fff80
s_mov_b64 s[68:69], {P(pWS)}""")
    for n, (p_, off) in enumerate(((pB1, 0x80), (pX, 0), (pX, 0x200000), (pB2, 0x80), (pDSK, 0x80), (pOUT, 0), (pOUT, 0x200000))):
        S(f"s_cmp_eq_u32 s{sJ}, {12+n}\ns_cselect_b64 s[68:69], {P(p_)}, s[68:69]\ns_cselect_b32 s12, {off}, s12")
    S(f"v_mov_b32 v12, s12\ns_cmp_ge_u32 s{sJ}, 19\ns_cbranch_scc1 .Ltlbd")
    S.junk(f"global_load_dword {JUNK}, v12, s[68:69]"); S.l[-1].kind = 'other'
S("s_branch .Ltlbd")
S.label(".Ltlb3")
S.junk(f"global_load_dword {JUNK}, v10, {P(pWS)}"); S.l[-1].kind = 'other'
S("s_branch .Ltlbd")
S.label(".Ltlb2")
S.junk(f"global_load_dword {JUNK}, v12, {P(pDBG)}"); S.l[-1].kind = 'other'
S(f"""s_cmp_lg_u32 s{sWG}, 0
s_cbranch_scc1 .Ltlbd
s_memrealtime s[68:69]
s_waitcnt lgkmcnt(0)
s_lshl_b32 s68, s68, 1
s_or_b32 s68, s68, 1
v_mov_b32 v1, s68
v_mov_b32 v2, 0
global_store_dword v2, v1, {P(pDBG)} sc0 sc1""")
S.l[-1].kind = 'other'
S.label(".Ltlbd")
srd(SRD_W1, pW1, 640*1536*2)
srd(SRD_W2, pW2, 640*1536*2)
srd(SRD_WS, pWS, 0x10000000)
srd(SRD_X, pX, 2048*640*2)
srd(SRD_OUT, pOUT, 2048*640*2)
S(f"""s_lshr_b32 s13, s11, 1
s_and_b32 s{sXH}, s11, 1
s_lshl_b32 s{sRB}, s13, 2
s_and_b32 s15, s{sJ}, 3
s_add_u32 s{sRB}, s{sRB}, s15
s_lshl_b32 s{sCB}, s{sXH}, 3
s_lshr_b32 s12, s{sJ}, 2
s_add_u32 s{sCB}, s{sCB}, s12
s_lshl_b32 s15, s15, 1
s_mul_i32 s{sROT}, s{sCB}, {opt['xrot']}
s_add_u32 s{sROT}, s15, s{sROT}
s_lshl_b32 s{sRB2}, s13, 3
s_and_b32 s15, s{sJ}, 7
s_add_u32 s{sRB2}, s{sRB2}, s15
s_lshl_b32 s{sCB2}, s{sXH}, 2
s_lshr_b32 s15, s{sJ}, 3
s_add_u32 s{sCB2}, s{sCB2}, s15
s_mov_b32 s{sNONCE}, 0
s_mul_i32 s{sSCR}, s{sWAVE}, {SCR_W}
s_mul_i32 s{sW2B}, s{sWAVE}, 15360
s_add_u32 s{sW2B}, s{sW2B}, {L_W}
s_mul_i32 s{sSRC}, s{sCB}, 192
s_mov_b32 s70, {L_W}
s_and_b32 s12, s{sROT}, 7
s_mul_i32 s71, s12, {5*49152}
s_add_u32 s71, s71, s{sSRC}
s_add_u32 s74, s{sSRC}, {40*49152}""")
def divmod_off(dst, i, magic, div, stride):
    S(f"""v_add_u32 v15, {64*i}, v0
v_mul_u32_u24 v2, {magic}, v15
v_lshrrev_b32 v2, 19, v2
v_mul_u32_u24 v3, {div}, v2
v_sub_u32 v3, v15, v3
v_mul_u32_u24 v2, {stride}, v2
v_lshl_add_u32 v{dst}, v3, 4, v2""")
def w1_slot(s):
    for i in range(3):
        s(f"s_add_u32 m0, s70, {i*1024}")
        s(f"buffer_load_dwordx4 v{vW1O+i}, {SRD_W1}, s71 offen lds")
    s(f"""s_add_u32 s70, s70, 3072
s_add_u32 s71, s71, 49152
s_cmp_eq_u32 s71, s74
s_cselect_b32 s71, s{sSRC}, s71""")
def w1_upto(s, n):
    uid[0] += 1; L = f".Lw1_{uid[0]}"
    s(f"s_cmp_ge_u32 s70, {L_W + 3072*n}\ns_cbranch_scc1 {L}x")
    s.label(L)
    s(f"s_waitcnt vmcnt({opt['w3cap']})"); s.l[-1].mn = 's_waitcnt_raw'
    k = len(s.l)
    w1_slot(s)
    for i in s.l[k:]:
        if i.kind == 'vmem': i.kind = 'other'
    s(f"s_cmp_lt_u32 s70, {L_W + 3072*n}\ns_cbranch_scc1 {L}")
    s.label(L + "x")
def w1_slots(s, n, counted=True):
    if n <= 0: return
    uid[0] += 1; L = f".Lw1_{uid[0]}"
    s(f"s_mov_b32 s75, {n}")
    s.label(L)
    s(f"s_waitcnt vmcnt({opt['w3cap']})"); s.l[-1].mn = 's_waitcnt_raw'
    k = len(s.l)
    w1_slot(s)
    s(f"s_sub_u32 s75, s75, 1\ns_cmp_lg_u32 s75, 0\ns_cbranch_scc1 {L}")
    if counted:
        for _ in range(min(3 * (n - 1), 40)): s.assume([])
    else:
        for i in s.l[k:]:
            if i.kind == 'vmem': i.kind = 'other'
for i in range(3): divmod_off(vW1O + i, i, 0xaaab, 12, 3072)
S(f"""s_nop 0
s_lshl_b32 s11, s{sRB}, 2
s_add_u32 s11, s11, s{sWAVE}
s_mul_i32 s{sXB}, s11, {XAS}
s_lshl_b32 s12, s11, 4
s_add_u32 s12, s12, s{sCB}
s_lshl_b32 s12, s12, 7
s_add_u32 s{sHFL}, s12, {FH}
s_lshl_b32 s12, s11, 9
s_add_u32 s12, s12, {FX}
v_and_b32 v1, 3, v0
v_lshl_add_u32 v{vXF}, v1, 7, s12
s_lshl_b32 s11, s11, 1
s_mul_i32 s11, s11, {HBS}
s_mul_i32 s12, s{sCB}, 3
s_add_u32 s11, s11, s12
s_lshl_b32 s11, s11, 10
s_add_u32 s{sHST}, s11, {HB}
s_mul_i32 s{sOWN}, s{sCB2}, {opt['hrot']}
s_add_u32 s{sOWN}, s{sWAVE}, s{sOWN}
s_and_b32 s{sOWN}, s{sOWN}, 3
s_mul_i32 s11, s{sWAVE}, {64*XBS}
s_lshl_b32 s12, s{sCBASE}, 4
s_add_u32 s11, s11, s12
s_add_u32 s{sUB}, s11, {XNB}
s_lshl_b32 s14, s{sRB2}, 6
s_lshl_b32 s12, s{sOWN}, 4
s_add_u32 s14, s14, s12
s_lshr_b32 s13, s14, 5
s_mul_i32 s13, s13, {XAS//1024}
s_mul_i32 s12, s{sCB2}, 5
s_add_u32 s13, s13, s12
s_lshl_b32 s13, s13, 10
s_and_b32 s12, s14, 31
s_lshl_b32 s12, s12, 4
s_add_u32 s{sEN0}, s13, s12
s_mul_i32 s{sEN1}, s14, 1280
s_mul_i32 s12, s{sCB2}, 160
s_add_u32 s{sEN1}, s{sEN1}, s12
s_mul_i32 s11, s{sCB2}, {80*YS}
s_lshl_b32 s12, s{sRB2}, 7
s_add_u32 s11, s11, s12
s_mul_i32 s12, s{sWAVE}, {20*YS}
s_add_u32 s11, s11, s12
s_add_u32 s{sYL}, s11, {YT}
s_add_u32 s{sYL+1}, s{sYL}, {8*YS}
s_add_u32 s{sYL+2}, s{sYL}, {12*YS}
s_add_u32 s{sSL0}, s{sPAR}, s{sWAVE}
s_cmp_eq_u32 s{sWAVE}, 2
s_cselect_b32 s{sSL0}, s{sPAR}, s{sSL0}
s_cselect_b32 s{sISX}, 1, 0
s_add_u32 s{sSL1}, s{sPAR}, 1
s_lshl_b32 s12, s{sPAR}, 1
s_sub_u32 s12, 2, s12
s_cmp_eq_u32 s{sWAVE}, 3
s_cselect_b32 s{sISX}, s{sPAR}, s{sISX}
s_cselect_b32 s{sSL0}, s12, s{sSL0}
s_cselect_b32 s{sSL1}, 0, s{sSL1}""")
for p in range(4):
    S(f"""s_add_u32 s11, s{sOWN}, {p+1}
s_and_b32 s11, s11, 3
s_lshl_b32 s12, s{sRB2}, 2
s_add_u32 s11, s11, s12
s_mul_i32 s11, s11, {HBS}
s_mul_i32 s12, s{sWAVE}, 12
s_add_u32 s11, s11, s12
s_lshl_b32 s11, s11, 10
s_add_u32 s{sHB+p}, s11, {HB}""")
for i in range(3): divmod_off(vXD + i, i, 0xcccd, 10, 1280)
S(f"""v_and_b32 v5, 31, v0
v_lshrrev_b32 v8, 4, v0
v_lshrrev_b32 v9, 5, v0
v_and_b32 v13, 1, v8
v_and_b32 v1, 3, v0
v_lshrrev_b32 v14, 2, v0
v_lshlrev_b32 v{vL0}, 4, v0
v_add_u32 v{vL1}, 1024, v{vL0}
v_lshlrev_b32 v{vB1A}, 3, v9
v_add_u32 v{vB1A}, {L_V}, v{vB1A}
v_add_u32 v{vOO}, s14, v7
v_mul_u32_u24 v{vOO}, 1280, v{vOO}
s_mul_i32 s12, s{sCB2}, 160
v_lshl_add_u32 v{vBD}, v8, 3, s12
v_add_u32 v{vOO}, v{vOO}, v{vBD}
v_lshlrev_b32 v{vBD}, 3, v8
v_add_u32 v{vBD}, {L_V + 256}, v{vBD}
v_lshrrev_b32 v2, 2, v7
v_lshl_add_u32 v3, v9, 3, v2
v_mul_u32_u24 v{vA0}, 192, v3
v_lshl_add_u32 v{vA0}, v1, 3, v{vA0}
v_lshl_add_u32 v{vA0}, v13, 5, v{vA0}
v_add_u32 v{vA0}, {L_W}, v{vA0}
v_add_u32 v{vA1}, 61440, v{vA0}
v_lshl_add_u32 v3, v13, 2, v2
v_lshl_add_u32 v3, v9, 4, v3
v_lshlrev_b32 v3, 8, v3
v_lshl_add_u32 v3, v1, 3, v3
v_add_u32 v{vW2R}, {L_P}, v3
v_mul_u32_u24 v3, {XBS}, v14
v_lshl_add_u32 v{vUG}, v1, 4, v3
v_mul_u32_u24 v3, {USLOT}, v1
v_lshl_add_u32 v3, v14, 4, v3
s_lshl_b32 s12, s{sWAVE}, 10
s_add_u32 s12, s12, {L_U + 256}
v_add_u32 v{vUW}, s12, v3
v_lshlrev_b32 v2, 4, v7
v_lshl_add_u32 v{vENA}, v8, 9, v2
s_mul_i32 s12, s{sWAVE}, 6144
s_add_u32 s12, s12, {L_E}
v_mul_u32_u24 v3, 160, v7
v_lshl_add_u32 v3, v8, 3, v3
v_add_u32 v{vEA}, s12, v3
v_lshl_add_u32 v3, v9, 8, v2
v_lshl_add_u32 v3, v13, 3, v3
v_add_u32 v{vEA+1}, s12, v3
v_mul_u32_u24 v3, {HBS*1024}, v13
v_add_u32 v3, v3, v2
v_lshl_add_u32 v{vHS}, v9, 8, v3
v_lshl_add_u32 v3, v13, 8, v2
v_lshl_add_u32 v{vYl}, v9, 10, v3
v_add_u32 v3, v7, v8
v_lshlrev_b32 v3, 4, v3
v_add_u32 v{vUl}, {L_U + 16}, v3
v_and_b32 v3, 7, v0
v_sub_u32 v3, 8, v3
v_lshrrev_b32 v3, 1, v3
v_lshl_add_u32 v3, v8, 2, v3
v_lshlrev_b32 v{vKl}, 2, v3
v_and_b32 v2, 1, v0
v_sub_u32 v3, 1, v2
v_mul_u32_u24 v3, {OOFF}, v3
v_add_u32 v{vKl}, v{vKl}, v3
v_bfe_u32 v3, v0, 3, 1
v_sub_u32 v3, 1, v3
v_mul_u32_u24 v3, 1056, v3
v_add_u32 v{vKl}, v{vKl}, v3
v_lshrrev_b32 v3, 3, v0
v_mul_u32_u24 v3, {YS}, v3
v_and_b32 v2, 7, v0
v_lshl_add_u32 v{vYG}, v2, 4, v3
s_lshr_b32 s11, s{sRB2}, 1
s_lshl_b32 s11, s11, 2
s_and_b32 s12, s{sRB2}, 1
s_lshl_b32 s12, s12, 1
s_add_u32 s11, s11, s12
s_lshl_b32 s11, s11, 4
s_lshl_b32 s12, s{sWAVE}, 2
s_add_u32 s11, s11, s12
s_lshl_b32 s11, s11, 7
s_add_u32 s11, s11, {FH}
v_and_b32 v3, 1, v14
v_lshlrev_b32 v3, 11, v3
v_lshl_add_u32 v3, v1, 7, v3
v_add_u32 v{vHF}, s11, v3
v_sub_u32 v2, 31, v5
v_lshl_add_u32 v2, v2, 4, s{sSCR}
v_sub_u32 v3, 1, v9
v_lshl_add_u32 v{vE0}, v3, 9, v2
v_mul_u32_u24 v3, 1056, v3
v_add_u32 v{vE1}, v3, v2
v_mul_u32_u24 v1, {LNROW}, v4
v_lshl_add_u32 v1, v7, 4, v1
v_add_u32 v1, {L_LN}, v1""")
def unit_addr(s, sslot):
    s(f"""s_mul_i32 s12, s{sslot}, {USLOT}
v_add_u32 v{vU}, s12, v{vUl}
s_mul_i32 s12, s{sslot}, {KSLOT}
s_mul_i32 s13, s{sISX}, 2112
s_add_u32 s12, s12, s13
v_add_u32 v{vK}, s12, v{vKl}
v_add_u32 v{vKn}, 1056, v{vK}
s_add_u32 s12, s{sCBASE}, s{sslot}
s_mul_i32 s12, s12, {YS}
s_lshl_b32 s13, s{sISX}, 11
s_sub_u32 s12, s12, s13
s_add_u32 s{sYB}, s12, {YT + 2048}
s_nop 0""")
def xreg(i): return ar(120 + 4 * (i % 30), 4)
def xn_load(s, i):
    if i % 5 == 0:
        s(f"s_add_u32 s{sXC}, s{sROT}, {i//5}\ns_and_b32 s{sXC}, s{sXC}, 7\ns_mul_i32 s{sXC}, s{sXC}, 5120\ns_add_u32 s{sXC}, s{sXC}, s{sXB}")
    k = i % 5
    s(f"buffer_load_dwordx4 {xreg(i)}, v{vL0 if k < 4 else vL1}, {SRD_WS}, s{sXC} offen offset:{1024*min(k,3)} sc1")
G1PRE = opt['g1pre']
XF = [(1, vXF)]; XN = (2, 3)
def xn_try(s, tag):
    flag_test(s, XF, XN)
    s("s_mov_b64 s[46:47], vcc")
    out = []
    for n in range(G1PRE):
        x = Stream(); x(f"s_cbranch_vccnz .Lxs{tag}{n}"); xn_load(x, n); x.label(f".Lxs{tag}{n}"); out.append(x)
    return out

stamp(S, 'idle')
S(f"s_cmp_eq_u32 s{sWAVE}, 3\ns_cbranch_scc1 .Lw3\ns_cmp_eq_u32 s{sWAVE}, 2")
S.save('role')
S("s_cbranch_scc1 .Lkgen")
S("s_waitcnt vmcnt(4)")
vF = 40; NX = 20; vA = 80
for k in range(NX):
    S(f"v_lshlrev_b32 v{vF+2*k}, 16, v{vX+k}")
    S(f"v_and_b32 v{vF+2*k+1}, 0xffff0000, v{vX+k}")
    if k == 3:
        S(f"v_pk_add_f32 {vp(vA)}, {vp(vF)}, {vp(vF+2)}")
        S(f"v_pk_add_f32 {vp(vA+2)}, {vp(vF+4)}, {vp(vF+6)}")
    elif k > 3:
        a = vA + 2 * (k & 1)
        S(f"v_pk_add_f32 {vp(a)}, {vp(a)}, {vp(vF+2*k)}")
stamp(S, 'x_in')
S(f"v_pk_add_f32 {vp(vA)}, {vp(vA)}, {vp(vA+2)}")
S(f"v_add_f32 v{vA}, v{vA}, v{vA+1}")
def rowsum(s, r):
    for sh in (8, 4, 2, 1):
        s(f"v_add_f32_dpp v{r}, v{r}, v{r} row_ror:{sh} row_mask:0xf bank_mask:0xf")
rowsum(S, vA)
S(f"v_mul_f32 v{vA+4}, {f32(-1.0/640)}, v{vA}")
bf16_round(S, f"v{vA}", f"v{vA+4}")
S(f"v_mov_b32 v{vA+1}, v{vA}")
S(f"v_sub_f32 v{vA+4}, v{vA+4}, v{vA}")
for k in range(NX):
    a = vA + 2 + 4 * (k & 1)
    S(f"v_pk_add_f32 {vp(vF+2*k)}, {vp(vF+2*k)}, {vp(vA)}")
    S(f"v_cvt_pk_bf16_f32 v{vX+k}, v{vF+2*k}, v{vF+2*k+1}")
    if k < 2: S(f"v_pk_mul_f32 {vp(a)}, {vp(vF+2*k)}, {vp(vF+2*k)}")
    else: S(f"v_pk_fma_f32 {vp(a)}, {vp(vF+2*k)}, {vp(vF+2*k)}, {vp(a)}")
r_ = vA + 2
S(f"v_pk_add_f32 {vp(r_)}, {vp(r_)}, {vp(vA+6)}")
S(f"v_add_f32 v{r_}, v{r_}, v{r_+1}")
R = Stream(); rowsum(R, r_)
R(f"v_mul_f32 v{vA+4}, v{vA+4}, v{vA+4}\nv_mul_f32 v{r_}, {f32(1.0/640)}, v{r_}\nv_sub_f32 v{r_}, v{r_}, v{vA+4}\nv_max_f32 v{r_}, 0, v{r_}")
bf16_round(R, f"v{r_}", f"v{r_}")
R(f"v_add_f32 v{r_}, {f32(1e-5)}, v{r_}")
bf16_round(R, f"v{r_}", f"v{r_}")
R(f"v_sqrt_f32 v{r_}, v{r_}")
bf16_round(R, f"v{r_}", f"v{r_}")
R(f"v_rcp_f32 v{r_}, v{r_}")
U = []
for k in range(NX):
    g = Stream(); g(f"v_lshlrev_b32 v{vF+2*k}, 16, v{vX+k}\nv_and_b32 v{vF+2*k+1}, 0xffff0000, v{vX+k}"); U.append(g)
S.ext(sprinkle(R, U, 1))
S(f"v_mov_b32 v{r_+1}, v{r_}\ns_lshl_b32 s12, s{sWAVE}, 2\ns_add_u32 s12, s12, {L_F}\nv_mov_b32 v2, s12\nv_mov_b32 v3, 1")
for k in range(NX):
    S(f"v_pk_mul_f32 {vp(vF+2*k)}, {vp(vF+2*k)}, {vp(r_)}")
for k in range(NX):
    S(f"v_cvt_pk_bf16_f32 v{vX+k}, v{vF+2*k}, v{vF+2*k+1}")
for j in range(5):
    S(f"ds_write_b128 v1, {vr(vX+4*j,4)} offset:{256*j}")
S("ds_write_b32 v2, v3")
stamp(S, 'ln')
S("s_branch .Lkgen")
S.label(".Lw3")
S.endpath(keep=None)
w1_slots(S, opt['b0'], False)
S(f"""v_lshrrev_b32 v5, 3, v0
v_and_b32 v6, 7, v0
v_mul_u32_u24 v10, {LNROW}, v6
v_lshl_add_u32 v10, v5, 4, v10
v_add_u32 v10, {L_LN}, v10
v_and_b32 v12, 3, v14
v_mul_u32_u24 v12, {LNROW}, v12
v_and_b32 v4, 3, v0
v_lshl_add_u32 v12, v4, 3, v12
v_lshl_add_u32 v12, v8, 5, v12
v_add_u32 v12, {L_LN}, v12
v_lshlrev_b32 v11, 10, v8
v_and_b32 v5, 1, v5
v_lshl_add_u32 v11, v5, 9, v11
v_lshl_add_u32 v11, v6, 4, v11
v_mul_u32_u24 v6, 1280, v8
v_lshl_add_u32 v6, v7, 4, v6
v_mov_b32 v2, {L_F}
v_mov_b32 v3, 0
s_min_u32 s12, s{sRG}, 239
s_mul_i32 s13, s12, 52429
s_lshr_b32 s13, s13, 18
s_mul_i32 s14, s13, 5
s_sub_u32 s14, s12, s14
s_mul_i32 s15, s13, {32*1280}
s_lshl_b32 s12, s14, 8
s_add_u32 s15, s15, s12
s_mul_i32 s13, s13, 40
s_lshl_b32 s14, s14, 3
s_add_u32 s13, s13, s14
s_lshl_b32 s13, s13, 10
s_add_u32 s14, s13, {W2R}
s_lshr_b32 s12, s{sRG}, 2
s_mul_i32 s12, s12, {XAS}
s_and_b32 s13, s{sRG}, 3
s_lshl_b32 s13, s13, 7
s_add_u32 s12, s12, s13
s_mul_i32 s13, s{sRG}, {XBS}
s_add_u32 s13, s13, {XNB}
s_mov_b32 s11, 0""")
stamp(S, 'w3_b0')
S.label(".Llnw")
S(f"""ds_read_b64 v[16:17], v2
s_waitcnt lgkmcnt(0)
v_and_b32 v16, v16, v17
s_add_u32 s11, s11, 1
v_readfirstlane_b32 s75, v16
s_cmp_gt_u32 s11, {SPIN_MAX*16}
s_cbranch_scc1 .Llnwx
s_cmp_eq_u32 s75, 0
s_cbranch_scc1 .Llnw""")
S.label(".Llnwx")
stamp(S, 'w3_ln')
for j in range(10):
    S(f"ds_read_b128 {vr(20+4*j,4)}, v10 offset:{128*j}")
S(f"global_load_dword v15, v3, {P(pDBG)} sc0 sc1")
for it in range(10):
    S(f"ds_read_b64_tr_b16 {vr(130+4*it,2)}, v12 offset:{128*it}")
    S(f"ds_read_b64_tr_b16 {vr(132+4*it,2)}, v12 offset:{128*it + 4*LNROW}")
for j in range(10):
    tl = S(f"buffer_store_dwordx4 {vr(20+4*j,4)}, v11, {SRD_WS}, s12 offen sc0 sc1")
    if j < 9: S("s_add_u32 s12, s12, 4096")
stamp(S, 'ln_st')
for i in range(8):
    S(f"s_mov_b32 m0, {L_P + 1024*i}")
    tp_ = S(f"buffer_load_dwordx4 v6, {SRD_W2}, s15 offen lds")
    if i < 7: S(f"s_add_u32 s15, s15, {4*1280}")
S(f"""s_mul_i32 s11, s{sCB2}, 160
v_add_u32 v18, s{sSRC}, v{vL0}
v_add_u32 v19, s11, v{vL0}
s_mov_b32 exec_hi, 0
s_mov_b32 exec_lo, 0xfff
s_mov_b32 m0, {L_V}
global_load_lds_dwordx4 v18, {P(pB1)}
s_mov_b32 exec_lo, 0x3ff
s_mov_b32 m0, {L_V + 256}
global_load_lds_dwordx4 v19, {P(pB2)}
s_mov_b32 m0, {L_V + 512}
global_load_lds_dwordx4 v19, {P(pDSK)}
s_mov_b64 exec, -1""")
w1_slots(S, opt['b2a'])
S(f"""v_readfirstlane_b32 s{sNONCE}, v15
v_mul_u32_u24 v1, {USLOT}, v8
v_lshl_add_u32 v1, v7, 4, v1
v_mov_b32 v16, 0
v_mov_b32 v17, 0
v_mov_b32 v18, 0
v_mov_b32 v19, 0
s_mov_b32 exec_hi, 0xffff
s_waitcnt lgkmcnt(0)
ds_write_b128 v1, v[16:19] offset:{L_U}
s_mov_b64 exec, -1""")
S(f"s_cmp_eq_u32 s{sNONCE}, 0\ns_cbranch_scc1 .Lnonce_s")
S.label(".Lnonce_b")
COLD.label(".Lnonce_s")
COLD(f"s_mov_b32 s11, 0")
COLD.label(".Lnonce_l")
COLD(f"global_load_dword v15, v3, {P(pDBG)} sc0 sc1\ns_waitcnt vmcnt(0)\nv_readfirstlane_b32 s{sNONCE}, v15\ns_add_u32 s11, s11, 1\ns_cmp_gt_u32 s11, {SPIN_MAX}\ns_cbranch_scc1 .Lnonce_b\ns_cmp_eq_u32 s{sNONCE}, 0\ns_cbranch_scc1 .Lnonce_l\ns_branch .Lnonce_b")
S(f"""s_lshl_b32 s12, s{sRG}, 7
s_add_u32 s12, s12, {FX}
v_mov_b32 v15, s{sNONCE}""")
S.wait(tl)
S(f"buffer_store_dword v15, v3, {SRD_WS}, s12 offen sc0 sc1")
stamp(S, 'ln_flag')
for it in range(10):
    S(f"buffer_store_dwordx4 {vr(130+4*it,4)}, v{vL0}, {SRD_WS}, s13 offen offset:{1024*(it%4)} sc0 sc1")
    if it % 4 == 3: S("s_add_u32 s13, s13, 4096")
w1_slots(S, opt['b2b'])
S.wait(tp_)
for dt in range(8):
    for r in range(2):
        S(f"ds_read_b64_tr_b16 {vr(180+4*dt+2*r,2)}, v{vW2R} offset:{r*2048 + dt*32}")
S(f"""v_add_u32 v{vW2R}, 4096, v{vL0}
s_lshr_b32 s11, s{sRG}, 2
s_lshl_b32 s11, s11, 7
s_and_b32 s12, s{sRG}, 3
s_lshl_b32 s12, s12, 2
s_add_u32 s11, s11, s12
s_add_u32 s11, s11, {FB}
v_lshlrev_b32 v8, 7, v0
v_add_u32 v8, {FB}, v8""")
for dt in range(8):
    tl = S(f"buffer_store_dwordx4 {vr(180+4*dt,4)}, v{vL0 if dt < 4 else vW2R}, {SRD_WS}, s14 offen offset:{1024*(dt%4)} sc0 sc1")
w1_slots(S, opt['b2c'])
S.wait(tl)
S(f"buffer_store_dword v15, v3, {SRD_WS}, s11 offen sc0 sc1")
stamp(S, 'fb')
w1_slots(S, 40 - opt['b0'] - opt['b2a'] - opt['b2b'] - opt['b2c'] - opt['tail10'])
UF = [(4, 8, 4)]
flag_load(S, UF)
flag_load(S, XF, XN)
w1_slots(S, opt['tail10'])
stamp(S, 'w1_iss')
flag_check(S, UF)
gs = xn_try(S, 'a')
stamp(S, 'xnpoll')
S.ext(flat(gs))
S(f"s_waitcnt vmcnt({G1PRE})"); S.l[-1].mn = 's_waitcnt_raw'
S("s_cmp_eq_u64 s[46:47], 0\ns_cbranch_scc1 .Lk3\ns_waitcnt vmcnt(0)"); S.l[-1].mn = 's_waitcnt_raw'
S("s_branch .Lk3")

S.label(".Lkgen")
S.restore('role')
S("s_waitcnt vmcnt(0) lgkmcnt(0)")
vD = 4; vT = 52
vFs = 120; vPK = 184
vFO = 192
vGOl = [224, 228, 232, 236, 76, 80, 84, 88]
vSR, vONE, vDT = 20, 21, 22
vPE = 108
S(f"""s_mov_b32 m0, s{sSCR}
v_mul_u32_u24 v{vSR}, {TROW}, v5
v_lshl_add_u32 v{vSR}, v9, 4, v{vSR}
v_add_u32 v{vSR}, s{sSCR}, v{vSR}
v_mov_b32 v{vONE}, 0x3f80
s_lshr_b32 s47, s47, s46
s_lshl_b32 s47, s47, 16
v_mov_b32 v{vDT}, {f32(LOG2E)}
v_mul_f32 v{vDT}, s47, v{vDT}
v_exp_f32 v{vDT}, v{vDT}
v_and_b32 v1, 1, v0
v_lshlrev_b32 v1, 4, v1
v_mov_b32 v3, 0""")
bf16_round(S, f"v{vDT}", f"v{vDT}")
for k in range(4):
    d0, d1 = vRAW + 2*k, vRAW + 2*k + 1
    S(f"""v_alignbit_b32 v{d0}, v{d1}, v{d0}, v1
v_lshrrev_b32 v{d1}, v1, v{d1}
v_lshlrev_b32 v{vPE+k}, 16, v{d0}
v_and_b32 v{vPE+4+k}, 0xffff0000, v{d0}
v_lshlrev_b32 v{vPE+8+k}, 16, v{d1}""")
S(f"v_add_f32 v{vDT+1}, v{vDT}, v{vDT}\ns_mov_b32 s15, {f32(1.0 / (2 * math.pi))}")
def cmuls(s, lst):
    for d, x, y in lst:
        assert d != x and d != y
        s(f"v_pk_mul_f32 {vp(d)}, {vp(x)}, {vp(y)} op_sel:[0,0] op_sel_hi:[1,0]")
    for d, x, y in lst:
        s(f"v_pk_fma_f32 {vp(d)}, {vp(x)}, {vp(y)}, {vp(d)} op_sel:[1,1,0] op_sel_hi:[0,1,1] neg_lo:[0,1,0]")
I2PI = 1.0 / (2 * math.pi)
i2pi_hi = struct.unpack('<f', struct.pack('<f', I2PI))[0]
i2pi_lo = I2PI - i2pi_hi
hi0 = [0,1,2,3,4,5,6,7,8, 512,516,520, 1024,1032, 1280,1288]
hi1 = [256,256,258,260,260,260,262,264,264, 768,772,776, 1536,1544, 1792,1800]
rowhi = [(hi0, hi1)[(p >> 2) & 1][4 * (p >> 3) + (p & 3)] for p in range(32)]
def k_mfmas(u):
    out = []
    for s_ in range(8):
        x = Stream()
        c = "0" if (s_ == 0 and u == 0) else vr(vD, 16)
        x(f"v_mfma_f32_32x32x16_bf16 {vr(vD,16)}, {vr(vGOl[s_],4)}, {vr(vFO+4*s_,4)}, {c}")
        out.append(x)
    return out
pkc = [0]
def put(s, items, neg, mf=None):
    regs = []
    if mf: s.ext(mf.pop(0))
    for r, rows in items:
        b = vPK + (pkc[0] & 7); pkc[0] += 1
        s(f"v_cvt_pk_bf16_f32 v{b}, v{r}, {'-' if neg else ''}v{r+1}")
        regs.append((b, rows))
    if mf: s.ext(mf.pop(0))
    for b, rows in regs:
        for p in rows: s(f"ds_write_addtid_b32 v{b} offset:{p*TROW}")
    s.pseudo('slot')
def kgen_unit(u):
    A = Stream(); B = Stream()
    pa, pb, pc, pd = range(vPE + 4*u, vPE + 4*u + 4)
    va, vbh, vbl = vT, vT+1, vT+2
    vW1, vW8, vW256, vW2, vW4, vG0 = vT+4, vT+6, vT+8, vT+10, vT+12, vT+14
    G = lambda k: vFs + 2 * k
    A(f"""v_mul_f32 v{va}, {f32(LOG2E)}, v{pa}
v_mul_f32 v{pb}, v{pb}, v{vDT}
v_exp_f32 v{va}, v{va}
v_mul_f32 v{vbh}, s15, v{pb}
v_cvt_pk_bf16_f32 v{va}, v{va}, v{va}
v_fma_f32 v{vbl}, v{pb}, s15, -v{vbh}
v_and_b32 v{va}, 0xffff0000, v{va}
v_fmac_f32 v{vbl}, {f32(i2pi_lo)}, v{pb}
v_mul_f32 v{va}, v{va}, v{vDT}
v_mul_f32 v{va}, {f32(-LOG2E)}, v{va}""")
    t0 = vT + 16
    m8, a8, m1, a1, m2, a2 = range(t0, t0 + 6)
    A(f"""v_mul_f32 v{a8}, {f32(8.0)}, v{vbh}
v_mul_f32 v{m8}, {f32(8.0)}, v{va}
v_fract_f32 v{a8}, v{a8}
v_exp_f32 v{m8}, v{m8}
v_fmac_f32 v{a8}, {f32(8.0)}, v{vbl}
v_exp_f32 v{m1}, v{va}
v_fract_f32 v{a1}, v{vbh}
v_cos_f32 v{vW8}, v{a8}
v_add_f32 v{a1}, v{a1}, v{vbl}
v_sin_f32 v{vW8+1}, v{a8}
v_mul_f32 v{m2}, {f32(256.0)}, v{va}
v_cos_f32 v{vW1}, v{a1}
v_mul_f32 v{a2}, {f32(256.0)}, v{vbh}
v_sin_f32 v{vW1+1}, v{a1}
v_fract_f32 v{a2}, v{a2}
v_exp_f32 v{m2}, v{m2}
v_fmac_f32 v{a2}, {f32(256.0)}, v{vbl}
v_pk_mul_f32 {vp(vW8)}, {vp(vW8)}, {vp(m8)} op_sel:[0,0] op_sel_hi:[1,0]
v_cos_f32 v{vW256}, v{a2}
v_pk_mul_f32 {vp(vW1)}, {vp(vW1)}, {vp(m1)} op_sel:[0,0] op_sel_hi:[1,0]
v_sin_f32 v{vW256+1}, v{a2}""")
    F = lambda k: vW8 if k == 1 else G(k)
    cmuls(A, [(F(2), F(1), F(1)), (vW2, vW1, vW1)])
    A(f"v_mul_f32 v{vG0}, v{pc}, v{vDT+1}\nv_mul_f32 v{vG0+1}, v{pd}, v{vDT+1}")
    cmuls(A, [(F(3), F(2), F(1)), (F(4), F(2), F(2)), (vW4, vW2, vW2)])
    A(f"v_pk_mul_f32 {vp(vW256)}, {vp(vW256)}, {vp(m2)} op_sel:[0,0] op_sel_hi:[1,0]")
    mf = k_mfmas(u - 1) if u > 0 else None
    for lo in range(5, 32, 8):
        cmuls(A, [(F(k), F(k-4), F(4)) for k in range(lo, min(lo+4, 32))])
        cmuls(A, [(F(k), F(k-4), F(4)) for k in range(lo+4, min(lo+8, 32))])
        if lo == 29: A(f"ds_write_addtid_b32 v{vONE}")
        put(A, [(F(k), [k]) for k in range(lo-4, min(lo+4, 32))], False, mf)
    assert not mf
    A.l.pop()
    for s_ in range(8):
        A(f"ds_read_b128 {vr(vFO+4*s_,4)}, v{vSR} offset:{32*s_}")
    A.pseudo('slot')
    his = sorted(set(hi0 + hi1))
    gi = {h: G(n) for n, h in enumerate(his)}; gi[0] = vG0
    rows = lambda h: [p for p in range(32) if rowhi[p] == h]
    steps = [[(1,0,vW1), (2,0,vW2), (4,0,vW4), (8,0,vW8), (256,0,vW256)],
             [(3,2,vW1), (5,4,vW1), (258,256,vW2), (512,256,vW256)],
             [(6,4,vW2), (260,256,vW4), (264,256,vW8), (768,512,vW256)],
             [(7,6,vW1), (262,260,vW2), (516,512,vW4), (1024,768,vW256)],
             [(520,512,vW8), (772,768,vW4), (776,768,vW8), (1280,1024,vW256)],
             [(1032,1024,vW8), (1288,1280,vW8), (1536,1280,vW256)],
             [(1544,1536,vW8), (1792,1536,vW256)],
             [(1800,1792,vW8)]]
    pend = [0]
    for n, st in enumerate(steps):
        cmuls(B, [(gi[d_], gi[x_], y_) for d_, x_, y_ in st])
        if n in (1, 3, 5):
            k = min(8, len(pend))
            put(B, [(gi[h], rows(h)) for h in pend[:k]], True); pend = pend[k:]
        pend += [d_ for d_, x_, y_ in st]
    assert len(pend) <= 8, pend
    put(B, [(gi[h], rows(h)) for h in pend], True)
    B.l.pop()
    for s_ in range(8):
        B(f"ds_read_b128 {vr(vGOl[s_],4)}, v{vSR} offset:{32*s_}")
    s = Stream(); s.ext(A); s.ext(B)
    segs = [Stream()]
    for i in s.l:
        if i.kind == 'slot': segs.append(Stream())
        else: segs[-1].l.append(i)
    return segs
S.ext(flat(kgen_unit(0)))
stamp(S, 'k_u0')
U1 = kgen_unit(1); U2 = kgen_unit(2)
S.ext(flat(U1))
stamp(S, 'k_u1')
S.ext(flat(U2[:opt['xf0']]))
flag_load(S, XF, XN)
S.ext(flat(U2[opt['xf0']:opt['xf1']]))
gs = xn_try(S, 'b')
stamp(S, 'xnpoll')
seg = flat(U2[opt['xf1']:])
S.ext(sprinkle(seg, gs, max(1, len(seg.l) // (len(gs) + 1))))
for x in k_mfmas(2): S.ext(x)
stamp(S, 'kgen')
X = Stream()
vXT = 156 if opt['xpos'] == 0 else 188
d = lambda k: f"v{vD+k}"
X(f"v_and_b32 v236, 1, v0\nv_cmp_eq_u32 vcc, 1, v236")
def wo(s, b, aE, off):
    s(f"v_add_u32 v236, {off + OOFF}, v{aE}")
    s(f"ds_write2_b32 v236, v{b}, v{b+1} offset0:0 offset1:1")
    s(f"ds_write2_b32 v236, v{b+2}, v{b+3} offset0:2 offset1:3")
def build(e_pairs, o_pairs, base, aE, imm):
    for j, (a, b) in enumerate(e_pairs): X(f"v_cvt_pk_bf16_f32 v{base+j}, {a}, {b}")
    for j, (a, b) in enumerate(o_pairs): X(f"v_cvt_pk_bf16_f32 v{base+4+j}, {a}, {b}")
    X(f"v_add_u32 v236, {imm + OOFF}, v{aE}")
    X(f"ds_write_b128 v{aE}, {vr(base,4)} offset:{imm}")
    X(f"ds_write2_b32 v236, v{base+4}, v{base+5} offset0:0 offset1:1")
    X(f"ds_write2_b32 v236, v{base+6}, v{base+7} offset0:2 offset1:3")
build([(d(7),d(6)),(d(5),d(4)),(d(3),d(2)),(d(1),d(0))], [(d(8),d(7)),(d(6),d(5)),(d(4),d(3)),(d(2),d(1))], vXT, vE0, 3*1056)
build([(d(11),d(11)),(d(10),d(10)),(d(10),d(9)),(d(9),d(9))], [(d(11),d(11)),(d(11),d(10)),(d(10),d(10)),(d(9),d(9))], vXT+8, vE0, 2*1056)
for n, (r0, imm) in enumerate(((12, 512), (14, 0))):
    X(f"v_cndmask_b32 v237, {d(r0)}, {d(r0+1)}, vcc")
    V0, V1 = d(r0), d(r0+1)
    build([(V1,V1),(V1,'v237'),(V0,V0),(V0,V0)], [(V1,V1),(V1,V1),('v237',V0),(V0,V0)], vXT+16+8*n, vE1, imm)
z = vXT + 16
X(f"v_mov_b32 v{z}, 0\nv_mov_b32 v{z+1}, 0\nv_mov_b32 v{z+2}, 0\nv_mov_b32 v{z+3}, 0\nv_cvt_pk_bf16_f32 v{z+4}, {d(0)}, 0\nv_mov_b32 v237, s{sSCR}\nv_subrev_u32 v{vE1}, 32, v{vE1}")
XA = X; X = Stream()
X("s_mov_b32 exec_lo, 0\ns_mov_b32 exec_hi, 0x80000000")
X(f"ds_write_b128 v{vE0}, {vr(vXT,4)} offset:{3*1056-32}")
X(f"ds_write_b128 v{vE0}, {vr(vXT+8,4)} offset:{2*1056-32}")
wo(X, vXT+4, vE0, 3*1056-32)
wo(X, vXT+12, vE0, 2*1056-32)
X("s_mov_b32 exec_lo, 0x80000000\ns_mov_b32 exec_hi, 0")
X(f"ds_write_b128 v{vE1}, {vr(vXT+24,4)}")
wo(X, vXT+28, vE1, 0)
X("s_mov_b32 exec_lo, 1")
X(f"ds_write_b128 v237, {vr(z,4)} offset:{(3*264+256)*4}")
X(f"v_add_u32 v237, {OOFF + (3*264+256)*4}, v237")
X(f"ds_write2_b32 v237, v{z+4}, v{z} offset0:0 offset1:1\nds_write2_b32 v237, v{z}, v{z} offset0:2 offset1:3")
X("s_mov_b64 exec, -1")
XB = X
if opt['xpos'] == 0: S.ext(XA); S.ext(XB)
stamp(S, 'exp')
S.label(".Lk3")
S("s_barrier")
stamp(S, 'bar1')
S("s_cmp_lg_u64 s[46:47], 0\ns_cbranch_scc1 .Lxs")
S.label(".Lxb")
X = Stream()
for i in range(G1PRE): xn_load(X, i)
spin(".Lx", XF, XN, post=X)

vAC = 20; vAR = 120
vB1P = 68; vB1 = 188
vUL = 160
vEX, vED, vEB = 4, 68, 78
EN = lambda k: 14 + k if k < 6 else 82 + k
L_E = L_W + 61440
L_Y = L_E + 4 * 6144
STG = opt['stg']
order = [(ks, ft) for ks in range(40 - STG) for ft in range(3)] + [(ks, ft) for ft in range(3) for ks in range(40 - STG, 40)]
NAR = 9
def g1_read(s, n):
    ks, ft = order[n]
    for r in range(2):
        base, k = (vA0, ks) if ks < 20 else (vA1, ks - 20)
        s(f"ds_read_b64_tr_b16 {vr(vAR + 4*(n % NAR) + 2*r, 2)}, v{base} offset:{k*3072 + r*768 + ft*64}")
S("s_mov_b32 exec_lo, 0x77777777\ns_mov_b32 exec_hi, 0x77777777")
for k in range(4):
    S(f"buffer_load_dwordx4 {vr(vUL+4*k,4)}, v{vUG}, {SRD_WS}, s{sUB} offen sc1")
    if k < 3: S(f"s_add_u32 s{sUB}, s{sUB}, {16*XBS}")
S("s_mov_b64 exec, -1")
for n in range(6): g1_read(S, n)
sKO = 18
S(f"""s_mul_i32 s{sSRC}, s{sWAVE}, {12*40*1024}
s_mul_i32 s11, s{sCB2}, 5120
s_add_u32 s{sSRC}, s{sSRC}, s11
s_add_u32 s{sSRC}, s{sSRC}, {W2R}
s_and_b32 s11, s{sRB2}, 7
s_mul_i32 s11, s11, {3*opt['wrot']}
s_lshr_b32 s11, s11, 1
s_lshl_b32 s{sKO}, s11, 10""")
for k in range(1, 12):
    S(f"s_add_u32 s{sKO+k}, s{sKO+k-1}, 1024\ns_cmp_eq_u32 s{sKO+k}, 12288\ns_cselect_b32 s{sKO+k}, 0, s{sKO+k}")
G1D = opt['g1d']
Sg = Stream(); nxt = G1PRE
first_use = {}
for n, (ks, ft) in enumerate(order): first_use.setdefault(ks, n)
for n, (ks, ft) in enumerate(order):
    if n in (3, 30, 60, 90): stamp(Sg, f'g1_{n//3}')
    c = vr(vAC + 16*ft, 16) if ks > 0 else "0"
    Sg(f"v_mfma_f32_32x32x16_bf16 {vr(vAC+16*ft,16)}, {vr(vAR + 4*(n % NAR), 4)}, {xreg(ks)}, {c}")
    if n + 6 < 120: g1_read(Sg, n + 6)
    if nxt < 40 and n % opt['xev'] == 0 and first_use[nxt] <= n + 3 * G1D + (opt['xlead'] if nxt >= 40 - STG else 0):
        assert nxt < 30 or max(m for m, o in enumerate(order) if o[0] == nxt - 30) <= n
        xn_load(Sg, nxt); nxt += 1
assert nxt == 40
plan = {}
if opt['xpos'] == 1:
    L = XA.l; per = 4; n = 0
    while L:
        g = Stream(); g(f"s_cmp_eq_u32 s{sWAVE}, 3\ns_cbranch_scc1 .Lxp{n}")
        for i in L[:per]:
            if i.kind == 'ds': i.kind = 'other'
            g.l.append(i)
        L = L[per:]
        g.label(f".Lxp{n}"); plan[1 + n] = g; n += 1
    g = Stream(); g(f"s_cmp_eq_u32 s{sWAVE}, 3\ns_cbranch_scc1 .Lxp{n}")
    for i in XB.l:
        if i.kind == 'ds': i.kind = 'other'
        g.l.append(i)
    g.label(f".Lxp{n}"); plan[1 + n] = g
    assert n + 1 < 30
vCA = 20; vCP = 36; vKB = 44; vR = 176
vNON, vZ = 241, 242
sKO = 18
def w2_load(s, n):
    k, dt = divmod(n, 5)
    if dt == 0: s(f"s_mul_i32 s70, s{sKO+k}, 40\ns_add_u32 s70, s70, s{sSRC}")
    s(f"buffer_load_dwordx4 {ar(4*n,4)}, v{vL0 if dt < 4 else vL1}, {SRD_WS}, s70 offen offset:{1024*min(dt,3)} sc1")
wn = [0]
def w2_next(s, cnt):
    for _ in range(cnt):
        if wn[0] < 60: w2_load(s, wn[0]); wn[0] += 1
F = Stream()
F(f"v_mov_b32 v{vNON}, s{sNONCE}\nv_mov_b32 v{vZ}, 0")
plan.setdefault(40, Stream()).ext(F)
F = Stream()
for k in range(12):
    F(f"ds_read_b64 {vr(vB1P+2*k,2)}, v{vB1A} offset:{16*k}")
spread(F, 3, 26, plan)
F = Stream()
F(f"""s_mov_b32 s72, 0x00003f80
s_mov_b32 s73, 0x3f800000""")
unit_addr(F, sSL0)
spread(F, 14, 35, plan)
F = Stream()
for k in range(24):
    F(f"v_lshlrev_b32 v{vB1+2*k}, 16, v{vB1P+k}\nv_and_b32 v{vB1+2*k+1}, 0xffff0000, v{vB1P+k}")
spread(F, 30, 62, plan)
F = Stream()
for dt in range(5):
    F(f"ds_read_b64 {vr(vEB+2*dt,2)}, v{vBD} offset:{32*dt}")
    F(f"ds_read_b64 {vr(vED+2*dt,2)}, v{vBD} offset:{256+32*dt}")
spread(F, 64, 84, plan)
F = Stream()
F("s_mov_b32 exec_lo, 0x77777777\ns_mov_b32 exec_hi, 0x77777777")
for k in range(4):
    F(f"ds_write_b128 v{vUW}, {vr(vUL+4*k,4)} offset:{256*k}")
F("s_mov_b64 exec, -1")
plan.setdefault(opt['uw'], Stream()).ext(F)
F = Stream(); w2_next(F, opt['wan'])
spread(F, opt['wa0'], 119, plan)
def g1_epi(ft, packed):
    E = Stream()
    tp = 156 + 8 * ft
    if opt.get('g1fast'):
        for k in range(8):
            a = vAC + 16*ft + 2*k; b = vB1 + 16*ft + 2*k
            E(f"v_pk_add_f32 {vp(a)}, {vp(a)}, {vp(b)}\nv_max_f32 v{a}, 0, v{a}\nv_max_f32 v{a+1}, 0, v{a+1}\nv_pk_mul_f32 {vp(a)}, {vp(a)}, {vp(a)}\nv_cvt_pk_bf16_f32 v{tp+k}, v{a}, v{a+1}")
    for k in range(8 if not opt.get('g1fast') else 0):
        a = vAC + 16*ft + 2*k; b = vB1 + 16*ft + 2*k
        E(f"v_cvt_pk_bf16_f32 v{tp+k}, v{a}, v{a+1}")
        E(f"v_dot2_f32_bf16 v{a}, v{tp+k}, s72, v{b}")
        E(f"v_dot2_f32_bf16 v{a+1}, v{tp+k}, s73, v{b+1}")
    for k in range(8 if not opt.get('g1fast') else 0):
        a = vAC + 16*ft + 2*k
        E(f"v_cvt_pk_bf16_f32 v{tp+k}, v{a}, v{a+1}")
        E(f"v_pk_max_i16 v{tp+k}, v{tp+k}, 0")
        E(f"v_lshlrev_b32 v{a}, 16, v{tp+k}")
        E(f"v_and_b32 v{a+1}, 0xffff0000, v{tp+k}")
        if packed: E(f"v_pk_mul_f32 {vp(a)}, {vp(a)}, {vp(a)}")
        else: E(f"v_mul_f32 v{a}, v{a}, v{a}\nv_mul_f32 v{a+1}, v{a+1}, v{a+1}")
        E(f"v_cvt_pk_bf16_f32 v{tp+k}, v{a}, v{a+1}")
    t = None
    for jp in range(2):
        t = E(f"buffer_store_dwordx4 {vr(tp+4*jp,4)}, v{vHS}, {SRD_WS}, s{sHST} offen offset:{1024*ft + 512*jp} sc0 sc1")
    return E, t
rest = []
for ft in range(3):
    if STG >= 10 and ft < 2:
        E, th = g1_epi(ft, False)
        a0 = 120 - (2 - ft) * STG
        spread(E, a0 + 2, a0 + STG - 1, plan)
    else: rest.append(ft)
S.ext(weave(Sg, plan))
stamp(S, 'g1')
for ft in rest:
    E, th = g1_epi(ft, True)
    gs = []
    for _ in range(opt['wep'] // len(rest)):
        g = Stream(); w2_next(g, 1); gs.append(g)
    if gs: E = sprinkle(E, gs, len(E.l) // (len(gs) + 1))
    S.ext(E)
S("s_waitcnt lgkmcnt(0)")
S("s_barrier")
stamp(S, 'g1ep')

def conv_load(s, sg):
    s(f"ds_read_b128 {vr(vR + 4*(sg & 15), 4)}, v{vU} offset:{64*sg}")
    base, o = (vK, 16*sg) if sg < 16 else (vKn, 16*(sg-16))
    kb = vKB + 4*(sg & 3)
    s(f"ds_read2_b32 {vr(kb,2)}, v{base} offset0:{o} offset1:{o+1}")
    s(f"ds_read2_b32 {vr(kb+2,2)}, v{base} offset0:{o+2} offset1:{o+3}")
def conv_block(ramp, last=False):
    s = Stream()
    for sg in range(16):
        ld = Stream()
        if not (last and sg + 3 >= 16): conv_load(ld, sg + 3)
        for rt in (3, 2, 1, 0):
            first = 12 - 4*rt
            if ramp and sg < first: continue
            c = "0" if (ramp and sg == first) else vr(vCA + 4*rt, 4)
            s(f"v_mfma_f32_16x16x32_bf16 {vr(vCA+4*rt,4)}, {vr(vKB + 4*(sg&3),4)}, {vr(vR + 4*((sg+4+4*rt)&15),4)}, {c}")
            if ld.l: s.l.append(ld.l.pop(0))
        s.ext(ld)
    if not last:
        s(f"v_add_u32 v{vU}, 1024, v{vU}\nv_add_u32 v{vK}, 1056, v{vK}\nv_add_u32 v{vKn}, 1056, v{vKn}")
    return s
def conv_save(s):
    for rt in (3, 2, 1, 0):
        for h in range(2):
            s(f"v_cvt_pk_bf16_f32 v{vCP + 4*(rt>>1) + 2*(rt&1) + h}, v{vCA+4*rt+2*h}, v{vCA+4*rt+2*h+1}")
def conv_fin(s):
    s("s_mov_b32 exec_lo, 0")
    conv_save(s)
    s("s_mov_b32 exec_lo, -1")
    t = None
    for pr in range(2):
        b = vCP + 4*pr
        s(f"v_permlane16_swap_b32 v{b}, v{b+2}")
        s(f"v_permlane16_swap_b32 v{b+1}, v{b+3}")
        t = s(f"buffer_store_dwordx4 {vr(b,4)}, v{vYl}, {SRD_WS}, s{sYB} offen offset:{512*pr} sc0 sc1")
    return t
for sg in range(3): conv_load(S, sg)
F = Stream(); w2_next(F, opt['wb0'])
S.ext(weave(conv_block(True), spread(F, 4, 39)))
stamp(S, 'cv_b0')
conv_save(S)
F = Stream()
F.wait(th)
F(f"buffer_store_dword v{vNON}, v{vZ}, {SRD_WS}, s{sHFL} offen sc0 sc1")
w2_next(F, opt['wb1'])
def tiles(F):
    F(f"s_mul_i32 s11, s{sWAVE}, 6144\ns_add_u32 s11, s11, {L_E}")
    for i in range(3):
        F(f"s_add_u32 m0, s11, {1024*i}")
        F(f"buffer_load_dwordx4 v{vXD+i}, {SRD_X}, s{sEN1} offen lds")
    for i in range(3):
        F(f"s_add_u32 m0, s11, {3072 + 1024*i - 2048*i}")
        F(f"buffer_load_dwordx4 v{vENA}, {SRD_WS}, s{sEN0} offen offset:{2048*i} sc1 lds") if i < 2 else None
    F.l.pop()
    F(f"s_add_u32 m0, s11, {3072 + 2048}\ns_add_u32 s{sEN0}, s{sEN0}, 4096")
    return F(f"buffer_load_dwordx4 v{vENA}, {SRD_WS}, s{sEN0} offen sc1 lds")
if opt['tpos'] == 0: tiles(F)
vH = 108
HF = [(62, vHF)]
assert wn[0] == 60
flag_load(F, HF)
P1 = spread(F, opt['hfl'], 63)
S.ext(weave(conv_block(False), P1))
stamp(S, 'cv_b1')
NH = 33
def hreg(n): return vH + 4 * (n % NH)
def h_load(s, n):
    p, k = divmod(n, 12)
    s(f"s_add_u32 s70, s{sHB+p}, s{sKO+k}")
    s(f"buffer_load_dwordx4 {vr(hreg(n), 4)}, v{vL0}, {SRD_WS}, s70 offen sc1")
HPRE = opt['hpre']
def h_first(tag, first, gap):
    plan = {}
    F = Stream()
    flag_test(F, HF)
    F("s_mov_b64 s[46:47], vcc")
    plan[first] = F
    for n in range(HPRE):
        F = Stream()
        F(f"s_cbranch_vccnz .Lhskip{tag}{n}")
        h_load(F, n)
        F.label(f".Lhskip{tag}{n}")
        plan.setdefault(first + 1 + n * gap, Stream()).ext(F)
    return plan
S(f"s_lshl_b32 s{sYF}, s{sRG}, 7\ns_lshl_b32 s12, s{sWAVE}, 2\ns_add_u32 s{sYF}, s{sYF}, s12\ns_add_u32 s{sYF}, s{sYF}, {FY}\ns_cmp_eq_u32 s{sISX}, 1")
S.save('b2')
S("s_cbranch_scc1 .Lb2x")
S.ext(weave(conv_block(False), h_first('a', opt['hchk'], opt['hgap'])))
S("s_waitcnt lgkmcnt(0)")
S.endpath(keep=None)
S("s_branch .Lb3")
S.label(".Lb2x")
S.restore('b2')
conv_fin(S)
unit_addr(S, sSL1)
for sg in range(3): conv_load(S, sg)
S.ext(weave(conv_block(True), h_first('b', 2, opt['hgapx'])))
S("s_waitcnt lgkmcnt(0)")
S.endpath(keep=None)
S.label(".Lb3")
for n in range(HPRE): S.assume([('v', hreg(n) + r) for r in range(4)])
stamp(S, 'cv_b2')
conv_save(S)
plan = {}
def tile_reads(F):
    for dt in range(5):
        F(f"ds_read_b64 {vr(vEX+2*dt,2)}, v{vEA} offset:{32*dt}")
        F(f"ds_read_b64 {vr(EN(2*dt),2)}, v{vEA+1} offset:{3072 + 512*dt}")
F = Stream()
if opt['tpos'] == 0: tile_reads(F)
else: ttile = tiles(F)
spread(F, 4 if opt['tpos'] == 0 else 46, 40 if opt['tpos'] == 0 else 63, plan)
HB3 = opt['hb3']
for n in range(HPRE, HPRE + HB3):
    F = Stream()
    F(f"s_cbranch_vccnz .Lhskipc{n}")
    h_load(F, n)
    F.label(f".Lhskipc{n}")
    plan.setdefault(2 + (n - HPRE) * opt['hgap'], Stream()).ext(F)
HPRE += HB3
assert HPRE <= 17
S.ext(weave(conv_block(False, last=True), plan))
ty = conv_fin(S)
S("s_cmp_lg_u64 s[46:47], 0\ns_cbranch_scc1 .Lhs")
S.label(".Lhb")
X = Stream()
for n in range(HPRE): h_load(X, n)
spin(".Lh", HF, post=X)
stamp(S, 'conv')

vG2 = 20
vRW = vL1
S(f"v_add_u32 v{vRW}, s{sW2B}, v{vL0}")
HD = opt['hd']
hn = [HPRE]
def g2_pass(p):
    s = Stream()
    ac = vG2 + 20*(p & 1)
    for k in range(12):
        for dt in range(5):
            c = ("0" if not (p == 3 and opt['fast']) else vr(168 + 4*dt, 4)) if k == 0 else vr(ac + 4*dt, 4)
            s(f"v_mfma_f32_16x16x32_bf16 {vr(ac+4*dt,4)}, {ar((k*5+dt)*4,4)}, {vr(hreg(12*p+k), 4)}, {c}")
            if dt in (0, 2) and hn[0] < 48 and hn[0] <= 12*p + k + HD: h_load(s, hn[0]); hn[0] += 1
    return s
def g2_dump(s, p):
    ac = vG2 + 20*(p & 1)
    for dt in range(5):
        s(f"ds_write_b128 v{vRW}, {vr(ac+4*dt,4)} offset:{p*5120 + dt*1024}")
F = Stream()
F.wait(ty)
F(f"buffer_store_dword v{vNON}, v{vZ}, {SRD_WS}, s{sYF} offen sc0 sc1")
S.ext(weave(g2_pass(0), {opt['ypub']: F}))
stamp(S, 'g2_p0')
F = Stream()
g2_dump(F, 0)
if opt['tpos'] == 1: F.wait(ttile); tile_reads(F)
vXD2 = [148 + 2*k for k in range(4)] + [156 + 2*k for k in range(6)]
if not opt['fast']:
    for k in range(10):
        a = 60 + 4*(k & 1)
        F(f"""v_lshlrev_b32 v{a}, 16, v{EN(k)}
v_and_b32 v{a+1}, 0xffff0000, v{EN(k)}
v_lshlrev_b32 v{a+2}, 16, v{vED+k}
v_and_b32 v{a+3}, 0xffff0000, v{vED+k}
v_mul_f32 v{a}, v{a}, v{a+2}
v_mul_f32 v{a+1}, v{a+1}, v{a+3}
v_cvt_pk_bf16_f32 v{EN(k)}, v{a}, v{a+1}""")
YF = [(60, 64, 4)]
F(f"""s_lshl_b32 s11, s{sCB2}, 12
s_add_u32 s11, s11, {FY}
v_and_b32 v2, 31, v0
v_lshl_add_u32 v64, v2, 7, s11""")
S.ext(weave(g2_pass(1), spread(F, 3, 59)))
stamp(S, 'g2_p1')
vB2 = 168; vXf = [188 + 2*k if k < 8 else 92 + 2*(k-8) for k in range(10)]
F = Stream()
g2_dump(F, 1)
F(f"""v_lshrrev_b32 v65, 2, v0
v_lshlrev_b32 v65, 7, v65
v_and_b32 v1, 3, v0
v_lshl_add_u32 v65, v1, 3, v65
s_lshl_b32 s11, s{sOWN}, 5
s_add_u32 s11, s11, {L_Y}
v_add_u32 v65, s11, v65""")
for k in range(10):
    F(f"""v_lshlrev_b32 v{vB2+2*k}, 16, v{vEB+k}
v_and_b32 v{vB2+2*k+1}, 0xffff0000, v{vEB+k}
v_lshlrev_b32 v{vXf[k]}, 16, v{vEX+k}
v_and_b32 v{vXf[k]+1}, 0xffff0000, v{vEX+k}""")
plan = spread(F, 3, 50)
F = Stream(); flag_load(F, YF)
plan.setdefault(opt['yfl'], Stream()).ext(F)
S.ext(weave(g2_pass(2), plan))
stamp(S, 'g2_p2')
assert hn[0] == 48
vY = 68
vS = 204
vYT = 224
F = Stream(); flag_check(F, YF)
F(f"s_mul_i32 s70, s{sWAVE}, 2560\ns_add_u32 s70, s70, {L_Y}")
for i, o in enumerate((0, 1024, 1536)):
    F(f"s_add_u32 m0, s70, {o}")
    tyl = F(f"buffer_load_dwordx4 v{vYG}, {SRD_WS}, s{sYL+i} offen sc1 lds")
plan = {opt['ychk']: F}
F = Stream()
g2_dump(F, 2)
vPA = [66, 67, 1]
for p in range(3):
    F(f"s_sub_u32 s11, s{sWAVE}, {p+1}\ns_and_b32 s11, s11, 3\ns_mul_i32 s11, s11, 15360\ns_add_u32 s11, s11, {L_W}\nv_add_u32 v{vPA[p]}, s11, v{vL0}")
F(f"s_mov_b32 s12, {f32(-LOG2E)}\ns_mov_b32 s13, {f32(-LOG2E)}\ns_mov_b32 s14, 1.0\ns_mov_b32 s15, 1.0")
if opt['fast']:
    for k in range(10):
        a = vS + 2*k
        F(f"""v_lshlrev_b32 v{a}, 16, v{EN(k)}
v_and_b32 v{a+1}, 0xffff0000, v{EN(k)}
v_lshlrev_b32 v2, 16, v{vED+k}
v_and_b32 v3, 0xffff0000, v{vED+k}
v_mul_f32 v{a}, v{a}, v2
v_mul_f32 v{a+1}, v{a+1}, v3""")
spread(F, 3, 58, plan)
S.ext(weave(g2_pass(3), plan))
stamp(S, 'g2')
S("s_waitcnt lgkmcnt(0)")
S("s_barrier")
stamp(S, 'e_bar')
PS = lambda p, dt: 108 + 20*p + 4*dt
for p in range(3):
    for dt in range(5):
        S(f"ds_read_b128 {vr(PS(p, dt), 4)}, v{vPA[p]} offset:{p*5120 + dt*1024}")
ac = vG2 + 20
for p in range(3):
    for k in range(10):
        S(f"v_pk_add_f32 {vp(ac+2*k)}, {vp(ac+2*k)}, {vp(PS(p, k//2) + 2*(k&1))}")
T = lambda k: 108 + 2*k
def stage(fn):
    for k in range(10): fn(k, ac + 2*k, T(k))
def y_in():
    S.wait(tyl)
    S("s_barrier")
    for dt in range(5):
        S(f"ds_read_b64_tr_b16 {vr(vYT+2*dt,2)}, v65 offset:{2048*dt}")
if opt['fast']:
    stage(lambda k, a, t: S(f"v_pk_mul_f32 {vp(t)}, {vp(a)}, s[12:13]"))
    stage(lambda k, a, t: S(f"v_exp_f32 v{t}, v{t}\nv_exp_f32 v{t+1}, v{t+1}"))
    stage(lambda k, a, t: S(f"v_pk_add_f32 {vp(t)}, {vp(t)}, s[14:15]"))
    stage(lambda k, a, t: S(f"v_rcp_f32 v{t}, v{t}\nv_rcp_f32 v{t+1}, v{t+1}"))
    y_in()
    stage(lambda k, a, t: S(f"v_pk_mul_f32 {vp(a)}, {vp(a)}, {vp(t)}"))
    stage(lambda k, a, t: S(f"v_dot2_f32_bf16 v{vS+2*k}, v{vYT+k}, s72, v{vS+2*k}\nv_dot2_f32_bf16 v{vS+2*k+1}, v{vYT+k}, s73, v{vS+2*k+1}"))
    stage(lambda k, a, t: S(f"v_pk_fma_f32 {vp(a)}, {vp(a)}, {vp(vS+2*k)}, {vp(vXf[k])}"))
else:
    stage(lambda k, a, t: S(f"v_cvt_pk_bf16_f32 v{t}, v{a}, v{a+1}"))
    stage(lambda k, a, t: S(f"v_dot2_f32_bf16 v{a}, v{t}, s72, v{vB2+2*k}\nv_dot2_f32_bf16 v{a+1}, v{t}, s73, v{vB2+2*k+1}"))
    stage(lambda k, a, t: S(f"v_cvt_pk_bf16_f32 v{t}, v{a}, v{a+1}"))
    stage(lambda k, a, t: S(f"v_lshlrev_b32 v{a}, 16, v{t}\nv_and_b32 v{a+1}, 0xffff0000, v{t}\nv_pk_mul_f32 {vp(t)}, {vp(a)}, s[12:13]"))
    stage(lambda k, a, t: S(f"v_exp_f32 v{t}, v{t}\nv_exp_f32 v{t+1}, v{t+1}"))
    stage(lambda k, a, t: S(f"v_pk_add_f32 {vp(t)}, {vp(t)}, s[14:15]"))
    stage(lambda k, a, t: S(f"v_rcp_f32 v{t}, v{t}\nv_rcp_f32 v{t+1}, v{t+1}"))
    y_in()
    stage(lambda k, a, t: S(f"v_pk_mul_f32 {vp(a)}, {vp(a)}, {vp(t)}"))
    stage(lambda k, a, t: S(f"v_cvt_pk_bf16_f32 v{t}, v{a}, v{a+1}\nv_lshlrev_b32 v{a}, 16, v{t}\nv_and_b32 v{a+1}, 0xffff0000, v{t}"))
    stage(lambda k, a, t: S(f"v_lshlrev_b32 v{vS+2*k}, 16, v{vYT+k}\nv_and_b32 v{vS+2*k+1}, 0xffff0000, v{vYT+k}\nv_dot2_f32_bf16 v{vS+2*k}, v{EN(k)}, s72, v{vS+2*k}\nv_dot2_f32_bf16 v{vS+2*k+1}, v{EN(k)}, s73, v{vS+2*k+1}"))
    stage(lambda k, a, t: S(f"v_cvt_pk_bf16_f32 v{t}, v{vS+2*k}, v{vS+2*k+1}\nv_lshlrev_b32 v{vS+2*k}, 16, v{t}\nv_and_b32 v{vS+2*k+1}, 0xffff0000, v{t}\nv_pk_mul_f32 {vp(a)}, {vp(a)}, {vp(vS+2*k)}\nv_cvt_pk_bf16_f32 v{t}, v{a}, v{a+1}"))
    stage(lambda k, a, t: S(f"v_dot2_f32_bf16 v{a}, v{t}, s72, v{vXf[k]}\nv_dot2_f32_bf16 v{a+1}, v{t}, s73, v{vXf[k]+1}"))
for k in range(10):
    a = ac + 2*k
    S(f"v_cvt_pk_bf16_f32 v{vEX+k}, v{a}, v{a+1}")
    if k & 1:
        S(f"buffer_store_dwordx2 {vr(vEX+k-1,2)}, v{vOO}, {SRD_OUT}, 0 offen offset:{32*(k//2)}")
stamp(S, 'end')
if opt['stamps']:
    S(f"s_memrealtime s[68:69]\ns_waitcnt lgkmcnt(0)\nv_writelane_b32 v{vST}, s68, 31")
    S(f"s_lshl_b32 s11, s{sWG}, 2\ns_add_u32 s11, s11, s{sWAVE}\ns_lshl_b32 s11, s11, 7\ns_add_u32 s11, s11, {STAMP}\nv_lshlrev_b32 v1, 2, v0\ns_mov_b32 exec_hi, 0")
    S(f"buffer_store_dword v{vST}, v1, {SRD_WS}, s11 offen")
S.label(".Lend")
S("s_endpgm")

body = finalize(S) + finalize(COLD) + ["    s_endpgm"]
H2 = f""".amdgcn_target "amdgcn-amd-amdhsa--gfx950"
.text
.globl {NAME}_kernel
.p2align 8
.type {NAME}_kernel,@function
{NAME}_kernel:"""
body, nbytes, nfix = align_pass(body, H2, minrun=5 if opt['align'] else 100000)
sys.stderr.write(f"code bytes {nbytes}, alignment fixes {nfix}\n")
hdr = open('cdna_kernels/' + NAME + '.s.ref').read().split('\n')
out = []
for l in hdr:
    if l.startswith('; @launch'): out.append(f"; @launch grid=(256,1,1) block=(256,1,1) lds={LDS_BYTES}"); break
    out.append(l)
out.append(H2)
out += body
kb = opt['code_kb']
assert nbytes <= kb * 1024
out.append(f""".fill ({kb*1024 + 2304} - (. - {NAME}_kernel)) / 4, 4, 0xbf800000
.section .rodata,"a"
.p2align 6
.amdhsa_kernel {NAME}_kernel
  .amdhsa_next_free_vgpr 512
  .amdhsa_next_free_sgpr 102
  .amdhsa_accum_offset 256
  .amdhsa_group_segment_fixed_size 0
  .amdhsa_kernarg_size 120
  .amdhsa_user_sgpr_count 2
  .amdhsa_user_sgpr_kernarg_segment_ptr 1
  .amdhsa_system_sgpr_workgroup_id_x 1
.end_amdhsa_kernel""")
if opt['stamps']: out.insert(0, "; stamps: " + ",".join(stamp_names))
print('\n'.join(out))
```

```python
import sys, math, struct
sys.path.insert(0, 'gen')
from emit import *

NAME = "recurrent_scan__ssm_conv_s4d__dense_activation_squared_relu__prompt"
opt = dict(xev=2, xlead=30, dtlb=1, w3cap=48, stamps=0, spin=2000000, code_kb=35, align=1, b0=8, b2a=2, b2b=2, b2c=4, xf0=3, xf1=5,
           g1pre=8, g1d=10, uw=45, wa0=40, wan=20, wep=9, wb0=14, wb1=17, tpos=0, xpos=0, ka=12, wb3=0, wev=10, hld=10, hldx=0, hchkx=34,
           hfl=8, tail10=0, stg=0, hrot=0, wrot=0, xrot=0, hb3=10, fast=0, ypub=50, hchk=52, hgap=4, hgapx=2, hpre=3, hd=12, yfl=165, ychk=200)
for a in sys.argv[1:]:
    k, v = a.split('='); opt[k] = int(v)

def f32(x): return struct.unpack('<I', struct.pack('<f', x))[0]
def vr(b, n=1): return f"v{b}" if n == 1 else f"v[{b}:{b+n-1}]"
def ar(b, n=1): return f"a{b}" if n == 1 else f"a[{b}:{b+n-1}]"
def vp(b): return f"v[{b}:{b+1}]"
def flat(gs):
    s = Stream()
    for g in gs: s.ext(g)
    return s

XNA = 0; XNB = 0x400000; HB = 0x800000; YT = 0x1000000
FX = 0x1500000; FB = FX + 0x8000; FH = FX + 0x10000; FY = FX + 0x40000
W2R = 0x1600000
STAMP = 0x1800000
XAS = 65536; XBS = 16384; HBS = 64; YS = 8192
L_W = 40960
SCR_W = 8704; TROW = 272
KSLOT = SCR_W; OOFF = 4284
L_U = 3 * KSLOT; USLOT = 4352
L_LN = L_U; LNROW = 1344
L_E = L_W + 61440
L_Y = L_E + 4 * 6144
L_P = L_W + 37 * 3072
L_F = L_W - 64
L_V = L_U + 3 * USLOT
LDS_BYTES = 163840
assert L_U + 3 * USLOT <= L_W and L_LN + 8 * LNROW <= L_W
sWG, sWAVE, sRB, sCB, sRB2, sCB2, sCBASE, sPAR, sNONCE = 2, 3, 4, 5, 6, 7, 8, 9, 10
P = lambda k: f"s[{16+2*k}:{17+2*k}]"
pX, pLOGA, pAIM, pCR, pCI, pLOGDT, pDSK, pBX, pW1, pB1, pW2, pB2, pOUT, pDBG, pWS = range(15)
SRD_X, SRD_W1, SRD_W2, SRD_WS, SRD_OUT = "s[48:51]", "s[52:55]", "s[56:59]", "s[60:63]", "s[64:67]"
sXB, sXC, sSCR, sW2B, sROT, sSRC, sRG, sXH = 76, 77, 78, 79, 80, 81, 82, 83
sOWN, sUB, sEN0, sEN1, sHST, sHFL = 84, 85, 86, 87, 88, 89
sHB = 90
sYL = 94
sSL0, sSL1, sISX, sYF2, sJ = 97, 98, 99, 100, 101
sYB, sYF = 74, 75
SPIN_MAX = opt['spin']
JUNK = "a255"
LOG2E = 1.4426950408889634
vU, vK, vKn = 92, 93, 94
vXD, vEA = 95, 98
vW2R, vUl, vKl, vYl, vOO, vUG, vUW = 100, 101, 102, 103, 104, 105, 106
vST = 107
vXF, vW1O, vBD, vB1A, vHS, vENA, vE0, vE1 = 240, 241, 244, 245, 246, 247, 248, 249
vHF, vYG, vL1, vL0, vA0, vA1 = 250, 251, 252, 253, 254, 255

S = Stream()
COLD = Stream()
stamp_names = []
SKIP = set('w3_b0 w3_ln ln_st idle ln k_u0 e_bar ep0 ep1 ep2'.split())
def stamp(s, name):
    if not opt['stamps'] or name in SKIP: return
    if name not in stamp_names: stamp_names.append(name)
    idx = stamp_names.index(name)
    assert 0 < idx < 29
    s(f"s_memtime s[68:69]\ns_waitcnt lgkmcnt(0)\nv_writelane_b32 v{vST}, s68, {idx}")

def bf16_round(s, dst, src):
    s(f"v_cvt_pk_bf16_f32 {dst}, {src}, {src}")
    s(f"v_and_b32 {dst}, 0xffff0000, {dst}")

def flag_load(s, loads, nonce=None):
    for vd, vo, *n in loads:
        s(f"buffer_load_dword{'x4' if n else ''} {vr(vd, 4 if n else 1)}, v{vo}, {SRD_WS}, 0 offen sc0 sc1")
    if nonce: s(f"global_load_dword v{nonce[0]}, v{nonce[1]}, {P(pDBG)} sc0 sc1")
def flag_test(s, loads, nonce=None):
    regs = [vd + k for vd, vo, *n in loads for k in range(4 if n else 1)]
    if nonce: s(f"v_readfirstlane_b32 s{sNONCE}, v{nonce[0]}")
    for r in regs: s(f"v_xor_b32 v{r}, s{sNONCE}, v{r}")
    for r in regs[1:]: s(f"v_or_b32 v{regs[0]}, v{regs[0]}, v{r}")
    if nonce:
        s(f"v_cmp_eq_u32 vcc, 0, v{nonce[0]}")
        s(f"v_cndmask_b32 v{regs[0]}, v{regs[0]}, 1, vcc")
    s(f"v_cmp_ne_u32 vcc, 0, v{regs[0]}")
uid = [0]
def spin(L, loads, nonce=None, pre="", post=None):
    c = COLD
    c.label(f"{L}s")
    c("s_mov_b32 s70, 0")
    if pre: c(pre)
    c.label(f"{L}l")
    flag_load(c, loads, nonce)
    c("s_waitcnt vmcnt(0)")
    flag_test(c, loads, nonce)
    c(f"s_add_u32 s70, s70, 1\ns_cmp_gt_u32 s70, {SPIN_MAX}\ns_cbranch_scc1 {L}x\ns_cbranch_vccz {L}x\ns_sleep 4\ns_branch {L}l")
    c.label(f"{L}x")
    if post: c.ext(post); c("s_waitcnt vmcnt(0)")
    c(f"s_nop 4\ns_branch {L}b")
def flag_check(s, loads):
    uid[0] += 1; L = f".Lc{uid[0]}"
    flag_test(s, loads)
    s(f"s_cbranch_vccnz {L}s")
    s.label(f"{L}b")
    spin(L, loads)

if opt['stamps']:
    S("s_memtime s[70:71]"); stamp_names.append('start')
S(f"s_cmp_ge_u32 s{sWG}, 256")
S("s_cbranch_scc1 .Lend")
S("s_load_dwordx16 s[16:31], s[0:1], 0")
S("s_load_dwordx8 s[32:39], s[0:1], 64")
S("s_load_dwordx4 s[40:43], s[0:1], 96")
S("s_load_dwordx2 s[44:45], s[0:1], 112")
vX = 20; vRAW = 120
S(f"""s_getpc_b64 s[72:73]
s_and_b32 s11, s{sWG}, 7
s_lshr_b32 s{sJ}, s{sWG}, 3
s_lshl_b32 s{sRG}, s11, 5
s_add_u32 s{sRG}, s{sRG}, s{sJ}
v_lshrrev_b32 v4, 4, v0
v_lshl_add_u32 v2, s{sRG}, 3, v4
v_mul_u32_u24 v2, 1280, v2
v_and_b32 v7, 15, v0
v_lshl_add_u32 v2, v7, 4, v2
v_lshrrev_b32 v3, 6, v0
v_and_b32 v0, 63, v0
v_readfirstlane_b32 s{sWAVE}, v3
s_and_b32 s{sPAR}, s{sJ}, 1
s_lshl_b32 s{sCBASE}, s11, 4
s_lshr_b32 s15, s{sJ}, 1
s_add_u32 s{sCBASE}, s{sCBASE}, s15
s_mul_i32 s{sCBASE}, s{sCBASE}, 5
s_lshl_b32 s15, s{sPAR}, 1
s_add_u32 s{sCBASE}, s{sCBASE}, s15
s_min_u32 s12, s{sWAVE}, 2
s_add_u32 s12, s12, s{sCBASE}
s_mul_i32 s15, s12, 384
s_lshl_b32 s12, s12, 1
s_and_b32 s13, s12, -4
s_lshl_b32 s46, s12, 3
v_mul_u32_u24 v6, 6, v0
v_and_b32 v6, -4, v6
v_add_u32 v6, s15, v6
v_mov_b32 v10, {L_F}
v_mov_b32 v12, 0
v_mov_b32 v13, 0
ds_write_b64 v10, v[12:13]
s_cmp_ge_u32 s{sWAVE}, 2
s_waitcnt lgkmcnt(0)
s_cbranch_scc1 .Lnox""")
for j in range(5):
    S(f"global_load_dwordx4 {vr(vX+4*j,4)}, v2, {P(pX)} offset:{256*j}")
S.label(".Lnox")
if opt['stamps']:
    S(f"v_mov_b32 v{vST}, 0\nv_writelane_b32 v{vST}, s70, 0\ns_memrealtime s[68:69]\ns_waitcnt lgkmcnt(0)\nv_writelane_b32 v{vST}, s68, 30")
S(f"s_load_dword s47, {P(pLOGDT)}, s13")
S("s_barrier")
S(f"s_cmp_eq_u32 s{sWAVE}, 3\ns_cbranch_scc1 .Lnopar")
for k, p in enumerate((pLOGA, pAIM, pCR, pCI)):
    S(f"global_load_dwordx2 {vr(vRAW+2*k,2)}, v6, {P(p)}")
S.label(".Lnopar")
def srd(name, p, nbytes):
    b = int(name[2:name.index(':')])
    S(f"s_mov_b32 s{b}, s{16+2*p}\ns_mov_b32 s{b+1}, s{17+2*p}\ns_mov_b32 s{b+2}, {nbytes}\ns_mov_b32 s{b+3}, 0x20000")
S(f"""v_min_u32 v10, 2, v0
v_mul_u32_u24 v10, 10, v10
v_min_u32 v11, 1, v0
v_lshlrev_b32 v11, 1, v11
v_cmp_lt_u32 vcc, 1, v0
s_lshr_b32 s12, s{sRG}, 7
v_add_u32 v11, s12, v11
v_cndmask_b32 v10, v11, 10, vcc
v_cmp_lt_u32 vcc, 2, v0
v_cndmask_b32 v10, v10, 11, vcc
v_lshlrev_b32 v10, 21, v10
v_add_u32 v10, 0x1fff80, v10
v_mov_b32 v12, 0x80
s_mul_i32 s12, s{sJ}, {opt['code_kb'] * 32}
v_lshl_add_u32 v1, v0, 5, s12
s_cmp_eq_u32 s{sWAVE}, 1
s_cbranch_scc1 .Ltlb1
s_cmp_eq_u32 s{sWAVE}, 2
s_cbranch_scc1 .Ltlb2
s_cmp_eq_u32 s{sWAVE}, 3
s_cbranch_scc1 .Ltlb3""")
S.junk(f"global_load_dword {JUNK}, v1, s[72:73]"); S.l[-1].kind = 'other'
S("s_branch .Ltlbd")
S.label(".Ltlb1")
if opt['dtlb']:
    S(f"""s_lshl_b32 s12, s{sJ}, 21
s_add_u32 s12, s12, 0x1fff80
s_mov_b64 s[68:69], {P(pWS)}""")
    for n, (p_, off) in enumerate(((pB1, 0x80), (pX, 0), (pX, 0x200000), (pB2, 0x80), (pDSK, 0x80), (pOUT, 0), (pOUT, 0x200000))):
        S(f"s_cmp_eq_u32 s{sJ}, {12+n}\ns_cselect_b64 s[68:69], {P(p_)}, s[68:69]\ns_cselect_b32 s12, {off}, s12")
    S(f"v_mov_b32 v12, s12\ns_cmp_ge_u32 s{sJ}, 19\ns_cbranch_scc1 .Ltlbd")
    S.junk(f"global_load_dword {JUNK}, v12, s[68:69]"); S.l[-1].kind = 'other'
S("s_branch .Ltlbd")
S.label(".Ltlb3")
S.junk(f"global_load_dword {JUNK}, v10, {P(pWS)}"); S.l[-1].kind = 'other'
S("s_branch .Ltlbd")
S.label(".Ltlb2")
S.junk(f"global_load_dword {JUNK}, v12, {P(pDBG)}"); S.l[-1].kind = 'other'
S(f"""s_cmp_lg_u32 s{sWG}, 0
s_cbranch_scc1 .Ltlbd
s_memrealtime s[68:69]
s_waitcnt lgkmcnt(0)
s_lshl_b32 s68, s68, 1
s_or_b32 s68, s68, 1
v_mov_b32 v1, s68
v_mov_b32 v2, 0
global_store_dword v2, v1, {P(pDBG)} sc0 sc1""")
S.l[-1].kind = 'other'
S.label(".Ltlbd")
srd(SRD_W1, pW1, 640*1536*2)
srd(SRD_W2, pW2, 640*1536*2)
srd(SRD_WS, pWS, 0x10000000)
srd(SRD_X, pX, 2048*640*2)
srd(SRD_OUT, pOUT, 2048*640*2)
S(f"""s_lshr_b32 s13, s11, 1
s_and_b32 s{sXH}, s11, 1
s_lshl_b32 s{sRB}, s13, 2
s_and_b32 s15, s{sJ}, 3
s_add_u32 s{sRB}, s{sRB}, s15
s_lshl_b32 s{sCB}, s{sXH}, 3
s_lshr_b32 s12, s{sJ}, 2
s_add_u32 s{sCB}, s{sCB}, s12
s_lshl_b32 s15, s15, 1
s_mul_i32 s{sROT}, s{sCB}, {opt['xrot']}
s_add_u32 s{sROT}, s15, s{sROT}
s_lshl_b32 s{sRB2}, s13, 3
s_and_b32 s15, s{sJ}, 7
s_add_u32 s{sRB2}, s{sRB2}, s15
s_lshl_b32 s{sCB2}, s{sXH}, 2
s_lshr_b32 s15, s{sJ}, 3
s_add_u32 s{sCB2}, s{sCB2}, s15
s_mov_b32 s{sNONCE}, 0
s_mul_i32 s{sSCR}, s{sWAVE}, {SCR_W}
s_mul_i32 s{sW2B}, s{sWAVE}, 15360
s_add_u32 s{sW2B}, s{sW2B}, {L_W}
s_mul_i32 s{sSRC}, s{sCB}, 192
s_mov_b32 s70, {L_W}
s_and_b32 s12, s{sROT}, 7
s_mul_i32 s71, s12, {5*49152}
s_add_u32 s71, s71, s{sSRC}
s_add_u32 s74, s{sSRC}, {40*49152}""")
def divmod_off(dst, i, magic, div, stride):
    S(f"""v_add_u32 v15, {64*i}, v0
v_mul_u32_u24 v2, {magic}, v15
v_lshrrev_b32 v2, 19, v2
v_mul_u32_u24 v3, {div}, v2
v_sub_u32 v3, v15, v3
v_mul_u32_u24 v2, {stride}, v2
v_lshl_add_u32 v{dst}, v3, 4, v2""")
def w1_slot(s):
    for i in range(3):
        s(f"s_add_u32 m0, s70, {i*1024}")
        s(f"buffer_load_dwordx4 v{vW1O+i}, {SRD_W1}, s71 offen lds")
    s(f"""s_add_u32 s70, s70, 3072
s_add_u32 s71, s71, 49152
s_cmp_eq_u32 s71, s74
s_cselect_b32 s71, s{sSRC}, s71""")
def w1_upto(s, n):
    uid[0] += 1; L = f".Lw1_{uid[0]}"
    s(f"s_cmp_ge_u32 s70, {L_W + 3072*n}\ns_cbranch_scc1 {L}x")
    s.label(L)
    s(f"s_waitcnt vmcnt({opt['w3cap']})"); s.l[-1].mn = 's_waitcnt_raw'
    k = len(s.l)
    w1_slot(s)
    for i in s.l[k:]:
        if i.kind == 'vmem': i.kind = 'other'
    s(f"s_cmp_lt_u32 s70, {L_W + 3072*n}\ns_cbranch_scc1 {L}")
    s.label(L + "x")
def w1_slots(s, n, counted=True):
    if n <= 0: return
    uid[0] += 1; L = f".Lw1_{uid[0]}"
    s(f"s_mov_b32 s75, {n}")
    s.label(L)
    s(f"s_waitcnt vmcnt({opt['w3cap']})"); s.l[-1].mn = 's_waitcnt_raw'
    k = len(s.l)
    w1_slot(s)
    s(f"s_sub_u32 s75, s75, 1\ns_cmp_lg_u32 s75, 0\ns_cbranch_scc1 {L}")
    if counted:
        for _ in range(min(3 * (n - 1), 40)): s.assume([])
    else:
        for i in s.l[k:]:
            if i.kind == 'vmem': i.kind = 'other'
for i in range(3): divmod_off(vW1O + i, i, 0xaaab, 12, 3072)
S(f"""s_nop 0
s_lshl_b32 s11, s{sRB}, 2
s_add_u32 s11, s11, s{sWAVE}
s_mul_i32 s{sXB}, s11, {XAS}
s_lshl_b32 s12, s11, 4
s_add_u32 s12, s12, s{sCB}
s_lshl_b32 s12, s12, 7
s_add_u32 s{sHFL}, s12, {FH}
s_lshl_b32 s12, s11, 9
s_add_u32 s12, s12, {FX}
v_and_b32 v1, 3, v0
v_lshl_add_u32 v{vXF}, v1, 7, s12
s_lshl_b32 s11, s11, 1
s_mul_i32 s11, s11, {HBS}
s_mul_i32 s12, s{sCB}, 3
s_add_u32 s11, s11, s12
s_lshl_b32 s11, s11, 10
s_add_u32 s{sHST}, s11, {HB}
s_mul_i32 s{sOWN}, s{sCB2}, {opt['hrot']}
s_add_u32 s{sOWN}, s{sWAVE}, s{sOWN}
s_and_b32 s{sOWN}, s{sOWN}, 3
s_mul_i32 s11, s{sWAVE}, {64*XBS}
s_lshl_b32 s12, s{sCBASE}, 4
s_add_u32 s11, s11, s12
s_add_u32 s{sUB}, s11, {XNB}
s_lshl_b32 s14, s{sRB2}, 6
s_lshl_b32 s12, s{sOWN}, 4
s_add_u32 s14, s14, s12
s_lshr_b32 s13, s14, 5
s_mul_i32 s13, s13, {XAS//1024}
s_mul_i32 s12, s{sCB2}, 5
s_add_u32 s13, s13, s12
s_lshl_b32 s13, s13, 10
s_and_b32 s12, s14, 31
s_lshl_b32 s12, s12, 4
s_add_u32 s{sEN0}, s13, s12
s_mul_i32 s{sEN1}, s14, 1280
s_mul_i32 s12, s{sCB2}, 160
s_add_u32 s{sEN1}, s{sEN1}, s12
s_mul_i32 s11, s{sCB2}, {80*YS}
s_lshl_b32 s12, s{sRB2}, 7
s_add_u32 s11, s11, s12
s_mul_i32 s12, s{sWAVE}, {20*YS}
s_add_u32 s11, s11, s12
s_add_u32 s{sYL}, s11, {YT}
s_add_u32 s{sYL+1}, s{sYL}, {8*YS}
s_add_u32 s{sYL+2}, s{sYL}, {12*YS}
s_add_u32 s{sSL0}, s{sPAR}, s{sWAVE}
s_cmp_eq_u32 s{sWAVE}, 2
s_cselect_b32 s{sSL0}, s{sPAR}, s{sSL0}
s_cselect_b32 s{sISX}, 1, 0
s_add_u32 s{sSL1}, s{sPAR}, 1
s_lshl_b32 s12, s{sPAR}, 1
s_sub_u32 s12, 2, s12
s_cmp_eq_u32 s{sWAVE}, 3
s_cselect_b32 s{sISX}, s{sPAR}, s{sISX}
s_cselect_b32 s{sSL0}, s12, s{sSL0}
s_cselect_b32 s{sSL1}, 0, s{sSL1}""")
for p in range(4):
    S(f"""s_add_u32 s11, s{sOWN}, {p+1}
s_and_b32 s11, s11, 3
s_lshl_b32 s12, s{sRB2}, 2
s_add_u32 s11, s11, s12
s_mul_i32 s11, s11, {HBS}
s_mul_i32 s12, s{sWAVE}, 12
s_add_u32 s11, s11, s12
s_lshl_b32 s11, s11, 10
s_add_u32 s{sHB+p}, s11, {HB}""")
for i in range(3): divmod_off(vXD + i, i, 0xcccd, 10, 1280)
S(f"""v_and_b32 v5, 31, v0
v_lshrrev_b32 v8, 4, v0
v_lshrrev_b32 v9, 5, v0
v_and_b32 v13, 1, v8
v_and_b32 v1, 3, v0
v_lshrrev_b32 v14, 2, v0
v_lshlrev_b32 v{vL0}, 4, v0
v_add_u32 v{vL1}, 1024, v{vL0}
v_lshlrev_b32 v{vB1A}, 3, v9
v_add_u32 v{vB1A}, {L_V}, v{vB1A}
v_add_u32 v{vOO}, s14, v7
v_mul_u32_u24 v{vOO}, 1280, v{vOO}
s_mul_i32 s12, s{sCB2}, 160
v_lshl_add_u32 v{vBD}, v8, 3, s12
v_add_u32 v{vOO}, v{vOO}, v{vBD}
v_lshlrev_b32 v{vBD}, 3, v8
v_add_u32 v{vBD}, {L_V + 256}, v{vBD}
v_lshrrev_b32 v2, 2, v7
v_lshl_add_u32 v3, v9, 3, v2
v_mul_u32_u24 v{vA0}, 192, v3
v_lshl_add_u32 v{vA0}, v1, 3, v{vA0}
v_lshl_add_u32 v{vA0}, v13, 5, v{vA0}
v_add_u32 v{vA0}, {L_W}, v{vA0}
v_add_u32 v{vA1}, 61440, v{vA0}
v_lshl_add_u32 v3, v13, 2, v2
v_lshl_add_u32 v3, v9, 4, v3
v_lshlrev_b32 v3, 8, v3
v_lshl_add_u32 v3, v1, 3, v3
v_add_u32 v{vW2R}, {L_P}, v3
v_mul_u32_u24 v3, {XBS}, v14
v_lshl_add_u32 v{vUG}, v1, 4, v3
v_mul_u32_u24 v3, {USLOT}, v1
v_lshl_add_u32 v3, v14, 4, v3
s_lshl_b32 s12, s{sWAVE}, 10
s_add_u32 s12, s12, {L_U + 256}
v_add_u32 v{vUW}, s12, v3
v_lshlrev_b32 v2, 4, v7
v_lshl_add_u32 v{vENA}, v8, 9, v2
s_mul_i32 s12, s{sWAVE}, 6144
s_add_u32 s12, s12, {L_E}
v_mul_u32_u24 v3, 160, v7
v_lshl_add_u32 v3, v8, 3, v3
v_add_u32 v{vEA}, s12, v3
v_lshl_add_u32 v3, v9, 8, v2
v_lshl_add_u32 v3, v13, 3, v3
v_add_u32 v{vEA+1}, s12, v3
v_mul_u32_u24 v3, {HBS*1024}, v13
v_add_u32 v3, v3, v2
v_lshl_add_u32 v{vHS}, v9, 8, v3
v_lshl_add_u32 v3, v13, 8, v2
v_lshl_add_u32 v{vYl}, v9, 10, v3
v_add_u32 v3, v7, v8
v_lshlrev_b32 v3, 4, v3
v_add_u32 v{vUl}, {L_U + 16}, v3
v_and_b32 v3, 7, v0
v_sub_u32 v3, 8, v3
v_lshrrev_b32 v3, 1, v3
v_lshl_add_u32 v3, v8, 2, v3
v_lshlrev_b32 v{vKl}, 2, v3
v_and_b32 v2, 1, v0
v_sub_u32 v3, 1, v2
v_mul_u32_u24 v3, {OOFF}, v3
v_add_u32 v{vKl}, v{vKl}, v3
v_bfe_u32 v3, v0, 3, 1
v_sub_u32 v3, 1, v3
v_mul_u32_u24 v3, 1056, v3
v_add_u32 v{vKl}, v{vKl}, v3
v_lshrrev_b32 v3, 3, v0
v_mul_u32_u24 v3, {YS}, v3
v_and_b32 v2, 7, v0
v_lshl_add_u32 v{vYG}, v2, 4, v3
s_lshr_b32 s11, s{sRB2}, 1
s_lshl_b32 s11, s11, 2
s_and_b32 s12, s{sRB2}, 1
s_lshl_b32 s12, s12, 1
s_add_u32 s11, s11, s12
s_lshl_b32 s11, s11, 4
s_lshl_b32 s12, s{sWAVE}, 2
s_add_u32 s11, s11, s12
s_lshl_b32 s11, s11, 7
s_add_u32 s11, s11, {FH}
v_and_b32 v3, 1, v14
v_lshlrev_b32 v3, 11, v3
v_lshl_add_u32 v3, v1, 7, v3
v_add_u32 v{vHF}, s11, v3
v_sub_u32 v2, 31, v5
v_lshl_add_u32 v2, v2, 4, s{sSCR}
v_sub_u32 v3, 1, v9
v_lshl_add_u32 v{vE0}, v3, 9, v2
v_mul_u32_u24 v3, 1056, v3
v_add_u32 v{vE1}, v3, v2
v_mul_u32_u24 v1, {LNROW}, v4
v_lshl_add_u32 v1, v7, 4, v1
v_add_u32 v1, {L_LN}, v1""")
def unit_addr(s, sslot):
    s(f"""s_mul_i32 s12, s{sslot}, {USLOT}
v_add_u32 v{vU}, s12, v{vUl}
s_mul_i32 s12, s{sslot}, {KSLOT}
s_mul_i32 s13, s{sISX}, 2112
s_add_u32 s12, s12, s13
v_add_u32 v{vK}, s12, v{vKl}
v_add_u32 v{vKn}, 1056, v{vK}
s_add_u32 s12, s{sCBASE}, s{sslot}
s_mul_i32 s12, s12, {YS}
s_lshl_b32 s13, s{sISX}, 11
s_sub_u32 s12, s12, s13
s_add_u32 s{sYB}, s12, {YT + 2048}
s_nop 0""")
def xreg(i): return ar(120 + 4 * (i % 30), 4)
def xn_load(s, i):
    if i % 5 == 0:
        s(f"s_add_u32 s{sXC}, s{sROT}, {i//5}\ns_and_b32 s{sXC}, s{sXC}, 7\ns_mul_i32 s{sXC}, s{sXC}, 5120\ns_add_u32 s{sXC}, s{sXC}, s{sXB}")
    k = i % 5
    s(f"buffer_load_dwordx4 {xreg(i)}, v{vL0 if k < 4 else vL1}, {SRD_WS}, s{sXC} offen offset:{1024*min(k,3)} sc1")
G1PRE = opt['g1pre']
XF = [(1, vXF)]; XN = (2, 3)
def xn_try(s, tag):
    flag_test(s, XF, XN)
    s("s_mov_b64 s[46:47], vcc")
    out = []
    for n in range(G1PRE):
        x = Stream(); x(f"s_cbranch_vccnz .Lxs{tag}{n}"); xn_load(x, n); x.label(f".Lxs{tag}{n}"); out.append(x)
    return out

stamp(S, 'idle')
S(f"s_cmp_eq_u32 s{sWAVE}, 3\ns_cbranch_scc1 .Lw3\ns_cmp_eq_u32 s{sWAVE}, 2")
S.save('role')
S("s_cbranch_scc1 .Lkgen")
S("s_waitcnt vmcnt(4)")
vF = 40; NX = 20; vA = 80
for k in range(NX):
    S(f"v_lshlrev_b32 v{vF+2*k}, 16, v{vX+k}")
    S(f"v_and_b32 v{vF+2*k+1}, 0xffff0000, v{vX+k}")
    if k == 3:
        S(f"v_pk_add_f32 {vp(vA)}, {vp(vF)}, {vp(vF+2)}")
        S(f"v_pk_add_f32 {vp(vA+2)}, {vp(vF+4)}, {vp(vF+6)}")
    elif k > 3:
        a = vA + 2 * (k & 1)
        S(f"v_pk_add_f32 {vp(a)}, {vp(a)}, {vp(vF+2*k)}")
stamp(S, 'x_in')
S(f"v_pk_add_f32 {vp(vA)}, {vp(vA)}, {vp(vA+2)}")
S(f"v_add_f32 v{vA}, v{vA}, v{vA+1}")
def rowsum(s, r):
    for sh in (8, 4, 2, 1):
        s(f"v_add_f32_dpp v{r}, v{r}, v{r} row_ror:{sh} row_mask:0xf bank_mask:0xf")
rowsum(S, vA)
S(f"v_mul_f32 v{vA+4}, {f32(-1.0/640)}, v{vA}")
bf16_round(S, f"v{vA}", f"v{vA+4}")
S(f"v_mov_b32 v{vA+1}, v{vA}")
S(f"v_sub_f32 v{vA+4}, v{vA+4}, v{vA}")
for k in range(NX):
    a = vA + 2 + 4 * (k & 1)
    S(f"v_pk_add_f32 {vp(vF+2*k)}, {vp(vF+2*k)}, {vp(vA)}")
    S(f"v_cvt_pk_bf16_f32 v{vX+k}, v{vF+2*k}, v{vF+2*k+1}")
    if k < 2: S(f"v_pk_mul_f32 {vp(a)}, {vp(vF+2*k)}, {vp(vF+2*k)}")
    else: S(f"v_pk_fma_f32 {vp(a)}, {vp(vF+2*k)}, {vp(vF+2*k)}, {vp(a)}")
r_ = vA + 2
S(f"v_pk_add_f32 {vp(r_)}, {vp(r_)}, {vp(vA+6)}")
S(f"v_add_f32 v{r_}, v{r_}, v{r_+1}")
R = Stream(); rowsum(R, r_)
R(f"v_mul_f32 v{vA+4}, v{vA+4}, v{vA+4}\nv_mul_f32 v{r_}, {f32(1.0/640)}, v{r_}\nv_sub_f32 v{r_}, v{r_}, v{vA+4}\nv_max_f32 v{r_}, 0, v{r_}")
bf16_round(R, f"v{r_}", f"v{r_}")
R(f"v_add_f32 v{r_}, {f32(1e-5)}, v{r_}")
bf16_round(R, f"v{r_}", f"v{r_}")
R(f"v_sqrt_f32 v{r_}, v{r_}")
bf16_round(R, f"v{r_}", f"v{r_}")
R(f"v_rcp_f32 v{r_}, v{r_}")
U = []
for k in range(NX):
    g = Stream(); g(f"v_lshlrev_b32 v{vF+2*k}, 16, v{vX+k}\nv_and_b32 v{vF+2*k+1}, 0xffff0000, v{vX+k}"); U.append(g)
S.ext(sprinkle(R, U, 1))
S(f"v_mov_b32 v{r_+1}, v{r_}\ns_lshl_b32 s12, s{sWAVE}, 2\ns_add_u32 s12, s12, {L_F}\nv_mov_b32 v2, s12\nv_mov_b32 v3, 1")
for k in range(NX):
    S(f"v_pk_mul_f32 {vp(vF+2*k)}, {vp(vF+2*k)}, {vp(r_)}")
for k in range(NX):
    S(f"v_cvt_pk_bf16_f32 v{vX+k}, v{vF+2*k}, v{vF+2*k+1}")
for j in range(5):
    S(f"ds_write_b128 v1, {vr(vX+4*j,4)} offset:{256*j}")
S("ds_write_b32 v2, v3")
stamp(S, 'ln')
S("s_branch .Lkgen")
S.label(".Lw3")
S.endpath(keep=None)
w1_slots(S, opt['b0'], False)
S(f"""v_lshrrev_b32 v5, 3, v0
v_and_b32 v6, 7, v0
v_mul_u32_u24 v10, {LNROW}, v6
v_lshl_add_u32 v10, v5, 4, v10
v_add_u32 v10, {L_LN}, v10
v_and_b32 v12, 3, v14
v_mul_u32_u24 v12, {LNROW}, v12
v_and_b32 v4, 3, v0
v_lshl_add_u32 v12, v4, 3, v12
v_lshl_add_u32 v12, v8, 5, v12
v_add_u32 v12, {L_LN}, v12
v_lshlrev_b32 v11, 10, v8
v_and_b32 v5, 1, v5
v_lshl_add_u32 v11, v5, 9, v11
v_lshl_add_u32 v11, v6, 4, v11
v_mul_u32_u24 v6, 1280, v8
v_lshl_add_u32 v6, v7, 4, v6
v_mov_b32 v2, {L_F}
v_mov_b32 v3, 0
s_min_u32 s12, s{sRG}, 239
s_mul_i32 s13, s12, 52429
s_lshr_b32 s13, s13, 18
s_mul_i32 s14, s13, 5
s_sub_u32 s14, s12, s14
s_mul_i32 s15, s13, {32*1280}
s_lshl_b32 s12, s14, 8
s_add_u32 s15, s15, s12
s_mul_i32 s13, s13, 40
s_lshl_b32 s14, s14, 3
s_add_u32 s13, s13, s14
s_lshl_b32 s13, s13, 10
s_add_u32 s14, s13, {W2R}
s_lshr_b32 s12, s{sRG}, 2
s_mul_i32 s12, s12, {XAS}
s_and_b32 s13, s{sRG}, 3
s_lshl_b32 s13, s13, 7
s_add_u32 s12, s12, s13
s_mul_i32 s13, s{sRG}, {XBS}
s_add_u32 s13, s13, {XNB}
s_mov_b32 s11, 0""")
stamp(S, 'w3_b0')
S.label(".Llnw")
S(f"""ds_read_b64 v[16:17], v2
s_waitcnt lgkmcnt(0)
v_and_b32 v16, v16, v17
s_add_u32 s11, s11, 1
v_readfirstlane_b32 s75, v16
s_cmp_gt_u32 s11, {SPIN_MAX*16}
s_cbranch_scc1 .Llnwx
s_cmp_eq_u32 s75, 0
s_cbranch_scc1 .Llnw""")
S.label(".Llnwx")
stamp(S, 'w3_ln')
for j in range(10):
    S(f"ds_read_b128 {vr(20+4*j,4)}, v10 offset:{128*j}")
S(f"global_load_dword v15, v3, {P(pDBG)} sc0 sc1")
for it in range(10):
    S(f"ds_read_b64_tr_b16 {vr(130+4*it,2)}, v12 offset:{128*it}")
    S(f"ds_read_b64_tr_b16 {vr(132+4*it,2)}, v12 offset:{128*it + 4*LNROW}")
for j in range(10):
    tl = S(f"buffer_store_dwordx4 {vr(20+4*j,4)}, v11, {SRD_WS}, s12 offen sc0 sc1")
    if j < 9: S("s_add_u32 s12, s12, 4096")
stamp(S, 'ln_st')
for i in range(8):
    S(f"s_mov_b32 m0, {L_P + 1024*i}")
    tp_ = S(f"buffer_load_dwordx4 v6, {SRD_W2}, s15 offen lds")
    if i < 7: S(f"s_add_u32 s15, s15, {4*1280}")
S(f"""s_mul_i32 s11, s{sCB2}, 160
v_add_u32 v18, s{sSRC}, v{vL0}
v_add_u32 v19, s11, v{vL0}
s_mov_b32 exec_hi, 0
s_mov_b32 exec_lo, 0xfff
s_mov_b32 m0, {L_V}
global_load_lds_dwordx4 v18, {P(pB1)}
s_mov_b32 exec_lo, 0x3ff
s_mov_b32 m0, {L_V + 256}
global_load_lds_dwordx4 v19, {P(pB2)}
s_mov_b32 m0, {L_V + 512}
global_load_lds_dwordx4 v19, {P(pDSK)}
s_mov_b64 exec, -1""")
w1_slots(S, opt['b2a'])
S(f"""v_readfirstlane_b32 s{sNONCE}, v15
v_mul_u32_u24 v1, {USLOT}, v8
v_lshl_add_u32 v1, v7, 4, v1
v_mov_b32 v16, 0
v_mov_b32 v17, 0
v_mov_b32 v18, 0
v_mov_b32 v19, 0
s_mov_b32 exec_hi, 0xffff
s_waitcnt lgkmcnt(0)
ds_write_b128 v1, v[16:19] offset:{L_U}
s_mov_b64 exec, -1""")
S(f"s_cmp_eq_u32 s{sNONCE}, 0\ns_cbranch_scc1 .Lnonce_s")
S.label(".Lnonce_b")
COLD.label(".Lnonce_s")
COLD(f"s_mov_b32 s11, 0")
COLD.label(".Lnonce_l")
COLD(f"global_load_dword v15, v3, {P(pDBG)} sc0 sc1\ns_waitcnt vmcnt(0)\nv_readfirstlane_b32 s{sNONCE}, v15\ns_add_u32 s11, s11, 1\ns_cmp_gt_u32 s11, {SPIN_MAX}\ns_cbranch_scc1 .Lnonce_b\ns_cmp_eq_u32 s{sNONCE}, 0\ns_cbranch_scc1 .Lnonce_l\ns_branch .Lnonce_b")
S(f"""s_lshl_b32 s12, s{sRG}, 7
s_add_u32 s12, s12, {FX}
v_mov_b32 v15, s{sNONCE}""")
S.wait(tl)
S(f"buffer_store_dword v15, v3, {SRD_WS}, s12 offen sc0 sc1")
stamp(S, 'ln_flag')
for it in range(10):
    S(f"buffer_store_dwordx4 {vr(130+4*it,4)}, v{vL0}, {SRD_WS}, s13 offen offset:{1024*(it%4)} sc0 sc1")
    if it % 4 == 3: S("s_add_u32 s13, s13, 4096")
w1_slots(S, opt['b2b'])
S.wait(tp_)
for dt in range(8):
    for r in range(2):
        S(f"ds_read_b64_tr_b16 {vr(180+4*dt+2*r,2)}, v{vW2R} offset:{r*2048 + dt*32}")
S(f"""v_add_u32 v{vW2R}, 4096, v{vL0}
s_lshr_b32 s11, s{sRG}, 2
s_lshl_b32 s11, s11, 7
s_and_b32 s12, s{sRG}, 3
s_lshl_b32 s12, s12, 2
s_add_u32 s11, s11, s12
s_add_u32 s11, s11, {FB}
v_lshlrev_b32 v8, 7, v0
v_add_u32 v8, {FB}, v8""")
for dt in range(8):
    tl = S(f"buffer_store_dwordx4 {vr(180+4*dt,4)}, v{vL0 if dt < 4 else vW2R}, {SRD_WS}, s14 offen offset:{1024*(dt%4)} sc0 sc1")
w1_slots(S, opt['b2c'])
S.wait(tl)
S(f"buffer_store_dword v15, v3, {SRD_WS}, s11 offen sc0 sc1")
stamp(S, 'fb')
w1_slots(S, 40 - opt['b0'] - opt['b2a'] - opt['b2b'] - opt['b2c'] - opt['tail10'])
UF = [(4, 8, 4)]
flag_load(S, UF)
flag_load(S, XF, XN)
w1_slots(S, opt['tail10'])
stamp(S, 'w1_iss')
flag_check(S, UF)
gs = xn_try(S, 'a')
stamp(S, 'xnpoll')
S.ext(flat(gs))
S(f"s_waitcnt vmcnt({G1PRE})"); S.l[-1].mn = 's_waitcnt_raw'
S("s_cmp_eq_u64 s[46:47], 0\ns_cbranch_scc1 .Lk3\ns_waitcnt vmcnt(0)"); S.l[-1].mn = 's_waitcnt_raw'
S("s_branch .Lk3")

S.label(".Lkgen")
S.restore('role')
S("s_waitcnt vmcnt(0) lgkmcnt(0)")
vD = 4; vT = 52
vFs = 120; vPK = 184
vFO = 192
vGOl = [224, 228, 232, 236, 76, 80, 84, 88]
vSR, vONE, vDT = 20, 21, 22
vPE = 108
S(f"""s_mov_b32 m0, s{sSCR}
v_mul_u32_u24 v{vSR}, {TROW}, v5
v_lshl_add_u32 v{vSR}, v9, 4, v{vSR}
v_add_u32 v{vSR}, s{sSCR}, v{vSR}
v_mov_b32 v{vONE}, 0x3f80
s_lshr_b32 s47, s47, s46
s_lshl_b32 s47, s47, 16
v_mov_b32 v{vDT}, {f32(LOG2E)}
v_mul_f32 v{vDT}, s47, v{vDT}
v_exp_f32 v{vDT}, v{vDT}
v_and_b32 v1, 1, v0
v_lshlrev_b32 v1, 4, v1
v_mov_b32 v3, 0""")
bf16_round(S, f"v{vDT}", f"v{vDT}")
for k in range(4):
    d0, d1 = vRAW + 2*k, vRAW + 2*k + 1
    S(f"""v_alignbit_b32 v{d0}, v{d1}, v{d0}, v1
v_lshrrev_b32 v{d1}, v1, v{d1}
v_lshlrev_b32 v{vPE+k}, 16, v{d0}
v_and_b32 v{vPE+4+k}, 0xffff0000, v{d0}
v_lshlrev_b32 v{vPE+8+k}, 16, v{d1}""")
S(f"v_add_f32 v{vDT+1}, v{vDT}, v{vDT}\ns_mov_b32 s15, {f32(1.0 / (2 * math.pi))}")
def cmuls(s, lst):
    for d, x, y in lst:
        assert d != x and d != y
        s(f"v_pk_mul_f32 {vp(d)}, {vp(x)}, {vp(y)} op_sel:[0,0] op_sel_hi:[1,0]")
    for d, x, y in lst:
        s(f"v_pk_fma_f32 {vp(d)}, {vp(x)}, {vp(y)}, {vp(d)} op_sel:[1,1,0] op_sel_hi:[0,1,1] neg_lo:[0,1,0]")
I2PI = 1.0 / (2 * math.pi)
i2pi_hi = struct.unpack('<f', struct.pack('<f', I2PI))[0]
i2pi_lo = I2PI - i2pi_hi
hi0 = [0,1,2,3,4,5,6,7,8, 512,516,520, 1024,1032, 1280,1288]
hi1 = [256,256,258,260,260,260,262,264,264, 768,772,776, 1536,1544, 1792,1800]
rowhi = [(hi0, hi1)[(p >> 2) & 1][4 * (p >> 3) + (p & 3)] for p in range(32)]
def k_mfmas(u):
    out = []
    for s_ in range(8):
        x = Stream()
        c = "0" if (s_ == 0 and u == 0) else vr(vD, 16)
        x(f"v_mfma_f32_32x32x16_bf16 {vr(vD,16)}, {vr(vGOl[s_],4)}, {vr(vFO+4*s_,4)}, {c}")
        out.append(x)
    return out
pkc = [0]
def put(s, items, neg, mf=None):
    regs = []
    if mf: s.ext(mf.pop(0))
    for r, rows in items:
        b = vPK + (pkc[0] & 7); pkc[0] += 1
        s(f"v_cvt_pk_bf16_f32 v{b}, v{r}, {'-' if neg else ''}v{r+1}")
        regs.append((b, rows))
    if mf: s.ext(mf.pop(0))
    for b, rows in regs:
        for p in rows: s(f"ds_write_addtid_b32 v{b} offset:{p*TROW}")
    s.pseudo('slot')
def kgen_unit(u):
    A = Stream(); B = Stream()
    pa, pb, pc, pd = range(vPE + 4*u, vPE + 4*u + 4)
    va, vbh, vbl = vT, vT+1, vT+2
    vW1, vW8, vW256, vW2, vW4, vG0 = vT+4, vT+6, vT+8, vT+10, vT+12, vT+14
    G = lambda k: vFs + 2 * k
    A(f"""v_mul_f32 v{va}, {f32(LOG2E)}, v{pa}
v_mul_f32 v{pb}, v{pb}, v{vDT}
v_exp_f32 v{va}, v{va}
v_mul_f32 v{vbh}, s15, v{pb}
v_cvt_pk_bf16_f32 v{va}, v{va}, v{va}
v_fma_f32 v{vbl}, v{pb}, s15, -v{vbh}
v_and_b32 v{va}, 0xffff0000, v{va}
v_fmac_f32 v{vbl}, {f32(i2pi_lo)}, v{pb}
v_mul_f32 v{va}, v{va}, v{vDT}
v_mul_f32 v{va}, {f32(-LOG2E)}, v{va}""")
    t0 = vT + 16
    m8, a8, m1, a1, m2, a2 = range(t0, t0 + 6)
    A(f"""v_mul_f32 v{a8}, {f32(8.0)}, v{vbh}
v_mul_f32 v{m8}, {f32(8.0)}, v{va}
v_fract_f32 v{a8}, v{a8}
v_exp_f32 v{m8}, v{m8}
v_fmac_f32 v{a8}, {f32(8.0)}, v{vbl}
v_exp_f32 v{m1}, v{va}
v_fract_f32 v{a1}, v{vbh}
v_cos_f32 v{vW8}, v{a8}
v_add_f32 v{a1}, v{a1}, v{vbl}
v_sin_f32 v{vW8+1}, v{a8}
v_mul_f32 v{m2}, {f32(256.0)}, v{va}
v_cos_f32 v{vW1}, v{a1}
v_mul_f32 v{a2}, {f32(256.0)}, v{vbh}
v_sin_f32 v{vW1+1}, v{a1}
v_fract_f32 v{a2}, v{a2}
v_exp_f32 v{m2}, v{m2}
v_fmac_f32 v{a2}, {f32(256.0)}, v{vbl}
v_pk_mul_f32 {vp(vW8)}, {vp(vW8)}, {vp(m8)} op_sel:[0,0] op_sel_hi:[1,0]
v_cos_f32 v{vW256}, v{a2}
v_pk_mul_f32 {vp(vW1)}, {vp(vW1)}, {vp(m1)} op_sel:[0,0] op_sel_hi:[1,0]
v_sin_f32 v{vW256+1}, v{a2}""")
    F = lambda k: vW8 if k == 1 else G(k)
    cmuls(A, [(F(2), F(1), F(1)), (vW2, vW1, vW1)])
    A(f"v_mul_f32 v{vG0}, v{pc}, v{vDT+1}\nv_mul_f32 v{vG0+1}, v{pd}, v{vDT+1}")
    cmuls(A, [(F(3), F(2), F(1)), (F(4), F(2), F(2)), (vW4, vW2, vW2)])
    A(f"v_pk_mul_f32 {vp(vW256)}, {vp(vW256)}, {vp(m2)} op_sel:[0,0] op_sel_hi:[1,0]")
    mf = k_mfmas(u - 1) if u > 0 else None
    for lo in range(5, 32, 8):
        cmuls(A, [(F(k), F(k-4), F(4)) for k in range(lo, min(lo+4, 32))])
        cmuls(A, [(F(k), F(k-4), F(4)) for k in range(lo+4, min(lo+8, 32))])
        if lo == 29: A(f"ds_write_addtid_b32 v{vONE}")
        put(A, [(F(k), [k]) for k in range(lo-4, min(lo+4, 32))], False, mf)
    assert not mf
    A.l.pop()
    for s_ in range(8):
        A(f"ds_read_b128 {vr(vFO+4*s_,4)}, v{vSR} offset:{32*s_}")
    A.pseudo('slot')
    his = sorted(set(hi0 + hi1))
    gi = {h: G(n) for n, h in enumerate(his)}; gi[0] = vG0
    rows = lambda h: [p for p in range(32) if rowhi[p] == h]
    steps = [[(1,0,vW1), (2,0,vW2), (4,0,vW4), (8,0,vW8), (256,0,vW256)],
             [(3,2,vW1), (5,4,vW1), (258,256,vW2), (512,256,vW256)],
             [(6,4,vW2), (260,256,vW4), (264,256,vW8), (768,512,vW256)],
             [(7,6,vW1), (262,260,vW2), (516,512,vW4), (1024,768,vW256)],
             [(520,512,vW8), (772,768,vW4), (776,768,vW8), (1280,1024,vW256)],
             [(1032,1024,vW8), (1288,1280,vW8), (1536,1280,vW256)],
             [(1544,1536,vW8), (1792,1536,vW256)],
             [(1800,1792,vW8)]]
    pend = [0]
    for n, st in enumerate(steps):
        cmuls(B, [(gi[d_], gi[x_], y_) for d_, x_, y_ in st])
        if n in (1, 3, 5):
            k = min(8, len(pend))
            put(B, [(gi[h], rows(h)) for h in pend[:k]], True); pend = pend[k:]
        pend += [d_ for d_, x_, y_ in st]
    assert len(pend) <= 8, pend
    put(B, [(gi[h], rows(h)) for h in pend], True)
    B.l.pop()
    for s_ in range(8):
        B(f"ds_read_b128 {vr(vGOl[s_],4)}, v{vSR} offset:{32*s_}")
    s = Stream(); s.ext(A); s.ext(B)
    segs = [Stream()]
    for i in s.l:
        if i.kind == 'slot': segs.append(Stream())
        else: segs[-1].l.append(i)
    return segs
S.ext(flat(kgen_unit(0)))
stamp(S, 'k_u0')
U1 = kgen_unit(1); U2 = kgen_unit(2)
S.ext(flat(U1))
stamp(S, 'k_u1')
S.ext(flat(U2[:opt['xf0']]))
flag_load(S, XF, XN)
S.ext(flat(U2[opt['xf0']:opt['xf1']]))
gs = xn_try(S, 'b')
stamp(S, 'xnpoll')
seg = flat(U2[opt['xf1']:])
S.ext(sprinkle(seg, gs, max(1, len(seg.l) // (len(gs) + 1))))
for x in k_mfmas(2): S.ext(x)
stamp(S, 'kgen')
X = Stream()
vXT = 156 if opt['xpos'] == 0 else 188
d = lambda k: f"v{vD+k}"
X(f"v_and_b32 v236, 1, v0\nv_cmp_eq_u32 vcc, 1, v236")
def wo(s, b, aE, off):
    s(f"v_add_u32 v236, {off + OOFF}, v{aE}")
    s(f"ds_write2_b32 v236, v{b}, v{b+1} offset0:0 offset1:1")
    s(f"ds_write2_b32 v236, v{b+2}, v{b+3} offset0:2 offset1:3")
def build(e_pairs, o_pairs, base, aE, imm):
    for j, (a, b) in enumerate(e_pairs): X(f"v_cvt_pk_bf16_f32 v{base+j}, {a}, {b}")
    for j, (a, b) in enumerate(o_pairs): X(f"v_cvt_pk_bf16_f32 v{base+4+j}, {a}, {b}")
    X(f"v_add_u32 v236, {imm + OOFF}, v{aE}")
    X(f"ds_write_b128 v{aE}, {vr(base,4)} offset:{imm}")
    X(f"ds_write2_b32 v236, v{base+4}, v{base+5} offset0:0 offset1:1")
    X(f"ds_write2_b32 v236, v{base+6}, v{base+7} offset0:2 offset1:3")
build([(d(7),d(6)),(d(5),d(4)),(d(3),d(2)),(d(1),d(0))], [(d(8),d(7)),(d(6),d(5)),(d(4),d(3)),(d(2),d(1))], vXT, vE0, 3*1056)
build([(d(11),d(11)),(d(10),d(10)),(d(10),d(9)),(d(9),d(9))], [(d(11),d(11)),(d(11),d(10)),(d(10),d(10)),(d(9),d(9))], vXT+8, vE0, 2*1056)
for n, (r0, imm) in enumerate(((12, 512), (14, 0))):
    X(f"v_cndmask_b32 v237, {d(r0)}, {d(r0+1)}, vcc")
    V0, V1 = d(r0), d(r0+1)
    build([(V1,V1),(V1,'v237'),(V0,V0),(V0,V0)], [(V1,V1),(V1,V1),('v237',V0),(V0,V0)], vXT+16+8*n, vE1, imm)
z = vXT + 16
X(f"v_mov_b32 v{z}, 0\nv_mov_b32 v{z+1}, 0\nv_mov_b32 v{z+2}, 0\nv_mov_b32 v{z+3}, 0\nv_cvt_pk_bf16_f32 v{z+4}, {d(0)}, 0\nv_mov_b32 v237, s{sSCR}\nv_subrev_u32 v{vE1}, 32, v{vE1}")
XA = X; X = Stream()
X("s_mov_b32 exec_lo, 0\ns_mov_b32 exec_hi, 0x80000000")
X(f"ds_write_b128 v{vE0}, {vr(vXT,4)} offset:{3*1056-32}")
X(f"ds_write_b128 v{vE0}, {vr(vXT+8,4)} offset:{2*1056-32}")
wo(X, vXT+4, vE0, 3*1056-32)
wo(X, vXT+12, vE0, 2*1056-32)
X("s_mov_b32 exec_lo, 0x80000000\ns_mov_b32 exec_hi, 0")
X(f"ds_write_b128 v{vE1}, {vr(vXT+24,4)}")
wo(X, vXT+28, vE1, 0)
X("s_mov_b32 exec_lo, 1")
X(f"ds_write_b128 v237, {vr(z,4)} offset:{(3*264+256)*4}")
X(f"v_add_u32 v237, {OOFF + (3*264+256)*4}, v237")
X(f"ds_write2_b32 v237, v{z+4}, v{z} offset0:0 offset1:1\nds_write2_b32 v237, v{z}, v{z} offset0:2 offset1:3")
X("s_mov_b64 exec, -1")
XB = X
if opt['xpos'] == 0: S.ext(XA); S.ext(XB)
stamp(S, 'exp')
S.label(".Lk3")
S("s_barrier")
stamp(S, 'bar1')
S("s_cmp_lg_u64 s[46:47], 0\ns_cbranch_scc1 .Lxs")
S.label(".Lxb")
X = Stream()
for i in range(G1PRE): xn_load(X, i)
spin(".Lx", XF, XN, post=X)

vAC = 20; vAR = 120
vB1P = 68; vB1 = 188
vUL = 160
vEX, vED, vEB = 4, 68, 78
EN = lambda k: 14 + k if k < 6 else 82 + k
L_E = L_W + 61440
L_Y = L_E + 4 * 6144
STG = opt['stg']
order = [(ks, ft) for ks in range(40 - STG) for ft in range(3)] + [(ks, ft) for ft in range(3) for ks in range(40 - STG, 40)]
NAR = 9
def g1_read(s, n):
    ks, ft = order[n]
    for r in range(2):
        base, k = (vA0, ks) if ks < 20 else (vA1, ks - 20)
        s(f"ds_read_b64_tr_b16 {vr(vAR + 4*(n % NAR) + 2*r, 2)}, v{base} offset:{k*3072 + r*768 + ft*64}")
S("s_mov_b32 exec_lo, 0x77777777\ns_mov_b32 exec_hi, 0x77777777")
for k in range(4):
    S(f"buffer_load_dwordx4 {vr(vUL+4*k,4)}, v{vUG}, {SRD_WS}, s{sUB} offen sc1")
    if k < 3: S(f"s_add_u32 s{sUB}, s{sUB}, {16*XBS}")
S("s_mov_b64 exec, -1")
for n in range(6): g1_read(S, n)
sKO = 18
S(f"""s_mul_i32 s{sSRC}, s{sWAVE}, {12*40*1024}
s_mul_i32 s11, s{sCB2}, 5120
s_add_u32 s{sSRC}, s{sSRC}, s11
s_add_u32 s{sSRC}, s{sSRC}, {W2R}
s_and_b32 s11, s{sRB2}, 7
s_mul_i32 s11, s11, {3*opt['wrot']}
s_lshr_b32 s11, s11, 1
s_lshl_b32 s{sKO}, s11, 10""")
for k in range(1, 12):
    S(f"s_add_u32 s{sKO+k}, s{sKO+k-1}, 1024\ns_cmp_eq_u32 s{sKO+k}, 12288\ns_cselect_b32 s{sKO+k}, 0, s{sKO+k}")
G1D = opt['g1d']
Sg = Stream(); nxt = G1PRE
first_use = {}
for n, (ks, ft) in enumerate(order): first_use.setdefault(ks, n)
for n, (ks, ft) in enumerate(order):
    if n in (3, 30, 60, 90): stamp(Sg, f'g1_{n//3}')
    c = vr(vAC + 16*ft, 16) if ks > 0 else "0"
    Sg(f"v_mfma_f32_32x32x16_bf16 {vr(vAC+16*ft,16)}, {vr(vAR + 4*(n % NAR), 4)}, {xreg(ks)}, {c}")
    if n + 6 < 120: g1_read(Sg, n + 6)
    if nxt < 40 and n % opt['xev'] == 0 and first_use[nxt] <= n + 3 * G1D + (opt['xlead'] if nxt >= 40 - STG else 0):
        assert nxt < 30 or max(m for m, o in enumerate(order) if o[0] == nxt - 30) <= n
        xn_load(Sg, nxt); nxt += 1
assert nxt == 40
plan = {}
if opt['xpos'] == 1:
    L = XA.l; per = 4; n = 0
    while L:
        g = Stream(); g(f"s_cmp_eq_u32 s{sWAVE}, 3\ns_cbranch_scc1 .Lxp{n}")
        for i in L[:per]:
            if i.kind == 'ds': i.kind = 'other'
            g.l.append(i)
        L = L[per:]
        g.label(f".Lxp{n}"); plan[1 + n] = g; n += 1
    g = Stream(); g(f"s_cmp_eq_u32 s{sWAVE}, 3\ns_cbranch_scc1 .Lxp{n}")
    for i in XB.l:
        if i.kind == 'ds': i.kind = 'other'
        g.l.append(i)
    g.label(f".Lxp{n}"); plan[1 + n] = g
    assert n + 1 < 30
vCA = 20; vCP = 36; vKB = 44; vR = 176
vNON, vZ = 241, 242
sKO = 18
def w2_load(s, n):
    k, dt = divmod(n, 5)
    if dt == 0: s(f"s_mul_i32 s71, s{sKO+k}, 40\ns_add_u32 s71, s71, s{sSRC}")
    s(f"buffer_load_dwordx4 {ar(4*n,4)}, v{vL0 if dt < 4 else vL1}, {SRD_WS}, s71 offen offset:{1024*min(dt,3)} sc1")
wn = [0]
def w2_next(s, cnt):
    for _ in range(cnt):
        if wn[0] < 60: w2_load(s, wn[0]); wn[0] += 1
F = Stream()
F(f"v_mov_b32 v{vNON}, s{sNONCE}\nv_mov_b32 v{vZ}, 0")
plan.setdefault(40, Stream()).ext(F)
F = Stream()
for k in range(12):
    F(f"ds_read_b64 {vr(vB1P+2*k,2)}, v{vB1A} offset:{16*k}")
spread(F, 3, 26, plan)
F = Stream()
F(f"""s_mov_b32 s72, 0x00003f80
s_mov_b32 s73, 0x3f800000""")
unit_addr(F, sSL0)
spread(F, 14, 35, plan)
F = Stream()
for k in range(24):
    F(f"v_lshlrev_b32 v{vB1+2*k}, 16, v{vB1P+k}\nv_and_b32 v{vB1+2*k+1}, 0xffff0000, v{vB1P+k}")
spread(F, 30, 62, plan)
F = Stream()
for dt in range(5):
    F(f"ds_read_b64 {vr(vEB+2*dt,2)}, v{vBD} offset:{32*dt}")
    F(f"ds_read_b64 {vr(vED+2*dt,2)}, v{vBD} offset:{256+32*dt}")
spread(F, 64, 84, plan)
F = Stream()
F("s_mov_b32 exec_lo, 0x77777777\ns_mov_b32 exec_hi, 0x77777777")
for k in range(4):
    F(f"ds_write_b128 v{vUW}, {vr(vUL+4*k,4)} offset:{256*k}")
F("s_mov_b64 exec, -1")
plan.setdefault(opt['uw'], Stream()).ext(F)
F = Stream(); w2_next(F, opt['wan'])
spread(F, opt['wa0'], 119, plan)
def g1_epi(ft, packed):
    E = Stream()
    tp = 156 + 8 * ft
    for k in range(8):
        a = vAC + 16*ft + 2*k; b = vB1 + 16*ft + 2*k
        E(f"v_cvt_pk_bf16_f32 v{tp+k}, v{a}, v{a+1}")
        E(f"v_dot2_f32_bf16 v{a}, v{tp+k}, s72, v{b}")
        E(f"v_dot2_f32_bf16 v{a+1}, v{tp+k}, s73, v{b+1}")
    for k in range(8):
        a = vAC + 16*ft + 2*k
        E(f"v_cvt_pk_bf16_f32 v{tp+k}, v{a}, v{a+1}")
        E(f"v_pk_max_i16 v{tp+k}, v{tp+k}, 0")
        E(f"v_lshlrev_b32 v{a}, 16, v{tp+k}")
        E(f"v_and_b32 v{a+1}, 0xffff0000, v{tp+k}")
        if packed: E(f"v_pk_mul_f32 {vp(a)}, {vp(a)}, {vp(a)}")
        else: E(f"v_mul_f32 v{a}, v{a}, v{a}\nv_mul_f32 v{a+1}, v{a+1}, v{a+1}")
        E(f"v_cvt_pk_bf16_f32 v{tp+k}, v{a}, v{a+1}")
    t = None
    for jp in range(2):
        t = E(f"buffer_store_dwordx4 {vr(tp+4*jp,4)}, v{vHS}, {SRD_WS}, s{sHST} offen offset:{1024*ft + 512*jp} sc0 sc1")
    return E, t
rest = []
for ft in range(3):
    if STG >= 10 and ft < 2:
        E, th = g1_epi(ft, False)
        a0 = 120 - (2 - ft) * STG
        spread(E, a0 + 2, a0 + STG - 1, plan)
    else: rest.append(ft)
S.ext(weave(Sg, plan))
stamp(S, 'g1')
for ft in rest:
    E, th = g1_epi(ft, True)
    gs = []
    for _ in range(opt['wep'] // len(rest)):
        g = Stream(); w2_next(g, 1); gs.append(g)
    if gs: E = sprinkle(E, gs, len(E.l) // (len(gs) + 1))
    S.ext(E)
S("s_waitcnt lgkmcnt(0)")
S("s_barrier")
stamp(S, 'g1ep')

def conv_load(s, sg):
    s(f"ds_read_b128 {vr(vR + 4*(sg & 15), 4)}, v{vU} offset:{64*sg}")
    base, o = (vK, 16*sg) if sg < 16 else (vKn, 16*(sg-16))
    kb = vKB + 4*(sg & 3)
    s(f"ds_read2_b32 {vr(kb,2)}, v{base} offset0:{o} offset1:{o+1}")
    s(f"ds_read2_b32 {vr(kb+2,2)}, v{base} offset0:{o+2} offset1:{o+3}")
def conv_block(ramp, last=False):
    s = Stream()
    for sg in range(16):
        ld = Stream()
        if not (last and sg + 3 >= 16): conv_load(ld, sg + 3)
        for rt in (3, 2, 1, 0):
            first = 12 - 4*rt
            if ramp and sg < first: continue
            c = "0" if (ramp and sg == first) else vr(vCA + 4*rt, 4)
            s(f"v_mfma_f32_16x16x32_bf16 {vr(vCA+4*rt,4)}, {vr(vKB + 4*(sg&3),4)}, {vr(vR + 4*((sg+4+4*rt)&15),4)}, {c}")
            if ld.l: s.l.append(ld.l.pop(0))
        s.ext(ld)
    if not last:
        s(f"v_add_u32 v{vU}, 1024, v{vU}\nv_add_u32 v{vK}, 1056, v{vK}\nv_add_u32 v{vKn}, 1056, v{vKn}")
    return s
def conv_save(s):
    for rt in (3, 2, 1, 0):
        for h in range(2):
            s(f"v_cvt_pk_bf16_f32 v{vCP + 4*(rt>>1) + 2*(rt&1) + h}, v{vCA+4*rt+2*h}, v{vCA+4*rt+2*h+1}")
def conv_fin(s):
    s("s_mov_b32 exec_lo, 0")
    conv_save(s)
    s("s_mov_b32 exec_lo, -1")
    t = None
    for pr in range(2):
        b = vCP + 4*pr
        s(f"v_permlane16_swap_b32 v{b}, v{b+2}")
        s(f"v_permlane16_swap_b32 v{b+1}, v{b+3}")
        t = s(f"buffer_store_dwordx4 {vr(b,4)}, v{vYl}, {SRD_WS}, s{sYB} offen offset:{512*pr} sc0 sc1")
    return t
for sg in range(3): conv_load(S, sg)
F = Stream(); w2_next(F, opt['wb0'])
S.ext(weave(conv_block(True), spread(F, 4, 39)))
stamp(S, 'cv_b0')
conv_save(S)
F = Stream()
F.wait(th)
F(f"buffer_store_dword v{vNON}, v{vZ}, {SRD_WS}, s{sHFL} offen sc0 sc1")
w2_next(F, opt['wb1'])
def tiles(F):
    F(f"s_mul_i32 s11, s{sWAVE}, 6144\ns_add_u32 s11, s11, {L_E}")
    for i in range(3):
        F(f"s_add_u32 m0, s11, {1024*i}")
        F(f"buffer_load_dwordx4 v{vXD+i}, {SRD_X}, s{sEN1} offen lds")
    for i in range(3):
        F(f"s_add_u32 m0, s11, {3072 + 1024*i - 2048*i}")
        F(f"buffer_load_dwordx4 v{vENA}, {SRD_WS}, s{sEN0} offen offset:{2048*i} sc1 lds") if i < 2 else None
    F.l.pop()
    F(f"s_add_u32 m0, s11, {3072 + 2048}\ns_add_u32 s{sEN0}, s{sEN0}, 4096")
    return F(f"buffer_load_dwordx4 v{vENA}, {SRD_WS}, s{sEN0} offen sc1 lds")
if opt['tpos'] == 0: tiles(F)
vH = 108
HF = [(62, vHF)]
assert wn[0] >= 5 * opt['ka'], wn[0]
if opt['hld'] < 0: flag_load(F, HF)
P1 = spread(F, opt['hfl'], 63)
S.ext(weave(conv_block(False), P1))
stamp(S, 'cv_b1')
NH = 17
KA = opt['ka']
steps = [(p, k) for p in range(4) for k in range(KA)] + [(p, k) for p in range(4) for k in range(KA, 12)]
def hreg(n): return vH + 4 * (n % NH)
def h_load(s, n):
    p, k = steps[n]
    s(f"s_add_u32 s70, s{sHB+p}, s{sKO+k}")
    s(f"buffer_load_dwordx4 {vr(hreg(n), 4)}, v{vL0}, {SRD_WS}, s70 offen sc1")
HPRE = opt['hpre']
def h_first(tag, first, gap, ld):
    plan = {}
    if opt['hld'] >= 0:
        F = Stream(); flag_load(F, HF); plan[ld] = F
        assert ld < first
    F = Stream()
    flag_test(F, HF)
    F("s_mov_b64 s[46:47], vcc")
    plan[first] = F
    for n in range(HPRE):
        F = Stream()
        F(f"s_cbranch_vccnz .Lhskip{tag}{n}")
        h_load(F, n)
        F.label(f".Lhskip{tag}{n}")
        plan.setdefault(first + 1 + n * gap, Stream()).ext(F)
    return plan
S(f"s_lshl_b32 s{sYF}, s{sRG}, 7\ns_lshl_b32 s12, s{sWAVE}, 2\ns_add_u32 s{sYF}, s{sYF}, s12\ns_add_u32 s{sYF}, s{sYF}, {FY}\ns_cmp_eq_u32 s{sISX}, 1")
S.save('b2')
S("s_cbranch_scc1 .Lb2x")
S.ext(weave(conv_block(False), h_first('a', opt['hchk'], opt['hgap'], opt['hld'])))
S("s_waitcnt lgkmcnt(0)")
S.endpath(keep=None)
S("s_branch .Lb3")
S.label(".Lb2x")
S.restore('b2')
conv_fin(S)
unit_addr(S, sSL1)
for sg in range(3): conv_load(S, sg)
S.ext(weave(conv_block(True), h_first('b', opt['hchkx'], opt['hgapx'], opt['hldx'])))
S("s_waitcnt lgkmcnt(0)")
S.endpath(keep=None)
S.label(".Lb3")
for n in range(HPRE): S.assume([('v', hreg(n) + r) for r in range(4)])
stamp(S, 'cv_b2')
conv_save(S)
plan = {}
def tile_reads(F):
    for dt in range(5):
        F(f"ds_read_b64 {vr(vEX+2*dt,2)}, v{vEA} offset:{32*dt}")
        F(f"ds_read_b64 {vr(EN(2*dt),2)}, v{vEA+1} offset:{3072 + 512*dt}")
F = Stream()
if opt['tpos'] == 0: tile_reads(F)
else: ttile = tiles(F)
spread(F, 4 if opt['tpos'] == 0 else 46, 40 if opt['tpos'] == 0 else 63, plan)
HB3 = opt['hb3']
for n in range(HPRE, HPRE + HB3):
    F = Stream()
    F(f"s_cbranch_vccnz .Lhskipc{n}")
    h_load(F, n)
    F.label(f".Lhskipc{n}")
    plan.setdefault(2 + (n - HPRE) * opt['hgap'], Stream()).ext(F)
HPRE += HB3
F = Stream(); w2_next(F, opt['wb3'])
if F.l: spread(F, 5, 60, plan)
assert HPRE <= 17
S.ext(weave(conv_block(False, last=True), plan))
ty = conv_fin(S)
S("s_cmp_lg_u64 s[46:47], 0\ns_cbranch_scc1 .Lhs")
S.label(".Lhb")
X = Stream()
for n in range(HPRE): h_load(X, n)
spin(".Lh", HF, post=X)
stamp(S, 'conv')

assert opt['tpos'] == 0 and (not opt['fast'] or KA == 12)
AC = [20, 176, 196, 40]
vRW = 240
S(f"v_add_u32 v{vRW}, s{sW2B}, v{vL0}")
HD = opt['hd']
hn = HPRE
G2 = Stream()
for n, (p, k) in enumerate(steps):
    if n in (12, 24, 36): stamp(G2, f'g2_p{n//12-1}')
    for dt in range(5):
        c = ("0" if not (opt['fast'] and p == 3) else vr(216 + 4*dt, 4)) if k == 0 else vr(AC[p] + 4*dt, 4)
        G2(f"v_mfma_f32_16x16x32_bf16 {vr(AC[p]+4*dt,4)}, {ar((k*5+dt)*4,4)}, {vr(hreg(n), 4)}, {c}")
        if dt in (0, 2) and hn < 48 and hn <= n + HD:
            assert hn - NH < n or (hn - NH == n and False)
            h_load(G2, hn); hn += 1
        if (5*n + dt) % opt['wev'] == 4: w2_next(G2, 1)
assert hn == 48 and wn[0] == 60
plan = {}
F = Stream()
F.wait(ty)
F(f"buffer_store_dword v{vNON}, v{vZ}, {SRD_WS}, s{sYF} offen sc0 sc1")
plan[opt['ypub']] = F
F = Stream()
for k in range(10 if not opt['fast'] else 0):
    a = 60 + 4*(k & 1)
    F(f"""v_lshlrev_b32 v{a}, 16, v{EN(k)}
v_and_b32 v{a+1}, 0xffff0000, v{EN(k)}
v_lshlrev_b32 v{a+2}, 16, v{vED+k}
v_and_b32 v{a+3}, 0xffff0000, v{vED+k}
v_mul_f32 v{a}, v{a}, v{a+2}
v_mul_f32 v{a+1}, v{a+1}, v{a+3}
v_cvt_pk_bf16_f32 v{EN(k)}, v{a}, v{a+1}""")
YF = [(60, 64, 4)]
F(f"""s_lshl_b32 s11, s{sCB2}, 12
s_add_u32 s11, s11, {FY}
v_and_b32 v2, 31, v0
v_lshl_add_u32 v64, v2, 7, s11
v_lshrrev_b32 v65, 2, v0
v_lshlrev_b32 v65, 7, v65
v_and_b32 v1, 3, v0
v_lshl_add_u32 v65, v1, 3, v65
s_lshl_b32 s11, s{sOWN}, 5
s_add_u32 s11, s11, {L_Y}
v_add_u32 v65, s11, v65""")
vB2 = 216; vXf = [92, 94, 96, 98, 100, 102, 244, 246, 248, 254]
for k in range(10):
    F(f"""v_lshlrev_b32 v{vB2+2*k}, 16, v{vEB+k}
v_and_b32 v{vB2+2*k+1}, 0xffff0000, v{vEB+k}
v_lshlrev_b32 v{vXf[k]}, 16, v{vEX+k}
v_and_b32 v{vXf[k]+1}, 0xffff0000, v{vEX+k}""")
vPA = [66, 67, 1]
for p in range(3):
    F(f"s_sub_u32 s11, s{sWAVE}, {p+1}\ns_and_b32 s11, s11, 3\ns_mul_i32 s11, s11, 15360\ns_add_u32 s11, s11, {L_W}\nv_add_u32 v{vPA[p]}, s11, v{vL0}")
F(f"s_mov_b32 s12, {f32(-LOG2E)}\ns_mov_b32 s13, {f32(-LOG2E)}\ns_mov_b32 s14, 1.0\ns_mov_b32 s15, 1.0")
spread(F, 4, min(opt['yfl'] - 1, 155) if not opt['fast'] else 95, plan)
F = Stream(); flag_load(F, YF)
plan.setdefault(opt['yfl'], Stream()).ext(F)
F = Stream(); flag_check(F, YF)
F(f"s_mul_i32 s11, s{sWAVE}, 2560\ns_add_u32 s11, s11, {L_Y}")
for i, o in enumerate((0, 1024, 1536)):
    F(f"s_add_u32 m0, s11, {o}")
    tyl = F(f"buffer_load_dwordx4 v{vYG}, {SRD_WS}, s{sYL+i} offen sc1 lds")
plan.setdefault(opt['ychk'], Stream()).ext(F)
for p in range(3):
    last = 5 * max(n for n, st in enumerate(steps) if st[0] == p) + 4
    F = Stream()
    for dt in range(5):
        F(f"ds_write_b128 v{vRW}, {vr(AC[p]+4*dt,4)} offset:{p*5120 + dt*1024}")
    spread(F, last + 3, last + 3 + min(15, 5 * (12 - KA) - 5 if KA < 12 else 15), plan)
if opt['fast']:
    F = Stream()
    for k in range(10):
        a = 20 + 2*k
        F(f"""v_lshlrev_b32 v{a}, 16, v{EN(k)}
v_and_b32 v{a+1}, 0xffff0000, v{EN(k)}
v_lshlrev_b32 v2, 16, v{vED+k}
v_and_b32 v3, 0xffff0000, v{vED+k}
v_mul_f32 v{a}, v{a}, v2
v_mul_f32 v{a+1}, v{a+1}, v3""")
    spread(F, 100, 158, plan)
S.ext(weave(G2, plan))
vS = 176 if not opt['fast'] else 20; vYT = 196; vG2 = 20
stamp(S, 'g2')
S("s_waitcnt lgkmcnt(0)")
S("s_barrier")
stamp(S, 'e_bar')
PS = lambda p, dt: 108 + 20*p + 4*dt
for p in range(3):
    for dt in range(5):
        S(f"ds_read_b128 {vr(PS(p, dt), 4)}, v{vPA[p]} offset:{p*5120 + dt*1024}")
ac = vG2 + 20
for p in range(3):
    for k in range(10):
        S(f"v_pk_add_f32 {vp(ac+2*k)}, {vp(ac+2*k)}, {vp(PS(p, k//2) + 2*(k&1))}")
T = lambda k: 108 + 2*k
def stage(fn):
    for k in range(10): fn(k, ac + 2*k, T(k))
def y_in():
    S.wait(tyl)
    S("s_barrier")
    for dt in range(5):
        S(f"ds_read_b64_tr_b16 {vr(vYT+2*dt,2)}, v65 offset:{2048*dt}")
if opt['fast']:
    stage(lambda k, a, t: S(f"v_pk_mul_f32 {vp(t)}, {vp(a)}, s[12:13]"))
    stage(lambda k, a, t: S(f"v_exp_f32 v{t}, v{t}\nv_exp_f32 v{t+1}, v{t+1}"))
    stage(lambda k, a, t: S(f"v_pk_add_f32 {vp(t)}, {vp(t)}, s[14:15]"))
    stage(lambda k, a, t: S(f"v_rcp_f32 v{t}, v{t}\nv_rcp_f32 v{t+1}, v{t+1}"))
    y_in()
    stage(lambda k, a, t: S(f"v_pk_mul_f32 {vp(a)}, {vp(a)}, {vp(t)}"))
    stage(lambda k, a, t: S(f"v_dot2_f32_bf16 v{vS+2*k}, v{vYT+k}, s72, v{vS+2*k}\nv_dot2_f32_bf16 v{vS+2*k+1}, v{vYT+k}, s73, v{vS+2*k+1}"))
    stage(lambda k, a, t: S(f"v_pk_fma_f32 {vp(a)}, {vp(a)}, {vp(vS+2*k)}, {vp(vXf[k])}"))
else:
    stage(lambda k, a, t: S(f"v_cvt_pk_bf16_f32 v{t}, v{a}, v{a+1}"))
    stage(lambda k, a, t: S(f"v_dot2_f32_bf16 v{a}, v{t}, s72, v{vB2+2*k}\nv_dot2_f32_bf16 v{a+1}, v{t}, s73, v{vB2+2*k+1}"))
    stage(lambda k, a, t: S(f"v_cvt_pk_bf16_f32 v{t}, v{a}, v{a+1}"))
    stage(lambda k, a, t: S(f"v_lshlrev_b32 v{a}, 16, v{t}\nv_and_b32 v{a+1}, 0xffff0000, v{t}\nv_pk_mul_f32 {vp(t)}, {vp(a)}, s[12:13]"))
    stage(lambda k, a, t: S(f"v_exp_f32 v{t}, v{t}\nv_exp_f32 v{t+1}, v{t+1}"))
    stage(lambda k, a, t: S(f"v_pk_add_f32 {vp(t)}, {vp(t)}, s[14:15]"))
    stage(lambda k, a, t: S(f"v_rcp_f32 v{t}, v{t}\nv_rcp_f32 v{t+1}, v{t+1}"))
    y_in()
    stage(lambda k, a, t: S(f"v_pk_mul_f32 {vp(a)}, {vp(a)}, {vp(t)}"))
    stage(lambda k, a, t: S(f"v_cvt_pk_bf16_f32 v{t}, v{a}, v{a+1}\nv_lshlrev_b32 v{a}, 16, v{t}\nv_and_b32 v{a+1}, 0xffff0000, v{t}"))
    stage(lambda k, a, t: S(f"v_lshlrev_b32 v{vS+2*k}, 16, v{vYT+k}\nv_and_b32 v{vS+2*k+1}, 0xffff0000, v{vYT+k}\nv_dot2_f32_bf16 v{vS+2*k}, v{EN(k)}, s72, v{vS+2*k}\nv_dot2_f32_bf16 v{vS+2*k+1}, v{EN(k)}, s73, v{vS+2*k+1}"))
    stage(lambda k, a, t: S(f"v_cvt_pk_bf16_f32 v{t}, v{vS+2*k}, v{vS+2*k+1}\nv_lshlrev_b32 v{vS+2*k}, 16, v{t}\nv_and_b32 v{vS+2*k+1}, 0xffff0000, v{t}\nv_pk_mul_f32 {vp(a)}, {vp(a)}, {vp(vS+2*k)}\nv_cvt_pk_bf16_f32 v{t}, v{a}, v{a+1}"))
    stage(lambda k, a, t: S(f"v_dot2_f32_bf16 v{a}, v{t}, s72, v{vXf[k]}\nv_dot2_f32_bf16 v{a+1}, v{t}, s73, v{vXf[k]+1}"))
for k in range(10):
    a = ac + 2*k
    S(f"v_cvt_pk_bf16_f32 v{vEX+k}, v{a}, v{a+1}")
    if k & 1:
        S(f"buffer_store_dwordx2 {vr(vEX+k-1,2)}, v{vOO}, {SRD_OUT}, 0 offen offset:{32*(k//2)}")
stamp(S, 'end')
if opt['stamps']:
    S(f"s_memrealtime s[68:69]\ns_waitcnt lgkmcnt(0)\nv_writelane_b32 v{vST}, s68, 31")
    S(f"s_lshl_b32 s11, s{sWG}, 2\ns_add_u32 s11, s11, s{sWAVE}\ns_lshl_b32 s11, s11, 7\ns_add_u32 s11, s11, {STAMP}\nv_lshlrev_b32 v1, 2, v0\ns_mov_b32 exec_hi, 0")
    S(f"buffer_store_dword v{vST}, v1, {SRD_WS}, s11 offen")
S.label(".Lend")
S("s_endpgm")

body = finalize(S) + finalize(COLD) + ["    s_endpgm"]
H2 = f""".amdgcn_target "amdgcn-amd-amdhsa--gfx950"
.text
.globl {NAME}_kernel
.p2align 8
.type {NAME}_kernel,@function
{NAME}_kernel:"""
body, nbytes, nfix = align_pass(body, H2, minrun=5 if opt['align'] else 100000)
sys.stderr.write(f"code bytes {nbytes}, alignment fixes {nfix}\n")
hdr = open('cdna_kernels/' + NAME + '.s.ref').read().split('\n')
out = []
for l in hdr:
    if l.startswith('; @launch'): out.append(f"; @launch grid=(256,1,1) block=(256,1,1) lds={LDS_BYTES}"); break
    out.append(l)
out.append(H2)
out += body
kb = opt['code_kb']
assert nbytes <= kb * 1024
out.append(f""".fill ({kb*1024 + 2304} - (. - {NAME}_kernel)) / 4, 4, 0xbf800000
.section .rodata,"a"
.p2align 6
.amdhsa_kernel {NAME}_kernel
  .amdhsa_next_free_vgpr 512
  .amdhsa_next_free_sgpr 102
  .amdhsa_accum_offset 256
  .amdhsa_group_segment_fixed_size 0
  .amdhsa_kernarg_size 120
  .amdhsa_user_sgpr_count 2
  .amdhsa_user_sgpr_kernarg_segment_ptr 1
  .amdhsa_system_sgpr_workgroup_id_x 1
.end_amdhsa_kernel""")
if opt['stamps']: out.insert(0, "; stamps: " + ",".join(stamp_names))
print('\n'.join(out))
```

```python
import re

REG_RE = re.compile(r'^(-|\|)?(abs\()?([vas])(\d+|\[(\d+):(\d+)\])\)?\|?$')

def parse_regs(tok):
    tok = tok.strip()
    if tok in ('vcc', 'exec', 'm0', 'scc'):
        return [tok]
    if tok in ('vcc_lo', 'vcc_hi'): return ['vcc']
    if tok in ('exec_lo', 'exec_hi'): return ['exec']
    m = REG_RE.match(tok)
    if not m: return []
    k = m.group(3)
    if m.group(5) is not None:
        return [(k, i) for i in range(int(m.group(5)), int(m.group(6)) + 1)]
    return [(k, int(m.group(4)))]

TRANS = ('v_exp_f32', 'v_log_f32', 'v_rcp_f32', 'v_rsq_f32', 'v_sqrt_f32', 'v_sin_f32', 'v_cos_f32')

class Ins:
    __slots__ = ('maybe', 'text', 'mn', 'kind', 'dst', 'src', 'tok', 'need', 'ops', 'srcC', 'srcAB', 'passes', 'dpp', 'wide', 'data', 'ldsdma', 'cost')
    def __init__(self, text):
        self.text = text
        self.maybe = False
        self.tok = None; self.need = []
        self.dst = []; self.src = []; self.srcC = []; self.srcAB = []; self.passes = 0
        self.dpp = False; self.wide = False; self.data = []; self.ldsdma = False
        t = text.split(';')[0].strip()
        if t.endswith(':'):
            self.kind = 'label'; self.mn = t; return
        parts = t.split(None, 1)
        mn = parts[0]; self.mn = mn
        rest = parts[1] if len(parts) > 1 else ''
        ops = []; depth = 0; cur = ''
        for ch in rest:
            if ch in '[(': depth += 1
            if ch in '])': depth -= 1
            if ch == ',' and depth == 0:
                ops.append(cur.strip()); cur = ''
            else: cur += ch
        if cur.strip(): ops.append(cur.strip())
        mods = ''
        if ops:
            sp = ops[-1].split(None, 1)
            ops[-1] = sp[0]
            if len(sp) > 1: mods = sp[1]
        self.ops = ops
        R = [parse_regs(o) for o in ops]
        flat = lambda L: [r for x in L for r in x]
        if mn.startswith('v_mfma'):
            self.kind = 'mfma'
            self.dst = R[0]; self.srcAB = R[1] + R[2]; self.srcC = R[3]; self.src = self.srcAB + self.srcC
            self.passes = 8 if '32x32x16' in mn else 4
            assert ('32x32x16' in mn) or ('16x16x32' in mn)
        elif mn.startswith('v_'):
            self.kind = 'trans' if mn.replace('_e32', '').replace('_e64', '') in TRANS else 'valu'
            if mn.startswith('v_cmp'):
                self.dst = R[0]; self.src = flat(R[1:])
                if mn.startswith('v_cmpx'): self.dst = self.dst + ['exec']
            elif mn.startswith('v_permlane') and 'swap' in mn:
                self.dst = R[0] + R[1]; self.src = R[0] + R[1]
            elif '_co_' in mn:
                self.dst = R[0] + R[1]; self.src = flat(R[2:])
            elif mn == 'v_nop':
                pass
            else:
                self.dst = R[0]; self.src = flat(R[1:])
                if mn.startswith(('v_fmac', 'v_dot2c', 'v_writelane', 'v_pk_fmac')): self.src = self.src + R[0]
                if mn.startswith('v_cndmask') and len(ops) == 3: self.src = self.src + ['vcc']
            if 'dpp' in mn or 'row_' in mods or 'quad_perm' in mods or 'wave_' in mods:
                self.dpp = True
                self.src = self.src + R[0]
            if 'sdwa' in mn: self.src = self.src + R[0]
        elif mn.startswith('ds_'):
            self.kind = 'ds'
            if mn.startswith(('ds_read', 'ds_bpermute', 'ds_permute', 'ds_swizzle')) or '_rtn' in mn:
                self.dst = R[0]; self.src = flat(R[1:])
            else:
                self.src = flat(R)
            if 'addtid' in mn: self.src = self.src + ['m0']; self.ldsdma = True
        elif mn.startswith(('buffer_', 'global_')):
            self.kind = 'vmem'
            lds = re.search(r'\blds\b', mods) is not None or '_lds_' in mn
            if lds:
                self.ldsdma = True; self.src = flat(R) + ['m0']
            elif '_load' in mn:
                self.dst = R[0]; self.src = flat(R[1:])
                if 'd16' in mn: self.src = self.src + R[0]
            elif mn in ('buffer_inv', 'buffer_wbl2'):
                pass
            else:
                self.src = flat(R)
                if mn.startswith('buffer_'): self.data = R[0]
                else: self.data = R[1]
                self.wide = ('x4' in mn) or ('x3' in mn)
                if 'atomic' in mn and re.search(r'\bsc0\b', mods): self.dst = self.data
        elif mn.startswith(('s_load', 's_buffer_load', 's_memtime', 's_memrealtime')):
            self.kind = 'smem'; self.dst = R[0]; self.src = flat(R[1:])
        elif mn.startswith(('s_cbranch', 's_branch', 's_setpc', 's_swappc', 's_endpgm')):
            self.kind = 'branch'; self.src = flat(R)
        elif mn in ('s_waitcnt', 's_nop', 's_barrier', 's_sleep', 's_setprio'):
            self.kind = 'other'
        elif mn.startswith('s_'):
            self.kind = 'salu'
            if mn.startswith(('s_cmp', 's_bitcmp')):
                self.src = flat(R)
            else:
                self.dst = R[0]; self.src = flat(R[1:])
                if 'saveexec' in mn: self.dst = self.dst + ['exec']
        else:
            raise ValueError("unknown instr: " + text)

class Tok:
    def __init__(self, cls): self.cls = cls; self.done = False

class Stream:
    def __init__(self): self.l = []
    def __call__(self, text, need=None, tok=False):
        for line in text.split('\n'):
            line = line.strip()
            if not line or line.startswith(';'): continue
            i = Ins(line)
            if need: i.need = list(need) if isinstance(need, (list, tuple)) else [need]; need = None
            if i.kind in ('vmem', 'ds'):
                i.tok = Tok('vm' if i.kind == 'vmem' else 'lgkm')
            self.l.append(i)
        return self.l[-1].tok
    def junk(self, text):
        t = self(text); self.l[-1].dst = []; return t
    def wait(self, *toks):
        i = Ins('s_nop 0'); i.kind = 'waitonly'; i.need = [t for t in toks if t is not None]
        self.l.append(i)
    def ext(self, other):
        self.l.extend(other.l if isinstance(other, Stream) else other)
    def label(self, name): self(name + ':')
    def pseudo(self, kind, name=None):
        i = Ins('s_nop 0'); i.kind = kind; i.text = name; self.l.append(i)
    def save(self, name): self.pseudo('save', name)
    def restore(self, name): self.pseudo('restore', name)
    def assume(self, regs):
        i = Ins('s_nop 0'); i.kind = 'assume'; i.dst = list(regs); i.tok = Tok('vm'); self.l.append(i); return i.tok
    def endpath(self, keep=()):
        self.pseudo('endpath' if keep is not None else 'forget'); self.l[-1].dst = list(keep or ())
    def endpath_old(self): self.pseudo('endpath')

def interleave(main, fillers, per_gap, start=0, is_anchor=lambda i: i.kind == 'mfma', flush=True):
    out = Stream(); f = list(fillers.l); n = 0; acc = 0.0
    for ins in main.l:
        out.l.append(ins)
        if is_anchor(ins):
            if n >= start:
                acc += per_gap
                while acc >= 1.0 and f:
                    x = f.pop(0); out.l.append(x)
                    if x.kind != 'waitonly': acc -= 1.0
                if not f: acc = 0.0
            n += 1
    if flush: out.l.extend(f); f = []
    rest = Stream(); rest.l = f
    return (out, rest) if not flush else out

def sprinkle(main, groups, every, start=0):
    out = Stream(); g = list(groups); n = 0; nxt = start + every
    for ins in main.l:
        out.l.append(ins)
        if ins.kind in ('waitonly', 'label', 'save', 'restore', 'endpath', 'assume', 'forget'): continue
        n += 1
        if n >= nxt and g:
            out.ext(g.pop(0)); nxt += every
    for x in g: out.ext(x)
    return out

def weave(main, plan, is_anchor=lambda i: i.kind == 'mfma'):
    out = Stream(); n = 0; used = set()
    for ins in main.l:
        out.l.append(ins)
        if is_anchor(ins):
            if n in plan: out.ext(plan[n]); used.add(n)
            n += 1
    for k in sorted(plan):
        if k not in used: out.ext(plan[k])
    return out

def spread(fill, first, last, plan=None):
    plan = {} if plan is None else plan
    L = list(fill.l); real = [i for i in L if i.kind != 'waitonly']
    n = last - first + 1; tot = len(real); k = 0
    for ins in L:
        a = first + min(n - 1, (k * n) // max(tot, 1))
        plan.setdefault(a, Stream()).l.append(ins)
        if ins.kind != 'waitonly': k += 1
    return plan

def fit(main, plan, fill, first, last, cap, extra=None):
    load = {}; n = -1
    for ins in main.l:
        if ins.kind == 'mfma': n += 1; load[n] = 0
        elif n >= 0 and ins.kind not in ('waitonly', 'label', 'save', 'restore', 'assume'): load[n] += 1
    for g, st in plan.items(): load[g] = load.get(g, 0) + sum(1 for i in st.l if i.kind not in ('waitonly', 'label'))
    if extra:
        for g in load: load[g] += extra(g)
    slots = []
    for g in range(first, last + 1): slots += [g] * max(0, cap - load.get(g, 0))
    real = [i for i in fill.l if i.kind != 'waitonly']
    assert len(slots) >= len(real), (len(slots), len(real))
    k = 0
    for ins in fill.l:
        g = slots[min(len(slots) - 1, (k * len(slots)) // len(real))]
        plan.setdefault(g, Stream()).l.append(ins)
        if ins.kind != 'waitonly': k += 1
    return plan

def finalize(stream, verbose=False):
    out = []
    q = {'vm': [], 'lgkm': []}
    saved = {}; lost = set(); issued = set()
    def emit_wait(vm=None, lg=None):
        parts = []
        if vm is not None: parts.append(f'vmcnt({min(vm,63)})')
        if lg is not None: parts.append(f'lgkmcnt({min(lg,15)})')
        out.append(Ins('s_waitcnt ' + ' '.join(parts)))
    def retire(cls, n):
        L = q[cls]
        while len(L) > n:
            L.pop(0)
    for ins in stream.l:
        if ins.kind == 'label':
            out.append(ins); continue
        if ins.kind == 'forget':
            for cls in q:
                for x in q[cls]:
                    if x[0] is not None: lost.add(id(x[0]))
                q[cls][:] = []
            continue
        if ins.kind == 'assume':
            q['vm'].append((ins.tok, set(ins.dst), False)); issued.add(id(ins.tok)); continue
        if ins.kind == 'save':
            saved[ins.text] = {c: list(q[c]) for c in q}; continue
        if ins.kind == 'restore':
            for c in q: q[c][:] = list(saved[ins.text][c])
            continue
        if ins.kind == 'endpath':
            for cls in q:
                pend = [x for x in q[cls] if x[1] - set(ins.dst)]
                if ins.dst and cls == 'vm': assert q[cls][-1][1] == set(ins.dst), "kept load must be the youngest"
                if pend:
                    raise RuntimeError(f"pending loads at endpath: {[(sorted(map(str,x[1])))[:4] for x in pend]}")
                for x in q[cls]:
                    if x[0] is not None: lost.add(id(x[0]))
                q[cls][:] = []
            continue
        if ins.mn == 's_waitcnt' and ins.kind == 'other':
            m = re.search(r'vmcnt\((\d+)\)', ins.text)
            if m: retire('vm', int(m.group(1)))
            m = re.search(r'lgkmcnt\((\d+)\)', ins.text)
            if m: retire('lgkm', int(m.group(1)))
            out.append(ins); continue
        need = {'vm': None, 'lgkm': None}
        touched = set(ins.src) | set(ins.dst)
        for cls in q:
            L = q[cls]
            idx = -1
            for k, (tok, dst, sm) in enumerate(L):
                if (dst & touched) or (tok is not None and tok in ins.need):
                    idx = k
            if idx >= 0:
                n = len(L) - 1 - idx
                if cls == 'lgkm' and any(x[2] for x in L): n = 0
                need[cls] = n
        for t in ins.need:
            if id(t) not in issued or (id(t) in lost and not any(t is x[0] for x in q[t.cls])):
                raise RuntimeError("token not in flight (issued later or lost): " + ins.text)
        if need['vm'] is not None or need['lgkm'] is not None:
            emit_wait(need['vm'], need['lgkm'])
            if need['vm'] is not None: retire('vm', min(need['vm'], 63))
            if need['lgkm'] is not None: retire('lgkm', min(need['lgkm'], 15))
        if ins.kind == 'waitonly': continue
        if ins.kind == 'vmem' and len(q['vm']) >= 58:
            emit_wait(50, None); retire('vm', 50)
        out.append(ins)
        if ins.tok is not None: issued.add(id(ins.tok))
        if ins.kind == 'vmem':
            q['vm'].append((ins.tok, set(ins.dst), False))
            if len(q['vm']) > 63: raise RuntimeError("more than 63 vmem outstanding")
        elif ins.kind == 'ds': q['lgkm'].append((ins.tok, set(ins.dst), False))
        elif ins.kind == 'smem': q['lgkm'].append((None, set(ins.dst), True))
    for n, ins in enumerate(out):
        if ins.kind == 'branch' and ins.mn.startswith('s_cbranch'):
            tgt = ins.ops[0] + ':'
            for m in range(n + 1, min(n + 80, len(out))):
                if out[m].kind == 'label' and out[m].mn == tgt:
                    for x in out[n+1:m]: x.maybe = True
                    break
    res = []
    nnop = 0
    def states(i):
        if i.kind == 'label': return 0
        if i.mn == 's_nop': return int(i.ops[0], 0) + 1
        return 1
    isv = lambda r: isinstance(r, tuple) and r[0] in 'va'
    iss = lambda r: (isinstance(r, tuple) and r[0] == 's') or r == 'vcc'
    for ins in out:
        req = 0
        if ins.kind not in ('label',):
            dist = 0
            S = set(ins.src); D = set(ins.dst)
            for p in reversed(res):
                if dist >= 20: break
                if p.kind == 'label':
                    continue
                need = 0
                PD = set(p.dst)
                pv = p.kind in ('valu', 'trans')
                cv = ins.kind in ('valu', 'trans')
                if pv and ins.kind == 'mfma' and (PD & S): need = max(need, 2)
                if pv and 'exec' in PD and ins.kind == 'mfma': need = max(need, 4)
                if p.kind == 'mfma':
                    big = {4: 8, 8: 12}[p.passes]
                    if ins.kind == 'mfma':
                        if PD & set(ins.srcAB): need = max(need, big)
                        if PD & set(ins.srcC):
                            if list(p.dst) == list(ins.srcC) and p.passes == ins.passes: pass
                            else: need = max(need, big - 2)
                        elif PD & D: need = max(need, big - 2)
                    elif ins.kind in ('valu', 'trans', 'ds', 'vmem'):
                        if PD & (S | D): need = max(need, big)
                        if (set(p.srcC) & D): need = max(need, {4: 3, 8: 7}[p.passes])
                if p.kind == 'trans' and cv and (PD & S): need = max(need, 1)
                if p.mn.startswith('v_dot') and (PD & (S | D)) and not (p.mn == ins.mn and p.mn.startswith('v_dot2c') and PD == D and not (PD & set(r for o in ins.ops[1:] for r in parse_regs(o)))): need = max(need, 3)
                if pv and ins.dpp and any(isv(r) for r in PD & S): need = max(need, 2)
                if pv and 'exec' in PD and ins.dpp: need = max(need, 5)
                if pv and ins.mn.startswith('v_permlane') and (PD & S): need = max(need, 2)
                if pv and ins.mn.startswith(('v_readlane', 'v_readfirstlane')) and any(isv(r) for r in PD & S): need = max(need, 1)
                if pv and 'exec' in PD and ins.mn.startswith(('v_readlane', 'v_readfirstlane', 'v_writelane', 'v_permlane')): need = max(need, 4)
                if pv and any(iss(r) for r in PD & S):
                    if cv: need = max(need, 4 if ins.mn.startswith(('v_readlane', 'v_writelane')) else 2)
                    if ins.kind == 'vmem': need = max(need, 5)
                    if ins.kind in ('salu', 'branch'): need = max(need, 1)
                if pv and 'vcc' in PD and ins.mn.startswith('s_cbranch_vcc'): need = max(need, 1)
                if p.kind == 'salu' and 'm0' in PD and ins.ldsdma: need = max(need, 1)
                if p.kind == 'vmem' and p.wide and (set(p.data) & D): need = max(need, 2)
                if pv and ('sdwa' in p.mn or 'op_sel' in p.text) and not p.mn.startswith('v_pk') and cv and (PD & (S | D)): need = max(need, 1)
                if need - dist > req: req = need - dist
                if not (p.maybe and not ins.maybe): dist += states(p)
        while req > 0:
            k = min(req, 16)
            res.append(Ins(f's_nop {k-1}')); req -= k; nnop += 1
        res.append(ins)
    if verbose: print(f"; finalize: {len(res)} instrs, {nnop} nops inserted")
    return [('' if i.kind == 'label' else '    ') + i.text for i in res]

import subprocess, tempfile, os
def align_pass(lines, head, minrun=5):
    src = head + '\n' + '\n'.join(lines) + '\n'
    with tempfile.TemporaryDirectory() as d:
        open(d + '/a.s', 'w').write(src)
        r = subprocess.run(['clang', '-x', 'assembler', '-target', 'amdgcn-amd-amdhsa', '-mcpu=gfx950', '-c', d + '/a.s', '-o', d + '/a.o'], capture_output=True, text=True)
        assert r.returncode == 0, r.stderr
        dis = subprocess.run(['llvm-objdump', '-d', '--mcpu=gfx950', d + '/a.o'], capture_output=True, text=True).stdout
    sizes = []
    for l in dis.splitlines():
        m = re.search(r'// [0-9A-F]{12}: ((?:[0-9A-F]{8} ?)+)', l)
        if m: sizes.append(4 * len(m.group(1).split()))
    idx = [i for i, l in enumerate(lines) if not l.strip().endswith(':')]
    assert len(idx) == len(sizes), (len(idx), len(sizes))
    size = dict(zip(idx, sizes))
    out = []; off = 0; prev = None; nfix = [0, 0]
    for pos, i in enumerate(range(len(lines))):
        if i not in size:
            out.append(lines[i]); prev = None; continue
        if size[i] == 8 and off % 8 == 4:
            run = 0; j = i
            while j < len(lines) and (j not in size or size[j] == 8):
                if j in size: run += 1
                j += 1
            if run >= minrun:
                mn = out[prev].split()[0] if prev is not None else ''
                if prev is not None and mn.startswith('v_') and psize == 4 and not mn.endswith(('_e64', '_dpp', '_sdwa')) and not mn.startswith(('v_readfirstlane', 'v_permlane', 'v_nop', 'v_accvgpr')):
                    out[prev] = out[prev].replace(mn, mn + '_e64', 1); nfix[0] += 1
                else:
                    out.append('    s_nop 0'); nfix[1] += 1
                off += 4
        out.append(lines[i]); prev = len(out) - 1; psize = size[i]; off += size[i]
    return out, off, nfix
```

```python
import sys, math, struct
sys.path.insert(0, 'gen')
from emit import *

NAME = "recurrent_scan__ssm_conv_s4d__dense_activation_squared_relu__prompt"
opt = dict(lt=3, lt0=4, lt1=40, hrt=2, hgap3=4, cap2=2, capc=2, xev=2, xlead=30, dtlb=1, w3cap=48, stamps=0, spin=2000000, code_kb=35, align=1, b0=8, b2a=2, b2b=2, b2c=4, xf0=4, xf1=6,
           g1pre=8, g1d=10, uw=45, mb=78, uf=48, wa0=84, wan=12, wep=12, wb0=14, wb1=22, tpos=0, xpos=0, ka=12, wb3=0, wev=10, hld=10, hldx=0, hchkx=34,
           hfl=8, tail10=0, stg=0, hrot=0, wrot=0, xrot=0, hb3=14, fast=0, ypub=50, hchk=52, hgap=4, hgapx=2, hpre=3, hd=12, yfl=185, ychk=225)
for a in sys.argv[1:]:
    k, v = a.split('='); opt[k] = int(v)

def f32(x): return struct.unpack('<I', struct.pack('<f', x))[0]
def vr(b, n=1): return f"v{b}" if n == 1 else f"v[{b}:{b+n-1}]"
def ar(b, n=1): return f"a{b}" if n == 1 else f"a[{b}:{b+n-1}]"
def vp(b): return f"v[{b}:{b+1}]"
def flat(gs):
    s = Stream()
    for g in gs: s.ext(g)
    return s

XNA = 0; XNB = 0x400000; HB = 0x800000; YT = 0x1000000
FX = 0x1500000; FB = FX + 0x8000; FH = FX + 0x10000; FY = FX + 0x40000
W2R = 0x1600000
STAMP = 0x1800000
XAS = 65536; XBS = 16384; HBS = 64; YS = 8192
L_W = 40960
SCR_W = 8704; TROW = 272
KSLOT = SCR_W; OOFF = 4284
L_U = 3 * KSLOT; USLOT = 4352
L_LN = L_U; LNROW = 1344
L_E = L_W + 61440
L_Y = L_E + 4 * 6144
L_P = L_W + 37 * 3072
L_F = L_W - 64
L_V = L_U + 3 * USLOT
LDS_BYTES = 163840
assert L_U + 3 * USLOT <= L_W and L_LN + 8 * LNROW <= L_W
sWG, sWAVE, sRB, sCB, sRB2, sCB2, sCBASE, sPAR, sNONCE = 2, 3, 4, 5, 6, 7, 8, 9, 10
P = lambda k: f"s[{16+2*k}:{17+2*k}]"
pX, pLOGA, pAIM, pCR, pCI, pLOGDT, pDSK, pBX, pW1, pB1, pW2, pB2, pOUT, pDBG, pWS = range(15)
SRD_X, SRD_W1, SRD_W2, SRD_WS, SRD_OUT = "s[48:51]", "s[52:55]", "s[56:59]", "s[60:63]", "s[64:67]"
sXB, sXC, sSCR, sW2B, sROT, sSRC, sRG, sXH = 76, 77, 78, 79, 80, 81, 82, 83
sOWN, sUB, sEN0, sEN1, sHST, sHFL = 84, 85, 86, 87, 88, 89
sHB = 90
sYL = 94
sSL0, sSL1, sISX, sYF2, sJ = 97, 98, 99, 100, 101
sYB, sYF = 74, 75
SPIN_MAX = opt['spin']
JUNK = "a255"
LOG2E = 1.4426950408889634
vU, vK, vKn = 92, 93, 94
vXD, vEA = 95, 98
vW2R, vUl, vKl, vYl, vOO, vUG, vUW = 100, 101, 102, 103, 104, 105, 106
vST = 107
vXF, vW1O, vBD, vB1A, vHS, vENA, vE0, vE1 = 240, 241, 244, 245, 246, 247, 248, 249
vHF, vYG, vL1, vL0, vA0, vA1 = 250, 251, 252, 253, 254, 255

S = Stream()
COLD = Stream()
stamp_names = []
SKIP = set('w3_b0 w3_ln ln_st idle ln k_u0 e_bar ep0 ep1 ep2'.split())
def stamp(s, name):
    if not opt['stamps'] or name in SKIP: return
    if name not in stamp_names: stamp_names.append(name)
    idx = stamp_names.index(name)
    assert 0 < idx < 29
    s(f"s_memtime s[68:69]\ns_waitcnt lgkmcnt(0)\nv_writelane_b32 v{vST}, s68, {idx}")

def bf16_round(s, dst, src):
    s(f"v_cvt_pk_bf16_f32 {dst}, {src}, {src}")
    s(f"v_and_b32 {dst}, 0xffff0000, {dst}")

def flag_load(s, loads, nonce=None):
    for vd, vo, *n in loads:
        s(f"buffer_load_dword{'x4' if n else ''} {vr(vd, 4 if n else 1)}, v{vo}, {SRD_WS}, 0 offen sc0 sc1")
    if nonce: s(f"global_load_dword v{nonce[0]}, v{nonce[1]}, {P(pDBG)} sc0 sc1")
def flag_test(s, loads, nonce=None):
    regs = [vd + k for vd, vo, *n in loads for k in range(4 if n else 1)]
    if nonce: s(f"v_readfirstlane_b32 s{sNONCE}, v{nonce[0]}")
    for r in regs: s(f"v_xor_b32 v{r}, s{sNONCE}, v{r}")
    for r in regs[1:]: s(f"v_or_b32 v{regs[0]}, v{regs[0]}, v{r}")
    if nonce:
        s(f"v_cmp_eq_u32 vcc, 0, v{nonce[0]}")
        s(f"v_cndmask_b32 v{regs[0]}, v{regs[0]}, 1, vcc")
    s(f"v_cmp_ne_u32 vcc, 0, v{regs[0]}")
uid = [0]
def spin(L, loads, nonce=None, pre="", post=None, drain=True):
    c = COLD
    c.label(f"{L}s")
    c("s_mov_b32 s70, 0")
    if pre: c(pre)
    c.label(f"{L}l")
    flag_load(c, loads, nonce)
    c("s_waitcnt vmcnt(0)")
    flag_test(c, loads, nonce)
    c(f"s_add_u32 s70, s70, 1\ns_cmp_gt_u32 s70, {SPIN_MAX}\ns_cbranch_scc1 {L}x\ns_cbranch_vccz {L}x\ns_sleep 4\ns_branch {L}l")
    c.label(f"{L}x")
    if post:
        c.ext(post)
        if drain: c("s_waitcnt vmcnt(0)")
        else: c.endpath(keep=None)
    c(f"s_nop 4\ns_branch {L}b")
def flag_check(s, loads):
    uid[0] += 1; L = f".Lc{uid[0]}"
    flag_test(s, loads)
    s(f"s_cbranch_vccnz {L}s")
    s.label(f"{L}b")
    spin(L, loads)

if opt['stamps']:
    S("s_memtime s[70:71]"); stamp_names.append('start')
S(f"s_cmp_ge_u32 s{sWG}, 256")
S("s_cbranch_scc1 .Lend")
S("s_load_dwordx16 s[16:31], s[0:1], 0")
S("s_load_dwordx8 s[32:39], s[0:1], 64")
S("s_load_dwordx4 s[40:43], s[0:1], 96")
S("s_load_dwordx2 s[44:45], s[0:1], 112")
vX = 20; vRAW = 120
S(f"""s_getpc_b64 s[72:73]
s_and_b32 s11, s{sWG}, 7
s_lshr_b32 s{sJ}, s{sWG}, 3
s_lshl_b32 s{sRG}, s11, 5
s_add_u32 s{sRG}, s{sRG}, s{sJ}
v_lshrrev_b32 v4, 4, v0
v_lshl_add_u32 v2, s{sRG}, 3, v4
v_mul_u32_u24 v2, 1280, v2
v_and_b32 v7, 15, v0
v_lshl_add_u32 v2, v7, 4, v2
v_lshrrev_b32 v3, 6, v0
v_and_b32 v0, 63, v0
v_readfirstlane_b32 s{sWAVE}, v3
s_and_b32 s{sPAR}, s{sJ}, 1
s_lshl_b32 s{sCBASE}, s11, 4
s_lshr_b32 s15, s{sJ}, 1
s_add_u32 s{sCBASE}, s{sCBASE}, s15
s_mul_i32 s{sCBASE}, s{sCBASE}, 5
s_lshl_b32 s15, s{sPAR}, 1
s_add_u32 s{sCBASE}, s{sCBASE}, s15
s_min_u32 s12, s{sWAVE}, 2
s_add_u32 s12, s12, s{sCBASE}
s_mul_i32 s15, s12, 384
s_lshl_b32 s12, s12, 1
s_and_b32 s13, s12, -4
s_lshl_b32 s46, s12, 3
v_mul_u32_u24 v6, 6, v0
v_and_b32 v6, -4, v6
v_add_u32 v6, s15, v6
v_mov_b32 v10, {L_F}
v_mov_b32 v12, 0
v_mov_b32 v13, 0
ds_write_b64 v10, v[12:13]
s_cmp_ge_u32 s{sWAVE}, 2
s_waitcnt lgkmcnt(0)
s_cbranch_scc1 .Lnox""")
for j in range(5):
    S(f"global_load_dwordx4 {vr(vX+4*j,4)}, v2, {P(pX)} offset:{256*j}")
S.label(".Lnox")
if opt['stamps']:
    S(f"v_mov_b32 v{vST}, 0\nv_writelane_b32 v{vST}, s70, 0\ns_memrealtime s[68:69]\ns_waitcnt lgkmcnt(0)\nv_writelane_b32 v{vST}, s68, 30")
S(f"s_load_dword s47, {P(pLOGDT)}, s13")
S("s_barrier")
S(f"s_cmp_eq_u32 s{sWAVE}, 3\ns_cbranch_scc1 .Lnopar")
for k, p in enumerate((pLOGA, pAIM, pCR, pCI)):
    S(f"global_load_dwordx2 {vr(vRAW+2*k,2)}, v6, {P(p)}")
S.label(".Lnopar")
def srd(name, p, nbytes):
    b = int(name[2:name.index(':')])
    S(f"s_mov_b32 s{b}, s{16+2*p}\ns_mov_b32 s{b+1}, s{17+2*p}\ns_mov_b32 s{b+2}, {nbytes}\ns_mov_b32 s{b+3}, 0x20000")
S(f"""v_min_u32 v10, 2, v0
v_mul_u32_u24 v10, 10, v10
v_min_u32 v11, 1, v0
v_lshlrev_b32 v11, 1, v11
v_cmp_lt_u32 vcc, 1, v0
s_lshr_b32 s12, s{sRG}, 7
v_add_u32 v11, s12, v11
v_cndmask_b32 v10, v11, 10, vcc
v_cmp_lt_u32 vcc, 2, v0
v_cndmask_b32 v10, v10, 11, vcc
v_lshlrev_b32 v10, 21, v10
v_add_u32 v10, 0x1fff80, v10
v_mov_b32 v12, 0x80
s_mul_i32 s12, s{sJ}, {opt['code_kb'] * 32}
v_lshl_add_u32 v1, v0, 5, s12
s_cmp_eq_u32 s{sWAVE}, 1
s_cbranch_scc1 .Ltlb1
s_cmp_eq_u32 s{sWAVE}, 2
s_cbranch_scc1 .Ltlb2
s_cmp_eq_u32 s{sWAVE}, 3
s_cbranch_scc1 .Ltlb3""")
S.junk(f"global_load_dword {JUNK}, v1, s[72:73]"); S.l[-1].kind = 'other'
S("s_branch .Ltlbd")
S.label(".Ltlb1")
if opt['dtlb']:
    S(f"""s_lshl_b32 s12, s{sJ}, 21
s_add_u32 s12, s12, 0x1fff80
s_mov_b64 s[68:69], {P(pWS)}""")
    for n, (p_, off) in enumerate(((pB1, 0x80), (pX, 0), (pX, 0x200000), (pB2, 0x80), (pDSK, 0x80), (pOUT, 0), (pOUT, 0x200000))):
        S(f"s_cmp_eq_u32 s{sJ}, {12+n}\ns_cselect_b64 s[68:69], {P(p_)}, s[68:69]\ns_cselect_b32 s12, {off}, s12")
    S(f"v_mov_b32 v12, s12\ns_cmp_ge_u32 s{sJ}, 19\ns_cbranch_scc1 .Ltlbd")
    S.junk(f"global_load_dword {JUNK}, v12, s[68:69]"); S.l[-1].kind = 'other'
S("s_branch .Ltlbd")
S.label(".Ltlb3")
S.junk(f"global_load_dword {JUNK}, v10, {P(pWS)}"); S.l[-1].kind = 'other'
S("s_branch .Ltlbd")
S.label(".Ltlb2")
S.junk(f"global_load_dword {JUNK}, v12, {P(pDBG)}"); S.l[-1].kind = 'other'
S(f"""s_cmp_lg_u32 s{sWG}, 0
s_cbranch_scc1 .Ltlbd
s_memrealtime s[68:69]
s_waitcnt lgkmcnt(0)
s_lshl_b32 s68, s68, 1
s_or_b32 s68, s68, 1
v_mov_b32 v1, s68
v_mov_b32 v2, 0
global_store_dword v2, v1, {P(pDBG)} sc0 sc1""")
S.l[-1].kind = 'other'
S.label(".Ltlbd")
srd(SRD_W1, pW1, 640*1536*2)
srd(SRD_W2, pW2, 640*1536*2)
srd(SRD_WS, pWS, 0x10000000)
srd(SRD_X, pX, 2048*640*2)
srd(SRD_OUT, pOUT, 2048*640*2)
S(f"""s_lshr_b32 s13, s11, 1
s_and_b32 s{sXH}, s11, 1
s_lshl_b32 s{sRB}, s13, 2
s_and_b32 s15, s{sJ}, 3
s_add_u32 s{sRB}, s{sRB}, s15
s_lshl_b32 s{sCB}, s{sXH}, 3
s_lshr_b32 s12, s{sJ}, 2
s_add_u32 s{sCB}, s{sCB}, s12
s_lshl_b32 s15, s15, 1
s_mul_i32 s{sROT}, s{sCB}, {opt['xrot']}
s_add_u32 s{sROT}, s15, s{sROT}
s_lshl_b32 s{sRB2}, s13, 3
s_and_b32 s15, s{sJ}, 7
s_add_u32 s{sRB2}, s{sRB2}, s15
s_lshl_b32 s{sCB2}, s{sXH}, 2
s_lshr_b32 s15, s{sJ}, 3
s_add_u32 s{sCB2}, s{sCB2}, s15
s_mov_b32 s{sNONCE}, 0
s_mul_i32 s{sSCR}, s{sWAVE}, {SCR_W}
s_mul_i32 s{sW2B}, s{sWAVE}, 15360
s_add_u32 s{sW2B}, s{sW2B}, {L_W}
s_mul_i32 s{sSRC}, s{sCB}, 192
s_mov_b32 s70, {L_W}
s_and_b32 s12, s{sROT}, 7
s_mul_i32 s71, s12, {5*49152}
s_add_u32 s71, s71, s{sSRC}
s_add_u32 s74, s{sSRC}, {40*49152}""")
def divmod_off(dst, i, magic, div, stride):
    S(f"""v_add_u32 v15, {64*i}, v0
v_mul_u32_u24 v2, {magic}, v15
v_lshrrev_b32 v2, 19, v2
v_mul_u32_u24 v3, {div}, v2
v_sub_u32 v3, v15, v3
v_mul_u32_u24 v2, {stride}, v2
v_lshl_add_u32 v{dst}, v3, 4, v2""")
def w1_slot(s):
    for i in range(3):
        s(f"s_add_u32 m0, s70, {i*1024}")
        s(f"buffer_load_dwordx4 v{vW1O+i}, {SRD_W1}, s71 offen lds")
    s(f"""s_add_u32 s70, s70, 3072
s_add_u32 s71, s71, 49152
s_cmp_eq_u32 s71, s74
s_cselect_b32 s71, s{sSRC}, s71""")
def w1_upto(s, n):
    uid[0] += 1; L = f".Lw1_{uid[0]}"
    s(f"s_cmp_ge_u32 s70, {L_W + 3072*n}\ns_cbranch_scc1 {L}x")
    s.label(L)
    s(f"s_waitcnt vmcnt({opt['w3cap']})"); s.l[-1].mn = 's_waitcnt_raw'
    k = len(s.l)
    w1_slot(s)
    for i in s.l[k:]:
        if i.kind == 'vmem': i.kind = 'other'
    s(f"s_cmp_lt_u32 s70, {L_W + 3072*n}\ns_cbranch_scc1 {L}")
    s.label(L + "x")
def w1_slots(s, n, counted=True):
    if n <= 0: return
    uid[0] += 1; L = f".Lw1_{uid[0]}"
    s(f"s_mov_b32 s75, {n}")
    s.label(L)
    s(f"s_waitcnt vmcnt({opt['w3cap']})"); s.l[-1].mn = 's_waitcnt_raw'
    k = len(s.l)
    w1_slot(s)
    s(f"s_sub_u32 s75, s75, 1\ns_cmp_lg_u32 s75, 0\ns_cbranch_scc1 {L}")
    if counted:
        for _ in range(min(3 * (n - 1), 40)): s.assume([])
    else:
        for i in s.l[k:]:
            if i.kind == 'vmem': i.kind = 'other'
for i in range(3): divmod_off(vW1O + i, i, 0xaaab, 12, 3072)
S(f"""s_nop 0
s_lshl_b32 s11, s{sRB}, 2
s_add_u32 s11, s11, s{sWAVE}
s_mul_i32 s{sXB}, s11, {XAS}
s_lshl_b32 s12, s11, 4
s_add_u32 s12, s12, s{sCB}
s_lshl_b32 s12, s12, 7
s_add_u32 s{sHFL}, s12, {FH}
s_lshl_b32 s12, s11, 9
s_add_u32 s12, s12, {FX}
v_and_b32 v1, 3, v0
v_lshl_add_u32 v{vXF}, v1, 7, s12
s_lshl_b32 s11, s11, 1
s_mul_i32 s11, s11, {HBS}
s_mul_i32 s12, s{sCB}, 3
s_add_u32 s11, s11, s12
s_lshl_b32 s11, s11, 10
s_add_u32 s{sHST}, s11, {HB}
s_mul_i32 s{sOWN}, s{sCB2}, {opt['hrot']}
s_add_u32 s{sOWN}, s{sWAVE}, s{sOWN}
s_and_b32 s{sOWN}, s{sOWN}, 3
s_mul_i32 s11, s{sWAVE}, {64*XBS}
s_lshl_b32 s12, s{sCBASE}, 4
s_add_u32 s11, s11, s12
s_add_u32 s{sUB}, s11, {XNB}
s_lshl_b32 s14, s{sRB2}, 6
s_lshl_b32 s12, s{sOWN}, 4
s_add_u32 s14, s14, s12
s_lshr_b32 s13, s14, 5
s_mul_i32 s13, s13, {XAS//1024}
s_mul_i32 s12, s{sCB2}, 5
s_add_u32 s13, s13, s12
s_lshl_b32 s13, s13, 10
s_and_b32 s12, s14, 31
s_lshl_b32 s12, s12, 4
s_add_u32 s{sEN0}, s13, s12
s_mul_i32 s{sEN1}, s14, 1280
s_mul_i32 s12, s{sCB2}, 160
s_add_u32 s{sEN1}, s{sEN1}, s12
s_mul_i32 s11, s{sCB2}, {80*YS}
s_lshl_b32 s12, s{sRB2}, 7
s_add_u32 s11, s11, s12
s_mul_i32 s12, s{sWAVE}, {20*YS}
s_add_u32 s11, s11, s12
s_add_u32 s{sYL}, s11, {YT}
s_add_u32 s{sYL+1}, s{sYL}, {8*YS}
s_add_u32 s{sYL+2}, s{sYL}, {12*YS}
s_add_u32 s{sSL0}, s{sPAR}, s{sWAVE}
s_cmp_eq_u32 s{sWAVE}, 2
s_cselect_b32 s{sSL0}, s{sPAR}, s{sSL0}
s_cselect_b32 s{sISX}, 1, 0
s_add_u32 s{sSL1}, s{sPAR}, 1
s_lshl_b32 s12, s{sPAR}, 1
s_sub_u32 s12, 2, s12
s_cmp_eq_u32 s{sWAVE}, 3
s_cselect_b32 s{sISX}, s{sPAR}, s{sISX}
s_cselect_b32 s{sSL0}, s12, s{sSL0}
s_cselect_b32 s{sSL1}, 0, s{sSL1}""")
for p in range(4):
    S(f"""s_add_u32 s11, s{sOWN}, {p+1}
s_and_b32 s11, s11, 3
s_lshl_b32 s12, s{sRB2}, 2
s_add_u32 s11, s11, s12
s_mul_i32 s11, s11, {HBS}
s_mul_i32 s12, s{sWAVE}, 12
s_add_u32 s11, s11, s12
s_lshl_b32 s11, s11, 10
s_add_u32 s{sHB+p}, s11, {HB}""")
for i in range(3): divmod_off(vXD + i, i, 0xcccd, 10, 1280)
S(f"""v_and_b32 v5, 31, v0
v_lshrrev_b32 v8, 4, v0
v_lshrrev_b32 v9, 5, v0
v_and_b32 v13, 1, v8
v_and_b32 v1, 3, v0
v_lshrrev_b32 v14, 2, v0
v_lshlrev_b32 v{vL0}, 4, v0
v_add_u32 v{vL1}, 1024, v{vL0}
v_lshlrev_b32 v{vB1A}, 3, v9
v_add_u32 v{vB1A}, {L_V}, v{vB1A}
v_add_u32 v{vOO}, s14, v7
v_mul_u32_u24 v{vOO}, 1280, v{vOO}
s_mul_i32 s12, s{sCB2}, 160
v_lshl_add_u32 v{vBD}, v8, 3, s12
v_add_u32 v{vOO}, v{vOO}, v{vBD}
v_lshlrev_b32 v{vBD}, 3, v8
v_add_u32 v{vBD}, {L_V + 256}, v{vBD}
v_lshrrev_b32 v2, 2, v7
v_lshl_add_u32 v3, v9, 3, v2
v_mul_u32_u24 v{vA0}, 192, v3
v_lshl_add_u32 v{vA0}, v1, 3, v{vA0}
v_lshl_add_u32 v{vA0}, v13, 5, v{vA0}
v_add_u32 v{vA0}, {L_W}, v{vA0}
v_add_u32 v{vA1}, 61440, v{vA0}
v_lshl_add_u32 v3, v13, 2, v2
v_lshl_add_u32 v3, v9, 4, v3
v_lshlrev_b32 v3, 8, v3
v_lshl_add_u32 v3, v1, 3, v3
v_add_u32 v{vW2R}, {L_P}, v3
v_mul_u32_u24 v3, {XBS}, v14
v_lshl_add_u32 v{vUG}, v1, 4, v3
v_mul_u32_u24 v3, {USLOT}, v1
v_lshl_add_u32 v3, v14, 4, v3
s_lshl_b32 s12, s{sWAVE}, 10
s_add_u32 s12, s12, {L_U + 256}
v_add_u32 v{vUW}, s12, v3
v_lshlrev_b32 v2, 4, v7
v_lshl_add_u32 v{vENA}, v8, 9, v2
s_mul_i32 s12, s{sWAVE}, 6144
s_add_u32 s12, s12, {L_E}
v_mul_u32_u24 v3, 160, v7
v_lshl_add_u32 v3, v8, 3, v3
v_add_u32 v{vEA}, s12, v3
v_lshl_add_u32 v3, v9, 8, v2
v_lshl_add_u32 v3, v13, 3, v3
v_add_u32 v{vEA+1}, s12, v3
v_mul_u32_u24 v3, {HBS*1024}, v13
v_add_u32 v3, v3, v2
v_lshl_add_u32 v{vHS}, v9, 8, v3
v_lshl_add_u32 v3, v13, 8, v2
v_lshl_add_u32 v{vYl}, v9, 10, v3
v_add_u32 v3, v7, v8
v_lshlrev_b32 v3, 4, v3
v_add_u32 v{vUl}, {L_U + 16}, v3
v_and_b32 v3, 7, v0
v_sub_u32 v3, 8, v3
v_lshrrev_b32 v3, 1, v3
v_lshl_add_u32 v3, v8, 2, v3
v_lshlrev_b32 v{vKl}, 2, v3
v_and_b32 v2, 1, v0
v_sub_u32 v3, 1, v2
v_mul_u32_u24 v3, {OOFF}, v3
v_add_u32 v{vKl}, v{vKl}, v3
v_bfe_u32 v3, v0, 3, 1
v_sub_u32 v3, 1, v3
v_mul_u32_u24 v3, 1056, v3
v_add_u32 v{vKl}, v{vKl}, v3
v_lshrrev_b32 v3, 3, v0
v_mul_u32_u24 v3, {YS}, v3
v_and_b32 v2, 7, v0
v_lshl_add_u32 v{vYG}, v2, 4, v3
s_lshr_b32 s11, s{sRB2}, 1
s_lshl_b32 s11, s11, 2
s_and_b32 s12, s{sRB2}, 1
s_lshl_b32 s12, s12, 1
s_add_u32 s11, s11, s12
s_lshl_b32 s11, s11, 4
s_lshl_b32 s12, s{sWAVE}, 2
s_add_u32 s11, s11, s12
s_lshl_b32 s11, s11, 7
s_add_u32 s11, s11, {FH}
v_and_b32 v3, 1, v14
v_lshlrev_b32 v3, 11, v3
v_lshl_add_u32 v3, v1, 7, v3
v_add_u32 v{vHF}, s11, v3
v_sub_u32 v2, 31, v5
v_lshl_add_u32 v2, v2, 4, s{sSCR}
v_sub_u32 v3, 1, v9
v_lshl_add_u32 v{vE0}, v3, 9, v2
v_mul_u32_u24 v3, 1056, v3
v_add_u32 v{vE1}, v3, v2
v_mul_u32_u24 v1, {LNROW}, v4
v_lshl_add_u32 v1, v7, 4, v1
v_add_u32 v1, {L_LN}, v1""")
def unit_addr(s, sslot):
    s(f"""s_mul_i32 s12, s{sslot}, {USLOT}
v_add_u32 v{vU}, s12, v{vUl}
s_mul_i32 s12, s{sslot}, {KSLOT}
s_mul_i32 s13, s{sISX}, 2112
s_add_u32 s12, s12, s13
v_add_u32 v{vK}, s12, v{vKl}
v_add_u32 v{vKn}, 1056, v{vK}
s_add_u32 s12, s{sCBASE}, s{sslot}
s_mul_i32 s12, s12, {YS}
s_lshl_b32 s13, s{sISX}, 11
s_sub_u32 s12, s12, s13
s_add_u32 s{sYB}, s12, {YT + 2048}
s_nop 0""")
def xreg(i): return ar(120 + 4 * (i % 30), 4)
def xn_load(s, i):
    if i % 5 == 0:
        s(f"s_add_u32 s{sXC}, s{sROT}, {i//5}\ns_and_b32 s{sXC}, s{sXC}, 7\ns_mul_i32 s{sXC}, s{sXC}, 5120\ns_add_u32 s{sXC}, s{sXC}, s{sXB}")
    k = i % 5
    s(f"buffer_load_dwordx4 {xreg(i)}, v{vL0 if k < 4 else vL1}, {SRD_WS}, s{sXC} offen offset:{1024*min(k,3)} sc1")
G1PRE = opt['g1pre']
XF = [(1, vXF)]; XN = (2, 3)
def xn_try(s, tag):
    flag_test(s, XF, XN)
    s("s_mov_b64 s[46:47], vcc")
    out = []
    for n in range(G1PRE):
        x = Stream(); x(f"s_cbranch_vccnz .Lxs{tag}{n}"); xn_load(x, n); x.label(f".Lxs{tag}{n}"); out.append(x)
    return out

stamp(S, 'idle')
S(f"s_cmp_eq_u32 s{sWAVE}, 3\ns_cbranch_scc1 .Lw3\ns_cmp_eq_u32 s{sWAVE}, 2")
S.save('role')
S("s_cbranch_scc1 .Lkgen")
S("s_waitcnt vmcnt(4)")
vF = 40; NX = 20; vA = 80
for k in range(NX):
    S(f"v_lshlrev_b32 v{vF+2*k}, 16, v{vX+k}")
    S(f"v_and_b32 v{vF+2*k+1}, 0xffff0000, v{vX+k}")
    if k == 3:
        S(f"v_pk_add_f32 {vp(vA)}, {vp(vF)}, {vp(vF+2)}")
        S(f"v_pk_add_f32 {vp(vA+2)}, {vp(vF+4)}, {vp(vF+6)}")
    elif k > 3:
        a = vA + 2 * (k & 1)
        S(f"v_pk_add_f32 {vp(a)}, {vp(a)}, {vp(vF+2*k)}")
stamp(S, 'x_in')
S(f"v_pk_add_f32 {vp(vA)}, {vp(vA)}, {vp(vA+2)}")
S(f"v_add_f32 v{vA}, v{vA}, v{vA+1}")
def rowsum(s, r):
    for sh in (8, 4, 2, 1):
        s(f"v_add_f32_dpp v{r}, v{r}, v{r} row_ror:{sh} row_mask:0xf bank_mask:0xf")
rowsum(S, vA)
S(f"v_mul_f32 v{vA+4}, {f32(-1.0/640)}, v{vA}")
bf16_round(S, f"v{vA}", f"v{vA+4}")
S(f"v_mov_b32 v{vA+1}, v{vA}")
S(f"v_sub_f32 v{vA+4}, v{vA+4}, v{vA}")
for k in range(NX):
    a = vA + 2 + 4 * (k & 1)
    S(f"v_pk_add_f32 {vp(vF+2*k)}, {vp(vF+2*k)}, {vp(vA)}")
    S(f"v_cvt_pk_bf16_f32 v{vX+k}, v{vF+2*k}, v{vF+2*k+1}")
    if k < 2: S(f"v_pk_mul_f32 {vp(a)}, {vp(vF+2*k)}, {vp(vF+2*k)}")
    else: S(f"v_pk_fma_f32 {vp(a)}, {vp(vF+2*k)}, {vp(vF+2*k)}, {vp(a)}")
r_ = vA + 2
S(f"v_pk_add_f32 {vp(r_)}, {vp(r_)}, {vp(vA+6)}")
S(f"v_add_f32 v{r_}, v{r_}, v{r_+1}")
R = Stream(); rowsum(R, r_)
R(f"v_mul_f32 v{vA+4}, v{vA+4}, v{vA+4}\nv_mul_f32 v{r_}, {f32(1.0/640)}, v{r_}\nv_sub_f32 v{r_}, v{r_}, v{vA+4}\nv_max_f32 v{r_}, 0, v{r_}")
bf16_round(R, f"v{r_}", f"v{r_}")
R(f"v_add_f32 v{r_}, {f32(1e-5)}, v{r_}")
bf16_round(R, f"v{r_}", f"v{r_}")
R(f"v_sqrt_f32 v{r_}, v{r_}")
bf16_round(R, f"v{r_}", f"v{r_}")
R(f"v_rcp_f32 v{r_}, v{r_}")
U = []
for k in range(NX):
    g = Stream(); g(f"v_lshlrev_b32 v{vF+2*k}, 16, v{vX+k}\nv_and_b32 v{vF+2*k+1}, 0xffff0000, v{vX+k}"); U.append(g)
S.ext(sprinkle(R, U, 1))
S(f"v_mov_b32 v{r_+1}, v{r_}\ns_lshl_b32 s12, s{sWAVE}, 2\ns_add_u32 s12, s12, {L_F}\nv_mov_b32 v2, s12\nv_mov_b32 v3, 1")
for k in range(NX):
    S(f"v_pk_mul_f32 {vp(vF+2*k)}, {vp(vF+2*k)}, {vp(r_)}")
for k in range(NX):
    S(f"v_cvt_pk_bf16_f32 v{vX+k}, v{vF+2*k}, v{vF+2*k+1}")
for j in range(5):
    S(f"ds_write_b128 v1, {vr(vX+4*j,4)} offset:{256*j}")
S("ds_write_b32 v2, v3")
stamp(S, 'ln')
S("s_branch .Lkgen")
S.label(".Lw3")
S.endpath(keep=None)
w1_slots(S, opt['b0'], False)
S(f"""v_lshrrev_b32 v5, 3, v0
v_and_b32 v6, 7, v0
v_mul_u32_u24 v10, {LNROW}, v6
v_lshl_add_u32 v10, v5, 4, v10
v_add_u32 v10, {L_LN}, v10
v_and_b32 v12, 3, v14
v_mul_u32_u24 v12, {LNROW}, v12
v_and_b32 v4, 3, v0
v_lshl_add_u32 v12, v4, 3, v12
v_lshl_add_u32 v12, v8, 5, v12
v_add_u32 v12, {L_LN}, v12
v_lshlrev_b32 v11, 10, v8
v_and_b32 v5, 1, v5
v_lshl_add_u32 v11, v5, 9, v11
v_lshl_add_u32 v11, v6, 4, v11
v_mul_u32_u24 v6, 1280, v8
v_lshl_add_u32 v6, v7, 4, v6
v_mov_b32 v2, {L_F}
v_mov_b32 v3, 0
s_min_u32 s12, s{sRG}, 239
s_mul_i32 s13, s12, 52429
s_lshr_b32 s13, s13, 18
s_mul_i32 s14, s13, 5
s_sub_u32 s14, s12, s14
s_mul_i32 s15, s13, {32*1280}
s_lshl_b32 s12, s14, 8
s_add_u32 s15, s15, s12
s_mul_i32 s13, s13, 40
s_lshl_b32 s14, s14, 3
s_add_u32 s13, s13, s14
s_lshl_b32 s13, s13, 10
s_add_u32 s14, s13, {W2R}
s_lshr_b32 s12, s{sRG}, 2
s_mul_i32 s12, s12, {XAS}
s_and_b32 s13, s{sRG}, 3
s_lshl_b32 s13, s13, 7
s_add_u32 s12, s12, s13
s_mul_i32 s13, s{sRG}, {XBS}
s_add_u32 s13, s13, {XNB}
s_mov_b32 s11, 0""")
stamp(S, 'w3_b0')
S.label(".Llnw")
S(f"""ds_read_b64 v[16:17], v2
s_waitcnt lgkmcnt(0)
v_and_b32 v16, v16, v17
s_add_u32 s11, s11, 1
v_readfirstlane_b32 s75, v16
s_cmp_gt_u32 s11, {SPIN_MAX*16}
s_cbranch_scc1 .Llnwx
s_cmp_eq_u32 s75, 0
s_cbranch_scc1 .Llnw""")
S.label(".Llnwx")
stamp(S, 'w3_ln')
for j in range(10):
    S(f"ds_read_b128 {vr(20+4*j,4)}, v10 offset:{128*j}")
S(f"global_load_dword v15, v3, {P(pDBG)} sc0 sc1")
for it in range(10):
    S(f"ds_read_b64_tr_b16 {vr(130+4*it,2)}, v12 offset:{128*it}")
    S(f"ds_read_b64_tr_b16 {vr(132+4*it,2)}, v12 offset:{128*it + 4*LNROW}")
for j in range(10):
    tl = S(f"buffer_store_dwordx4 {vr(20+4*j,4)}, v11, {SRD_WS}, s12 offen sc0 sc1")
    if j < 9: S("s_add_u32 s12, s12, 4096")
stamp(S, 'ln_st')
for i in range(8):
    S(f"s_mov_b32 m0, {L_P + 1024*i}")
    tp_ = S(f"buffer_load_dwordx4 v6, {SRD_W2}, s15 offen lds")
    if i < 7: S(f"s_add_u32 s15, s15, {4*1280}")
S(f"""s_mul_i32 s11, s{sCB2}, 160
v_add_u32 v18, s{sSRC}, v{vL0}
v_add_u32 v19, s11, v{vL0}
s_mov_b32 exec_hi, 0
s_mov_b32 exec_lo, 0xfff
s_mov_b32 m0, {L_V}
global_load_lds_dwordx4 v18, {P(pB1)}
s_mov_b32 exec_lo, 0x3ff
s_mov_b32 m0, {L_V + 256}
global_load_lds_dwordx4 v19, {P(pB2)}
s_mov_b32 m0, {L_V + 512}
global_load_lds_dwordx4 v19, {P(pDSK)}
s_mov_b64 exec, -1""")
w1_slots(S, opt['b2a'])
S(f"""v_readfirstlane_b32 s{sNONCE}, v15
v_mul_u32_u24 v1, {USLOT}, v8
v_lshl_add_u32 v1, v7, 4, v1
v_mov_b32 v16, 0
v_mov_b32 v17, 0
v_mov_b32 v18, 0
v_mov_b32 v19, 0
s_mov_b32 exec_hi, 0xffff
s_waitcnt lgkmcnt(0)
ds_write_b128 v1, v[16:19] offset:{L_U}
s_mov_b64 exec, -1""")
S(f"s_cmp_eq_u32 s{sNONCE}, 0\ns_cbranch_scc1 .Lnonce_s")
S.label(".Lnonce_b")
COLD.label(".Lnonce_s")
COLD(f"s_mov_b32 s11, 0")
COLD.label(".Lnonce_l")
COLD(f"global_load_dword v15, v3, {P(pDBG)} sc0 sc1\ns_waitcnt vmcnt(0)\nv_readfirstlane_b32 s{sNONCE}, v15\ns_add_u32 s11, s11, 1\ns_cmp_gt_u32 s11, {SPIN_MAX}\ns_cbranch_scc1 .Lnonce_b\ns_cmp_eq_u32 s{sNONCE}, 0\ns_cbranch_scc1 .Lnonce_l\ns_branch .Lnonce_b")
S(f"""s_lshl_b32 s12, s{sRG}, 7
s_add_u32 s12, s12, {FX}
v_mov_b32 v15, s{sNONCE}""")
S.wait(tl)
S(f"buffer_store_dword v15, v3, {SRD_WS}, s12 offen sc0 sc1")
stamp(S, 'ln_flag')
for it in range(10):
    S(f"buffer_store_dwordx4 {vr(130+4*it,4)}, v{vL0}, {SRD_WS}, s13 offen offset:{1024*(it%4)} sc0 sc1")
    if it % 4 == 3: S("s_add_u32 s13, s13, 4096")
w1_slots(S, opt['b2b'])
S.wait(tp_)
for dt in range(8):
    for r in range(2):
        S(f"ds_read_b64_tr_b16 {vr(180+4*dt+2*r,2)}, v{vW2R} offset:{r*2048 + dt*32}")
S(f"""v_add_u32 v{vW2R}, 4096, v{vL0}
s_lshr_b32 s11, s{sRG}, 2
s_lshl_b32 s11, s11, 7
s_and_b32 s12, s{sRG}, 3
s_lshl_b32 s12, s12, 2
s_add_u32 s11, s11, s12
s_add_u32 s11, s11, {FB}
v_lshlrev_b32 v8, 7, v0
v_add_u32 v8, {FB}, v8""")
for dt in range(8):
    tl = S(f"buffer_store_dwordx4 {vr(180+4*dt,4)}, v{vL0 if dt < 4 else vW2R}, {SRD_WS}, s14 offen offset:{1024*(dt%4)} sc0 sc1")
w1_slots(S, opt['b2c'])
S.wait(tl)
S(f"buffer_store_dword v15, v3, {SRD_WS}, s11 offen sc0 sc1")
stamp(S, 'fb')
w1_slots(S, 40 - opt['b0'] - opt['b2a'] - opt['b2b'] - opt['b2c'] - 4 * opt['lt'])
S(f"v_mov_b32 v{vE1}, v8")
flag_load(S, XF, XN)
flag_test(S, XF, XN)
stamp(S, 'w1_iss')
S("s_cbranch_vccnz .Lws")
for i in range(G1PRE): xn_load(S, i)
S.label(".Lwb")
X = Stream()
for i in range(G1PRE): xn_load(X, i)
spin(".Lw", XF, XN, post=X, drain=False)
S("s_branch .Lk3")

S.label(".Lkgen")
S.restore('role')
S("s_waitcnt vmcnt(0) lgkmcnt(0)")
vD = 4; vT = 52
vFs = 120; vPK = 184
vFO = 192
vGOl = [224, 228, 232, 236, 76, 80, 84, 88]
vSR, vONE, vDT = 20, 21, 22
vPE = 108
S(f"""s_mov_b32 m0, s{sSCR}
v_mul_u32_u24 v{vSR}, {TROW}, v5
v_lshl_add_u32 v{vSR}, v9, 4, v{vSR}
v_add_u32 v{vSR}, s{sSCR}, v{vSR}
v_mov_b32 v{vONE}, 0x3f80
s_lshr_b32 s47, s47, s46
s_lshl_b32 s47, s47, 16
v_mov_b32 v{vDT}, {f32(LOG2E)}
v_mul_f32 v{vDT}, s47, v{vDT}
v_exp_f32 v{vDT}, v{vDT}
v_and_b32 v1, 1, v0
v_lshlrev_b32 v1, 4, v1
v_mov_b32 v3, 0""")
bf16_round(S, f"v{vDT}", f"v{vDT}")
for k in range(4):
    d0, d1 = vRAW + 2*k, vRAW + 2*k + 1
    S(f"""v_alignbit_b32 v{d0}, v{d1}, v{d0}, v1
v_lshrrev_b32 v{d1}, v1, v{d1}
v_lshlrev_b32 v{vPE+k}, 16, v{d0}
v_and_b32 v{vPE+4+k}, 0xffff0000, v{d0}
v_lshlrev_b32 v{vPE+8+k}, 16, v{d1}""")
S(f"v_add_f32 v{vDT+1}, v{vDT}, v{vDT}\ns_mov_b32 s15, {f32(1.0 / (2 * math.pi))}")
def cmuls(s, lst):
    for d, x, y in lst:
        assert d != x and d != y
        s(f"v_pk_mul_f32 {vp(d)}, {vp(x)}, {vp(y)} op_sel:[0,0] op_sel_hi:[1,0]")
    for d, x, y in lst:
        s(f"v_pk_fma_f32 {vp(d)}, {vp(x)}, {vp(y)}, {vp(d)} op_sel:[1,1,0] op_sel_hi:[0,1,1] neg_lo:[0,1,0]")
I2PI = 1.0 / (2 * math.pi)
i2pi_hi = struct.unpack('<f', struct.pack('<f', I2PI))[0]
i2pi_lo = I2PI - i2pi_hi
hi0 = [0,1,2,3,4,5,6,7,8, 512,516,520, 1024,1032, 1280,1288]
hi1 = [256,256,258,260,260,260,262,264,264, 768,772,776, 1536,1544, 1792,1800]
rowhi = [(hi0, hi1)[(p >> 2) & 1][4 * (p >> 3) + (p & 3)] for p in range(32)]
def k_mfmas(u):
    out = []
    for s_ in range(8):
        x = Stream()
        c = "0" if (s_ == 0 and u == 0) else vr(vD, 16)
        x(f"v_mfma_f32_32x32x16_bf16 {vr(vD,16)}, {vr(vGOl[s_],4)}, {vr(vFO+4*s_,4)}, {c}")
        out.append(x)
    return out
pkc = [0]
def put(s, items, neg, mf=None):
    regs = []
    if mf: s.ext(mf.pop(0))
    for r, rows in items:
        b = vPK + (pkc[0] & 7); pkc[0] += 1
        s(f"v_cvt_pk_bf16_f32 v{b}, v{r}, {'-' if neg else ''}v{r+1}")
        regs.append((b, rows))
    if mf: s.ext(mf.pop(0))
    for b, rows in regs:
        for p in rows: s(f"ds_write_addtid_b32 v{b} offset:{p*TROW}")
    s.pseudo('slot')
def kgen_unit(u):
    A = Stream(); B = Stream()
    pa, pb, pc, pd = range(vPE + 4*u, vPE + 4*u + 4)
    va, vbh, vbl = vT, vT+1, vT+2
    vW1, vW8, vW256, vW2, vW4, vG0 = vT+4, vT+6, vT+8, vT+10, vT+12, vT+14
    G = lambda k: vFs + 2 * k
    A(f"""v_mul_f32 v{va}, {f32(LOG2E)}, v{pa}
v_mul_f32 v{pb}, v{pb}, v{vDT}
v_exp_f32 v{va}, v{va}
v_mul_f32 v{vbh}, s15, v{pb}
v_cvt_pk_bf16_f32 v{va}, v{va}, v{va}
v_fma_f32 v{vbl}, v{pb}, s15, -v{vbh}
v_and_b32 v{va}, 0xffff0000, v{va}
v_fmac_f32 v{vbl}, {f32(i2pi_lo)}, v{pb}
v_mul_f32 v{va}, v{va}, v{vDT}
v_mul_f32 v{va}, {f32(-LOG2E)}, v{va}""")
    t0 = vT + 16
    m8, a8, m1, a1, m2, a2 = range(t0, t0 + 6)
    A(f"""v_mul_f32 v{a8}, {f32(8.0)}, v{vbh}
v_mul_f32 v{m8}, {f32(8.0)}, v{va}
v_fract_f32 v{a8}, v{a8}
v_exp_f32 v{m8}, v{m8}
v_fmac_f32 v{a8}, {f32(8.0)}, v{vbl}
v_exp_f32 v{m1}, v{va}
v_fract_f32 v{a1}, v{vbh}
v_cos_f32 v{vW8}, v{a8}
v_add_f32 v{a1}, v{a1}, v{vbl}
v_sin_f32 v{vW8+1}, v{a8}
v_mul_f32 v{m2}, {f32(256.0)}, v{va}
v_cos_f32 v{vW1}, v{a1}
v_mul_f32 v{a2}, {f32(256.0)}, v{vbh}
v_sin_f32 v{vW1+1}, v{a1}
v_fract_f32 v{a2}, v{a2}
v_exp_f32 v{m2}, v{m2}
v_fmac_f32 v{a2}, {f32(256.0)}, v{vbl}
v_pk_mul_f32 {vp(vW8)}, {vp(vW8)}, {vp(m8)} op_sel:[0,0] op_sel_hi:[1,0]
v_cos_f32 v{vW256}, v{a2}
v_pk_mul_f32 {vp(vW1)}, {vp(vW1)}, {vp(m1)} op_sel:[0,0] op_sel_hi:[1,0]
v_sin_f32 v{vW256+1}, v{a2}""")
    F = lambda k: vW8 if k == 1 else G(k)
    cmuls(A, [(F(2), F(1), F(1)), (vW2, vW1, vW1)])
    A(f"v_mul_f32 v{vG0}, v{pc}, v{vDT+1}\nv_mul_f32 v{vG0+1}, v{pd}, v{vDT+1}")
    cmuls(A, [(F(3), F(2), F(1)), (F(4), F(2), F(2)), (vW4, vW2, vW2)])
    A(f"v_pk_mul_f32 {vp(vW256)}, {vp(vW256)}, {vp(m2)} op_sel:[0,0] op_sel_hi:[1,0]")
    mf = k_mfmas(u - 1) if u > 0 else None
    for lo in range(5, 32, 8):
        cmuls(A, [(F(k), F(k-4), F(4)) for k in range(lo, min(lo+4, 32))])
        cmuls(A, [(F(k), F(k-4), F(4)) for k in range(lo+4, min(lo+8, 32))])
        if lo == 29: A(f"ds_write_addtid_b32 v{vONE}")
        put(A, [(F(k), [k]) for k in range(lo-4, min(lo+4, 32))], False, mf)
    assert not mf
    A.l.pop()
    for s_ in range(8):
        A(f"ds_read_b128 {vr(vFO+4*s_,4)}, v{vSR} offset:{32*s_}")
    A.pseudo('slot')
    his = sorted(set(hi0 + hi1))
    gi = {h: G(n) for n, h in enumerate(his)}; gi[0] = vG0
    rows = lambda h: [p for p in range(32) if rowhi[p] == h]
    steps = [[(1,0,vW1), (2,0,vW2), (4,0,vW4), (8,0,vW8), (256,0,vW256)],
             [(3,2,vW1), (5,4,vW1), (258,256,vW2), (512,256,vW256)],
             [(6,4,vW2), (260,256,vW4), (264,256,vW8), (768,512,vW256)],
             [(7,6,vW1), (262,260,vW2), (516,512,vW4), (1024,768,vW256)],
             [(520,512,vW8), (772,768,vW4), (776,768,vW8), (1280,1024,vW256)],
             [(1032,1024,vW8), (1288,1280,vW8), (1536,1280,vW256)],
             [(1544,1536,vW8), (1792,1536,vW256)],
             [(1800,1792,vW8)]]
    pend = [0]
    for n, st in enumerate(steps):
        cmuls(B, [(gi[d_], gi[x_], y_) for d_, x_, y_ in st])
        if n in (1, 3, 5):
            k = min(8, len(pend))
            put(B, [(gi[h], rows(h)) for h in pend[:k]], True); pend = pend[k:]
        pend += [d_ for d_, x_, y_ in st]
    assert len(pend) <= 8, pend
    put(B, [(gi[h], rows(h)) for h in pend], True)
    B.l.pop()
    for s_ in range(8):
        B(f"ds_read_b128 {vr(vGOl[s_],4)}, v{vSR} offset:{32*s_}")
    s = Stream(); s.ext(A); s.ext(B)
    segs = [Stream()]
    for i in s.l:
        if i.kind == 'slot': segs.append(Stream())
        else: segs[-1].l.append(i)
    return segs
S.ext(flat(kgen_unit(0)))
stamp(S, 'k_u0')
U1 = kgen_unit(1); U2 = kgen_unit(2)
S.ext(flat(U1))
stamp(S, 'k_u1')
S.ext(flat(U2[:opt['xf0']]))
flag_load(S, XF, XN)
S.ext(flat(U2[opt['xf0']:opt['xf1']]))
gs = xn_try(S, 'b')
stamp(S, 'xnpoll')
seg = flat(U2[opt['xf1']:])
S.ext(sprinkle(seg, gs, max(1, len(seg.l) // (len(gs) + 1))))
for x in k_mfmas(2): S.ext(x)
stamp(S, 'kgen')
X = Stream()
vXT = 156 if opt['xpos'] == 0 else 188
d = lambda k: f"v{vD+k}"
X(f"v_and_b32 v236, 1, v0\nv_cmp_eq_u32 vcc, 1, v236")
def wo(s, b, aE, off):
    s(f"v_add_u32 v236, {off + OOFF}, v{aE}")
    s(f"ds_write2_b32 v236, v{b}, v{b+1} offset0:0 offset1:1")
    s(f"ds_write2_b32 v236, v{b+2}, v{b+3} offset0:2 offset1:3")
def build(e_pairs, o_pairs, base, aE, imm):
    for j, (a, b) in enumerate(e_pairs): X(f"v_cvt_pk_bf16_f32 v{base+j}, {a}, {b}")
    for j, (a, b) in enumerate(o_pairs): X(f"v_cvt_pk_bf16_f32 v{base+4+j}, {a}, {b}")
    X(f"v_add_u32 v236, {imm + OOFF}, v{aE}")
    X(f"ds_write_b128 v{aE}, {vr(base,4)} offset:{imm}")
    X(f"ds_write2_b32 v236, v{base+4}, v{base+5} offset0:0 offset1:1")
    X(f"ds_write2_b32 v236, v{base+6}, v{base+7} offset0:2 offset1:3")
build([(d(7),d(6)),(d(5),d(4)),(d(3),d(2)),(d(1),d(0))], [(d(8),d(7)),(d(6),d(5)),(d(4),d(3)),(d(2),d(1))], vXT, vE0, 3*1056)
build([(d(11),d(11)),(d(10),d(10)),(d(10),d(9)),(d(9),d(9))], [(d(11),d(11)),(d(11),d(10)),(d(10),d(10)),(d(9),d(9))], vXT+8, vE0, 2*1056)
for n, (r0, imm) in enumerate(((12, 512), (14, 0))):
    X(f"v_cndmask_b32 v237, {d(r0)}, {d(r0+1)}, vcc")
    V0, V1 = d(r0), d(r0+1)
    build([(V1,V1),(V1,'v237'),(V0,V0),(V0,V0)], [(V1,V1),(V1,V1),('v237',V0),(V0,V0)], vXT+16+8*n, vE1, imm)
z = vXT + 16
X(f"v_mov_b32 v{z}, 0\nv_mov_b32 v{z+1}, 0\nv_mov_b32 v{z+2}, 0\nv_mov_b32 v{z+3}, 0\nv_cvt_pk_bf16_f32 v{z+4}, {d(0)}, 0\nv_mov_b32 v237, s{sSCR}\nv_subrev_u32 v{vE1}, 32, v{vE1}")
XA = X; X = Stream()
X("s_mov_b32 exec_lo, 0\ns_mov_b32 exec_hi, 0x80000000")
X(f"ds_write_b128 v{vE0}, {vr(vXT,4)} offset:{3*1056-32}")
X(f"ds_write_b128 v{vE0}, {vr(vXT+8,4)} offset:{2*1056-32}")
wo(X, vXT+4, vE0, 3*1056-32)
wo(X, vXT+12, vE0, 2*1056-32)
X("s_mov_b32 exec_lo, 0x80000000\ns_mov_b32 exec_hi, 0")
X(f"ds_write_b128 v{vE1}, {vr(vXT+24,4)}")
wo(X, vXT+28, vE1, 0)
X("s_mov_b32 exec_lo, 1")
X(f"ds_write_b128 v237, {vr(z,4)} offset:{(3*264+256)*4}")
X(f"v_add_u32 v237, {OOFF + (3*264+256)*4}, v237")
X(f"ds_write2_b32 v237, v{z+4}, v{z} offset0:0 offset1:1\nds_write2_b32 v237, v{z}, v{z} offset0:2 offset1:3")
X("s_mov_b64 exec, -1")
XB = X
if opt['xpos'] == 0: S.ext(XA); S.ext(XB)
stamp(S, 'exp')
S("s_cmp_lg_u64 s[46:47], 0\ns_cbranch_scc1 .Lxs")
S.label(".Lxb")
X = Stream()
for i in range(G1PRE): xn_load(X, i)
spin(".Lx", XF, XN, post=X, drain=False)
S.label(".Lk3")
S("s_barrier")
stamp(S, 'bar1')

vAC = 20; vAR = 120
vB1P = 68; vB1 = 188
vUL = 160
vEX, vED, vEB = 4, 68, 78
EN = lambda k: 14 + k if k < 6 else 82 + k
L_E = L_W + 61440
L_Y = L_E + 4 * 6144
STG = opt['stg']
order = [(ks, ft) for ks in range(40 - STG) for ft in range(3)] + [(ks, ft) for ft in range(3) for ks in range(40 - STG, 40)]
NAR = 9
def g1_read(s, n):
    ks, ft = order[n]
    for r in range(2):
        base, k = (vA0, ks) if ks < 20 else (vA1, ks - 20)
        s(f"ds_read_b64_tr_b16 {vr(vAR + 4*(n % NAR) + 2*r, 2)}, v{base} offset:{k*3072 + r*768 + ft*64}")
for n in range(6): g1_read(S, n)
LT = opt['lt']
if LT:
    S(f"""s_mul_i32 s13, s{sWAVE}, {LT}
s_add_u32 s13, s13, {40 - 4*LT}
s_mul_i32 s70, s13, 3072
s_add_u32 s70, s70, {L_W}
s_and_b32 s12, s{sROT}, 7
s_mul_i32 s12, s12, 5
s_add_u32 s12, s12, s13
s_cmp_ge_u32 s12, 40
s_cselect_b32 s13, 40, 0
s_sub_u32 s12, s12, s13
s_mul_i32 s71, s12, 49152
s_add_u32 s71, s71, s{sSRC}
s_mov_b32 s14, s{sSRC}
s_mov_b32 s15, s74""")
S(f"""s_mul_i32 s{sSRC}, s{sWAVE}, {12*40*1024}
s_mul_i32 s11, s{sCB2}, 5120
s_add_u32 s{sSRC}, s{sSRC}, s11
s_add_u32 s{sSRC}, s{sSRC}, {W2R - 40960}""")
G1D = opt['g1d']
Sg = Stream(); nxt = G1PRE
MB = min(opt['mb'], 3 * (40 - 4*LT) - 6)
UF = [(156, vE1, 4)]
assert opt['wa0'] > MB
first_use = {}
for n, (ks, ft) in enumerate(order): first_use.setdefault(ks, n)
for n, (ks, ft) in enumerate(order):
    if n in (3, 30, 60, 90): stamp(Sg, f'g1_{n//3}')
    if n == MB:
        Sg.pseudo('slot')
        Sg(f"s_cmp_lg_u32 s{sWAVE}, 3\ns_cbranch_scc1 .Lnouc")
        Sg("s_waitcnt vmcnt(0)"); UFW = Sg.l[-1]; UFW.mn = 's_waitcnt_raw'
        flag_check(Sg, UF)
        Sg.label(".Lnouc")
        Sg("s_barrier")
        Sg("s_mov_b32 exec_lo, 0x77777777\ns_mov_b32 exec_hi, 0x77777777")
        for k in range(4):
            Sg(f"buffer_load_dwordx4 {vr(vUL+4*k,4)}, v{vUG}, {SRD_WS}, s{sUB} offen sc1")
            if k < 3: Sg(f"s_add_u32 s{sUB}, s{sUB}, {16*XBS}")
        Sg("s_mov_b64 exec, -1")
    c = vr(vAC + 16*ft, 16) if ks > 0 else "0"
    Sg(f"v_mfma_f32_32x32x16_bf16 {vr(vAC+16*ft,16)}, {vr(vAR + 4*(n % NAR), 4)}, {xreg(ks)}, {c}")
    if n + 6 < 120: g1_read(Sg, n + 6)
    if nxt < 40 and n % opt['xev'] == 0 and first_use[nxt] <= n + 3 * G1D + (opt['xlead'] if nxt >= 40 - STG else 0):
        assert nxt < 30 or max(m for m, o in enumerate(order) if o[0] == nxt - 30) <= n
        xn_load(Sg, nxt); nxt += 1
assert nxt == 40
plan = {}
if opt['xpos'] == 1:
    L = XA.l; per = 4; n = 0
    while L:
        g = Stream(); g(f"s_cmp_eq_u32 s{sWAVE}, 3\ns_cbranch_scc1 .Lxp{n}")
        for i in L[:per]:
            if i.kind == 'ds': i.kind = 'other'
            g.l.append(i)
        L = L[per:]
        g.label(f".Lxp{n}"); plan[1 + n] = g; n += 1
    g = Stream(); g(f"s_cmp_eq_u32 s{sWAVE}, 3\ns_cbranch_scc1 .Lxp{n}")
    for i in XB.l:
        if i.kind == 'ds': i.kind = 'other'
        g.l.append(i)
    g.label(f".Lxp{n}"); plan[1 + n] = g
    assert n + 1 < 30
vCA = 20; vCP = 36; vKB = 44; vR = 176
vNON, vZ = 241, 242
sKO = 18
def w2_load(s, n):
    k, dt = divmod(n, 5)
    if dt == 0: s(f"s_add_u32 s{sSRC}, s{sSRC}, 40960")
    s(f"buffer_load_dwordx4 {ar(4*n,4)}, v{vL0 if dt < 4 else vL1}, {SRD_WS}, s{sSRC} offen offset:{1024*min(dt,3)} sc1")
wn = [0]
def w2_next(s, cnt):
    for _ in range(cnt):
        if wn[0] < 60: w2_load(s, wn[0]); wn[0] += 1
F = Stream()
F(f"v_mov_b32 v{vNON}, s{sNONCE}\nv_mov_b32 v{vZ}, 0")
plan.setdefault(70, Stream()).ext(F)
if LT:
    for k in range(LT):
        for i in range(3):
            G = Stream()
            G(f"s_add_u32 m0, s70, {i*1024}")
            tlt = G(f"buffer_load_dwordx4 v{vW1O+i}, {SRD_W1}, s71 offen lds")
            if i == 2 and k < LT - 1:
                G(f"s_add_u32 s70, s70, 3072\ns_add_u32 s71, s71, 49152\ns_cmp_eq_u32 s71, s15\ns_cselect_b32 s71, s14, s71")
            plan.setdefault(opt['lt0'] + ((3*k + i) * (opt['lt1'] - opt['lt0'])) // (3*LT), Stream()).ext(G)
for i in Sg.l:
    if i.kind == 'slot': i.kind = 'waitonly'; i.need = [tlt] if LT else []
F = Stream()
F(f"s_cmp_lg_u32 s{sWAVE}, 3\ns_cbranch_scc1 .Lnouf")
flag_load(F, UF); F.l[-1].kind = 'other'
F.label(".Lnouf")
plan.setdefault(opt['uf'], Stream()).ext(F)
F = Stream()
for k in range(12):
    F(f"ds_read_b64 {vr(vB1P+2*k,2)}, v{vB1A} offset:{16*k}")
spread(F, 3, 26, plan)
F = Stream()
F(f"""s_mov_b32 s72, 0x00003f80
s_mov_b32 s73, 0x3f800000""")
unit_addr(F, sSL0)
spread(F, 14, 35, plan)
F = Stream()
for k in range(24):
    F(f"v_lshlrev_b32 v{vB1+2*k}, 16, v{vB1P+k}\nv_and_b32 v{vB1+2*k+1}, 0xffff0000, v{vB1P+k}")
spread(F, 30, 62, plan)
F = Stream()
for dt in range(5):
    F(f"ds_read_b64 {vr(vEB+2*dt,2)}, v{vBD} offset:{32*dt}")
    F(f"ds_read_b64 {vr(vED+2*dt,2)}, v{vBD} offset:{256+32*dt}")
spread(F, 64, 84, plan)
F = Stream(); w2_next(F, opt['wan'])
spread(F, opt['wa0'], 119, plan)
def g1_epi(ft, packed):
    E = Stream()
    tp = (156 if STG else 108) + 8 * ft
    for k in range(8):
        a = vAC + 16*ft + 2*k; b = vB1 + 16*ft + 2*k
        E(f"v_cvt_pk_bf16_f32 v{tp+k}, v{a}, v{a+1}")
        E(f"v_dot2_f32_bf16 v{a}, v{tp+k}, s72, v{b}")
        E(f"v_dot2_f32_bf16 v{a+1}, v{tp+k}, s73, v{b+1}")
    for k in range(8):
        a = vAC + 16*ft + 2*k
        E(f"v_cvt_pk_bf16_f32 v{tp+k}, v{a}, v{a+1}")
        E(f"v_pk_max_i16 v{tp+k}, v{tp+k}, 0")
        E(f"v_lshlrev_b32 v{a}, 16, v{tp+k}")
        E(f"v_and_b32 v{a+1}, 0xffff0000, v{tp+k}")
        if packed: E(f"v_pk_mul_f32 {vp(a)}, {vp(a)}, {vp(a)}")
        else: E(f"v_mul_f32 v{a}, v{a}, v{a}\nv_mul_f32 v{a+1}, v{a+1}, v{a+1}")
        E(f"v_cvt_pk_bf16_f32 v{tp+k}, v{a}, v{a+1}")
    t = None
    for jp in range(2):
        t = E(f"buffer_store_dwordx4 {vr(tp+4*jp,4)}, v{vHS}, {SRD_WS}, s{sHST} offen offset:{1024*ft + 512*jp} sc0 sc1")
    return E, t
rest = []
for ft in range(3):
    if STG >= 10 and ft < 2:
        E, th = g1_epi(ft, False)
        a0 = 120 - (2 - ft) * STG
        spread(E, a0 + 2, a0 + STG - 1, plan)
    else: rest.append(ft)
G1S = weave(Sg, plan)
i0 = [n for n, i in enumerate(G1S.l) if i.text and i.text.startswith(".Lnouf")][0]; i1 = G1S.l.index(UFW)
UFW.text = f"s_waitcnt vmcnt({sum(1 for i in G1S.l[i0:i1] if i.kind == 'vmem')})"
S.ext(G1S)
stamp(S, 'g1')
HQ = []
for ft in rest:
    E, th = g1_epi(ft, True)
    gs = []
    for _ in range(opt['wep'] // len(rest)):
        g = Stream(); w2_next(g, 1); gs.append(g)
    hs = opt.get('hspread', 0)
    if hs:
        st = E.l[-2:]; E.l = E.l[:-2]
        if hs == 1 and HQ:
            g = Stream(); g.l.append(HQ.pop(0)); gs.insert(len(gs) // 2, g)
        HQ.extend(st)
    if gs: E = sprinkle(E, gs, len(E.l) // (len(gs) + 1))
    S.ext(E)
    if hs: S.l.append(HQ.pop(0))
S("s_mov_b32 exec_lo, 0x77777777\ns_mov_b32 exec_hi, 0x77777777")
for k in range(4):
    S(f"ds_write_b128 v{vUW}, {vr(vUL+4*k,4)} offset:{256*k}")
S("s_mov_b64 exec, -1")
S("s_waitcnt lgkmcnt(0)")
S("s_barrier")
stamp(S, 'g1ep')

def conv_load(s, sg):
    s(f"ds_read_b128 {vr(vR + 4*(sg & 15), 4)}, v{vU} offset:{64*sg}")
    base, o = (vK, 16*sg) if sg < 16 else (vKn, 16*(sg-16))
    kb = vKB + 4*(sg & 3)
    s(f"ds_read2_b32 {vr(kb,2)}, v{base} offset0:{o} offset1:{o+1}")
    s(f"ds_read2_b32 {vr(kb+2,2)}, v{base} offset0:{o+2} offset1:{o+3}")
def conv_block(ramp, last=False):
    s = Stream()
    for sg in range(16):
        ld = Stream()
        if not (last and sg + 3 >= 16): conv_load(ld, sg + 3)
        for rt in (3, 2, 1, 0):
            first = 12 - 4*rt
            if ramp and sg < first: continue
            c = "0" if (ramp and sg == first) else vr(vCA + 4*rt, 4)
            s(f"v_mfma_f32_16x16x32_bf16 {vr(vCA+4*rt,4)}, {vr(vKB + 4*(sg&3),4)}, {vr(vR + 4*((sg+4+4*rt)&15),4)}, {c}")
            if ld.l: s.l.append(ld.l.pop(0))
        s.ext(ld)
    if not last:
        s(f"v_add_u32 v{vU}, 1024, v{vU}\nv_add_u32 v{vK}, 1056, v{vK}\nv_add_u32 v{vKn}, 1056, v{vKn}")
    return s
def conv_save(s):
    for rt in (3, 2, 1, 0):
        for h in range(2):
            s(f"v_cvt_pk_bf16_f32 v{vCP + 4*(rt>>1) + 2*(rt&1) + h}, v{vCA+4*rt+2*h}, v{vCA+4*rt+2*h+1}")
def conv_fin(s):
    s("s_mov_b32 exec_lo, 0")
    conv_save(s)
    s("s_mov_b32 exec_lo, -1")
    t = None
    for pr in range(2):
        b = vCP + 4*pr
        s(f"v_permlane16_swap_b32 v{b}, v{b+2}")
        s(f"v_permlane16_swap_b32 v{b+1}, v{b+3}")
        t = s(f"buffer_store_dwordx4 {vr(b,4)}, v{vYl}, {SRD_WS}, s{sYB} offen offset:{512*pr} sc0 sc1")
    return t
for sg in range(3): conv_load(S, sg)
S(f"v_add_u32 v{vA0}, 4096, v{vL0}\nv_add_u32 v{vA1}, 8192, v{vL0}")
F = Stream(); w2_next(F, opt['wb0'])
CB = conv_block(True)
P0 = fit(CB, {}, F, 12, 39, opt['capc'] + 1)
for n, i in enumerate(HQ): P0.setdefault(opt.get('hs0', 8) + n * opt.get('hs1', 14), Stream()).l.append(i)
S.ext(weave(CB, P0))
stamp(S, 'cv_b0')
conv_save(S)
F = Stream()
F.wait(th)
F(f"buffer_store_dword v{vNON}, v{vZ}, {SRD_WS}, s{sHFL} offen sc0 sc1")
w2_next(F, opt['wb1'])
def tiles(F):
    F(f"s_mul_i32 s11, s{sWAVE}, 6144\ns_add_u32 s11, s11, {L_E}")
    for i in range(3):
        F(f"s_add_u32 m0, s11, {1024*i}")
        F(f"buffer_load_dwordx4 v{vXD+i}, {SRD_X}, s{sEN1} offen lds")
    for i in range(3):
        F(f"s_add_u32 m0, s11, {3072 + 1024*i - 2048*i}")
        F(f"buffer_load_dwordx4 v{vENA}, {SRD_WS}, s{sEN0} offen offset:{2048*i} sc1 lds") if i < 2 else None
    F.l.pop()
    F(f"s_add_u32 m0, s11, {3072 + 2048}\ns_add_u32 s{sEN0}, s{sEN0}, 4096")
    return F(f"buffer_load_dwordx4 v{vENA}, {SRD_WS}, s{sEN0} offen sc1 lds")
if opt['tpos'] == 0: tiles(F)
vH = 108
HF = [(62, vHF)]
assert wn[0] >= 5 * opt['ka'], wn[0]
if opt['hld'] < 0: flag_load(F, HF)
CB = conv_block(False)
P1 = fit(CB, {}, F, opt['hfl'], 63, opt['capc'], lambda g: 1 if g % 4 == 3 else 0)
S.ext(weave(CB, P1))
stamp(S, 'cv_b1')
NH = 17
KA = opt['ka']
steps = [(p, k) for p in range(4) for k in range(KA)] + [(p, k) for p in range(4) for k in range(KA, 12)]
def hreg(n): return vH + 4 * (n % NH)
def h_load(s, n):
    p, k = steps[n]
    s(f"buffer_load_dwordx4 {vr(hreg(n), 4)}, v{(vL0, vA0, vA1)[k//4]}, {SRD_WS}, s{sHB+p} offen offset:{1024*(k%4)} sc1")
HPRE = opt['hpre']
def h_first(tag, first, gap, ld):
    plan = {}
    if opt['hld'] >= 0:
        F = Stream(); flag_load(F, HF); plan[ld] = F
        assert ld < first
    F = Stream()
    flag_test(F, HF)
    plan[first] = F
    for n in range(HPRE):
        F = Stream()
        F(f"s_cbranch_vccnz .Lhskip{tag}{n}")
        h_load(F, n)
        F.label(f".Lhskip{tag}{n}")
        plan.setdefault(first + 1 + n * gap, Stream()).ext(F)
    return plan
S(f"s_lshl_b32 s{sYF}, s{sRG}, 7\ns_lshl_b32 s12, s{sWAVE}, 2\ns_add_u32 s{sYF}, s{sYF}, s12\ns_add_u32 s{sYF}, s{sYF}, {FY}\ns_cmp_eq_u32 s{sISX}, 1")
S.save('b2')
S("s_cbranch_scc1 .Lb2x")
S.ext(weave(conv_block(False), h_first('a', opt['hchk'], opt['hgap'], opt['hld'])))
S("s_waitcnt lgkmcnt(0)")
S.endpath(keep=None)
S("s_branch .Lb3")
S.label(".Lb2x")
S.restore('b2')
conv_fin(S)
unit_addr(S, sSL1)
for sg in range(3): conv_load(S, sg)
S.ext(weave(conv_block(True), h_first('b', opt['hchkx'], opt['hgapx'], opt['hldx'])))
S("s_waitcnt lgkmcnt(0)")
S.endpath(keep=None)
S.label(".Lb3")
for n in range(HPRE): S.assume([('v', hreg(n) + r) for r in range(4)])
stamp(S, 'cv_b2')
conv_save(S)
plan = {}
def tile_reads(F):
    for dt in range(5):
        F(f"ds_read_b64 {vr(vEX+2*dt,2)}, v{vEA} offset:{32*dt}")
        F(f"ds_read_b64 {vr(EN(2*dt),2)}, v{vEA+1} offset:{3072 + 512*dt}")
F = Stream()
if opt['tpos'] == 0: tile_reads(F)
else: ttile = tiles(F)
spread(F, 4 if opt['tpos'] == 0 else 46, 40 if opt['tpos'] == 0 else 63, plan)
HB3 = opt['hb3']
F = Stream()
F("s_cbranch_vccnz .Lhs")
F.label(".Lhb")
plan.setdefault(opt['hrt'], Stream()).ext(F)
X = Stream()
for n in range(HPRE): h_load(X, n)
spin(".Lh", HF, post=X, drain=False)
for n in range(HPRE, HPRE + HB3):
    F = Stream(); h_load(F, n)
    plan.setdefault(opt['hrt'] + 1 + (n - HPRE) * opt['hgap3'], Stream()).ext(F)
HPRE += HB3
F = Stream(); w2_next(F, opt['wb3'])
if F.l: spread(F, 5, 60, plan)
assert HPRE <= 17
S.ext(weave(conv_block(False, last=True), plan))
ty = conv_fin(S)
stamp(S, 'conv')

assert opt['tpos'] == 0 and (not opt['fast'] or KA == 12)
AC = [20, 176, 196, 40]
vRW = 240
S(f"v_add_u32 v{vRW}, s{sW2B}, v{vL0}")
HD = opt['hd']
hn = HPRE
G2 = Stream()
for n, (p, k) in enumerate(steps):
    if n in (12, 24, 36): stamp(G2, f'g2_p{n//12-1}')
    for dt in range(5):
        c = ("0" if not (opt['fast'] and p == 3) else vr(216 + 4*dt, 4)) if k == 0 else vr(AC[p] + 4*dt, 4)
        G2(f"v_mfma_f32_16x16x32_bf16 {vr(AC[p]+4*dt,4)}, {ar((k*5+dt)*4,4)}, {vr(hreg(n), 4)}, {c}")
        if dt in (0, 2) and hn < 48 and hn <= n + HD:
            assert hn - NH < n or (hn - NH == n and False)
            h_load(G2, hn); hn += 1
        if (5*n + dt) % opt['wev'] == 4: w2_next(G2, 1)
assert hn == 48 and wn[0] == 60
plan = {}
F = Stream()
F.wait(ty)
F(f"buffer_store_dword v{vNON}, v{vZ}, {SRD_WS}, s{sYF} offen sc0 sc1")
plan[opt['ypub']] = F
F = Stream()
for k in range(10 if not opt['fast'] else 0):
    a = 60 + 4*(k & 1)
    F(f"""v_lshlrev_b32 v{a}, 16, v{EN(k)}
v_and_b32 v{a+1}, 0xffff0000, v{EN(k)}
v_lshlrev_b32 v{a+2}, 16, v{vED+k}
v_and_b32 v{a+3}, 0xffff0000, v{vED+k}
v_mul_f32 v{a}, v{a}, v{a+2}
v_mul_f32 v{a+1}, v{a+1}, v{a+3}
v_cvt_pk_bf16_f32 v{EN(k)}, v{a}, v{a+1}""")
YF = [(60, 64, 4)]
F(f"""s_lshl_b32 s11, s{sCB2}, 12
s_add_u32 s11, s11, {FY}
v_and_b32 v2, 31, v0
v_lshl_add_u32 v64, v2, 7, s11
v_lshrrev_b32 v65, 2, v0
v_lshlrev_b32 v65, 7, v65
v_and_b32 v1, 3, v0
v_lshl_add_u32 v65, v1, 3, v65
s_lshl_b32 s11, s{sOWN}, 5
s_add_u32 s11, s11, {L_Y}
v_add_u32 v65, s11, v65""")
vB2 = 216; vXf = [92, 94, 96, 98, 100, 102, 244, 246, 248, 236]
for k in range(10):
    F(f"""v_lshlrev_b32 v{vB2+2*k}, 16, v{vEB+k}
v_and_b32 v{vB2+2*k+1}, 0xffff0000, v{vEB+k}
v_lshlrev_b32 v{vXf[k]}, 16, v{vEX+k}
v_and_b32 v{vXf[k]+1}, 0xffff0000, v{vEX+k}""")
vPA = [66, 67, 1]
for p in range(3):
    F(f"s_sub_u32 s11, s{sWAVE}, {p+1}\ns_and_b32 s11, s11, 3\ns_mul_i32 s11, s11, 15360\ns_add_u32 s11, s11, {L_W}\nv_add_u32 v{vPA[p]}, s11, v{vL0}")
F(f"s_mov_b32 s12, {f32(-LOG2E)}\ns_mov_b32 s13, {f32(-LOG2E)}\ns_mov_b32 s14, 1.0\ns_mov_b32 s15, 1.0")
FA = F
F = Stream(); flag_load(F, YF)
plan.setdefault(opt['yfl'], Stream()).ext(F)
F = Stream(); flag_check(F, YF)
F(f"s_mul_i32 s11, s{sWAVE}, 2560\ns_add_u32 s11, s11, {L_Y}")
for i, o in enumerate((0, 1024, 1536)):
    F(f"s_add_u32 m0, s11, {o}")
    tyl = F(f"buffer_load_dwordx4 v{vYG}, {SRD_WS}, s{sYL+i} offen sc1 lds")
plan.setdefault(opt['ychk'], Stream()).ext(F)
for p in range(3):
    last = 5 * max(n for n, st in enumerate(steps) if st[0] == p) + 4
    F = Stream()
    for dt in range(5):
        F(f"ds_write_b128 v{vRW}, {vr(AC[p]+4*dt,4)} offset:{p*5120 + dt*1024}")
    spread(F, last + 3, last + 3 + min(20, 5 * (12 - KA) - 5 if KA < 12 else 20), plan)
X4 = lambda g: 1 if g % 5 == 4 else 0
fit(G2, plan, FA, 1, opt['yfl'] - 1 if not opt['fast'] else 85, opt['cap2'], X4)
if opt['fast']:
    F = Stream()
    for k in range(10):
        a = 20 + 2*k
        F(f"""v_lshlrev_b32 v{a}, 16, v{EN(k)}
v_and_b32 v{a+1}, 0xffff0000, v{EN(k)}
v_lshlrev_b32 v2, 16, v{vED+k}
v_and_b32 v3, 0xffff0000, v{vED+k}
v_mul_f32 v{a}, v{a}, v2
v_mul_f32 v{a+1}, v{a+1}, v3""")
    fit(G2, plan, F, 90, 175, opt['cap2'], X4)
S.ext(weave(G2, plan))
vS = 176 if not opt['fast'] else 20; vYT = 196; vG2 = 20
stamp(S, 'g2')
S("s_waitcnt lgkmcnt(0)")
S("s_barrier")
stamp(S, 'e_bar')
PS = lambda p, dt: 108 + 20*p + 4*dt
for p in range(3):
    for dt in range(5):
        S(f"ds_read_b128 {vr(PS(p, dt), 4)}, v{vPA[p]} offset:{p*5120 + dt*1024}")
ac = vG2 + 20
for p in range(3):
    for k in range(10):
        S(f"v_pk_add_f32 {vp(ac+2*k)}, {vp(ac+2*k)}, {vp(PS(p, k//2) + 2*(k&1))}")
T = lambda k: 108 + 2*k
def stage(fn):
    for k in range(10): fn(k, ac + 2*k, T(k))
def y_in():
    S.wait(tyl)
    S("s_barrier")
    for dt in range(5):
        S(f"ds_read_b64_tr_b16 {vr(vYT+2*dt,2)}, v65 offset:{2048*dt}")
if opt['fast']:
    stage(lambda k, a, t: S(f"v_pk_mul_f32 {vp(t)}, {vp(a)}, s[12:13]"))
    stage(lambda k, a, t: S(f"v_exp_f32 v{t}, v{t}\nv_exp_f32 v{t+1}, v{t+1}"))
    stage(lambda k, a, t: S(f"v_pk_add_f32 {vp(t)}, {vp(t)}, s[14:15]"))
    stage(lambda k, a, t: S(f"v_rcp_f32 v{t}, v{t}\nv_rcp_f32 v{t+1}, v{t+1}"))
    y_in()
    stage(lambda k, a, t: S(f"v_pk_mul_f32 {vp(a)}, {vp(a)}, {vp(t)}"))
    stage(lambda k, a, t: S(f"v_dot2_f32_bf16 v{vS+2*k}, v{vYT+k}, s72, v{vS+2*k}\nv_dot2_f32_bf16 v{vS+2*k+1}, v{vYT+k}, s73, v{vS+2*k+1}"))
    stage(lambda k, a, t: S(f"v_pk_fma_f32 {vp(a)}, {vp(a)}, {vp(vS+2*k)}, {vp(vXf[k])}"))
else:
    stage(lambda k, a, t: S(f"v_cvt_pk_bf16_f32 v{t}, v{a}, v{a+1}"))
    stage(lambda k, a, t: S(f"v_dot2_f32_bf16 v{a}, v{t}, s72, v{vB2+2*k}\nv_dot2_f32_bf16 v{a+1}, v{t}, s73, v{vB2+2*k+1}"))
    stage(lambda k, a, t: S(f"v_cvt_pk_bf16_f32 v{t}, v{a}, v{a+1}"))
    stage(lambda k, a, t: S(f"v_lshlrev_b32 v{a}, 16, v{t}\nv_and_b32 v{a+1}, 0xffff0000, v{t}\nv_pk_mul_f32 {vp(t)}, {vp(a)}, s[12:13]"))
    stage(lambda k, a, t: S(f"v_exp_f32 v{t}, v{t}\nv_exp_f32 v{t+1}, v{t+1}"))
    stage(lambda k, a, t: S(f"v_pk_add_f32 {vp(t)}, {vp(t)}, s[14:15]"))
    stage(lambda k, a, t: S(f"v_rcp_f32 v{t}, v{t}\nv_rcp_f32 v{t+1}, v{t+1}"))
    y_in()
    stage(lambda k, a, t: S(f"v_pk_mul_f32 {vp(a)}, {vp(a)}, {vp(t)}"))
    stage(lambda k, a, t: S(f"v_cvt_pk_bf16_f32 v{t}, v{a}, v{a+1}\nv_lshlrev_b32 v{a}, 16, v{t}\nv_and_b32 v{a+1}, 0xffff0000, v{t}"))
    stage(lambda k, a, t: S(f"v_lshlrev_b32 v{vS+2*k}, 16, v{vYT+k}\nv_and_b32 v{vS+2*k+1}, 0xffff0000, v{vYT+k}\nv_dot2_f32_bf16 v{vS+2*k}, v{EN(k)}, s72, v{vS+2*k}\nv_dot2_f32_bf16 v{vS+2*k+1}, v{EN(k)}, s73, v{vS+2*k+1}"))
    stage(lambda k, a, t: S(f"v_cvt_pk_bf16_f32 v{t}, v{vS+2*k}, v{vS+2*k+1}\nv_lshlrev_b32 v{vS+2*k}, 16, v{t}\nv_and_b32 v{vS+2*k+1}, 0xffff0000, v{t}\nv_pk_mul_f32 {vp(a)}, {vp(a)}, {vp(vS+2*k)}\nv_cvt_pk_bf16_f32 v{t}, v{a}, v{a+1}"))
    stage(lambda k, a, t: S(f"v_dot2_f32_bf16 v{a}, v{t}, s72, v{vXf[k]}\nv_dot2_f32_bf16 v{a+1}, v{t}, s73, v{vXf[k]+1}"))
for k in range(10):
    a = ac + 2*k
    S(f"v_cvt_pk_bf16_f32 v{vEX+k}, v{a}, v{a+1}")
    if k & 1:
        S(f"buffer_store_dwordx2 {vr(vEX+k-1,2)}, v{vOO}, {SRD_OUT}, 0 offen offset:{32*(k//2)}")
stamp(S, 'end')
if opt['stamps']:
    S(f"s_memrealtime s[68:69]\ns_waitcnt lgkmcnt(0)\nv_writelane_b32 v{vST}, s68, 31")
    S(f"s_lshl_b32 s11, s{sWG}, 2\ns_add_u32 s11, s11, s{sWAVE}\ns_lshl_b32 s11, s11, 7\ns_add_u32 s11, s11, {STAMP}\nv_lshlrev_b32 v1, 2, v0\ns_mov_b32 exec_hi, 0")
    S(f"buffer_store_dword v{vST}, v1, {SRD_WS}, s11 offen")
S.label(".Lend")
S("s_endpgm")

body = finalize(S) + finalize(COLD) + ["    s_endpgm"]
H2 = f""".amdgcn_target "amdgcn-amd-amdhsa--gfx950"
.text
.globl {NAME}_kernel
.p2align 8
.type {NAME}_kernel,@function
{NAME}_kernel:"""
body, nbytes, nfix = align_pass(body, H2, minrun=5 if opt['align'] else 100000)
sys.stderr.write(f"code bytes {nbytes}, alignment fixes {nfix}\n")
hdr = open('cdna_kernels/' + NAME + '.s.ref').read().split('\n')
out = []
for l in hdr:
    if l.startswith('; @launch'): out.append(f"; @launch grid=(256,1,1) block=(256,1,1) lds={LDS_BYTES}"); break
    out.append(l)
out.append(H2)
out += body
kb = opt['code_kb']
assert nbytes <= kb * 1024
out.append(f""".fill ({kb*1024 + 2304} - (. - {NAME}_kernel)) / 4, 4, 0xbf800000
.section .rodata,"a"
.p2align 6
.amdhsa_kernel {NAME}_kernel
  .amdhsa_next_free_vgpr 512
  .amdhsa_next_free_sgpr 102
  .amdhsa_accum_offset 256
  .amdhsa_group_segment_fixed_size 0
  .amdhsa_kernarg_size 120
  .amdhsa_user_sgpr_count 2
  .amdhsa_user_sgpr_kernarg_segment_ptr 1
  .amdhsa_system_sgpr_workgroup_id_x 1
.end_amdhsa_kernel""")
if opt['stamps']: out.insert(0, "; stamps: " + ",".join(stamp_names))
print('\n'.join(out))
```

```python
import sys, math, struct
sys.path.insert(0, 'gen')
from emit import *

NAME = "recurrent_scan__ssm_conv_s4d__dense_activation_squared_relu__prompt"
opt = dict(lt=3, lt0=4, lt1=40, hrt=2, hgap3=4, cap2=2, capc=2, xev=2, xlead=30, dtlb=1, w3cap=48, stamps=0, spin=2000000, code_kb=35, align=1, b0=8, b2a=2, b2b=2, b2c=4, xf0=4, xf1=6,
           g1pre=8, g1d=10, uw=45, mb=78, uf=48, wa0=84, wan=12, wep=12, wb0=14, wb1=22, tpos=0, xpos=0, ka=12, wb3=0, wev=10, hld=10, hldx=0, hchkx=34,
           hfl=8, tail10=0, stg=0, hrot=0, wrot=0, xrot=0, hb3=14, fast=1, g1fast=0, ypub=50, hchk=52, hgap=4, hgapx=2, hpre=3, hd=12, yfl=185, ychk=225)
for a in sys.argv[1:]:
    k, v = a.split('='); opt[k] = int(v)

def f32(x): return struct.unpack('<I', struct.pack('<f', x))[0]
def vr(b, n=1): return f"v{b}" if n == 1 else f"v[{b}:{b+n-1}]"
def ar(b, n=1): return f"a{b}" if n == 1 else f"a[{b}:{b+n-1}]"
def vp(b): return f"v[{b}:{b+1}]"
def flat(gs):
    s = Stream()
    for g in gs: s.ext(g)
    return s

XNA = 0; XNB = 0x400000; HB = 0x800000; YT = 0x1000000
FX = 0x1500000; FB = FX + 0x8000; FH = FX + 0x10000; FY = FX + 0x40000
W2R = 0x1600000
STAMP = 0x1800000
XAS = 65536; XBS = 16384; HBS = 64; YS = 8192
L_W = 40960
SCR_W = 8704; TROW = 272
KSLOT = SCR_W; OOFF = 4284
L_U = 3 * KSLOT; USLOT = 4352
L_LN = L_U; LNROW = 1344
L_E = L_W + 61440
L_Y = L_E + 4 * 6144
L_P = L_W + 37 * 3072
L_F = L_W - 64
L_V = L_U + 3 * USLOT
LDS_BYTES = 163840
assert L_U + 3 * USLOT <= L_W and L_LN + 8 * LNROW <= L_W
sWG, sWAVE, sRB, sCB, sRB2, sCB2, sCBASE, sPAR, sNONCE = 2, 3, 4, 5, 6, 7, 8, 9, 10
P = lambda k: f"s[{16+2*k}:{17+2*k}]"
pX, pLOGA, pAIM, pCR, pCI, pLOGDT, pDSK, pBX, pW1, pB1, pW2, pB2, pOUT, pDBG, pWS = range(15)
SRD_X, SRD_W1, SRD_W2, SRD_WS, SRD_OUT = "s[48:51]", "s[52:55]", "s[56:59]", "s[60:63]", "s[64:67]"
sXB, sXC, sSCR, sW2B, sROT, sSRC, sRG, sXH = 76, 77, 78, 79, 80, 81, 82, 83
sOWN, sUB, sEN0, sEN1, sHST, sHFL = 84, 85, 86, 87, 88, 89
sHB = 90
sYL = 94
sSL0, sSL1, sISX, sYF2, sJ = 97, 98, 99, 100, 101
sYB, sYF = 74, 75
SPIN_MAX = opt['spin']
JUNK = "a255"
LOG2E = 1.4426950408889634
vU, vK, vKn = 92, 93, 94
vXD, vEA = 95, 98
vW2R, vUl, vKl, vYl, vOO, vUG, vUW = 100, 101, 102, 103, 104, 105, 106
vST = 107
vXF, vW1O, vBD, vB1A, vHS, vENA, vE0, vE1 = 240, 241, 244, 245, 246, 247, 248, 249
vHF, vYG, vL1, vL0, vA0, vA1 = 250, 251, 252, 253, 254, 255

S = Stream()
COLD = Stream()
stamp_names = []
SKIP = set('w3_b0 w3_ln ln_st idle ln k_u0 e_bar ep0 ep1 ep2'.split())
def stamp(s, name):
    if not opt['stamps'] or name in SKIP: return
    if name not in stamp_names: stamp_names.append(name)
    idx = stamp_names.index(name)
    assert 0 < idx < 29
    s(f"s_memtime s[68:69]\ns_waitcnt lgkmcnt(0)\nv_writelane_b32 v{vST}, s68, {idx}")

def bf16_round(s, dst, src):
    s(f"v_cvt_pk_bf16_f32 {dst}, {src}, {src}")
    s(f"v_and_b32 {dst}, 0xffff0000, {dst}")

def flag_load(s, loads, nonce=None):
    for vd, vo, *n in loads:
        s(f"buffer_load_dword{'x4' if n else ''} {vr(vd, 4 if n else 1)}, v{vo}, {SRD_WS}, 0 offen sc0 sc1")
    if nonce: s(f"global_load_dword v{nonce[0]}, v{nonce[1]}, {P(pDBG)} sc0 sc1")
def flag_test(s, loads, nonce=None):
    regs = [vd + k for vd, vo, *n in loads for k in range(4 if n else 1)]
    if nonce: s(f"v_readfirstlane_b32 s{sNONCE}, v{nonce[0]}")
    for r in regs: s(f"v_xor_b32 v{r}, s{sNONCE}, v{r}")
    for r in regs[1:]: s(f"v_or_b32 v{regs[0]}, v{regs[0]}, v{r}")
    if nonce:
        s(f"v_cmp_eq_u32 vcc, 0, v{nonce[0]}")
        s(f"v_cndmask_b32 v{regs[0]}, v{regs[0]}, 1, vcc")
    s(f"v_cmp_ne_u32 vcc, 0, v{regs[0]}")
uid = [0]
def spin(L, loads, nonce=None, pre="", post=None, drain=True):
    c = COLD
    c.label(f"{L}s")
    c("s_mov_b32 s70, 0")
    if pre: c(pre)
    c.label(f"{L}l")
    flag_load(c, loads, nonce)
    c("s_waitcnt vmcnt(0)")
    flag_test(c, loads, nonce)
    c(f"s_add_u32 s70, s70, 1\ns_cmp_gt_u32 s70, {SPIN_MAX}\ns_cbranch_scc1 {L}x\ns_cbranch_vccz {L}x\ns_sleep 4\ns_branch {L}l")
    c.label(f"{L}x")
    if post:
        c.ext(post)
        if drain: c("s_waitcnt vmcnt(0)")
        else: c.endpath(keep=None)
    c(f"s_nop 4\ns_branch {L}b")
def flag_check(s, loads):
    uid[0] += 1; L = f".Lc{uid[0]}"
    flag_test(s, loads)
    s(f"s_cbranch_vccnz {L}s")
    s.label(f"{L}b")
    spin(L, loads)

if opt['stamps']:
    S("s_memtime s[70:71]"); stamp_names.append('start')
S(f"s_cmp_ge_u32 s{sWG}, 256")
S("s_cbranch_scc1 .Lend")
S("s_load_dwordx16 s[16:31], s[0:1], 0")
S("s_load_dwordx8 s[32:39], s[0:1], 64")
S("s_load_dwordx4 s[40:43], s[0:1], 96")
S("s_load_dwordx2 s[44:45], s[0:1], 112")
vX = 20; vRAW = 120
S(f"""s_getpc_b64 s[72:73]
s_and_b32 s11, s{sWG}, 7
s_lshr_b32 s{sJ}, s{sWG}, 3
s_lshl_b32 s{sRG}, s11, 5
s_add_u32 s{sRG}, s{sRG}, s{sJ}
v_lshrrev_b32 v4, 4, v0
v_lshl_add_u32 v2, s{sRG}, 3, v4
v_mul_u32_u24 v2, 1280, v2
v_and_b32 v7, 15, v0
v_lshl_add_u32 v2, v7, 4, v2
v_lshrrev_b32 v3, 6, v0
v_and_b32 v0, 63, v0
v_readfirstlane_b32 s{sWAVE}, v3
s_and_b32 s{sPAR}, s{sJ}, 1
s_lshl_b32 s{sCBASE}, s11, 4
s_lshr_b32 s15, s{sJ}, 1
s_add_u32 s{sCBASE}, s{sCBASE}, s15
s_mul_i32 s{sCBASE}, s{sCBASE}, 5
s_lshl_b32 s15, s{sPAR}, 1
s_add_u32 s{sCBASE}, s{sCBASE}, s15
s_min_u32 s12, s{sWAVE}, 2
s_add_u32 s12, s12, s{sCBASE}
s_mul_i32 s15, s12, 384
s_lshl_b32 s12, s12, 1
s_and_b32 s13, s12, -4
s_lshl_b32 s46, s12, 3
v_mul_u32_u24 v6, 6, v0
v_and_b32 v6, -4, v6
v_add_u32 v6, s15, v6
v_mov_b32 v10, {L_F}
v_mov_b32 v12, 0
v_mov_b32 v13, 0
ds_write_b64 v10, v[12:13]
s_cmp_ge_u32 s{sWAVE}, 2
s_waitcnt lgkmcnt(0)
s_cbranch_scc1 .Lnox""")
for j in range(5):
    S(f"global_load_dwordx4 {vr(vX+4*j,4)}, v2, {P(pX)} offset:{256*j}")
S.label(".Lnox")
if opt['stamps']:
    S(f"v_mov_b32 v{vST}, 0\nv_writelane_b32 v{vST}, s70, 0\ns_memrealtime s[68:69]\ns_waitcnt lgkmcnt(0)\nv_writelane_b32 v{vST}, s68, 30")
S(f"s_load_dword s47, {P(pLOGDT)}, s13")
S("s_barrier")
S(f"s_cmp_eq_u32 s{sWAVE}, 3\ns_cbranch_scc1 .Lnopar")
for k, p in enumerate((pLOGA, pAIM, pCR, pCI)):
    S(f"global_load_dwordx2 {vr(vRAW+2*k,2)}, v6, {P(p)}")
S.label(".Lnopar")
def srd(name, p, nbytes):
    b = int(name[2:name.index(':')])
    S(f"s_mov_b32 s{b}, s{16+2*p}\ns_mov_b32 s{b+1}, s{17+2*p}\ns_mov_b32 s{b+2}, {nbytes}\ns_mov_b32 s{b+3}, 0x20000")
S(f"""v_min_u32 v10, 2, v0
v_mul_u32_u24 v10, 10, v10
v_min_u32 v11, 1, v0
v_lshlrev_b32 v11, 1, v11
v_cmp_lt_u32 vcc, 1, v0
s_lshr_b32 s12, s{sRG}, 7
v_add_u32 v11, s12, v11
v_cndmask_b32 v10, v11, 10, vcc
v_cmp_lt_u32 vcc, 2, v0
v_cndmask_b32 v10, v10, 11, vcc
v_lshlrev_b32 v10, 21, v10
v_add_u32 v10, 0x1fff80, v10
v_mov_b32 v12, 0x80
s_mul_i32 s12, s{sJ}, {opt['code_kb'] * 32}
v_lshl_add_u32 v1, v0, 5, s12
s_cmp_eq_u32 s{sWAVE}, 1
s_cbranch_scc1 .Ltlb1
s_cmp_eq_u32 s{sWAVE}, 2
s_cbranch_scc1 .Ltlb2
s_cmp_eq_u32 s{sWAVE}, 3
s_cbranch_scc1 .Ltlb3""")
S.junk(f"global_load_dword {JUNK}, v1, s[72:73]"); S.l[-1].kind = 'other'
S("s_branch .Ltlbd")
S.label(".Ltlb1")
if opt['dtlb']:
    S(f"""s_lshl_b32 s12, s{sJ}, 21
s_add_u32 s12, s12, 0x1fff80
s_mov_b64 s[68:69], {P(pWS)}""")
    for n, (p_, off) in enumerate(((pB1, 0x80), (pX, 0), (pX, 0x200000), (pB2, 0x80), (pDSK, 0x80), (pOUT, 0), (pOUT, 0x200000))):
        S(f"s_cmp_eq_u32 s{sJ}, {12+n}\ns_cselect_b64 s[68:69], {P(p_)}, s[68:69]\ns_cselect_b32 s12, {off}, s12")
    S(f"v_mov_b32 v12, s12\ns_cmp_ge_u32 s{sJ}, 19\ns_cbranch_scc1 .Ltlbd")
    S.junk(f"global_load_dword {JUNK}, v12, s[68:69]"); S.l[-1].kind = 'other'
S("s_branch .Ltlbd")
S.label(".Ltlb3")
S.junk(f"global_load_dword {JUNK}, v10, {P(pWS)}"); S.l[-1].kind = 'other'
S("s_branch .Ltlbd")
S.label(".Ltlb2")
S.junk(f"global_load_dword {JUNK}, v12, {P(pDBG)}"); S.l[-1].kind = 'other'
S(f"""s_cmp_lg_u32 s{sWG}, 0
s_cbranch_scc1 .Ltlbd
s_memrealtime s[68:69]
s_waitcnt lgkmcnt(0)
s_lshl_b32 s68, s68, 1
s_or_b32 s68, s68, 1
v_mov_b32 v1, s68
v_mov_b32 v2, 0
global_store_dword v2, v1, {P(pDBG)} sc0 sc1""")
S.l[-1].kind = 'other'
S.label(".Ltlbd")
srd(SRD_W1, pW1, 640*1536*2)
srd(SRD_W2, pW2, 640*1536*2)
srd(SRD_WS, pWS, 0x10000000)
srd(SRD_X, pX, 2048*640*2)
srd(SRD_OUT, pOUT, 2048*640*2)
S(f"""s_lshr_b32 s13, s11, 1
s_and_b32 s{sXH}, s11, 1
s_lshl_b32 s{sRB}, s13, 2
s_and_b32 s15, s{sJ}, 3
s_add_u32 s{sRB}, s{sRB}, s15
s_lshl_b32 s{sCB}, s{sXH}, 3
s_lshr_b32 s12, s{sJ}, 2
s_add_u32 s{sCB}, s{sCB}, s12
s_lshl_b32 s15, s15, 1
s_mul_i32 s{sROT}, s{sCB}, {opt['xrot']}
s_add_u32 s{sROT}, s15, s{sROT}
s_lshl_b32 s{sRB2}, s13, 3
s_and_b32 s15, s{sJ}, 7
s_add_u32 s{sRB2}, s{sRB2}, s15
s_lshl_b32 s{sCB2}, s{sXH}, 2
s_lshr_b32 s15, s{sJ}, 3
s_add_u32 s{sCB2}, s{sCB2}, s15
s_mov_b32 s{sNONCE}, 0
s_mul_i32 s{sSCR}, s{sWAVE}, {SCR_W}
s_mul_i32 s{sW2B}, s{sWAVE}, 15360
s_add_u32 s{sW2B}, s{sW2B}, {L_W}
s_mul_i32 s{sSRC}, s{sCB}, 192
s_mov_b32 s70, {L_W}
s_and_b32 s12, s{sROT}, 7
s_mul_i32 s71, s12, {5*49152}
s_add_u32 s71, s71, s{sSRC}
s_add_u32 s74, s{sSRC}, {40*49152}""")
def divmod_off(dst, i, magic, div, stride):
    S(f"""v_add_u32 v15, {64*i}, v0
v_mul_u32_u24 v2, {magic}, v15
v_lshrrev_b32 v2, 19, v2
v_mul_u32_u24 v3, {div}, v2
v_sub_u32 v3, v15, v3
v_mul_u32_u24 v2, {stride}, v2
v_lshl_add_u32 v{dst}, v3, 4, v2""")
def w1_slot(s):
    for i in range(3):
        s(f"s_add_u32 m0, s70, {i*1024}")
        s(f"buffer_load_dwordx4 v{vW1O+i}, {SRD_W1}, s71 offen lds")
    s(f"""s_add_u32 s70, s70, 3072
s_add_u32 s71, s71, 49152
s_cmp_eq_u32 s71, s74
s_cselect_b32 s71, s{sSRC}, s71""")
def w1_upto(s, n):
    uid[0] += 1; L = f".Lw1_{uid[0]}"
    s(f"s_cmp_ge_u32 s70, {L_W + 3072*n}\ns_cbranch_scc1 {L}x")
    s.label(L)
    s(f"s_waitcnt vmcnt({opt['w3cap']})"); s.l[-1].mn = 's_waitcnt_raw'
    k = len(s.l)
    w1_slot(s)
    for i in s.l[k:]:
        if i.kind == 'vmem': i.kind = 'other'
    s(f"s_cmp_lt_u32 s70, {L_W + 3072*n}\ns_cbranch_scc1 {L}")
    s.label(L + "x")
def w1_slots(s, n, counted=True):
    if n <= 0: return
    uid[0] += 1; L = f".Lw1_{uid[0]}"
    s(f"s_mov_b32 s75, {n}")
    s.label(L)
    s(f"s_waitcnt vmcnt({opt['w3cap']})"); s.l[-1].mn = 's_waitcnt_raw'
    k = len(s.l)
    w1_slot(s)
    s(f"s_sub_u32 s75, s75, 1\ns_cmp_lg_u32 s75, 0\ns_cbranch_scc1 {L}")
    if counted:
        for _ in range(min(3 * (n - 1), 40)): s.assume([])
    else:
        for i in s.l[k:]:
            if i.kind == 'vmem': i.kind = 'other'
for i in range(3): divmod_off(vW1O + i, i, 0xaaab, 12, 3072)
S(f"""s_nop 0
s_lshl_b32 s11, s{sRB}, 2
s_add_u32 s11, s11, s{sWAVE}
s_mul_i32 s{sXB}, s11, {XAS}
s_lshl_b32 s12, s11, 4
s_add_u32 s12, s12, s{sCB}
s_lshl_b32 s12, s12, 7
s_add_u32 s{sHFL}, s12, {FH}
s_lshl_b32 s12, s11, 9
s_add_u32 s12, s12, {FX}
v_and_b32 v1, 3, v0
v_lshl_add_u32 v{vXF}, v1, 7, s12
s_lshl_b32 s11, s11, 1
s_mul_i32 s11, s11, {HBS}
s_mul_i32 s12, s{sCB}, 3
s_add_u32 s11, s11, s12
s_lshl_b32 s11, s11, 10
s_add_u32 s{sHST}, s11, {HB}
s_mul_i32 s{sOWN}, s{sCB2}, {opt['hrot']}
s_add_u32 s{sOWN}, s{sWAVE}, s{sOWN}
s_and_b32 s{sOWN}, s{sOWN}, 3
s_mul_i32 s11, s{sWAVE}, {64*XBS}
s_lshl_b32 s12, s{sCBASE}, 4
s_add_u32 s11, s11, s12
s_add_u32 s{sUB}, s11, {XNB}
s_lshl_b32 s14, s{sRB2}, 6
s_lshl_b32 s12, s{sOWN}, 4
s_add_u32 s14, s14, s12
s_lshr_b32 s13, s14, 5
s_mul_i32 s13, s13, {XAS//1024}
s_mul_i32 s12, s{sCB2}, 5
s_add_u32 s13, s13, s12
s_lshl_b32 s13, s13, 10
s_and_b32 s12, s14, 31
s_lshl_b32 s12, s12, 4
s_add_u32 s{sEN0}, s13, s12
s_mul_i32 s{sEN1}, s14, 1280
s_mul_i32 s12, s{sCB2}, 160
s_add_u32 s{sEN1}, s{sEN1}, s12
s_mul_i32 s11, s{sCB2}, {80*YS}
s_lshl_b32 s12, s{sRB2}, 7
s_add_u32 s11, s11, s12
s_mul_i32 s12, s{sWAVE}, {20*YS}
s_add_u32 s11, s11, s12
s_add_u32 s{sYL}, s11, {YT}
s_add_u32 s{sYL+1}, s{sYL}, {8*YS}
s_add_u32 s{sYL+2}, s{sYL}, {12*YS}
s_add_u32 s{sSL0}, s{sPAR}, s{sWAVE}
s_cmp_eq_u32 s{sWAVE}, 2
s_cselect_b32 s{sSL0}, s{sPAR}, s{sSL0}
s_cselect_b32 s{sISX}, 1, 0
s_add_u32 s{sSL1}, s{sPAR}, 1
s_lshl_b32 s12, s{sPAR}, 1
s_sub_u32 s12, 2, s12
s_cmp_eq_u32 s{sWAVE}, 3
s_cselect_b32 s{sISX}, s{sPAR}, s{sISX}
s_cselect_b32 s{sSL0}, s12, s{sSL0}
s_cselect_b32 s{sSL1}, 0, s{sSL1}""")
for p in range(4):
    S(f"""s_add_u32 s11, s{sOWN}, {p+1}
s_and_b32 s11, s11, 3
s_lshl_b32 s12, s{sRB2}, 2
s_add_u32 s11, s11, s12
s_mul_i32 s11, s11, {HBS}
s_mul_i32 s12, s{sWAVE}, 12
s_add_u32 s11, s11, s12
s_lshl_b32 s11, s11, 10
s_add_u32 s{sHB+p}, s11, {HB}""")
for i in range(3): divmod_off(vXD + i, i, 0xcccd, 10, 1280)
S(f"""v_and_b32 v5, 31, v0
v_lshrrev_b32 v8, 4, v0
v_lshrrev_b32 v9, 5, v0
v_and_b32 v13, 1, v8
v_and_b32 v1, 3, v0
v_lshrrev_b32 v14, 2, v0
v_lshlrev_b32 v{vL0}, 4, v0
v_add_u32 v{vL1}, 1024, v{vL0}
v_lshlrev_b32 v{vB1A}, 3, v9
v_add_u32 v{vB1A}, {L_V}, v{vB1A}
v_add_u32 v{vOO}, s14, v7
v_mul_u32_u24 v{vOO}, 1280, v{vOO}
s_mul_i32 s12, s{sCB2}, 160
v_lshl_add_u32 v{vBD}, v8, 3, s12
v_add_u32 v{vOO}, v{vOO}, v{vBD}
v_lshlrev_b32 v{vBD}, 3, v8
v_add_u32 v{vBD}, {L_V + 256}, v{vBD}
v_lshrrev_b32 v2, 2, v7
v_lshl_add_u32 v3, v9, 3, v2
v_mul_u32_u24 v{vA0}, 192, v3
v_lshl_add_u32 v{vA0}, v1, 3, v{vA0}
v_lshl_add_u32 v{vA0}, v13, 5, v{vA0}
v_add_u32 v{vA0}, {L_W}, v{vA0}
v_add_u32 v{vA1}, 61440, v{vA0}
v_lshl_add_u32 v3, v13, 2, v2
v_lshl_add_u32 v3, v9, 4, v3
v_lshlrev_b32 v3, 8, v3
v_lshl_add_u32 v3, v1, 3, v3
v_add_u32 v{vW2R}, {L_P}, v3
v_mul_u32_u24 v3, {XBS}, v14
v_lshl_add_u32 v{vUG}, v1, 4, v3
v_mul_u32_u24 v3, {USLOT}, v1
v_lshl_add_u32 v3, v14, 4, v3
s_lshl_b32 s12, s{sWAVE}, 10
s_add_u32 s12, s12, {L_U + 256}
v_add_u32 v{vUW}, s12, v3
v_lshlrev_b32 v2, 4, v7
v_lshl_add_u32 v{vENA}, v8, 9, v2
s_mul_i32 s12, s{sWAVE}, 6144
s_add_u32 s12, s12, {L_E}
v_mul_u32_u24 v3, 160, v7
v_lshl_add_u32 v3, v8, 3, v3
v_add_u32 v{vEA}, s12, v3
v_lshl_add_u32 v3, v9, 8, v2
v_lshl_add_u32 v3, v13, 3, v3
v_add_u32 v{vEA+1}, s12, v3
v_mul_u32_u24 v3, {HBS*1024}, v13
v_add_u32 v3, v3, v2
v_lshl_add_u32 v{vHS}, v9, 8, v3
v_lshl_add_u32 v3, v13, 8, v2
v_lshl_add_u32 v{vYl}, v9, 10, v3
v_add_u32 v3, v7, v8
v_lshlrev_b32 v3, 4, v3
v_add_u32 v{vUl}, {L_U + 16}, v3
v_and_b32 v3, 7, v0
v_sub_u32 v3, 8, v3
v_lshrrev_b32 v3, 1, v3
v_lshl_add_u32 v3, v8, 2, v3
v_lshlrev_b32 v{vKl}, 2, v3
v_and_b32 v2, 1, v0
v_sub_u32 v3, 1, v2
v_mul_u32_u24 v3, {OOFF}, v3
v_add_u32 v{vKl}, v{vKl}, v3
v_bfe_u32 v3, v0, 3, 1
v_sub_u32 v3, 1, v3
v_mul_u32_u24 v3, 1056, v3
v_add_u32 v{vKl}, v{vKl}, v3
v_lshrrev_b32 v3, 3, v0
v_mul_u32_u24 v3, {YS}, v3
v_and_b32 v2, 7, v0
v_lshl_add_u32 v{vYG}, v2, 4, v3
s_lshr_b32 s11, s{sRB2}, 1
s_lshl_b32 s11, s11, 2
s_and_b32 s12, s{sRB2}, 1
s_lshl_b32 s12, s12, 1
s_add_u32 s11, s11, s12
s_lshl_b32 s11, s11, 4
s_lshl_b32 s12, s{sWAVE}, 2
s_add_u32 s11, s11, s12
s_lshl_b32 s11, s11, 7
s_add_u32 s11, s11, {FH}
v_and_b32 v3, 1, v14
v_lshlrev_b32 v3, 11, v3
v_lshl_add_u32 v3, v1, 7, v3
v_add_u32 v{vHF}, s11, v3
v_sub_u32 v2, 31, v5
v_lshl_add_u32 v2, v2, 4, s{sSCR}
v_sub_u32 v3, 1, v9
v_lshl_add_u32 v{vE0}, v3, 9, v2
v_mul_u32_u24 v3, 1056, v3
v_add_u32 v{vE1}, v3, v2
v_mul_u32_u24 v1, {LNROW}, v4
v_lshl_add_u32 v1, v7, 4, v1
v_add_u32 v1, {L_LN}, v1""")
def unit_addr(s, sslot):
    s(f"""s_mul_i32 s12, s{sslot}, {USLOT}
v_add_u32 v{vU}, s12, v{vUl}
s_mul_i32 s12, s{sslot}, {KSLOT}
s_mul_i32 s13, s{sISX}, 2112
s_add_u32 s12, s12, s13
v_add_u32 v{vK}, s12, v{vKl}
v_add_u32 v{vKn}, 1056, v{vK}
s_add_u32 s12, s{sCBASE}, s{sslot}
s_mul_i32 s12, s12, {YS}
s_lshl_b32 s13, s{sISX}, 11
s_sub_u32 s12, s12, s13
s_add_u32 s{sYB}, s12, {YT + 2048}
s_nop 0""")
def xreg(i): return ar(120 + 4 * (i % 30), 4)
def xn_load(s, i):
    if i % 5 == 0:
        s(f"s_add_u32 s{sXC}, s{sROT}, {i//5}\ns_and_b32 s{sXC}, s{sXC}, 7\ns_mul_i32 s{sXC}, s{sXC}, 5120\ns_add_u32 s{sXC}, s{sXC}, s{sXB}")
    k = i % 5
    s(f"buffer_load_dwordx4 {xreg(i)}, v{vL0 if k < 4 else vL1}, {SRD_WS}, s{sXC} offen offset:{1024*min(k,3)} sc1")
G1PRE = opt['g1pre']
XF = [(1, vXF)]; XN = (2, 3)
def xn_try(s, tag):
    flag_test(s, XF, XN)
    s("s_mov_b64 s[46:47], vcc")
    out = []
    for n in range(G1PRE):
        x = Stream(); x(f"s_cbranch_vccnz .Lxs{tag}{n}"); xn_load(x, n); x.label(f".Lxs{tag}{n}"); out.append(x)
    return out

stamp(S, 'idle')
S(f"s_cmp_eq_u32 s{sWAVE}, 3\ns_cbranch_scc1 .Lw3\ns_cmp_eq_u32 s{sWAVE}, 2")
S.save('role')
S("s_cbranch_scc1 .Lkgen")
S("s_waitcnt vmcnt(4)")
vF = 40; NX = 20; vA = 80
for k in range(NX):
    S(f"v_lshlrev_b32 v{vF+2*k}, 16, v{vX+k}")
    S(f"v_and_b32 v{vF+2*k+1}, 0xffff0000, v{vX+k}")
    if k == 3:
        S(f"v_pk_add_f32 {vp(vA)}, {vp(vF)}, {vp(vF+2)}")
        S(f"v_pk_add_f32 {vp(vA+2)}, {vp(vF+4)}, {vp(vF+6)}")
    elif k > 3:
        a = vA + 2 * (k & 1)
        S(f"v_pk_add_f32 {vp(a)}, {vp(a)}, {vp(vF+2*k)}")
stamp(S, 'x_in')
S(f"v_pk_add_f32 {vp(vA)}, {vp(vA)}, {vp(vA+2)}")
S(f"v_add_f32 v{vA}, v{vA}, v{vA+1}")
def rowsum(s, r):
    for sh in (8, 4, 2, 1):
        s(f"v_add_f32_dpp v{r}, v{r}, v{r} row_ror:{sh} row_mask:0xf bank_mask:0xf")
rowsum(S, vA)
S(f"v_mul_f32 v{vA+4}, {f32(-1.0/640)}, v{vA}")
bf16_round(S, f"v{vA}", f"v{vA+4}")
S(f"v_mov_b32 v{vA+1}, v{vA}")
S(f"v_sub_f32 v{vA+4}, v{vA+4}, v{vA}")
for k in range(NX):
    a = vA + 2 + 4 * (k & 1)
    S(f"v_pk_add_f32 {vp(vF+2*k)}, {vp(vF+2*k)}, {vp(vA)}")
    S(f"v_cvt_pk_bf16_f32 v{vX+k}, v{vF+2*k}, v{vF+2*k+1}")
    if k < 2: S(f"v_pk_mul_f32 {vp(a)}, {vp(vF+2*k)}, {vp(vF+2*k)}")
    else: S(f"v_pk_fma_f32 {vp(a)}, {vp(vF+2*k)}, {vp(vF+2*k)}, {vp(a)}")
r_ = vA + 2
S(f"v_pk_add_f32 {vp(r_)}, {vp(r_)}, {vp(vA+6)}")
S(f"v_add_f32 v{r_}, v{r_}, v{r_+1}")
R = Stream(); rowsum(R, r_)
R(f"v_mul_f32 v{vA+4}, v{vA+4}, v{vA+4}\nv_mul_f32 v{r_}, {f32(1.0/640)}, v{r_}\nv_sub_f32 v{r_}, v{r_}, v{vA+4}\nv_max_f32 v{r_}, 0, v{r_}")
bf16_round(R, f"v{r_}", f"v{r_}")
R(f"v_add_f32 v{r_}, {f32(1e-5)}, v{r_}")
bf16_round(R, f"v{r_}", f"v{r_}")
R(f"v_sqrt_f32 v{r_}, v{r_}")
bf16_round(R, f"v{r_}", f"v{r_}")
R(f"v_rcp_f32 v{r_}, v{r_}")
U = []
for k in range(NX):
    g = Stream(); g(f"v_lshlrev_b32 v{vF+2*k}, 16, v{vX+k}\nv_and_b32 v{vF+2*k+1}, 0xffff0000, v{vX+k}"); U.append(g)
S.ext(sprinkle(R, U, 1))
S(f"v_mov_b32 v{r_+1}, v{r_}\ns_lshl_b32 s12, s{sWAVE}, 2\ns_add_u32 s12, s12, {L_F}\nv_mov_b32 v2, s12\nv_mov_b32 v3, 1")
for k in range(NX):
    S(f"v_pk_mul_f32 {vp(vF+2*k)}, {vp(vF+2*k)}, {vp(r_)}")
for k in range(NX):
    S(f"v_cvt_pk_bf16_f32 v{vX+k}, v{vF+2*k}, v{vF+2*k+1}")
for j in range(5):
    S(f"ds_write_b128 v1, {vr(vX+4*j,4)} offset:{256*j}")
S("ds_write_b32 v2, v3")
stamp(S, 'ln')
S("s_branch .Lkgen")
S.label(".Lw3")
S.endpath(keep=None)
w1_slots(S, opt['b0'], False)
S(f"""v_lshrrev_b32 v5, 3, v0
v_and_b32 v6, 7, v0
v_mul_u32_u24 v10, {LNROW}, v6
v_lshl_add_u32 v10, v5, 4, v10
v_add_u32 v10, {L_LN}, v10
v_and_b32 v12, 3, v14
v_mul_u32_u24 v12, {LNROW}, v12
v_and_b32 v4, 3, v0
v_lshl_add_u32 v12, v4, 3, v12
v_lshl_add_u32 v12, v8, 5, v12
v_add_u32 v12, {L_LN}, v12
v_lshlrev_b32 v11, 10, v8
v_and_b32 v5, 1, v5
v_lshl_add_u32 v11, v5, 9, v11
v_lshl_add_u32 v11, v6, 4, v11
v_mul_u32_u24 v6, 1280, v8
v_lshl_add_u32 v6, v7, 4, v6
v_mov_b32 v2, {L_F}
v_mov_b32 v3, 0
s_min_u32 s12, s{sRG}, 239
s_mul_i32 s13, s12, 52429
s_lshr_b32 s13, s13, 18
s_mul_i32 s14, s13, 5
s_sub_u32 s14, s12, s14
s_mul_i32 s15, s13, {32*1280}
s_lshl_b32 s12, s14, 8
s_add_u32 s15, s15, s12
s_mul_i32 s13, s13, 40
s_lshl_b32 s14, s14, 3
s_add_u32 s13, s13, s14
s_lshl_b32 s13, s13, 10
s_add_u32 s14, s13, {W2R}
s_lshr_b32 s12, s{sRG}, 2
s_mul_i32 s12, s12, {XAS}
s_and_b32 s13, s{sRG}, 3
s_lshl_b32 s13, s13, 7
s_add_u32 s12, s12, s13
s_mul_i32 s13, s{sRG}, {XBS}
s_add_u32 s13, s13, {XNB}
s_mov_b32 s11, 0""")
stamp(S, 'w3_b0')
S.label(".Llnw")
S(f"""ds_read_b64 v[16:17], v2
s_waitcnt lgkmcnt(0)
v_and_b32 v16, v16, v17
s_add_u32 s11, s11, 1
v_readfirstlane_b32 s75, v16
s_cmp_gt_u32 s11, {SPIN_MAX*16}
s_cbranch_scc1 .Llnwx
s_cmp_eq_u32 s75, 0
s_cbranch_scc1 .Llnw""")
S.label(".Llnwx")
stamp(S, 'w3_ln')
for j in range(10):
    S(f"ds_read_b128 {vr(20+4*j,4)}, v10 offset:{128*j}")
S(f"global_load_dword v15, v3, {P(pDBG)} sc0 sc1")
for it in range(10):
    S(f"ds_read_b64_tr_b16 {vr(130+4*it,2)}, v12 offset:{128*it}")
    S(f"ds_read_b64_tr_b16 {vr(132+4*it,2)}, v12 offset:{128*it + 4*LNROW}")
for j in range(10):
    tl = S(f"buffer_store_dwordx4 {vr(20+4*j,4)}, v11, {SRD_WS}, s12 offen sc0 sc1")
    if j < 9: S("s_add_u32 s12, s12, 4096")
stamp(S, 'ln_st')
for i in range(8):
    S(f"s_mov_b32 m0, {L_P + 1024*i}")
    tp_ = S(f"buffer_load_dwordx4 v6, {SRD_W2}, s15 offen lds")
    if i < 7: S(f"s_add_u32 s15, s15, {4*1280}")
S(f"""s_mul_i32 s11, s{sCB2}, 160
v_add_u32 v18, s{sSRC}, v{vL0}
v_add_u32 v19, s11, v{vL0}
s_mov_b32 exec_hi, 0
s_mov_b32 exec_lo, 0xfff
s_mov_b32 m0, {L_V}
global_load_lds_dwordx4 v18, {P(pB1)}
s_mov_b32 exec_lo, 0x3ff
s_mov_b32 m0, {L_V + 256}
global_load_lds_dwordx4 v19, {P(pB2)}
s_mov_b32 m0, {L_V + 512}
global_load_lds_dwordx4 v19, {P(pDSK)}
s_mov_b64 exec, -1""")
w1_slots(S, opt['b2a'])
S(f"""v_readfirstlane_b32 s{sNONCE}, v15
v_mul_u32_u24 v1, {USLOT}, v8
v_lshl_add_u32 v1, v7, 4, v1
v_mov_b32 v16, 0
v_mov_b32 v17, 0
v_mov_b32 v18, 0
v_mov_b32 v19, 0
s_mov_b32 exec_hi, 0xffff
s_waitcnt lgkmcnt(0)
ds_write_b128 v1, v[16:19] offset:{L_U}
s_mov_b64 exec, -1""")
S(f"s_cmp_eq_u32 s{sNONCE}, 0\ns_cbranch_scc1 .Lnonce_s")
S.label(".Lnonce_b")
COLD.label(".Lnonce_s")
COLD(f"s_mov_b32 s11, 0")
COLD.label(".Lnonce_l")
COLD(f"global_load_dword v15, v3, {P(pDBG)} sc0 sc1\ns_waitcnt vmcnt(0)\nv_readfirstlane_b32 s{sNONCE}, v15\ns_add_u32 s11, s11, 1\ns_cmp_gt_u32 s11, {SPIN_MAX}\ns_cbranch_scc1 .Lnonce_b\ns_cmp_eq_u32 s{sNONCE}, 0\ns_cbranch_scc1 .Lnonce_l\ns_branch .Lnonce_b")
S(f"""s_lshl_b32 s12, s{sRG}, 7
s_add_u32 s12, s12, {FX}
v_mov_b32 v15, s{sNONCE}""")
S.wait(tl)
S(f"buffer_store_dword v15, v3, {SRD_WS}, s12 offen sc0 sc1")
stamp(S, 'ln_flag')
for it in range(10):
    S(f"buffer_store_dwordx4 {vr(130+4*it,4)}, v{vL0}, {SRD_WS}, s13 offen offset:{1024*(it%4)} sc0 sc1")
    if it % 4 == 3: S("s_add_u32 s13, s13, 4096")
w1_slots(S, opt['b2b'])
S.wait(tp_)
for dt in range(8):
    for r in range(2):
        S(f"ds_read_b64_tr_b16 {vr(180+4*dt+2*r,2)}, v{vW2R} offset:{r*2048 + dt*32}")
S(f"""v_add_u32 v{vW2R}, 4096, v{vL0}
s_lshr_b32 s11, s{sRG}, 2
s_lshl_b32 s11, s11, 7
s_and_b32 s12, s{sRG}, 3
s_lshl_b32 s12, s12, 2
s_add_u32 s11, s11, s12
s_add_u32 s11, s11, {FB}
v_lshlrev_b32 v8, 7, v0
v_add_u32 v8, {FB}, v8""")
for dt in range(8):
    tl = S(f"buffer_store_dwordx4 {vr(180+4*dt,4)}, v{vL0 if dt < 4 else vW2R}, {SRD_WS}, s14 offen offset:{1024*(dt%4)} sc0 sc1")
w1_slots(S, opt['b2c'])
S.wait(tl)
S(f"buffer_store_dword v15, v3, {SRD_WS}, s11 offen sc0 sc1")
stamp(S, 'fb')
w1_slots(S, 40 - opt['b0'] - opt['b2a'] - opt['b2b'] - opt['b2c'] - 4 * opt['lt'])
S(f"v_mov_b32 v{vE1}, v8")
flag_load(S, XF, XN)
flag_test(S, XF, XN)
stamp(S, 'w1_iss')
S("s_cbranch_vccnz .Lws")
for i in range(G1PRE): xn_load(S, i)
S.label(".Lwb")
X = Stream()
for i in range(G1PRE): xn_load(X, i)
spin(".Lw", XF, XN, post=X, drain=False)
S("s_branch .Lk3")

S.label(".Lkgen")
S.restore('role')
S("s_waitcnt vmcnt(0) lgkmcnt(0)")
vD = 4; vT = 52
vFs = 120; vPK = 184
vFO = 192
vGOl = [224, 228, 232, 236, 76, 80, 84, 88]
vSR, vONE, vDT = 20, 21, 22
vPE = 108
S(f"""s_mov_b32 m0, s{sSCR}
v_mul_u32_u24 v{vSR}, {TROW}, v5
v_lshl_add_u32 v{vSR}, v9, 4, v{vSR}
v_add_u32 v{vSR}, s{sSCR}, v{vSR}
v_mov_b32 v{vONE}, 0x3f80
s_lshr_b32 s47, s47, s46
s_lshl_b32 s47, s47, 16
v_mov_b32 v{vDT}, {f32(LOG2E)}
v_mul_f32 v{vDT}, s47, v{vDT}
v_exp_f32 v{vDT}, v{vDT}
v_and_b32 v1, 1, v0
v_lshlrev_b32 v1, 4, v1
v_mov_b32 v3, 0""")
bf16_round(S, f"v{vDT}", f"v{vDT}")
for k in range(4):
    d0, d1 = vRAW + 2*k, vRAW + 2*k + 1
    S(f"""v_alignbit_b32 v{d0}, v{d1}, v{d0}, v1
v_lshrrev_b32 v{d1}, v1, v{d1}
v_lshlrev_b32 v{vPE+k}, 16, v{d0}
v_and_b32 v{vPE+4+k}, 0xffff0000, v{d0}
v_lshlrev_b32 v{vPE+8+k}, 16, v{d1}""")
S(f"v_add_f32 v{vDT+1}, v{vDT}, v{vDT}\ns_mov_b32 s15, {f32(1.0 / (2 * math.pi))}")
def cmuls(s, lst):
    for d, x, y in lst:
        assert d != x and d != y
        s(f"v_pk_mul_f32 {vp(d)}, {vp(x)}, {vp(y)} op_sel:[0,0] op_sel_hi:[1,0]")
    for d, x, y in lst:
        s(f"v_pk_fma_f32 {vp(d)}, {vp(x)}, {vp(y)}, {vp(d)} op_sel:[1,1,0] op_sel_hi:[0,1,1] neg_lo:[0,1,0]")
I2PI = 1.0 / (2 * math.pi)
i2pi_hi = struct.unpack('<f', struct.pack('<f', I2PI))[0]
i2pi_lo = I2PI - i2pi_hi
hi0 = [0,1,2,3,4,5,6,7,8, 512,516,520, 1024,1032, 1280,1288]
hi1 = [256,256,258,260,260,260,262,264,264, 768,772,776, 1536,1544, 1792,1800]
rowhi = [(hi0, hi1)[(p >> 2) & 1][4 * (p >> 3) + (p & 3)] for p in range(32)]
def k_mfmas(u):
    out = []
    for s_ in range(8):
        x = Stream()
        c = "0" if (s_ == 0 and u == 0) else vr(vD, 16)
        x(f"v_mfma_f32_32x32x16_bf16 {vr(vD,16)}, {vr(vGOl[s_],4)}, {vr(vFO+4*s_,4)}, {c}")
        out.append(x)
    return out
pkc = [0]
def put(s, items, neg, mf=None):
    regs = []
    if mf: s.ext(mf.pop(0))
    for r, rows in items:
        b = vPK + (pkc[0] & 7); pkc[0] += 1
        s(f"v_cvt_pk_bf16_f32 v{b}, v{r}, {'-' if neg else ''}v{r+1}")
        regs.append((b, rows))
    if mf: s.ext(mf.pop(0))
    for b, rows in regs:
        for p in rows: s(f"ds_write_addtid_b32 v{b} offset:{p*TROW}")
    s.pseudo('slot')
def kgen_unit(u):
    A = Stream(); B = Stream()
    pa, pb, pc, pd = range(vPE + 4*u, vPE + 4*u + 4)
    va, vbh, vbl = vT, vT+1, vT+2
    vW1, vW8, vW256, vW2, vW4, vG0 = vT+4, vT+6, vT+8, vT+10, vT+12, vT+14
    G = lambda k: vFs + 2 * k
    A(f"""v_mul_f32 v{va}, {f32(LOG2E)}, v{pa}
v_mul_f32 v{pb}, v{pb}, v{vDT}
v_exp_f32 v{va}, v{va}
v_mul_f32 v{vbh}, s15, v{pb}
v_cvt_pk_bf16_f32 v{va}, v{va}, v{va}
v_fma_f32 v{vbl}, v{pb}, s15, -v{vbh}
v_and_b32 v{va}, 0xffff0000, v{va}
v_fmac_f32 v{vbl}, {f32(i2pi_lo)}, v{pb}
v_mul_f32 v{va}, v{va}, v{vDT}
v_mul_f32 v{va}, {f32(-LOG2E)}, v{va}""")
    t0 = vT + 16
    m8, a8, m1, a1, m2, a2 = range(t0, t0 + 6)
    A(f"""v_mul_f32 v{a8}, {f32(8.0)}, v{vbh}
v_mul_f32 v{m8}, {f32(8.0)}, v{va}
v_fract_f32 v{a8}, v{a8}
v_exp_f32 v{m8}, v{m8}
v_fmac_f32 v{a8}, {f32(8.0)}, v{vbl}
v_exp_f32 v{m1}, v{va}
v_fract_f32 v{a1}, v{vbh}
v_cos_f32 v{vW8}, v{a8}
v_add_f32 v{a1}, v{a1}, v{vbl}
v_sin_f32 v{vW8+1}, v{a8}
v_mul_f32 v{m2}, {f32(256.0)}, v{va}
v_cos_f32 v{vW1}, v{a1}
v_mul_f32 v{a2}, {f32(256.0)}, v{vbh}
v_sin_f32 v{vW1+1}, v{a1}
v_fract_f32 v{a2}, v{a2}
v_exp_f32 v{m2}, v{m2}
v_fmac_f32 v{a2}, {f32(256.0)}, v{vbl}
v_pk_mul_f32 {vp(vW8)}, {vp(vW8)}, {vp(m8)} op_sel:[0,0] op_sel_hi:[1,0]
v_cos_f32 v{vW256}, v{a2}
v_pk_mul_f32 {vp(vW1)}, {vp(vW1)}, {vp(m1)} op_sel:[0,0] op_sel_hi:[1,0]
v_sin_f32 v{vW256+1}, v{a2}""")
    F = lambda k: vW8 if k == 1 else G(k)
    cmuls(A, [(F(2), F(1), F(1)), (vW2, vW1, vW1)])
    A(f"v_mul_f32 v{vG0}, v{pc}, v{vDT+1}\nv_mul_f32 v{vG0+1}, v{pd}, v{vDT+1}")
    cmuls(A, [(F(3), F(2), F(1)), (F(4), F(2), F(2)), (vW4, vW2, vW2)])
    A(f"v_pk_mul_f32 {vp(vW256)}, {vp(vW256)}, {vp(m2)} op_sel:[0,0] op_sel_hi:[1,0]")
    mf = k_mfmas(u - 1) if u > 0 else None
    for lo in range(5, 32, 8):
        cmuls(A, [(F(k), F(k-4), F(4)) for k in range(lo, min(lo+4, 32))])
        cmuls(A, [(F(k), F(k-4), F(4)) for k in range(lo+4, min(lo+8, 32))])
        if lo == 29: A(f"ds_write_addtid_b32 v{vONE}")
        put(A, [(F(k), [k]) for k in range(lo-4, min(lo+4, 32))], False, mf)
    assert not mf
    A.l.pop()
    for s_ in range(8):
        A(f"ds_read_b128 {vr(vFO+4*s_,4)}, v{vSR} offset:{32*s_}")
    A.pseudo('slot')
    his = sorted(set(hi0 + hi1))
    gi = {h: G(n) for n, h in enumerate(his)}; gi[0] = vG0
    rows = lambda h: [p for p in range(32) if rowhi[p] == h]
    steps = [[(1,0,vW1), (2,0,vW2), (4,0,vW4), (8,0,vW8), (256,0,vW256)],
             [(3,2,vW1), (5,4,vW1), (258,256,vW2), (512,256,vW256)],
             [(6,4,vW2), (260,256,vW4), (264,256,vW8), (768,512,vW256)],
             [(7,6,vW1), (262,260,vW2), (516,512,vW4), (1024,768,vW256)],
             [(520,512,vW8), (772,768,vW4), (776,768,vW8), (1280,1024,vW256)],
             [(1032,1024,vW8), (1288,1280,vW8), (1536,1280,vW256)],
             [(1544,1536,vW8), (1792,1536,vW256)],
             [(1800,1792,vW8)]]
    pend = [0]
    for n, st in enumerate(steps):
        cmuls(B, [(gi[d_], gi[x_], y_) for d_, x_, y_ in st])
        if n in (1, 3, 5):
            k = min(8, len(pend))
            put(B, [(gi[h], rows(h)) for h in pend[:k]], True); pend = pend[k:]
        pend += [d_ for d_, x_, y_ in st]
    assert len(pend) <= 8, pend
    put(B, [(gi[h], rows(h)) for h in pend], True)
    B.l.pop()
    for s_ in range(8):
        B(f"ds_read_b128 {vr(vGOl[s_],4)}, v{vSR} offset:{32*s_}")
    s = Stream(); s.ext(A); s.ext(B)
    segs = [Stream()]
    for i in s.l:
        if i.kind == 'slot': segs.append(Stream())
        else: segs[-1].l.append(i)
    return segs
S.ext(flat(kgen_unit(0)))
stamp(S, 'k_u0')
U1 = kgen_unit(1); U2 = kgen_unit(2)
S.ext(flat(U1))
stamp(S, 'k_u1')
S.ext(flat(U2[:opt['xf0']]))
flag_load(S, XF, XN)
S.ext(flat(U2[opt['xf0']:opt['xf1']]))
gs = xn_try(S, 'b')
stamp(S, 'xnpoll')
seg = flat(U2[opt['xf1']:])
S.ext(sprinkle(seg, gs, max(1, len(seg.l) // (len(gs) + 1))))
for x in k_mfmas(2): S.ext(x)
stamp(S, 'kgen')
X = Stream()
vXT = 156 if opt['xpos'] == 0 else 188
d = lambda k: f"v{vD+k}"
X(f"v_and_b32 v236, 1, v0\nv_cmp_eq_u32 vcc, 1, v236")
def wo(s, b, aE, off):
    s(f"v_add_u32 v236, {off + OOFF}, v{aE}")
    s(f"ds_write2_b32 v236, v{b}, v{b+1} offset0:0 offset1:1")
    s(f"ds_write2_b32 v236, v{b+2}, v{b+3} offset0:2 offset1:3")
def build(e_pairs, o_pairs, base, aE, imm):
    for j, (a, b) in enumerate(e_pairs): X(f"v_cvt_pk_bf16_f32 v{base+j}, {a}, {b}")
    for j, (a, b) in enumerate(o_pairs): X(f"v_cvt_pk_bf16_f32 v{base+4+j}, {a}, {b}")
    X(f"v_add_u32 v236, {imm + OOFF}, v{aE}")
    X(f"ds_write_b128 v{aE}, {vr(base,4)} offset:{imm}")
    X(f"ds_write2_b32 v236, v{base+4}, v{base+5} offset0:0 offset1:1")
    X(f"ds_write2_b32 v236, v{base+6}, v{base+7} offset0:2 offset1:3")
build([(d(7),d(6)),(d(5),d(4)),(d(3),d(2)),(d(1),d(0))], [(d(8),d(7)),(d(6),d(5)),(d(4),d(3)),(d(2),d(1))], vXT, vE0, 3*1056)
build([(d(11),d(11)),(d(10),d(10)),(d(10),d(9)),(d(9),d(9))], [(d(11),d(11)),(d(11),d(10)),(d(10),d(10)),(d(9),d(9))], vXT+8, vE0, 2*1056)
for n, (r0, imm) in enumerate(((12, 512), (14, 0))):
    X(f"v_cndmask_b32 v237, {d(r0)}, {d(r0+1)}, vcc")
    V0, V1 = d(r0), d(r0+1)
    build([(V1,V1),(V1,'v237'),(V0,V0),(V0,V0)], [(V1,V1),(V1,V1),('v237',V0),(V0,V0)], vXT+16+8*n, vE1, imm)
z = vXT + 16
X(f"v_mov_b32 v{z}, 0\nv_mov_b32 v{z+1}, 0\nv_mov_b32 v{z+2}, 0\nv_mov_b32 v{z+3}, 0\nv_cvt_pk_bf16_f32 v{z+4}, {d(0)}, 0\nv_mov_b32 v237, s{sSCR}\nv_subrev_u32 v{vE1}, 32, v{vE1}")
XA = X; X = Stream()
X("s_mov_b32 exec_lo, 0\ns_mov_b32 exec_hi, 0x80000000")
X(f"ds_write_b128 v{vE0}, {vr(vXT,4)} offset:{3*1056-32}")
X(f"ds_write_b128 v{vE0}, {vr(vXT+8,4)} offset:{2*1056-32}")
wo(X, vXT+4, vE0, 3*1056-32)
wo(X, vXT+12, vE0, 2*1056-32)
X("s_mov_b32 exec_lo, 0x80000000\ns_mov_b32 exec_hi, 0")
X(f"ds_write_b128 v{vE1}, {vr(vXT+24,4)}")
wo(X, vXT+28, vE1, 0)
X("s_mov_b32 exec_lo, 1")
X(f"ds_write_b128 v237, {vr(z,4)} offset:{(3*264+256)*4}")
X(f"v_add_u32 v237, {OOFF + (3*264+256)*4}, v237")
X(f"ds_write2_b32 v237, v{z+4}, v{z} offset0:0 offset1:1\nds_write2_b32 v237, v{z}, v{z} offset0:2 offset1:3")
X("s_mov_b64 exec, -1")
XB = X
if opt['xpos'] == 0: S.ext(XA); S.ext(XB)
stamp(S, 'exp')
S("s_cmp_lg_u64 s[46:47], 0\ns_cbranch_scc1 .Lxs")
S.label(".Lxb")
X = Stream()
for i in range(G1PRE): xn_load(X, i)
spin(".Lx", XF, XN, post=X, drain=False)
S.label(".Lk3")
S("s_barrier")
stamp(S, 'bar1')

vAC = 20; vAR = 120
vB1P = 68; vB1 = 188
vUL = 160
vEX, vED, vEB = 4, 68, 78
EN = lambda k: 14 + k if k < 6 else 82 + k
L_E = L_W + 61440
L_Y = L_E + 4 * 6144
STG = opt['stg']
order = [(ks, ft) for ks in range(40 - STG) for ft in range(3)] + [(ks, ft) for ft in range(3) for ks in range(40 - STG, 40)]
NAR = 9
def g1_read(s, n):
    ks, ft = order[n]
    for r in range(2):
        base, k = (vA0, ks) if ks < 20 else (vA1, ks - 20)
        s(f"ds_read_b64_tr_b16 {vr(vAR + 4*(n % NAR) + 2*r, 2)}, v{base} offset:{k*3072 + r*768 + ft*64}")
for n in range(6): g1_read(S, n)
LT = opt['lt']
if LT:
    S(f"""s_mul_i32 s13, s{sWAVE}, {LT}
s_add_u32 s13, s13, {40 - 4*LT}
s_mul_i32 s70, s13, 3072
s_add_u32 s70, s70, {L_W}
s_and_b32 s12, s{sROT}, 7
s_mul_i32 s12, s12, 5
s_add_u32 s12, s12, s13
s_cmp_ge_u32 s12, 40
s_cselect_b32 s13, 40, 0
s_sub_u32 s12, s12, s13
s_mul_i32 s71, s12, 49152
s_add_u32 s71, s71, s{sSRC}
s_mov_b32 s14, s{sSRC}
s_mov_b32 s15, s74""")
S(f"""s_mul_i32 s{sSRC}, s{sWAVE}, {12*40*1024}
s_mul_i32 s11, s{sCB2}, 5120
s_add_u32 s{sSRC}, s{sSRC}, s11
s_add_u32 s{sSRC}, s{sSRC}, {W2R - 40960}""")
G1D = opt['g1d']
Sg = Stream(); nxt = G1PRE
MB = min([opt['mb']] + [n - 6 for n, (ks, ft) in enumerate(order) if ks >= 40 - 4*LT])
UF = [(156, vE1, 4)]
assert opt['wa0'] > MB
first_use = {}
for n, (ks, ft) in enumerate(order): first_use.setdefault(ks, n)
for n, (ks, ft) in enumerate(order):
    if n in (3, 30, 60, 90): stamp(Sg, f'g1_{n//3}')
    if n == MB:
        Sg.pseudo('slot')
        Sg(f"s_cmp_lg_u32 s{sWAVE}, 3\ns_cbranch_scc1 .Lnouc")
        Sg("s_waitcnt vmcnt(0)"); UFW = Sg.l[-1]; UFW.mn = 's_waitcnt_raw'
        flag_check(Sg, UF)
        Sg.label(".Lnouc")
        Sg("s_barrier")
        Sg("s_mov_b32 exec_lo, 0x77777777\ns_mov_b32 exec_hi, 0x77777777")
        for k in range(4):
            Sg(f"buffer_load_dwordx4 {vr(vUL+4*k,4)}, v{vUG}, {SRD_WS}, s{sUB} offen sc1")
            if k < 3: Sg(f"s_add_u32 s{sUB}, s{sUB}, {16*XBS}")
        Sg("s_mov_b64 exec, -1")
    c = vr(vAC + 16*ft, 16) if ks > 0 else "0"
    Sg(f"v_mfma_f32_32x32x16_bf16 {vr(vAC+16*ft,16)}, {vr(vAR + 4*(n % NAR), 4)}, {xreg(ks)}, {c}")
    if n + 6 < 120: g1_read(Sg, n + 6)
    if nxt < 40 and n % opt['xev'] == 0 and first_use[nxt] <= n + 3 * G1D + (opt['xlead'] if nxt >= 40 - STG else 0):
        assert nxt < 30 or max(m for m, o in enumerate(order) if o[0] == nxt - 30) <= n
        xn_load(Sg, nxt); nxt += 1
assert nxt == 40
plan = {}
if opt['xpos'] == 1:
    L = XA.l; per = 4; n = 0
    while L:
        g = Stream(); g(f"s_cmp_eq_u32 s{sWAVE}, 3\ns_cbranch_scc1 .Lxp{n}")
        for i in L[:per]:
            if i.kind == 'ds': i.kind = 'other'
            g.l.append(i)
        L = L[per:]
        g.label(f".Lxp{n}"); plan[1 + n] = g; n += 1
    g = Stream(); g(f"s_cmp_eq_u32 s{sWAVE}, 3\ns_cbranch_scc1 .Lxp{n}")
    for i in XB.l:
        if i.kind == 'ds': i.kind = 'other'
        g.l.append(i)
    g.label(f".Lxp{n}"); plan[1 + n] = g
    assert n + 1 < 30
vCA = 20; vCP = 36; vKB = 44; vR = 176
vNON, vZ = 241, 242
sKO = 18
def w2_load(s, n):
    k, dt = divmod(n, 5)
    if dt == 0: s(f"s_add_u32 s{sSRC}, s{sSRC}, 40960")
    s(f"buffer_load_dwordx4 {ar(4*n,4)}, v{vL0 if dt < 4 else vL1}, {SRD_WS}, s{sSRC} offen offset:{1024*min(dt,3)} sc1")
wn = [0]
def w2_next(s, cnt):
    for _ in range(cnt):
        if wn[0] < 60: w2_load(s, wn[0]); wn[0] += 1
F = Stream()
F(f"v_mov_b32 v{vNON}, s{sNONCE}\nv_mov_b32 v{vZ}, 0")
plan.setdefault(70, Stream()).ext(F)
if LT:
    for k in range(LT):
        for i in range(3):
            G = Stream()
            G(f"s_add_u32 m0, s70, {i*1024}")
            tlt = G(f"buffer_load_dwordx4 v{vW1O+i}, {SRD_W1}, s71 offen lds")
            if i == 2 and k < LT - 1:
                G(f"s_add_u32 s70, s70, 3072\ns_add_u32 s71, s71, 49152\ns_cmp_eq_u32 s71, s15\ns_cselect_b32 s71, s14, s71")
            plan.setdefault(opt['lt0'] + ((3*k + i) * (opt['lt1'] - opt['lt0'])) // (3*LT), Stream()).ext(G)
for i in Sg.l:
    if i.kind == 'slot': i.kind = 'waitonly'; i.need = [tlt] if LT else []
F = Stream()
F(f"s_cmp_lg_u32 s{sWAVE}, 3\ns_cbranch_scc1 .Lnouf")
flag_load(F, UF); F.l[-1].kind = 'other'
F.label(".Lnouf")
plan.setdefault(opt['uf'], Stream()).ext(F)
F = Stream()
for k in range(12):
    F(f"ds_read_b64 {vr(vB1P+2*k,2)}, v{vB1A} offset:{16*k}")
spread(F, 3, 26, plan)
F = Stream()
F(f"""s_mov_b32 s72, 0x00003f80
s_mov_b32 s73, 0x3f800000""")
unit_addr(F, sSL0)
spread(F, 14, 35, plan)
F = Stream()
for k in range(24):
    F(f"v_lshlrev_b32 v{vB1+2*k}, 16, v{vB1P+k}\nv_and_b32 v{vB1+2*k+1}, 0xffff0000, v{vB1P+k}")
spread(F, 30, 62, plan)
F = Stream()
for dt in range(5):
    F(f"ds_read_b64 {vr(vEB+2*dt,2)}, v{vBD} offset:{32*dt}")
    F(f"ds_read_b64 {vr(vED+2*dt,2)}, v{vBD} offset:{256+32*dt}")
spread(F, 64, 84, plan)
F = Stream(); w2_next(F, opt['wan'])
spread(F, opt['wa0'], 119, plan)
def g1_epi(ft, packed):
    E = Stream()
    tp = (4, 108, 176)[ft] if STG else 108 + 8 * ft
    if opt['g1fast']:
        for k in range(8):
            a = vAC + 16*ft + 2*k; b = vB1 + 16*ft + 2*k
            if packed: E(f"v_pk_add_f32 {vp(a)}, {vp(a)}, {vp(b)}\nv_max_f32 v{a}, 0, v{a}\nv_max_f32 v{a+1}, 0, v{a+1}\nv_pk_mul_f32 {vp(a)}, {vp(a)}, {vp(a)}\nv_cvt_pk_bf16_f32 v{tp+k}, v{a}, v{a+1}")
            else: E(f"v_add_f32 v{a}, v{a}, v{b}\nv_add_f32 v{a+1}, v{a+1}, v{b+1}\nv_max_f32 v{a}, 0, v{a}\nv_max_f32 v{a+1}, 0, v{a+1}\nv_mul_f32 v{a}, v{a}, v{a}\nv_mul_f32 v{a+1}, v{a+1}, v{a+1}\nv_cvt_pk_bf16_f32 v{tp+k}, v{a}, v{a+1}")
    for k in range(8 if not opt['g1fast'] else 0):
        a = vAC + 16*ft + 2*k; b = vB1 + 16*ft + 2*k
        E(f"v_cvt_pk_bf16_f32 v{tp+k}, v{a}, v{a+1}")
        E(f"v_dot2_f32_bf16 v{a}, v{tp+k}, s72, v{b}")
        E(f"v_dot2_f32_bf16 v{a+1}, v{tp+k}, s73, v{b+1}")
    for k in range(8 if not opt['g1fast'] else 0):
        a = vAC + 16*ft + 2*k
        E(f"v_cvt_pk_bf16_f32 v{tp+k}, v{a}, v{a+1}")
        E(f"v_pk_max_i16 v{tp+k}, v{tp+k}, 0")
        E(f"v_lshlrev_b32 v{a}, 16, v{tp+k}")
        E(f"v_and_b32 v{a+1}, 0xffff0000, v{tp+k}")
        if packed: E(f"v_pk_mul_f32 {vp(a)}, {vp(a)}, {vp(a)}")
        else: E(f"v_mul_f32 v{a}, v{a}, v{a}\nv_mul_f32 v{a+1}, v{a+1}, v{a+1}")
        E(f"v_cvt_pk_bf16_f32 v{tp+k}, v{a}, v{a+1}")
    t = None
    for jp in range(2):
        t = E(f"buffer_store_dwordx4 {vr(tp+4*jp,4)}, v{vHS}, {SRD_WS}, s{sHST} offen offset:{1024*ft + 512*jp} sc0 sc1")
    return E, t
rest = []
for ft in range(3):
    if STG >= 10 and ft < 2:
        E, th = g1_epi(ft, False)
        a0 = 120 - (2 - ft) * STG
        spread(E, a0 + 2, a0 + STG - 1, plan)
    else: rest.append(ft)
G1S = weave(Sg, plan)
i0 = [n for n, i in enumerate(G1S.l) if i.text and i.text.startswith(".Lnouf")][0]; i1 = G1S.l.index(UFW)
UFW.text = f"s_waitcnt vmcnt({sum(1 for i in G1S.l[i0:i1] if i.kind == 'vmem')})"
S.ext(G1S)
stamp(S, 'g1')
HQ = []
for ft in rest:
    E, th = g1_epi(ft, True)
    gs = []
    for _ in range(opt['wep'] // len(rest)):
        g = Stream(); w2_next(g, 1); gs.append(g)
    hs = opt.get('hspread', 0)
    if hs:
        st = E.l[-2:]; E.l = E.l[:-2]
        if hs == 1 and HQ:
            g = Stream(); g.l.append(HQ.pop(0)); gs.insert(len(gs) // 2, g)
        HQ.extend(st)
    if gs: E = sprinkle(E, gs, len(E.l) // (len(gs) + 1))
    S.ext(E)
    if hs: S.l.append(HQ.pop(0))
S("s_mov_b32 exec_lo, 0x77777777\ns_mov_b32 exec_hi, 0x77777777")
for k in range(4):
    S(f"ds_write_b128 v{vUW}, {vr(vUL+4*k,4)} offset:{256*k}")
S("s_mov_b64 exec, -1")
S("s_waitcnt lgkmcnt(0)")
S("s_barrier")
stamp(S, 'g1ep')

def conv_load(s, sg):
    s(f"ds_read_b128 {vr(vR + 4*(sg & 15), 4)}, v{vU} offset:{64*sg}")
    base, o = (vK, 16*sg) if sg < 16 else (vKn, 16*(sg-16))
    kb = vKB + 4*(sg & 3)
    s(f"ds_read2_b32 {vr(kb,2)}, v{base} offset0:{o} offset1:{o+1}")
    s(f"ds_read2_b32 {vr(kb+2,2)}, v{base} offset0:{o+2} offset1:{o+3}")
def conv_block(ramp, last=False):
    s = Stream()
    for sg in range(16):
        ld = Stream()
        if not (last and sg + 3 >= 16): conv_load(ld, sg + 3)
        for rt in (3, 2, 1, 0):
            first = 12 - 4*rt
            if ramp and sg < first: continue
            c = "0" if (ramp and sg == first) else vr(vCA + 4*rt, 4)
            s(f"v_mfma_f32_16x16x32_bf16 {vr(vCA+4*rt,4)}, {vr(vKB + 4*(sg&3),4)}, {vr(vR + 4*((sg+4+4*rt)&15),4)}, {c}")
            if ld.l: s.l.append(ld.l.pop(0))
        s.ext(ld)
    if not last:
        s(f"v_add_u32 v{vU}, 1024, v{vU}\nv_add_u32 v{vK}, 1056, v{vK}\nv_add_u32 v{vKn}, 1056, v{vKn}")
    return s
def conv_save(s):
    for rt in (3, 2, 1, 0):
        for h in range(2):
            s(f"v_cvt_pk_bf16_f32 v{vCP + 4*(rt>>1) + 2*(rt&1) + h}, v{vCA+4*rt+2*h}, v{vCA+4*rt+2*h+1}")
def conv_fin(s):
    s("s_mov_b32 exec_lo, 0")
    conv_save(s)
    s("s_mov_b32 exec_lo, -1")
    t = None
    for pr in range(2):
        b = vCP + 4*pr
        s(f"v_permlane16_swap_b32 v{b}, v{b+2}")
        s(f"v_permlane16_swap_b32 v{b+1}, v{b+3}")
        t = s(f"buffer_store_dwordx4 {vr(b,4)}, v{vYl}, {SRD_WS}, s{sYB} offen offset:{512*pr} sc0 sc1")
    return t
for sg in range(3): conv_load(S, sg)
S(f"v_add_u32 v{vA0}, 4096, v{vL0}\nv_add_u32 v{vA1}, 8192, v{vL0}")
F = Stream(); w2_next(F, opt['wb0'])
CB = conv_block(True)
P0 = fit(CB, {}, F, 12, 39, opt['capc'] + 1)
for n, i in enumerate(HQ): P0.setdefault(opt.get('hs0', 8) + n * opt.get('hs1', 14), Stream()).l.append(i)
S.ext(weave(CB, P0))
stamp(S, 'cv_b0')
conv_save(S)
F = Stream()
F.wait(th)
F(f"buffer_store_dword v{vNON}, v{vZ}, {SRD_WS}, s{sHFL} offen sc0 sc1")
w2_next(F, opt['wb1'])
def tiles(F):
    F(f"s_mul_i32 s11, s{sWAVE}, 6144\ns_add_u32 s11, s11, {L_E}")
    for i in range(3):
        F(f"s_add_u32 m0, s11, {1024*i}")
        F(f"buffer_load_dwordx4 v{vXD+i}, {SRD_X}, s{sEN1} offen lds")
    for i in range(3):
        F(f"s_add_u32 m0, s11, {3072 + 1024*i - 2048*i}")
        F(f"buffer_load_dwordx4 v{vENA}, {SRD_WS}, s{sEN0} offen offset:{2048*i} sc1 lds") if i < 2 else None
    F.l.pop()
    F(f"s_add_u32 m0, s11, {3072 + 2048}\ns_add_u32 s{sEN0}, s{sEN0}, 4096")
    return F(f"buffer_load_dwordx4 v{vENA}, {SRD_WS}, s{sEN0} offen sc1 lds")
if opt['tpos'] == 0: tiles(F)
vH = 108
HF = [(62, vHF)]
assert wn[0] >= 5 * opt['ka'], wn[0]
if opt['hld'] < 0: flag_load(F, HF)
CB = conv_block(False)
P1 = fit(CB, {}, F, opt['hfl'], 63, opt['capc'], lambda g: 1 if g % 4 == 3 else 0)
S.ext(weave(CB, P1))
stamp(S, 'cv_b1')
NH = 17
KA = opt['ka']
steps = [(p, k) for p in range(4) for k in range(KA)] + [(p, k) for p in range(4) for k in range(KA, 12)]
def hreg(n): return vH + 4 * (n % NH)
def h_load(s, n):
    p, k = steps[n]
    s(f"buffer_load_dwordx4 {vr(hreg(n), 4)}, v{(vL0, vA0, vA1)[k//4]}, {SRD_WS}, s{sHB+p} offen offset:{1024*(k%4)} sc1")
HPRE = opt['hpre']
def h_first(tag, first, gap, ld):
    plan = {}
    if opt['hld'] >= 0:
        F = Stream(); flag_load(F, HF); plan[ld] = F
        assert ld < first
    F = Stream()
    flag_test(F, HF)
    plan[first] = F
    for n in range(HPRE):
        F = Stream()
        F(f"s_cbranch_vccnz .Lhskip{tag}{n}")
        h_load(F, n)
        F.label(f".Lhskip{tag}{n}")
        plan.setdefault(first + 1 + n * gap, Stream()).ext(F)
    return plan
S(f"s_lshl_b32 s{sYF}, s{sRG}, 7\ns_lshl_b32 s12, s{sWAVE}, 2\ns_add_u32 s{sYF}, s{sYF}, s12\ns_add_u32 s{sYF}, s{sYF}, {FY}\ns_cmp_eq_u32 s{sISX}, 1")
S.save('b2')
S("s_cbranch_scc1 .Lb2x")
S.ext(weave(conv_block(False), h_first('a', opt['hchk'], opt['hgap'], opt['hld'])))
S("s_waitcnt lgkmcnt(0)")
S.endpath(keep=None)
S("s_branch .Lb3")
S.label(".Lb2x")
S.restore('b2')
conv_fin(S)
unit_addr(S, sSL1)
for sg in range(3): conv_load(S, sg)
S.ext(weave(conv_block(True), h_first('b', opt['hchkx'], opt['hgapx'], opt['hldx'])))
S("s_waitcnt lgkmcnt(0)")
S.endpath(keep=None)
S.label(".Lb3")
for n in range(HPRE): S.assume([('v', hreg(n) + r) for r in range(4)])
stamp(S, 'cv_b2')
conv_save(S)
plan = {}
def tile_reads(F):
    for dt in range(5):
        F(f"ds_read_b64 {vr(vEX+2*dt,2)}, v{vEA} offset:{32*dt}")
        F(f"ds_read_b64 {vr(EN(2*dt),2)}, v{vEA+1} offset:{3072 + 512*dt}")
F = Stream()
if opt['tpos'] == 0: tile_reads(F)
else: ttile = tiles(F)
spread(F, 4 if opt['tpos'] == 0 else 46, 40 if opt['tpos'] == 0 else 63, plan)
HB3 = opt['hb3']
F = Stream()
F("s_cbranch_vccnz .Lhs")
F.label(".Lhb")
plan.setdefault(opt['hrt'], Stream()).ext(F)
X = Stream()
for n in range(HPRE): h_load(X, n)
spin(".Lh", HF, post=X, drain=False)
for n in range(HPRE, HPRE + HB3):
    F = Stream(); h_load(F, n)
    plan.setdefault(opt['hrt'] + 1 + (n - HPRE) * opt['hgap3'], Stream()).ext(F)
HPRE += HB3
F = Stream(); w2_next(F, opt['wb3'])
if F.l: spread(F, 5, 60, plan)
assert HPRE <= 17
S.ext(weave(conv_block(False, last=True), plan))
ty = conv_fin(S)
stamp(S, 'conv')

assert opt['tpos'] == 0 and (not opt['fast'] or KA == 12)
AC = [20, 176, 196, 40]
vRW = 240
S(f"v_add_u32 v{vRW}, s{sW2B}, v{vL0}")
HD = opt['hd']
hn = HPRE
G2 = Stream()
for n, (p, k) in enumerate(steps):
    if n in (12, 24, 36): stamp(G2, f'g2_p{n//12-1}')
    for dt in range(5):
        c = ("0" if not (opt['fast'] and p == 3) else vr(216 + 4*dt, 4)) if k == 0 else vr(AC[p] + 4*dt, 4)
        G2(f"v_mfma_f32_16x16x32_bf16 {vr(AC[p]+4*dt,4)}, {ar((k*5+dt)*4,4)}, {vr(hreg(n), 4)}, {c}")
        if dt in (0, 2) and hn < 48 and hn <= n + HD:
            assert hn - NH < n or (hn - NH == n and False)
            h_load(G2, hn); hn += 1
        if (5*n + dt) % opt['wev'] == 4: w2_next(G2, 1)
assert hn == 48 and wn[0] == 60
plan = {}
F = Stream()
F.wait(ty)
F(f"buffer_store_dword v{vNON}, v{vZ}, {SRD_WS}, s{sYF} offen sc0 sc1")
plan[opt['ypub']] = F
F = Stream()
for k in range(10 if not opt['fast'] else 0):
    a = 60 + 4*(k & 1)
    F(f"""v_lshlrev_b32 v{a}, 16, v{EN(k)}
v_and_b32 v{a+1}, 0xffff0000, v{EN(k)}
v_lshlrev_b32 v{a+2}, 16, v{vED+k}
v_and_b32 v{a+3}, 0xffff0000, v{vED+k}
v_mul_f32 v{a}, v{a}, v{a+2}
v_mul_f32 v{a+1}, v{a+1}, v{a+3}
v_cvt_pk_bf16_f32 v{EN(k)}, v{a}, v{a+1}""")
YF = [(60, 64, 4)]
F(f"""s_lshl_b32 s11, s{sCB2}, 12
s_add_u32 s11, s11, {FY}
v_and_b32 v2, 31, v0
v_lshl_add_u32 v64, v2, 7, s11
v_lshrrev_b32 v65, 2, v0
v_lshlrev_b32 v65, 7, v65
v_and_b32 v1, 3, v0
v_lshl_add_u32 v65, v1, 3, v65
s_lshl_b32 s11, s{sOWN}, 5
s_add_u32 s11, s11, {L_Y}
v_add_u32 v65, s11, v65""")
vB2 = 216; vXf = [92, 100, 102, 244, 246, 78, 80, 82, 84, 86]
for k in range(10):
    F(f"""v_lshlrev_b32 v{vB2+2*k}, 16, v{vEB+k}
v_and_b32 v{vB2+2*k+1}, 0xffff0000, v{vEB+k}""")
for k in range(10):
    F(f"""v_lshlrev_b32 v{vXf[k]}, 16, v{vEX+k}
v_and_b32 v{vXf[k]+1}, 0xffff0000, v{vEX+k}""")
F(f"s_mul_i32 s11, s{sWAVE}, 6144\ns_add_u32 s11, s11, {L_E}\nv_add_u32 v{vOO}, s11, v{vL0}")
vPA = [66, 67, 1]
for p in range(3):
    F(f"s_sub_u32 s11, s{sWAVE}, {p+1}\ns_and_b32 s11, s11, 3\ns_mul_i32 s11, s11, 15360\ns_add_u32 s11, s11, {L_W}\nv_add_u32 v{vPA[p]}, s11, v{vL0}")
F(f"s_mov_b32 s12, {f32(-LOG2E)}\ns_mov_b32 s13, {f32(-LOG2E)}\ns_mov_b32 s14, 1.0\ns_mov_b32 s15, 1.0")
FA = F
F = Stream(); flag_load(F, YF)
plan.setdefault(opt['yfl'], Stream()).ext(F)
F = Stream(); flag_check(F, YF)
F(f"s_mul_i32 s11, s{sWAVE}, 2560\ns_add_u32 s11, s11, {L_Y}")
for i, o in enumerate((0, 1024, 1536)):
    F(f"s_add_u32 m0, s11, {o}")
    tyl = F(f"buffer_load_dwordx4 v{vYG}, {SRD_WS}, s{sYL+i} offen sc1 lds")
plan.setdefault(opt['ychk'], Stream()).ext(F)
for p in range(3):
    last = 5 * max(n for n, st in enumerate(steps) if st[0] == p) + 4
    F = Stream()
    for dt in range(5):
        F(f"ds_write_b128 v{vRW}, {vr(AC[p]+4*dt,4)} offset:{p*5120 + dt*1024}")
    spread(F, last + 3, last + 3 + min(20, 5 * (12 - KA) - 5 if KA < 12 else 20), plan)
X4 = lambda g: 1 if g % 5 == 4 else 0
fit(G2, plan, FA, 1, opt['yfl'] - 1 if not opt['fast'] else 85, opt['cap2'], X4)
if opt['fast']:
    F = Stream()
    for k in range(10):
        a = 20 + 2*k
        F(f"""v_lshlrev_b32 v{a}, 16, v{EN(k)}
v_and_b32 v{a+1}, 0xffff0000, v{EN(k)}
v_lshlrev_b32 v2, 16, v{vED+k}
v_and_b32 v3, 0xffff0000, v{vED+k}
v_mul_f32 v{a}, v{a}, v2
v_mul_f32 v{a+1}, v{a+1}, v3""")
    fit(G2, plan, F, 90, 175, opt['cap2'], X4)
S.ext(weave(G2, plan))
vS = 176 if not opt['fast'] else 20; vYT = 196; vG2 = 20
stamp(S, 'g2')
S("s_waitcnt lgkmcnt(0)")
S("s_barrier")
stamp(S, 'e_bar')
PS = lambda p, dt: 108 + 20*p + 4*dt
for p in range(3):
    for dt in range(5):
        S(f"ds_read_b128 {vr(PS(p, dt), 4)}, v{vPA[p]} offset:{p*5120 + dt*1024}")
ac = vG2 + 20
for p in range(3):
    for k in range(10):
        S(f"v_pk_add_f32 {vp(ac+2*k)}, {vp(ac+2*k)}, {vp(PS(p, k//2) + 2*(k&1))}")
T = lambda k: 108 + 2*k
def stage(fn):
    for k in range(10): fn(k, ac + 2*k, T(k))
def y_in():
    S.wait(tyl)
    S("s_barrier")
    for dt in range(5):
        S(f"ds_read_b64_tr_b16 {vr(vYT+2*dt,2)}, v65 offset:{2048*dt}")
if opt['fast']:
    stage(lambda k, a, t: S(f"v_pk_mul_f32 {vp(t)}, {vp(a)}, s[12:13]"))
    stage(lambda k, a, t: S(f"v_exp_f32 v{t}, v{t}\nv_exp_f32 v{t+1}, v{t+1}"))
    stage(lambda k, a, t: S(f"v_pk_add_f32 {vp(t)}, {vp(t)}, s[14:15]"))
    stage(lambda k, a, t: S(f"v_rcp_f32 v{t}, v{t}\nv_rcp_f32 v{t+1}, v{t+1}"))
    y_in()
    stage(lambda k, a, t: S(f"v_pk_mul_f32 {vp(a)}, {vp(a)}, {vp(t)}"))
    stage(lambda k, a, t: S(f"v_dot2_f32_bf16 v{vS+2*k}, v{vYT+k}, s72, v{vS+2*k}\nv_dot2_f32_bf16 v{vS+2*k+1}, v{vYT+k}, s73, v{vS+2*k+1}"))
    stage(lambda k, a, t: S(f"v_pk_fma_f32 {vp(a)}, {vp(a)}, {vp(vS+2*k)}, {vp(vXf[k])}"))
else:
    stage(lambda k, a, t: S(f"v_cvt_pk_bf16_f32 v{t}, v{a}, v{a+1}"))
    stage(lambda k, a, t: S(f"v_dot2_f32_bf16 v{a}, v{t}, s72, v{vB2+2*k}\nv_dot2_f32_bf16 v{a+1}, v{t}, s73, v{vB2+2*k+1}"))
    stage(lambda k, a, t: S(f"v_cvt_pk_bf16_f32 v{t}, v{a}, v{a+1}"))
    stage(lambda k, a, t: S(f"v_lshlrev_b32 v{a}, 16, v{t}\nv_and_b32 v{a+1}, 0xffff0000, v{t}\nv_pk_mul_f32 {vp(t)}, {vp(a)}, s[12:13]"))
    stage(lambda k, a, t: S(f"v_exp_f32 v{t}, v{t}\nv_exp_f32 v{t+1}, v{t+1}"))
    stage(lambda k, a, t: S(f"v_pk_add_f32 {vp(t)}, {vp(t)}, s[14:15]"))
    stage(lambda k, a, t: S(f"v_rcp_f32 v{t}, v{t}\nv_rcp_f32 v{t+1}, v{t+1}"))
    y_in()
    stage(lambda k, a, t: S(f"v_pk_mul_f32 {vp(a)}, {vp(a)}, {vp(t)}"))
    stage(lambda k, a, t: S(f"v_cvt_pk_bf16_f32 v{t}, v{a}, v{a+1}\nv_lshlrev_b32 v{a}, 16, v{t}\nv_and_b32 v{a+1}, 0xffff0000, v{t}"))
    stage(lambda k, a, t: S(f"v_lshlrev_b32 v{vS+2*k}, 16, v{vYT+k}\nv_and_b32 v{vS+2*k+1}, 0xffff0000, v{vYT+k}\nv_dot2_f32_bf16 v{vS+2*k}, v{EN(k)}, s72, v{vS+2*k}\nv_dot2_f32_bf16 v{vS+2*k+1}, v{EN(k)}, s73, v{vS+2*k+1}"))
    stage(lambda k, a, t: S(f"v_cvt_pk_bf16_f32 v{t}, v{vS+2*k}, v{vS+2*k+1}\nv_lshlrev_b32 v{vS+2*k}, 16, v{t}\nv_and_b32 v{vS+2*k+1}, 0xffff0000, v{t}\nv_pk_mul_f32 {vp(a)}, {vp(a)}, {vp(vS+2*k)}\nv_cvt_pk_bf16_f32 v{t}, v{a}, v{a+1}"))
    stage(lambda k, a, t: S(f"v_dot2_f32_bf16 v{a}, v{t}, s72, v{vXf[k]}\nv_dot2_f32_bf16 v{a+1}, v{t}, s73, v{vXf[k]+1}"))
for k in range(10):
    a = ac + 2*k
    S(f"v_cvt_pk_bf16_f32 v{vEX+k}, v{a}, v{a+1}")
for dt in range(5):
    S(f"ds_write_b64 v{vEA}, {vr(vEX+2*dt,2)} offset:{32*dt}")
for i in range(3):
    S(f"ds_read_b128 {vr(128+4*i,4)}, v{vOO} offset:{1024*i}")
for i in range(3):
    if i == 2: S("s_mov_b32 exec_hi, 0")
    S(f"buffer_store_dwordx4 {vr(128+4*i,4)}, v{vXD+i}, {SRD_OUT}, s{sEN1} offen")
S("s_mov_b32 exec_hi, -1")
if opt.get('drainend'): S("s_waitcnt vmcnt(0)")
stamp(S, 'end')
if opt['stamps']:
    S(f"s_memrealtime s[68:69]\ns_waitcnt lgkmcnt(0)\nv_writelane_b32 v{vST}, s68, 31")
    S(f"s_lshl_b32 s11, s{sWG}, 2\ns_add_u32 s11, s11, s{sWAVE}\ns_lshl_b32 s11, s11, 7\ns_add_u32 s11, s11, {STAMP}\nv_lshlrev_b32 v1, 2, v0\ns_mov_b32 exec_hi, 0")
    S(f"buffer_store_dword v{vST}, v1, {SRD_WS}, s11 offen")
S.label(".Lend")
S("s_endpgm")

body = finalize(S) + finalize(COLD) + ["    s_endpgm"]
H2 = f""".amdgcn_target "amdgcn-amd-amdhsa--gfx950"
.text
.globl {NAME}_kernel
.p2align 8
.type {NAME}_kernel,@function
{NAME}_kernel:"""
body, nbytes, nfix = align_pass(body, H2, minrun=5 if opt['align'] else 100000)
sys.stderr.write(f"code bytes {nbytes}, alignment fixes {nfix}\n")
hdr = open('cdna_kernels/' + NAME + '.s.ref').read().split('\n')
out = []
for l in hdr:
    if l.startswith('; @launch'): out.append(f"; @launch grid=(256,1,1) block=(256,1,1) lds={LDS_BYTES}"); break
    out.append(l)
out.append(H2)
out += body
kb = opt['code_kb']
assert nbytes <= kb * 1024
out.append(f""".fill ({kb*1024 + 2304} - (. - {NAME}_kernel)) / 4, 4, 0xbf800000
.section .rodata,"a"
.p2align 6
.amdhsa_kernel {NAME}_kernel
  .amdhsa_next_free_vgpr 512
  .amdhsa_next_free_sgpr 102
  .amdhsa_accum_offset 256
  .amdhsa_group_segment_fixed_size 0
  .amdhsa_kernarg_size 120
  .amdhsa_user_sgpr_count 2
  .amdhsa_user_sgpr_kernarg_segment_ptr 1
  .amdhsa_system_sgpr_workgroup_id_x 1
.end_amdhsa_kernel""")
if opt['stamps']: out.insert(0, "; stamps: " + ",".join(stamp_names))
print('\n'.join(out))
```

```python
import sys, math, struct
sys.path.insert(0, 'gen')
from emit import *

NAME = "recurrent_scan__ssm_conv_s4d__dense_activation_squared_relu__prompt"
opt = dict(hmode=0, xg=1, wg2=0, w1s=0, lt=3, lt0=4, lt1=40, hrt=2, hgap3=3, cap2=2, capc=2, xev=2, xlead=30, dtlb=1, w3cap=48, stamps=0, spin=2000000, code_kb=35, align=1, b0=8, b2a=2, b2b=2, b2c=4, xf0=4, xf1=6,
           g1pre=8, g1d=10, uw=45, mb=78, uf=48, wa0=84, wan=12, wep=12, wb0=10, wb1=10, wb2=16, tpos=0, xpos=0, ka=12, wb3=0, wev=10, hld=20, hldx=0, hchkx=34,
           hfl=8, tail10=0, stg=0, hrot=0, wrot=0, xrot=0, hb3=16, fast=1, g1fast=0, ypub=50, hchk=58, hgap=4, hgapx=2, hpre=1, hd=12, yfl=185, ychk=225)
for a in sys.argv[1:]:
    k, v = a.split('='); opt[k] = int(v)

def f32(x): return struct.unpack('<I', struct.pack('<f', x))[0]
def vr(b, n=1): return f"v{b}" if n == 1 else f"v[{b}:{b+n-1}]"
def ar(b, n=1): return f"a{b}" if n == 1 else f"a[{b}:{b+n-1}]"
def vp(b): return f"v[{b}:{b+1}]"
def flat(gs):
    s = Stream()
    for g in gs: s.ext(g)
    return s

XNA = 0; XNB = 0x400000; HB = 0x800000; YT = 0x1000000
FX = 0x1500000; FB = FX + 0x8000; FH = FX + 0x10000; FY = FX + 0x40000
W2R = 0x1600000
STAMP = 0x1800000
XAS = 65536; XBS = 16384; HBS = 64; YS = 8192
L_W = 40960
SCR_W = 8704; TROW = 272
KSLOT = SCR_W; OOFF = 4284
L_U = 3 * KSLOT; USLOT = 4352
L_LN = L_U; LNROW = 1344
L_E = L_W + 61440
L_Y = L_E + 4 * 6144
L_P = L_W + 37 * 3072
L_F = L_W - 64
L_V = L_U + 3 * USLOT
LDS_BYTES = 163840
assert L_U + 3 * USLOT <= L_W and L_LN + 8 * LNROW <= L_W
sWG, sWAVE, sRB, sCB, sRB2, sCB2, sCBASE, sPAR, sNONCE = 2, 3, 4, 5, 6, 7, 8, 9, 10
P = lambda k: f"s[{16+2*k}:{17+2*k}]"
pX, pLOGA, pAIM, pCR, pCI, pLOGDT, pDSK, pBX, pW1, pB1, pW2, pB2, pOUT, pDBG, pWS = range(15)
SRD_X, SRD_W1, SRD_W2, SRD_WS, SRD_OUT = "s[48:51]", "s[52:55]", "s[56:59]", "s[60:63]", "s[64:67]"
sXB, sXC, sSCR, sW2B, sROT, sSRC, sRG, sXH = 76, 77, 78, 79, 80, 81, 82, 83
sOWN, sUB, sEN0, sEN1, sHST, sHFL = 84, 85, 86, 87, 88, 89
sHB = 90
sYL = 94
sSL0, sSL1, sISX, sYF2, sJ = 97, 98, 99, 100, 101
sYB, sYF = 74, 75
SPIN_MAX = opt['spin']
JUNK = "a255"
LOG2E = 1.4426950408889634
vU, vK, vKn = 92, 93, 94
vXD, vEA = 95, 98
vW2R, vUl, vKl, vYl, vOO, vUG, vUW = 100, 101, 102, 103, 104, 105, 106
vST = 107
vXF, vW1O, vBD, vB1A, vHS, vENA, vE0, vE1 = 240, 241, 244, 245, 246, 247, 248, 249
vHF, vYG, vL1, vL0, vA0, vA1 = 250, 251, 252, 253, 254, 255

S = Stream()
COLD = Stream()
stamp_names = []
SKIP = set(['x_in', 'ln_flag', 'k_u1', 'kgen', 'xnpoll']) | set('w3_b0 w3_ln ln_st idle ln k_u0 e_bar'.split())
def stamp(s, name):
    if not opt['stamps'] or name in SKIP: return
    if name not in stamp_names: stamp_names.append(name)
    idx = stamp_names.index(name)
    assert 0 < idx < 29
    s(f"s_memtime s[68:69]\ns_waitcnt lgkmcnt(0)\nv_writelane_b32 v{vST}, s68, {idx}")

def bf16_round(s, dst, src):
    s(f"v_cvt_pk_bf16_f32 {dst}, {src}, {src}")
    s(f"v_and_b32 {dst}, 0xffff0000, {dst}")

def flag_load(s, loads, nonce=None):
    for vd, vo, *n in loads:
        s(f"buffer_load_dword{'x4' if n else ''} {vr(vd, 4 if n else 1)}, v{vo}, {SRD_WS}, 0 offen sc0 sc1")
    if nonce: s(f"global_load_dword v{nonce[0]}, v{nonce[1]}, {P(pDBG)} sc0 sc1")
def flag_test(s, loads, nonce=None):
    regs = [vd + k for vd, vo, *n in loads for k in range(4 if n else 1)]
    if nonce: s(f"v_readfirstlane_b32 s{sNONCE}, v{nonce[0]}")
    for r in regs: s(f"v_xor_b32 v{r}, s{sNONCE}, v{r}")
    for r in regs[1:]: s(f"v_or_b32 v{regs[0]}, v{regs[0]}, v{r}")
    if nonce:
        s(f"v_cmp_eq_u32 vcc, 0, v{nonce[0]}")
        s(f"v_cndmask_b32 v{regs[0]}, v{regs[0]}, 1, vcc")
    s(f"v_cmp_ne_u32 vcc, 0, v{regs[0]}")
uid = [0]
def spin(L, loads, nonce=None, pre="", post=None, drain=True):
    c = COLD
    c.label(f"{L}s")
    c("s_mov_b32 s70, 0")
    if pre: c(pre)
    c.label(f"{L}l")
    flag_load(c, loads, nonce)
    c("s_waitcnt vmcnt(0)")
    flag_test(c, loads, nonce)
    c(f"s_add_u32 s70, s70, 1\ns_cmp_gt_u32 s70, {SPIN_MAX}\ns_cbranch_scc1 {L}x\ns_cbranch_vccz {L}x\ns_sleep 4\ns_branch {L}l")
    c.label(f"{L}x")
    if post:
        c.ext(post)
        if drain: c("s_waitcnt vmcnt(0)")
        else: c.endpath(keep=None)
    c(f"s_nop 4\ns_branch {L}b")
def flag_check(s, loads):
    uid[0] += 1; L = f".Lc{uid[0]}"
    flag_test(s, loads)
    s(f"s_cbranch_vccnz {L}s")
    s.label(f"{L}b")
    spin(L, loads)

if opt['stamps']:
    S("s_memtime s[70:71]"); stamp_names.append('start')
S(f"s_cmp_ge_u32 s{sWG}, 256")
S("s_cbranch_scc1 .Lend")
S("s_load_dwordx16 s[16:31], s[0:1], 0")
S("s_load_dwordx8 s[32:39], s[0:1], 64")
S("s_load_dwordx4 s[40:43], s[0:1], 96")
S("s_load_dwordx2 s[44:45], s[0:1], 112")
vX = 20; vRAW = 120
S(f"""s_getpc_b64 s[72:73]
s_and_b32 s11, s{sWG}, 7
s_lshr_b32 s{sJ}, s{sWG}, 3
s_lshl_b32 s{sRG}, s11, 5
s_add_u32 s{sRG}, s{sRG}, s{sJ}
v_lshrrev_b32 v4, 4, v0
v_lshl_add_u32 v2, s{sRG}, 3, v4
v_mul_u32_u24 v2, 1280, v2
v_and_b32 v7, 15, v0
v_lshl_add_u32 v2, v7, 4, v2
v_lshrrev_b32 v3, 6, v0
v_and_b32 v0, 63, v0
v_readfirstlane_b32 s{sWAVE}, v3
s_and_b32 s{sPAR}, s{sJ}, 1
s_lshl_b32 s{sCBASE}, s11, 4
s_lshr_b32 s15, s{sJ}, 1
s_add_u32 s{sCBASE}, s{sCBASE}, s15
s_mul_i32 s{sCBASE}, s{sCBASE}, 5
s_lshl_b32 s15, s{sPAR}, 1
s_add_u32 s{sCBASE}, s{sCBASE}, s15
s_min_u32 s12, s{sWAVE}, 2
s_add_u32 s12, s12, s{sCBASE}
s_mul_i32 s15, s12, 384
s_lshl_b32 s12, s12, 1
s_and_b32 s13, s12, -4
s_lshl_b32 s46, s12, 3
v_mul_u32_u24 v6, 6, v0
v_and_b32 v6, -4, v6
v_add_u32 v6, s15, v6
v_mov_b32 v10, {L_F}
v_mov_b32 v12, 0
v_mov_b32 v13, 0
ds_write_b64 v10, v[12:13]
s_cmp_ge_u32 s{sWAVE}, 2
s_waitcnt lgkmcnt(0)
s_cbranch_scc1 .Lnox""")
for j in range(5):
    S(f"global_load_dwordx4 {vr(vX+4*j,4)}, v2, {P(pX)} offset:{256*j}")
S.label(".Lnox")
if opt['stamps']:
    S(f"v_mov_b32 v{vST}, 0\nv_writelane_b32 v{vST}, s70, 0\ns_memrealtime s[68:69]\ns_waitcnt lgkmcnt(0)\nv_writelane_b32 v{vST}, s68, 30")
S(f"s_load_dword s47, {P(pLOGDT)}, s13")
S("s_barrier")
S(f"s_cmp_eq_u32 s{sWAVE}, 3\ns_cbranch_scc1 .Lnopar")
for k, p in enumerate((pLOGA, pAIM, pCR, pCI)):
    S(f"global_load_dwordx2 {vr(vRAW+2*k,2)}, v6, {P(p)}")
S.label(".Lnopar")
def srd(name, p, nbytes):
    b = int(name[2:name.index(':')])
    S(f"s_mov_b32 s{b}, s{16+2*p}\ns_mov_b32 s{b+1}, s{17+2*p}\ns_mov_b32 s{b+2}, {nbytes}\ns_mov_b32 s{b+3}, 0x20000")
S(f"""v_min_u32 v10, 2, v0
v_mul_u32_u24 v10, 10, v10
v_min_u32 v11, 1, v0
v_lshlrev_b32 v11, 1, v11
v_cmp_lt_u32 vcc, 1, v0
s_lshr_b32 s12, s{sRG}, 7
v_add_u32 v11, s12, v11
v_cndmask_b32 v10, v11, 10, vcc
v_cmp_lt_u32 vcc, 2, v0
v_cndmask_b32 v10, v10, 11, vcc
v_lshlrev_b32 v10, 21, v10
v_add_u32 v10, 0x1fff80, v10
v_mov_b32 v12, 0x80
s_mul_i32 s12, s{sJ}, {opt['code_kb'] * 32}
v_lshl_add_u32 v1, v0, 5, s12
s_cmp_eq_u32 s{sWAVE}, 1
s_cbranch_scc1 .Ltlb1
s_cmp_eq_u32 s{sWAVE}, 2
s_cbranch_scc1 .Ltlb2
s_cmp_eq_u32 s{sWAVE}, 3
s_cbranch_scc1 .Ltlb3""")
S.junk(f"global_load_dword {JUNK}, v1, s[72:73]"); S.l[-1].kind = 'other'
S("s_branch .Ltlbd")
S.label(".Ltlb1")
if opt['dtlb']:
    S(f"""s_lshl_b32 s12, s{sJ}, 21
s_add_u32 s12, s12, 0x1fff80
s_mov_b64 s[68:69], {P(pWS)}""")
    for n, (p_, off) in enumerate(((pB1, 0x80), (pX, 0), (pX, 0x200000), (pB2, 0x80), (pDSK, 0x80), (pOUT, 0), (pOUT, 0x200000))):
        S(f"s_cmp_eq_u32 s{sJ}, {12+n}\ns_cselect_b64 s[68:69], {P(p_)}, s[68:69]\ns_cselect_b32 s12, {off}, s12")
    S(f"v_mov_b32 v12, s12\ns_cmp_ge_u32 s{sJ}, 19\ns_cbranch_scc1 .Ltlbd")
    S.junk(f"global_load_dword {JUNK}, v12, s[68:69]"); S.l[-1].kind = 'other'
S("s_branch .Ltlbd")
S.label(".Ltlb3")
S.junk(f"global_load_dword {JUNK}, v10, {P(pWS)}"); S.l[-1].kind = 'other'
S("s_branch .Ltlbd")
S.label(".Ltlb2")
S.junk(f"global_load_dword {JUNK}, v12, {P(pDBG)}"); S.l[-1].kind = 'other'
S(f"""s_cmp_lg_u32 s{sWG}, 0
s_cbranch_scc1 .Ltlbd
s_memrealtime s[68:69]
s_waitcnt lgkmcnt(0)
s_lshl_b32 s68, s68, 1
s_or_b32 s68, s68, 1
v_mov_b32 v1, s68
v_mov_b32 v2, 0
global_store_dword v2, v1, {P(pDBG)} sc0 sc1""")
S.l[-1].kind = 'other'
S.label(".Ltlbd")
srd(SRD_W1, pW1, 640*1536*2)
srd(SRD_W2, pW2, 640*1536*2)
srd(SRD_WS, pWS, 0x10000000)
srd(SRD_X, pX, 2048*640*2)
srd(SRD_OUT, pOUT, 2048*640*2)
S(f"""s_lshr_b32 s13, s11, 1
s_and_b32 s{sXH}, s11, 1
s_lshl_b32 s{sRB}, s13, 2
s_and_b32 s15, s{sJ}, 3
s_add_u32 s{sRB}, s{sRB}, s15
s_lshl_b32 s{sCB}, s{sXH}, 3
s_lshr_b32 s12, s{sJ}, 2
s_add_u32 s{sCB}, s{sCB}, s12
s_lshl_b32 s15, s15, 1
s_and_b32 s{sROT}, s{sCB}, {opt['xg'] - 1}
s_mul_i32 s{sROT}, s{sROT}, {8 // opt['xg']}
s_add_u32 s{sROT}, s15, s{sROT}
s_lshl_b32 s{sRB2}, s13, 3
s_and_b32 s15, s{sJ}, 7
s_add_u32 s{sRB2}, s{sRB2}, s15
s_lshl_b32 s{sCB2}, s{sXH}, 2
s_lshr_b32 s15, s{sJ}, 3
s_add_u32 s{sCB2}, s{sCB2}, s15
s_mov_b32 s{sNONCE}, 0
s_mul_i32 s{sSCR}, s{sWAVE}, {SCR_W}
s_mul_i32 s{sW2B}, s{sWAVE}, 15360
s_add_u32 s{sW2B}, s{sW2B}, {L_W}
s_mul_i32 s{sSRC}, s{sCB}, 192
s_mov_b32 s70, {L_W}
s_and_b32 s12, s{sROT}, 7
s_mul_i32 s71, s12, {5*49152}
s_add_u32 s71, s71, s{sSRC}
s_add_u32 s74, s{sSRC}, {40*49152}""")
def divmod_off(dst, i, magic, div, stride):
    S(f"""v_add_u32 v15, {64*i}, v0
v_mul_u32_u24 v2, {magic}, v15
v_lshrrev_b32 v2, 19, v2
v_mul_u32_u24 v3, {div}, v2
v_sub_u32 v3, v15, v3
v_mul_u32_u24 v2, {stride}, v2
v_lshl_add_u32 v{dst}, v3, 4, v2""")
def w1_slot(s):
    for i in range(3):
        s(f"s_add_u32 m0, s70, {i*1024}")
        s(f"buffer_load_dwordx4 v{vW1O+i}, {SRD_W1}, s71 offen lds")
    s(f"""s_add_u32 s70, s70, 3072
s_add_u32 s71, s71, 49152
s_cmp_eq_u32 s71, s74
s_cselect_b32 s71, s{sSRC}, s71""")
def w1_upto(s, n):
    uid[0] += 1; L = f".Lw1_{uid[0]}"
    s(f"s_cmp_ge_u32 s70, {L_W + 3072*n}\ns_cbranch_scc1 {L}x")
    s.label(L)
    s(f"s_waitcnt vmcnt({opt['w3cap']})"); s.l[-1].mn = 's_waitcnt_raw'
    k = len(s.l)
    w1_slot(s)
    for i in s.l[k:]:
        if i.kind == 'vmem': i.kind = 'other'
    s(f"s_cmp_lt_u32 s70, {L_W + 3072*n}\ns_cbranch_scc1 {L}")
    s.label(L + "x")
def w1_slots(s, n, counted=True):
    if n <= 0: return
    uid[0] += 1; L = f".Lw1_{uid[0]}"
    s(f"s_mov_b32 s75, {n}")
    s.label(L)
    s(f"s_waitcnt vmcnt({opt['w3cap']})"); s.l[-1].mn = 's_waitcnt_raw'
    k = len(s.l)
    w1_slot(s)
    s(f"s_sub_u32 s75, s75, 1\ns_cmp_lg_u32 s75, 0\ns_cbranch_scc1 {L}")
    if counted:
        for _ in range(min(3 * (n - 1), 40)): s.assume([])
    else:
        for i in s.l[k:]:
            if i.kind == 'vmem': i.kind = 'other'
for i in range(3): divmod_off(vW1O + i, i, 0xaaab, 12, 3072)
S(f"""s_nop 0
s_lshl_b32 s11, s{sRB}, 2
s_add_u32 s11, s11, s{sWAVE}
s_mul_i32 s{sXB}, s11, {XAS}
s_lshl_b32 s12, s11, 4
s_add_u32 s12, s12, s{sCB}
s_lshl_b32 s12, s12, 7
s_add_u32 s{sHFL}, s12, {FH}
s_lshl_b32 s12, s11, 9
s_add_u32 s12, s12, {FX}
v_and_b32 v1, 3, v0
v_lshl_add_u32 v{vXF}, v1, 7, s12
s_lshl_b32 s11, s11, 1
s_mul_i32 s11, s11, {HBS}
s_mul_i32 s12, s{sCB}, 3
s_add_u32 s11, s11, s12
s_lshl_b32 s11, s11, 10
s_add_u32 s{sHST}, s11, {HB}
s_mul_i32 s{sOWN}, s{sCB2}, {opt['hrot']}
s_add_u32 s{sOWN}, s{sWAVE}, s{sOWN}
s_and_b32 s{sOWN}, s{sOWN}, 3
s_mul_i32 s11, s{sWAVE}, {64*XBS}
s_lshl_b32 s12, s{sCBASE}, 4
s_add_u32 s11, s11, s12
s_add_u32 s{sUB}, s11, {XNB}
s_lshl_b32 s14, s{sRB2}, 6
s_lshl_b32 s12, s{sOWN}, 4
s_add_u32 s14, s14, s12
s_lshr_b32 s13, s14, 5
s_mul_i32 s13, s13, {XAS//1024}
s_mul_i32 s12, s{sCB2}, 5
s_add_u32 s13, s13, s12
s_lshl_b32 s13, s13, 10
s_and_b32 s12, s14, 31
s_lshl_b32 s12, s12, 4
s_add_u32 s{sEN0}, s13, s12
s_mul_i32 s{sEN1}, s14, 1280
s_mul_i32 s12, s{sCB2}, 160
s_add_u32 s{sEN1}, s{sEN1}, s12
s_mul_i32 s11, s{sCB2}, {80*YS}
s_lshl_b32 s12, s{sRB2}, 7
s_add_u32 s11, s11, s12
s_mul_i32 s12, s{sWAVE}, {20*YS}
s_add_u32 s11, s11, s12
s_add_u32 s{sYL}, s11, {YT}
s_add_u32 s{sYL+1}, s{sYL}, {8*YS}
s_add_u32 s{sYL+2}, s{sYL}, {12*YS}
s_add_u32 s{sSL0}, s{sPAR}, s{sWAVE}
s_cmp_eq_u32 s{sWAVE}, 2
s_cselect_b32 s{sSL0}, s{sPAR}, s{sSL0}
s_cselect_b32 s{sISX}, 1, 0
s_add_u32 s{sSL1}, s{sPAR}, 1
s_lshl_b32 s12, s{sPAR}, 1
s_sub_u32 s12, 2, s12
s_cmp_eq_u32 s{sWAVE}, 3
s_cselect_b32 s{sISX}, s{sPAR}, s{sISX}
s_cselect_b32 s{sSL0}, s12, s{sSL0}
s_cselect_b32 s{sSL1}, 0, s{sSL1}""")
for p in range(4):
    S(f"""s_add_u32 s11, s{sOWN}, {p+1}
s_and_b32 s11, s11, 3
s_lshl_b32 s12, s{sRB2}, 2
s_add_u32 s11, s11, s12
s_mul_i32 s11, s11, {HBS}
s_mul_i32 s12, s{sWAVE}, 12
s_add_u32 s11, s11, s12
s_lshl_b32 s11, s11, 10
s_add_u32 s{sHB+p}, s11, {HB}""")
for i in range(3): divmod_off(vXD + i, i, 0xcccd, 10, 1280)
S(f"""v_and_b32 v5, 31, v0
v_lshrrev_b32 v8, 4, v0
v_lshrrev_b32 v9, 5, v0
v_and_b32 v13, 1, v8
v_and_b32 v1, 3, v0
v_lshrrev_b32 v14, 2, v0
v_lshlrev_b32 v{vL0}, 4, v0
v_add_u32 v{vL1}, 1024, v{vL0}
v_lshlrev_b32 v{vB1A}, 3, v9
v_add_u32 v{vB1A}, {L_V}, v{vB1A}
v_add_u32 v{vOO}, s14, v7
v_mul_u32_u24 v{vOO}, 1280, v{vOO}
s_mul_i32 s12, s{sCB2}, 160
v_lshl_add_u32 v{vBD}, v8, 3, s12
v_add_u32 v{vOO}, v{vOO}, v{vBD}
v_lshlrev_b32 v{vBD}, 3, v8
v_add_u32 v{vBD}, {L_V + 256}, v{vBD}
v_lshrrev_b32 v2, 2, v7
v_lshl_add_u32 v3, v9, 3, v2
v_mul_u32_u24 v{vA0}, 192, v3
v_lshl_add_u32 v{vA0}, v1, 3, v{vA0}
v_lshl_add_u32 v{vA0}, v13, 5, v{vA0}
v_add_u32 v{vA0}, {L_W}, v{vA0}
v_add_u32 v{vA1}, 61440, v{vA0}
v_lshl_add_u32 v3, v13, 2, v2
v_lshl_add_u32 v3, v9, 4, v3
v_lshlrev_b32 v3, 8, v3
v_lshl_add_u32 v3, v1, 3, v3
v_add_u32 v{vW2R}, {L_P}, v3
v_mul_u32_u24 v3, {XBS}, v14
v_lshl_add_u32 v{vUG}, v1, 4, v3
v_mul_u32_u24 v3, {USLOT}, v1
v_lshl_add_u32 v3, v14, 4, v3
s_lshl_b32 s12, s{sWAVE}, 10
s_add_u32 s12, s12, {L_U + 256}
v_add_u32 v{vUW}, s12, v3
v_lshlrev_b32 v2, 4, v7
v_lshl_add_u32 v{vENA}, v8, 9, v2
s_mul_i32 s12, s{sWAVE}, 6144
s_add_u32 s12, s12, {L_E}
v_mul_u32_u24 v3, 160, v7
v_lshl_add_u32 v3, v8, 3, v3
v_add_u32 v{vEA}, s12, v3
v_lshl_add_u32 v3, v9, 8, v2
v_lshl_add_u32 v3, v13, 3, v3
v_add_u32 v{vEA+1}, s12, v3
v_mul_u32_u24 v3, {HBS*1024}, v13
v_add_u32 v3, v3, v2
v_lshl_add_u32 v{vHS}, v9, 8, v3
v_lshl_add_u32 v3, v13, 8, v2
v_lshl_add_u32 v{vYl}, v9, 10, v3
v_add_u32 v3, v7, v8
v_lshlrev_b32 v3, 4, v3
v_add_u32 v{vUl}, {L_U + 16}, v3
v_and_b32 v3, 7, v0
v_sub_u32 v3, 8, v3
v_lshrrev_b32 v3, 1, v3
v_lshl_add_u32 v3, v8, 2, v3
v_lshlrev_b32 v{vKl}, 2, v3
v_and_b32 v2, 1, v0
v_sub_u32 v3, 1, v2
v_mul_u32_u24 v3, {OOFF}, v3
v_add_u32 v{vKl}, v{vKl}, v3
v_bfe_u32 v3, v0, 3, 1
v_sub_u32 v3, 1, v3
v_mul_u32_u24 v3, 1056, v3
v_add_u32 v{vKl}, v{vKl}, v3
v_lshrrev_b32 v3, 3, v0
v_mul_u32_u24 v3, {YS}, v3
v_and_b32 v2, 7, v0
v_lshl_add_u32 v{vYG}, v2, 4, v3
s_lshr_b32 s11, s{sRB2}, 1
s_lshl_b32 s11, s11, 2
s_and_b32 s12, s{sRB2}, 1
s_lshl_b32 s12, s12, 1
s_add_u32 s11, s11, s12
s_lshl_b32 s11, s11, 4
s_lshl_b32 s12, s{sWAVE}, 2
s_add_u32 s11, s11, s12
s_lshl_b32 s11, s11, 7
s_add_u32 s11, s11, {FH}
v_and_b32 v3, 1, v14
v_lshlrev_b32 v3, 11, v3
v_lshl_add_u32 v3, v1, 7, v3
v_add_u32 v{vHF}, s11, v3
v_sub_u32 v2, 31, v5
v_lshl_add_u32 v2, v2, 4, s{sSCR}
v_sub_u32 v3, 1, v9
v_lshl_add_u32 v{vE0}, v3, 9, v2
v_mul_u32_u24 v3, 1056, v3
v_add_u32 v{vE1}, v3, v2
v_mul_u32_u24 v1, {LNROW}, v4
v_lshl_add_u32 v1, v7, 4, v1
v_add_u32 v1, {L_LN}, v1""")
def unit_addr(s, sslot):
    s(f"""s_mul_i32 s12, s{sslot}, {USLOT}
v_add_u32 v{vU}, s12, v{vUl}
s_mul_i32 s12, s{sslot}, {KSLOT}
s_mul_i32 s13, s{sISX}, 2112
s_add_u32 s12, s12, s13
v_add_u32 v{vK}, s12, v{vKl}
v_add_u32 v{vKn}, 1056, v{vK}
s_add_u32 s12, s{sCBASE}, s{sslot}
s_mul_i32 s12, s12, {YS}
s_lshl_b32 s13, s{sISX}, 11
s_sub_u32 s12, s12, s13
s_add_u32 s{sYB}, s12, {YT + 2048}
s_nop 0""")
def xreg(i): return ar(120 + 4 * (i % 30), 4)
def xn_load(s, i):
    if i % 5 == 0:
        s(f"s_add_u32 s{sXC}, s{sROT}, {i//5}\ns_and_b32 s{sXC}, s{sXC}, 7\ns_mul_i32 s{sXC}, s{sXC}, 5120\ns_add_u32 s{sXC}, s{sXC}, s{sXB}")
    k = i % 5
    s(f"buffer_load_dwordx4 {xreg(i)}, v{vL0 if k < 4 else vL1}, {SRD_WS}, s{sXC} offen offset:{1024*min(k,3)} sc1")
G1PRE = opt['g1pre']
XF = [(1, vXF)]; XN = (2, 3)
def xn_try(s, tag):
    flag_test(s, XF, XN)
    s("s_mov_b64 s[46:47], vcc")
    out = []
    for n in range(G1PRE):
        x = Stream(); x(f"s_cbranch_vccnz .Lxs{tag}{n}"); xn_load(x, n); x.label(f".Lxs{tag}{n}"); out.append(x)
    return out

stamp(S, 'idle')
S(f"s_cmp_eq_u32 s{sWAVE}, 3\ns_cbranch_scc1 .Lw3\ns_cmp_eq_u32 s{sWAVE}, 2")
S.save('role')
S("s_cbranch_scc1 .Lkgen")
S("s_waitcnt vmcnt(4)")
vF = 40; NX = 20; vA = 80
for k in range(NX):
    S(f"v_lshlrev_b32 v{vF+2*k}, 16, v{vX+k}")
    S(f"v_and_b32 v{vF+2*k+1}, 0xffff0000, v{vX+k}")
    if k == 3:
        S(f"v_pk_add_f32 {vp(vA)}, {vp(vF)}, {vp(vF+2)}")
        S(f"v_pk_add_f32 {vp(vA+2)}, {vp(vF+4)}, {vp(vF+6)}")
    elif k > 3:
        a = vA + 2 * (k & 1)
        S(f"v_pk_add_f32 {vp(a)}, {vp(a)}, {vp(vF+2*k)}")
stamp(S, 'x_in')
S(f"v_pk_add_f32 {vp(vA)}, {vp(vA)}, {vp(vA+2)}")
S(f"v_add_f32 v{vA}, v{vA}, v{vA+1}")
def rowsum(s, r):
    for sh in (8, 4, 2, 1):
        s(f"v_add_f32_dpp v{r}, v{r}, v{r} row_ror:{sh} row_mask:0xf bank_mask:0xf")
rowsum(S, vA)
S(f"v_mul_f32 v{vA+4}, {f32(-1.0/640)}, v{vA}")
bf16_round(S, f"v{vA}", f"v{vA+4}")
S(f"v_mov_b32 v{vA+1}, v{vA}")
S(f"v_sub_f32 v{vA+4}, v{vA+4}, v{vA}")
for k in range(NX):
    a = vA + 2 + 4 * (k & 1)
    S(f"v_pk_add_f32 {vp(vF+2*k)}, {vp(vF+2*k)}, {vp(vA)}")
    S(f"v_cvt_pk_bf16_f32 v{vX+k}, v{vF+2*k}, v{vF+2*k+1}")
    if k < 2: S(f"v_pk_mul_f32 {vp(a)}, {vp(vF+2*k)}, {vp(vF+2*k)}")
    else: S(f"v_pk_fma_f32 {vp(a)}, {vp(vF+2*k)}, {vp(vF+2*k)}, {vp(a)}")
r_ = vA + 2
S(f"v_pk_add_f32 {vp(r_)}, {vp(r_)}, {vp(vA+6)}")
S(f"v_add_f32 v{r_}, v{r_}, v{r_+1}")
R = Stream(); rowsum(R, r_)
R(f"v_mul_f32 v{vA+4}, v{vA+4}, v{vA+4}\nv_mul_f32 v{r_}, {f32(1.0/640)}, v{r_}\nv_sub_f32 v{r_}, v{r_}, v{vA+4}\nv_max_f32 v{r_}, 0, v{r_}")
bf16_round(R, f"v{r_}", f"v{r_}")
R(f"v_add_f32 v{r_}, {f32(1e-5)}, v{r_}")
bf16_round(R, f"v{r_}", f"v{r_}")
R(f"v_sqrt_f32 v{r_}, v{r_}")
bf16_round(R, f"v{r_}", f"v{r_}")
R(f"v_rcp_f32 v{r_}, v{r_}")
U = []
for k in range(NX):
    g = Stream(); g(f"v_lshlrev_b32 v{vF+2*k}, 16, v{vX+k}\nv_and_b32 v{vF+2*k+1}, 0xffff0000, v{vX+k}"); U.append(g)
S.ext(sprinkle(R, U, 1))
S(f"v_mov_b32 v{r_+1}, v{r_}\ns_lshl_b32 s12, s{sWAVE}, 2\ns_add_u32 s12, s12, {L_F}\nv_mov_b32 v2, s12\nv_mov_b32 v3, 1")
for k in range(NX):
    S(f"v_pk_mul_f32 {vp(vF+2*k)}, {vp(vF+2*k)}, {vp(r_)}")
for k in range(NX):
    S(f"v_cvt_pk_bf16_f32 v{vX+k}, v{vF+2*k}, v{vF+2*k+1}")
for j in range(5):
    S(f"ds_write_b128 v1, {vr(vX+4*j,4)} offset:{256*j}")
S("ds_write_b32 v2, v3")
stamp(S, 'ln')
S("s_branch .Lkgen")
S.label(".Lw3")
S.endpath(keep=None)
w1_slots(S, opt['b0'], False)
S(f"""v_lshrrev_b32 v5, 3, v0
v_and_b32 v6, 7, v0
v_mul_u32_u24 v10, {LNROW}, v6
v_lshl_add_u32 v10, v5, 4, v10
v_add_u32 v10, {L_LN}, v10
v_and_b32 v12, 3, v14
v_mul_u32_u24 v12, {LNROW}, v12
v_and_b32 v4, 3, v0
v_lshl_add_u32 v12, v4, 3, v12
v_lshl_add_u32 v12, v8, 5, v12
v_add_u32 v12, {L_LN}, v12
v_lshlrev_b32 v11, 10, v8
v_and_b32 v5, 1, v5
v_lshl_add_u32 v11, v5, 9, v11
v_lshl_add_u32 v11, v6, 4, v11
v_mul_u32_u24 v6, 1280, v8
v_lshl_add_u32 v6, v7, 4, v6
v_mov_b32 v2, {L_F}
v_mov_b32 v3, 0
s_min_u32 s12, s{sRG}, 239
s_mul_i32 s13, s12, 52429
s_lshr_b32 s13, s13, 18
s_mul_i32 s14, s13, 5
s_sub_u32 s14, s12, s14
s_mul_i32 s15, s13, {32*1280}
s_lshl_b32 s12, s14, 8
s_add_u32 s15, s15, s12
s_mul_i32 s13, s13, 40
s_lshl_b32 s14, s14, 3
s_add_u32 s13, s13, s14
s_lshl_b32 s13, s13, 10
s_add_u32 s14, s13, {W2R}
s_lshr_b32 s12, s{sRG}, 2
s_mul_i32 s12, s12, {XAS}
s_and_b32 s13, s{sRG}, 3
s_lshl_b32 s13, s13, 7
s_add_u32 s12, s12, s13
s_mul_i32 s13, s{sRG}, {XBS}
s_add_u32 s13, s13, {XNB}
s_mov_b32 s11, 0""")
stamp(S, 'w3_b0')
S.label(".Llnw")
S(f"""ds_read_b64 v[16:17], v2
s_waitcnt lgkmcnt(0)
v_and_b32 v16, v16, v17
s_add_u32 s11, s11, 1
v_readfirstlane_b32 s75, v16
s_cmp_gt_u32 s11, {SPIN_MAX*16}
s_cbranch_scc1 .Llnwx
s_cmp_eq_u32 s75, 0
s_cbranch_scc1 .Llnw""")
S.label(".Llnwx")
stamp(S, 'w3_ln')
for j in range(10):
    S(f"ds_read_b128 {vr(20+4*j,4)}, v10 offset:{128*j}")
S(f"global_load_dword v15, v3, {P(pDBG)} sc0 sc1")
for it in range(10):
    S(f"ds_read_b64_tr_b16 {vr(130+4*it,2)}, v12 offset:{128*it}")
    S(f"ds_read_b64_tr_b16 {vr(132+4*it,2)}, v12 offset:{128*it + 4*LNROW}")
for j in range(10):
    tl = S(f"buffer_store_dwordx4 {vr(20+4*j,4)}, v11, {SRD_WS}, s12 offen sc0 sc1")
    if j < 9: S("s_add_u32 s12, s12, 4096")
stamp(S, 'ln_st')
for i in range(8):
    S(f"s_mov_b32 m0, {L_P + 1024*i}")
    tp_ = S(f"buffer_load_dwordx4 v6, {SRD_W2}, s15 offen lds")
    if i < 7: S(f"s_add_u32 s15, s15, {4*1280}")
S(f"""s_mul_i32 s11, s{sCB2}, 160
v_add_u32 v18, s{sSRC}, v{vL0}
v_add_u32 v19, s11, v{vL0}
s_mov_b32 exec_hi, 0
s_mov_b32 exec_lo, 0xfff
s_mov_b32 m0, {L_V}
global_load_lds_dwordx4 v18, {P(pB1)}
s_mov_b32 exec_lo, 0x3ff
s_mov_b32 m0, {L_V + 256}
global_load_lds_dwordx4 v19, {P(pB2)}
s_mov_b32 m0, {L_V + 512}
global_load_lds_dwordx4 v19, {P(pDSK)}
s_mov_b64 exec, -1""")
w1_slots(S, opt['b2a'])
S(f"""v_readfirstlane_b32 s{sNONCE}, v15
v_mul_u32_u24 v1, {USLOT}, v8
v_lshl_add_u32 v1, v7, 4, v1
v_mov_b32 v16, 0
v_mov_b32 v17, 0
v_mov_b32 v18, 0
v_mov_b32 v19, 0
s_mov_b32 exec_hi, 0xffff
s_waitcnt lgkmcnt(0)
ds_write_b128 v1, v[16:19] offset:{L_U}
s_mov_b64 exec, -1""")
S(f"s_cmp_eq_u32 s{sNONCE}, 0\ns_cbranch_scc1 .Lnonce_s")
S.label(".Lnonce_b")
COLD.label(".Lnonce_s")
COLD(f"s_mov_b32 s11, 0")
COLD.label(".Lnonce_l")
COLD(f"global_load_dword v15, v3, {P(pDBG)} sc0 sc1\ns_waitcnt vmcnt(0)\nv_readfirstlane_b32 s{sNONCE}, v15\ns_add_u32 s11, s11, 1\ns_cmp_gt_u32 s11, {SPIN_MAX}\ns_cbranch_scc1 .Lnonce_b\ns_cmp_eq_u32 s{sNONCE}, 0\ns_cbranch_scc1 .Lnonce_l\ns_branch .Lnonce_b")
S(f"""s_lshl_b32 s12, s{sRG}, 7
s_add_u32 s12, s12, {FX}
v_mov_b32 v15, s{sNONCE}""")
S.wait(tl)
S(f"buffer_store_dword v15, v3, {SRD_WS}, s12 offen sc0 sc1")
stamp(S, 'ln_flag')
for it in range(10):
    S(f"buffer_store_dwordx4 {vr(130+4*it,4)}, v{vL0}, {SRD_WS}, s13 offen offset:{1024*(it%4)} sc0 sc1")
    if it % 4 == 3: S("s_add_u32 s13, s13, 4096")
w1_slots(S, opt['b2b'])
S.wait(tp_)
for dt in range(8):
    for r in range(2):
        S(f"ds_read_b64_tr_b16 {vr(180+4*dt+2*r,2)}, v{vW2R} offset:{r*2048 + dt*32}")
S(f"""v_add_u32 v{vW2R}, 4096, v{vL0}
s_lshr_b32 s11, s{sRG}, 2
s_lshl_b32 s11, s11, 7
s_and_b32 s12, s{sRG}, 3
s_lshl_b32 s12, s12, 2
s_add_u32 s11, s11, s12
s_add_u32 s11, s11, {FB}
v_lshlrev_b32 v8, 7, v0
v_add_u32 v8, {FB}, v8""")
for dt in range(8):
    tl = S(f"buffer_store_dwordx4 {vr(180+4*dt,4)}, v{vL0 if dt < 4 else vW2R}, {SRD_WS}, s14 offen offset:{1024*(dt%4)} sc0 sc1")
w1_slots(S, opt['b2c'])
S.wait(tl)
S(f"buffer_store_dword v15, v3, {SRD_WS}, s11 offen sc0 sc1")
stamp(S, 'fb')
w1_slots(S, 40 - opt['b0'] - opt['b2a'] - opt['b2b'] - opt['b2c'] - 4 * opt['lt'])
S(f"v_mov_b32 v{vE1}, v8")
flag_load(S, XF, XN)
flag_test(S, XF, XN)
stamp(S, 'w1_iss')
S("s_cbranch_vccnz .Lws")
for i in range(G1PRE): xn_load(S, i)
S.label(".Lwb")
X = Stream()
for i in range(G1PRE): xn_load(X, i)
spin(".Lw", XF, XN, post=X, drain=False)
S("s_branch .Lk3")

S.label(".Lkgen")
S.restore('role')
S("s_waitcnt vmcnt(0) lgkmcnt(0)")
vD = 4; vT = 52
vFs = 120; vPK = 184
vFO = 192
vGOl = [224, 228, 232, 236, 76, 80, 84, 88]
vSR, vONE, vDT = 20, 21, 22
vPE = 108
S(f"""s_mov_b32 m0, s{sSCR}
v_mul_u32_u24 v{vSR}, {TROW}, v5
v_lshl_add_u32 v{vSR}, v9, 4, v{vSR}
v_add_u32 v{vSR}, s{sSCR}, v{vSR}
v_mov_b32 v{vONE}, 0x3f80
s_lshr_b32 s47, s47, s46
s_lshl_b32 s47, s47, 16
v_mov_b32 v{vDT}, {f32(LOG2E)}
v_mul_f32 v{vDT}, s47, v{vDT}
v_exp_f32 v{vDT}, v{vDT}
v_and_b32 v1, 1, v0
v_lshlrev_b32 v1, 4, v1
v_mov_b32 v3, 0""")
bf16_round(S, f"v{vDT}", f"v{vDT}")
for k in range(4):
    d0, d1 = vRAW + 2*k, vRAW + 2*k + 1
    S(f"""v_alignbit_b32 v{d0}, v{d1}, v{d0}, v1
v_lshrrev_b32 v{d1}, v1, v{d1}
v_lshlrev_b32 v{vPE+k}, 16, v{d0}
v_and_b32 v{vPE+4+k}, 0xffff0000, v{d0}
v_lshlrev_b32 v{vPE+8+k}, 16, v{d1}""")
S(f"v_add_f32 v{vDT+1}, v{vDT}, v{vDT}\ns_mov_b32 s15, {f32(1.0 / (2 * math.pi))}")
def cmuls(s, lst):
    for d, x, y in lst:
        assert d != x and d != y
        s(f"v_pk_mul_f32 {vp(d)}, {vp(x)}, {vp(y)} op_sel:[0,0] op_sel_hi:[1,0]")
    for d, x, y in lst:
        s(f"v_pk_fma_f32 {vp(d)}, {vp(x)}, {vp(y)}, {vp(d)} op_sel:[1,1,0] op_sel_hi:[0,1,1] neg_lo:[0,1,0]")
I2PI = 1.0 / (2 * math.pi)
i2pi_hi = struct.unpack('<f', struct.pack('<f', I2PI))[0]
i2pi_lo = I2PI - i2pi_hi
hi0 = [0,1,2,3,4,5,6,7,8, 512,516,520, 1024,1032, 1280,1288]
hi1 = [256,256,258,260,260,260,262,264,264, 768,772,776, 1536,1544, 1792,1800]
rowhi = [(hi0, hi1)[(p >> 2) & 1][4 * (p >> 3) + (p & 3)] for p in range(32)]
def k_mfmas(u):
    out = []
    for s_ in range(8):
        x = Stream()
        c = "0" if (s_ == 0 and u == 0) else vr(vD, 16)
        x(f"v_mfma_f32_32x32x16_bf16 {vr(vD,16)}, {vr(vGOl[s_],4)}, {vr(vFO+4*s_,4)}, {c}")
        out.append(x)
    return out
pkc = [0]
def put(s, items, neg, mf=None):
    regs = []
    if mf: s.ext(mf.pop(0))
    for r, rows in items:
        b = vPK + (pkc[0] & 7); pkc[0] += 1
        s(f"v_cvt_pk_bf16_f32 v{b}, v{r}, {'-' if neg else ''}v{r+1}")
        regs.append((b, rows))
    if mf: s.ext(mf.pop(0))
    for b, rows in regs:
        for p in rows: s(f"ds_write_addtid_b32 v{b} offset:{p*TROW}")
    s.pseudo('slot')
def kgen_unit(u):
    A = Stream(); B = Stream()
    pa, pb, pc, pd = range(vPE + 4*u, vPE + 4*u + 4)
    va, vbh, vbl = vT, vT+1, vT+2
    vW1, vW8, vW256, vW2, vW4, vG0 = vT+4, vT+6, vT+8, vT+10, vT+12, vT+14
    G = lambda k: vFs + 2 * k
    A(f"""v_mul_f32 v{va}, {f32(LOG2E)}, v{pa}
v_mul_f32 v{pb}, v{pb}, v{vDT}
v_exp_f32 v{va}, v{va}
v_mul_f32 v{vbh}, s15, v{pb}
v_cvt_pk_bf16_f32 v{va}, v{va}, v{va}
v_fma_f32 v{vbl}, v{pb}, s15, -v{vbh}
v_and_b32 v{va}, 0xffff0000, v{va}
v_fmac_f32 v{vbl}, {f32(i2pi_lo)}, v{pb}
v_mul_f32 v{va}, v{va}, v{vDT}
v_mul_f32 v{va}, {f32(-LOG2E)}, v{va}""")
    t0 = vT + 16
    m8, a8, m1, a1, m2, a2 = range(t0, t0 + 6)
    A(f"""v_mul_f32 v{a8}, {f32(8.0)}, v{vbh}
v_mul_f32 v{m8}, {f32(8.0)}, v{va}
v_fract_f32 v{a8}, v{a8}
v_exp_f32 v{m8}, v{m8}
v_fmac_f32 v{a8}, {f32(8.0)}, v{vbl}
v_exp_f32 v{m1}, v{va}
v_fract_f32 v{a1}, v{vbh}
v_cos_f32 v{vW8}, v{a8}
v_add_f32 v{a1}, v{a1}, v{vbl}
v_sin_f32 v{vW8+1}, v{a8}
v_mul_f32 v{m2}, {f32(256.0)}, v{va}
v_cos_f32 v{vW1}, v{a1}
v_mul_f32 v{a2}, {f32(256.0)}, v{vbh}
v_sin_f32 v{vW1+1}, v{a1}
v_fract_f32 v{a2}, v{a2}
v_exp_f32 v{m2}, v{m2}
v_fmac_f32 v{a2}, {f32(256.0)}, v{vbl}
v_pk_mul_f32 {vp(vW8)}, {vp(vW8)}, {vp(m8)} op_sel:[0,0] op_sel_hi:[1,0]
v_cos_f32 v{vW256}, v{a2}
v_pk_mul_f32 {vp(vW1)}, {vp(vW1)}, {vp(m1)} op_sel:[0,0] op_sel_hi:[1,0]
v_sin_f32 v{vW256+1}, v{a2}""")
    F = lambda k: vW8 if k == 1 else G(k)
    cmuls(A, [(F(2), F(1), F(1)), (vW2, vW1, vW1)])
    A(f"v_mul_f32 v{vG0}, v{pc}, v{vDT+1}\nv_mul_f32 v{vG0+1}, v{pd}, v{vDT+1}")
    cmuls(A, [(F(3), F(2), F(1)), (F(4), F(2), F(2)), (vW4, vW2, vW2)])
    A(f"v_pk_mul_f32 {vp(vW256)}, {vp(vW256)}, {vp(m2)} op_sel:[0,0] op_sel_hi:[1,0]")
    mf = k_mfmas(u - 1) if u > 0 else None
    for lo in range(5, 32, 8):
        cmuls(A, [(F(k), F(k-4), F(4)) for k in range(lo, min(lo+4, 32))])
        cmuls(A, [(F(k), F(k-4), F(4)) for k in range(lo+4, min(lo+8, 32))])
        if lo == 29: A(f"ds_write_addtid_b32 v{vONE}")
        put(A, [(F(k), [k]) for k in range(lo-4, min(lo+4, 32))], False, mf)
    assert not mf
    A.l.pop()
    for s_ in range(8):
        A(f"ds_read_b128 {vr(vFO+4*s_,4)}, v{vSR} offset:{32*s_}")
    A.pseudo('slot')
    his = sorted(set(hi0 + hi1))
    gi = {h: G(n) for n, h in enumerate(his)}; gi[0] = vG0
    rows = lambda h: [p for p in range(32) if rowhi[p] == h]
    steps = [[(1,0,vW1), (2,0,vW2), (4,0,vW4), (8,0,vW8), (256,0,vW256)],
             [(3,2,vW1), (5,4,vW1), (258,256,vW2), (512,256,vW256)],
             [(6,4,vW2), (260,256,vW4), (264,256,vW8), (768,512,vW256)],
             [(7,6,vW1), (262,260,vW2), (516,512,vW4), (1024,768,vW256)],
             [(520,512,vW8), (772,768,vW4), (776,768,vW8), (1280,1024,vW256)],
             [(1032,1024,vW8), (1288,1280,vW8), (1536,1280,vW256)],
             [(1544,1536,vW8), (1792,1536,vW256)],
             [(1800,1792,vW8)]]
    pend = [0]
    for n, st in enumerate(steps):
        cmuls(B, [(gi[d_], gi[x_], y_) for d_, x_, y_ in st])
        if n in (1, 3, 5):
            k = min(8, len(pend))
            put(B, [(gi[h], rows(h)) for h in pend[:k]], True); pend = pend[k:]
        pend += [d_ for d_, x_, y_ in st]
    assert len(pend) <= 8, pend
    put(B, [(gi[h], rows(h)) for h in pend], True)
    B.l.pop()
    for s_ in range(8):
        B(f"ds_read_b128 {vr(vGOl[s_],4)}, v{vSR} offset:{32*s_}")
    s = Stream(); s.ext(A); s.ext(B)
    segs = [Stream()]
    for i in s.l:
        if i.kind == 'slot': segs.append(Stream())
        else: segs[-1].l.append(i)
    return segs
S.ext(flat(kgen_unit(0)))
stamp(S, 'k_u0')
U1 = kgen_unit(1); U2 = kgen_unit(2)
S.ext(flat(U1))
stamp(S, 'k_u1')
S.ext(flat(U2[:opt['xf0']]))
flag_load(S, XF, XN)
S.ext(flat(U2[opt['xf0']:opt['xf1']]))
gs = xn_try(S, 'b')
stamp(S, 'xnpoll')
seg = flat(U2[opt['xf1']:])
S.ext(sprinkle(seg, gs, max(1, len(seg.l) // (len(gs) + 1))))
for x in k_mfmas(2): S.ext(x)
stamp(S, 'kgen')
X = Stream()
vXT = 156 if opt['xpos'] == 0 else 188
d = lambda k: f"v{vD+k}"
X(f"v_and_b32 v236, 1, v0\nv_cmp_eq_u32 vcc, 1, v236")
def wo(s, b, aE, off):
    s(f"v_add_u32 v236, {off + OOFF}, v{aE}")
    s(f"ds_write2_b32 v236, v{b}, v{b+1} offset0:0 offset1:1")
    s(f"ds_write2_b32 v236, v{b+2}, v{b+3} offset0:2 offset1:3")
def build(e_pairs, o_pairs, base, aE, imm):
    for j, (a, b) in enumerate(e_pairs): X(f"v_cvt_pk_bf16_f32 v{base+j}, {a}, {b}")
    for j, (a, b) in enumerate(o_pairs): X(f"v_cvt_pk_bf16_f32 v{base+4+j}, {a}, {b}")
    X(f"v_add_u32 v236, {imm + OOFF}, v{aE}")
    X(f"ds_write_b128 v{aE}, {vr(base,4)} offset:{imm}")
    X(f"ds_write2_b32 v236, v{base+4}, v{base+5} offset0:0 offset1:1")
    X(f"ds_write2_b32 v236, v{base+6}, v{base+7} offset0:2 offset1:3")
build([(d(7),d(6)),(d(5),d(4)),(d(3),d(2)),(d(1),d(0))], [(d(8),d(7)),(d(6),d(5)),(d(4),d(3)),(d(2),d(1))], vXT, vE0, 3*1056)
build([(d(11),d(11)),(d(10),d(10)),(d(10),d(9)),(d(9),d(9))], [(d(11),d(11)),(d(11),d(10)),(d(10),d(10)),(d(9),d(9))], vXT+8, vE0, 2*1056)
for n, (r0, imm) in enumerate(((12, 512), (14, 0))):
    X(f"v_cndmask_b32 v237, {d(r0)}, {d(r0+1)}, vcc")
    V0, V1 = d(r0), d(r0+1)
    build([(V1,V1),(V1,'v237'),(V0,V0),(V0,V0)], [(V1,V1),(V1,V1),('v237',V0),(V0,V0)], vXT+16+8*n, vE1, imm)
z = vXT + 16
X(f"v_mov_b32 v{z}, 0\nv_mov_b32 v{z+1}, 0\nv_mov_b32 v{z+2}, 0\nv_mov_b32 v{z+3}, 0\nv_cvt_pk_bf16_f32 v{z+4}, {d(0)}, 0\nv_mov_b32 v237, s{sSCR}\nv_subrev_u32 v{vE1}, 32, v{vE1}")
XA = X; X = Stream()
X("s_mov_b32 exec_lo, 0\ns_mov_b32 exec_hi, 0x80000000")
X(f"ds_write_b128 v{vE0}, {vr(vXT,4)} offset:{3*1056-32}")
X(f"ds_write_b128 v{vE0}, {vr(vXT+8,4)} offset:{2*1056-32}")
wo(X, vXT+4, vE0, 3*1056-32)
wo(X, vXT+12, vE0, 2*1056-32)
X("s_mov_b32 exec_lo, 0x80000000\ns_mov_b32 exec_hi, 0")
X(f"ds_write_b128 v{vE1}, {vr(vXT+24,4)}")
wo(X, vXT+28, vE1, 0)
X("s_mov_b32 exec_lo, 1")
X(f"ds_write_b128 v237, {vr(z,4)} offset:{(3*264+256)*4}")
X(f"v_add_u32 v237, {OOFF + (3*264+256)*4}, v237")
X(f"ds_write2_b32 v237, v{z+4}, v{z} offset0:0 offset1:1\nds_write2_b32 v237, v{z}, v{z} offset0:2 offset1:3")
X("s_mov_b64 exec, -1")
XB = X
if opt['xpos'] == 0: S.ext(XA); S.ext(XB)
stamp(S, 'exp')
S("s_cmp_lg_u64 s[46:47], 0\ns_cbranch_scc1 .Lxs")
S.label(".Lxb")
X = Stream()
for i in range(G1PRE): xn_load(X, i)
spin(".Lx", XF, XN, post=X, drain=False)
S.label(".Lk3")
S("s_barrier")
stamp(S, 'bar1')

vAC = 20; vAR = 120
vB1P = 68; vB1 = 188
vUL = 160
vEX, vED, vEB = 4, 68, 78
EN = lambda k: 14 + k if k < 6 else 82 + k
L_E = L_W + 61440
L_Y = L_E + 4 * 6144
STG = opt['stg']
order = [(ks, ft) for ks in range(40 - STG) for ft in range(3)] + [(ks, ft) for ft in range(3) for ks in range(40 - STG, 40)]
NAR = 9
def g1_read(s, n):
    ks, ft = order[n]
    for r in range(2):
        base, k = (vA0, ks) if ks < 20 else (vA1, ks - 20)
        s(f"ds_read_b64_tr_b16 {vr(vAR + 4*(n % NAR) + 2*r, 2)}, v{base} offset:{k*3072 + r*768 + ft*64}")
for n in range(6): g1_read(S, n)
LT = opt['lt']
if LT:
    S(f"""s_mul_i32 s13, s{sWAVE}, {LT}
s_add_u32 s13, s13, {40 - 4*LT}
s_mul_i32 s70, s13, 3072
s_add_u32 s70, s70, {L_W}
s_and_b32 s12, s{sROT}, 7
s_mul_i32 s12, s12, 5
s_add_u32 s12, s12, s13
s_cmp_ge_u32 s12, 40
s_cselect_b32 s13, 40, 0
s_sub_u32 s12, s12, s13
s_mul_i32 s71, s12, 49152
s_add_u32 s71, s71, s{sSRC}
s_mov_b32 s14, s{sSRC}
s_mov_b32 s15, s74""")
S(f"""s_mul_i32 s{sSRC}, s{sWAVE}, {12*40*1024}
s_mul_i32 s11, s{sCB2}, 5120
s_add_u32 s{sSRC}, s{sSRC}, s11
s_add_u32 s{sSRC}, s{sSRC}, {W2R - 40960}
s_and_b32 s11, s{sRB2}, {opt['wg2']}
s_mul_i32 s12, s11, {6*40960}
s_add_u32 s{sSRC}, s{sSRC}, s12
s_mul_i32 s22, s11, {12*40960}
s_mul_i32 s11, s11, 6144""")
for p in range(4):
    S(f"s_sub_u32 s{18+p}, s{sHB+p}, s11\ns_add_u32 s{sHB+p}, s{sHB+p}, s11")
G1D = opt['g1d']
Sg = Stream(); nxt = G1PRE
MB = min([opt['mb']] + [n - 6 for n, (ks, ft) in enumerate(order) if ks >= 40 - 4*LT])
UF = [(156, vE1, 4)]
assert opt['wa0'] > MB
first_use = {}
for n, (ks, ft) in enumerate(order): first_use.setdefault(ks, n)
for n, (ks, ft) in enumerate(order):
    if n in (3, 30, 60, 90): stamp(Sg, f'g1_{n//3}')
    if n == MB:
        Sg.pseudo('slot')
        Sg(f"s_cmp_lg_u32 s{sWAVE}, 3\ns_cbranch_scc1 .Lnouc")
        Sg("s_waitcnt vmcnt(0)"); UFW = Sg.l[-1]; UFW.mn = 's_waitcnt_raw'
        flag_check(Sg, UF)
        Sg.label(".Lnouc")
        Sg("s_barrier")
        Sg("s_mov_b32 exec_lo, 0x77777777\ns_mov_b32 exec_hi, 0x77777777")
        for k in range(4):
            Sg(f"buffer_load_dwordx4 {vr(vUL+4*k,4)}, v{vUG}, {SRD_WS}, s{sUB} offen sc1")
            if k < 3: Sg(f"s_add_u32 s{sUB}, s{sUB}, {16*XBS}")
        Sg("s_mov_b64 exec, -1")
    c = vr(vAC + 16*ft, 16) if ks > 0 else "0"
    Sg(f"v_mfma_f32_32x32x16_bf16 {vr(vAC+16*ft,16)}, {vr(vAR + 4*(n % NAR), 4)}, {xreg(ks)}, {c}")
    if n + 6 < 120: g1_read(Sg, n + 6)
    if nxt < 40 and n % opt['xev'] == 0 and first_use[nxt] <= n + 3 * G1D + (opt['xlead'] if nxt >= 40 - STG else 0):
        assert nxt < 30 or max(m for m, o in enumerate(order) if o[0] == nxt - 30) <= n
        xn_load(Sg, nxt); nxt += 1
assert nxt == 40
plan = {}
if opt['xpos'] == 1:
    L = XA.l; per = 4; n = 0
    while L:
        g = Stream(); g(f"s_cmp_eq_u32 s{sWAVE}, 3\ns_cbranch_scc1 .Lxp{n}")
        for i in L[:per]:
            if i.kind == 'ds': i.kind = 'other'
            g.l.append(i)
        L = L[per:]
        g.label(f".Lxp{n}"); plan[1 + n] = g; n += 1
    g = Stream(); g(f"s_cmp_eq_u32 s{sWAVE}, 3\ns_cbranch_scc1 .Lxp{n}")
    for i in XB.l:
        if i.kind == 'ds': i.kind = 'other'
        g.l.append(i)
    g.label(f".Lxp{n}"); plan[1 + n] = g
    assert n + 1 < 30
vCA = 20; vCP = 36; vKB = 44; vR = 176
vNON, vZ = 241, 242
sKO = 18
def w2_load(s, n):
    k, dt = divmod(n, 5)
    if dt == 0: s(f"s_add_u32 s{sSRC}, s{sSRC}, 40960")
    if n == 30: s(f"s_sub_u32 s{sSRC}, s{sSRC}, s22")
    s(f"buffer_load_dwordx4 {ar(4*n,4)}, v{vL0 if dt < 4 else vL1}, {SRD_WS}, s{sSRC} offen offset:{1024*min(dt,3)} sc1")
wn = [0]
def w2_next(s, cnt):
    for _ in range(cnt):
        if wn[0] < 60: w2_load(s, wn[0]); wn[0] += 1
F = Stream()
F(f"v_mov_b32 v{vNON}, s{sNONCE}\nv_mov_b32 v{vZ}, 0")
plan.setdefault(70, Stream()).ext(F)
if LT:
    for k in range(LT):
        for i in range(3):
            G = Stream()
            G(f"s_add_u32 m0, s70, {i*1024}")
            tlt = G(f"buffer_load_dwordx4 v{vW1O+i}, {SRD_W1}, s71 offen lds")
            if i == 2 and k < LT - 1:
                G(f"s_add_u32 s70, s70, 3072\ns_add_u32 s71, s71, 49152\ns_cmp_eq_u32 s71, s15\ns_cselect_b32 s71, s14, s71")
            plan.setdefault(opt['lt0'] + ((3*k + i) * (opt['lt1'] - opt['lt0'])) // (3*LT), Stream()).ext(G)
for i in Sg.l:
    if i.kind == 'slot': i.kind = 'waitonly'; i.need = [tlt] if LT else []
F = Stream()
F(f"s_cmp_lg_u32 s{sWAVE}, 3\ns_cbranch_scc1 .Lnouf")
flag_load(F, UF); F.l[-1].kind = 'other'
F.label(".Lnouf")
plan.setdefault(opt['uf'], Stream()).ext(F)
F = Stream()
for k in range(12):
    F(f"ds_read_b64 {vr(vB1P+2*k,2)}, v{vB1A} offset:{16*k}")
spread(F, 3, 26, plan)
F = Stream()
F(f"""s_mov_b32 s72, 0x00003f80
s_mov_b32 s73, 0x3f800000""")
unit_addr(F, sSL0)
spread(F, 14, 35, plan)
F = Stream()
for k in range(24):
    F(f"v_lshlrev_b32 v{vB1+2*k}, 16, v{vB1P+k}\nv_and_b32 v{vB1+2*k+1}, 0xffff0000, v{vB1P+k}")
spread(F, 30, 62, plan)
F = Stream()
for dt in range(5):
    F(f"ds_read_b64 {vr(vEB+2*dt,2)}, v{vBD} offset:{32*dt}")
    F(f"ds_read_b64 {vr(vED+2*dt,2)}, v{vBD} offset:{256+32*dt}")
spread(F, 64, 84, plan)
F = Stream(); w2_next(F, opt['wan'])
spread(F, opt['wa0'], 119, plan)
def g1_epi(ft, packed):
    E = Stream()
    tp = (4, 108, 176)[ft] if STG else 108 + 8 * ft
    if opt['g1fast']:
        for k in range(8):
            a = vAC + 16*ft + 2*k; b = vB1 + 16*ft + 2*k
            if packed: E(f"v_pk_add_f32 {vp(a)}, {vp(a)}, {vp(b)}\nv_max_f32 v{a}, 0, v{a}\nv_max_f32 v{a+1}, 0, v{a+1}\nv_pk_mul_f32 {vp(a)}, {vp(a)}, {vp(a)}\nv_cvt_pk_bf16_f32 v{tp+k}, v{a}, v{a+1}")
            else: E(f"v_add_f32 v{a}, v{a}, v{b}\nv_add_f32 v{a+1}, v{a+1}, v{b+1}\nv_max_f32 v{a}, 0, v{a}\nv_max_f32 v{a+1}, 0, v{a+1}\nv_mul_f32 v{a}, v{a}, v{a}\nv_mul_f32 v{a+1}, v{a+1}, v{a+1}\nv_cvt_pk_bf16_f32 v{tp+k}, v{a}, v{a+1}")
    for k in range(8 if not opt['g1fast'] else 0):
        a = vAC + 16*ft + 2*k; b = vB1 + 16*ft + 2*k
        E(f"v_cvt_pk_bf16_f32 v{tp+k}, v{a}, v{a+1}")
        E(f"v_dot2_f32_bf16 v{a}, v{tp+k}, s72, v{b}")
        E(f"v_dot2_f32_bf16 v{a+1}, v{tp+k}, s73, v{b+1}")
    for k in range(8 if not opt['g1fast'] else 0):
        a = vAC + 16*ft + 2*k
        E(f"v_cvt_pk_bf16_f32 v{tp+k}, v{a}, v{a+1}")
        E(f"v_pk_max_i16 v{tp+k}, v{tp+k}, 0")
        E(f"v_lshlrev_b32 v{a}, 16, v{tp+k}")
        E(f"v_and_b32 v{a+1}, 0xffff0000, v{tp+k}")
        if packed: E(f"v_pk_mul_f32 {vp(a)}, {vp(a)}, {vp(a)}")
        else: E(f"v_mul_f32 v{a}, v{a}, v{a}\nv_mul_f32 v{a+1}, v{a+1}, v{a+1}")
        E(f"v_cvt_pk_bf16_f32 v{tp+k}, v{a}, v{a+1}")
    t = None
    for jp in range(2):
        t = E(f"buffer_store_dwordx4 {vr(tp+4*jp,4)}, v{vHS}, {SRD_WS}, s{sHST} offen offset:{1024*ft + 512*jp} sc0 sc1")
    return E, t
rest = []
for ft in range(3):
    if STG >= 10 and ft < 2:
        E, th = g1_epi(ft, False)
        a0 = 120 - (2 - ft) * STG
        spread(E, a0 + 2, a0 + STG - 1, plan)
    else: rest.append(ft)
G1S = weave(Sg, plan)
i0 = [n for n, i in enumerate(G1S.l) if i.text and i.text.startswith(".Lnouf")][0]; i1 = G1S.l.index(UFW)
UFW.text = f"s_waitcnt vmcnt({sum(1 for i in G1S.l[i0:i1] if i.kind == 'vmem')})"
S.ext(G1S)
stamp(S, 'g1')
HQ = []
for ft in rest:
    E, th = g1_epi(ft, True)
    gs = []
    for _ in range(opt['wep'] // len(rest)):
        g = Stream(); w2_next(g, 1); gs.append(g)
    hs = opt.get('hspread', 0)
    if hs:
        st = E.l[-2:]; E.l = E.l[:-2]
        if hs == 1 and HQ:
            g = Stream(); g.l.append(HQ.pop(0)); gs.insert(len(gs) // 2, g)
        HQ.extend(st)
    if gs: E = sprinkle(E, gs, len(E.l) // (len(gs) + 1))
    S.ext(E)
    stamp(S, f'ep{ft}')
    if hs: S.l.append(HQ.pop(0))
S("s_mov_b32 exec_lo, 0x77777777\ns_mov_b32 exec_hi, 0x77777777")
for k in range(4):
    S(f"ds_write_b128 v{vUW}, {vr(vUL+4*k,4)} offset:{256*k}")
S("s_mov_b64 exec, -1")
S("s_waitcnt lgkmcnt(0)")
S("s_barrier")
stamp(S, 'g1ep')

def conv_load(s, sg):
    s(f"ds_read_b128 {vr(vR + 4*(sg & 15), 4)}, v{vU} offset:{64*sg}")
    base, o = (vK, 16*sg) if sg < 16 else (vKn, 16*(sg-16))
    kb = vKB + 4*(sg & 3)
    s(f"ds_read2_b32 {vr(kb,2)}, v{base} offset0:{o} offset1:{o+1}")
    s(f"ds_read2_b32 {vr(kb+2,2)}, v{base} offset0:{o+2} offset1:{o+3}")
def conv_block(ramp, last=False):
    s = Stream()
    for sg in range(16):
        ld = Stream()
        if not (last and sg + 3 >= 16): conv_load(ld, sg + 3)
        for rt in (3, 2, 1, 0):
            first = 12 - 4*rt
            if ramp and sg < first: continue
            c = "0" if (ramp and sg == first) else vr(vCA + 4*rt, 4)
            s(f"v_mfma_f32_16x16x32_bf16 {vr(vCA+4*rt,4)}, {vr(vKB + 4*(sg&3),4)}, {vr(vR + 4*((sg+4+4*rt)&15),4)}, {c}")
            if ld.l: s.l.append(ld.l.pop(0))
        s.ext(ld)
    if not last:
        s(f"v_add_u32 v{vU}, 1024, v{vU}\nv_add_u32 v{vK}, 1056, v{vK}\nv_add_u32 v{vKn}, 1056, v{vKn}")
    return s
def conv_save(s):
    for rt in (3, 2, 1, 0):
        for h in range(2):
            s(f"v_cvt_pk_bf16_f32 v{vCP + 4*(rt>>1) + 2*(rt&1) + h}, v{vCA+4*rt+2*h}, v{vCA+4*rt+2*h+1}")
def conv_fin(s):
    s("s_mov_b32 exec_lo, 0")
    conv_save(s)
    s("s_mov_b32 exec_lo, -1")
    t = None
    for pr in range(2):
        b = vCP + 4*pr
        s(f"v_permlane16_swap_b32 v{b}, v{b+2}")
        s(f"v_permlane16_swap_b32 v{b+1}, v{b+3}")
        t = s(f"buffer_store_dwordx4 {vr(b,4)}, v{vYl}, {SRD_WS}, s{sYB} offen offset:{512*pr} sc0 sc1")
    return t
for sg in range(3): conv_load(S, sg)
S(f"v_add_u32 v{vA0}, 4096, v{vL0}\nv_add_u32 v{vA1}, 8192, v{vL0}")
F = Stream(); w2_next(F, opt['wb0'])
CB = conv_block(True)
P0 = fit(CB, {}, F, 12, 39, opt['capc'] + 1)
for n, i in enumerate(HQ): P0.setdefault(opt.get('hs0', 8) + n * opt.get('hs1', 14), Stream()).l.append(i)
S.ext(weave(CB, P0))
stamp(S, 'cv_b0')
conv_save(S)
FH_ = Stream()
FH_.wait(th)
FH_(f"buffer_store_dword v{vNON}, v{vZ}, {SRD_WS}, s{sHFL} offen sc0 sc1")
F = Stream()
w2_next(F, opt['wb1'])
def tiles(F):
    F(f"s_mul_i32 s11, s{sWAVE}, 6144\ns_add_u32 s11, s11, {L_E}")
    for i in range(3):
        F(f"s_add_u32 m0, s11, {1024*i}")
        F(f"buffer_load_dwordx4 v{vXD+i}, {SRD_X}, s{sEN1} offen lds")
    for i in range(3):
        F(f"s_add_u32 m0, s11, {3072 + 1024*i - 2048*i}")
        F(f"buffer_load_dwordx4 v{vENA}, {SRD_WS}, s{sEN0} offen offset:{2048*i} sc1 lds") if i < 2 else None
    F.l.pop()
    F(f"s_add_u32 m0, s11, {3072 + 2048}\ns_add_u32 s{sEN0}, s{sEN0}, 4096")
    return F(f"buffer_load_dwordx4 v{vENA}, {SRD_WS}, s{sEN0} offen sc1 lds")
if opt['tpos'] == 0: tiles(F)
vH = 108
HF = [(62, vHF)]
assert wn[0] + opt['wb2'] >= 5 * opt['ka'], wn[0]
wb2_0 = wn[0]
if opt['hld'] < 0: flag_load(F, HF)
CB = conv_block(False)
P1 = fit(CB, {opt['hfl']: FH_}, F, opt['w1s'], 63, opt['capc'], lambda g: 1 if g % 4 == 3 else 0)
S.ext(weave(CB, P1))
stamp(S, 'cv_b1')
NH = 17
KA = opt['ka']
steps = [(p, k) for p in range(4) for k in range(KA)] + [(p, k) for p in range(4) for k in range(KA, 12)]
def hreg(n): return vH + 4 * (n % NH)
def h_load(s, n):
    p, k = steps[n]
    s(f"buffer_load_dwordx4 {vr(hreg(n), 4)}, v{(vL0, vA0, vA1)[k//4]}, {SRD_WS}, s{(sHB if k < 6 else 18) + p} offen offset:{1024*(k%4)} sc1")
HPRE = opt['hpre'] if not opt['hmode'] else 0
def h_first(tag, first, gap, ld):
    plan = {}
    if opt['hmode']:
        wn[0] = wb2_0
        F = Stream(); w2_next(F, opt['wb2']); flag_load(F, HF)
        return spread(F, 0, first)
    if opt['hld'] >= 0:
        F = Stream(); flag_load(F, HF); plan[ld] = F
        assert ld < first
    wn[0] = wb2_0
    F = Stream(); w2_next(F, opt['wb2'])
    if F.l: spread(F, 0, first - 1, plan)
    F = Stream()
    flag_test(F, HF)
    plan.setdefault(first, Stream()).ext(F)
    for n in range(HPRE):
        F = Stream()
        F(f"s_cbranch_vccnz .Lhskip{tag}{n}")
        h_load(F, n)
        F.label(f".Lhskip{tag}{n}")
        plan.setdefault(first + 1 + n * gap, Stream()).ext(F)
    return plan
S(f"s_lshl_b32 s{sYF}, s{sRG}, 7\ns_lshl_b32 s12, s{sWAVE}, 2\ns_add_u32 s{sYF}, s{sYF}, s12\ns_add_u32 s{sYF}, s{sYF}, {FY}\ns_cmp_eq_u32 s{sISX}, 1")
S.save('b2')
S("s_cbranch_scc1 .Lb2x")
S.ext(weave(conv_block(False), h_first('a', opt['hchk'], opt['hgap'], opt['hld'])))
S("s_waitcnt lgkmcnt(0)")
S.endpath(keep=None)
S("s_branch .Lb3")
S.label(".Lb2x")
S.restore('b2')
conv_fin(S)
unit_addr(S, sSL1)
for sg in range(3): conv_load(S, sg)
S.ext(weave(conv_block(True), h_first('b', opt['hchkx'], opt['hgapx'], opt['hldx'])))
S("s_waitcnt lgkmcnt(0)")
S.endpath(keep=None)
S.label(".Lb3")
for n in range(HPRE): S.assume([('v', hreg(n) + r) for r in range(4)])
if opt['hmode']: S.assume([('v', 62)])
stamp(S, 'cv_b2')
conv_save(S)
plan = {}
def tile_reads(F):
    for dt in range(5):
        F(f"ds_read_b64 {vr(vEX+2*dt,2)}, v{vEA} offset:{32*dt}")
        F(f"ds_read_b64 {vr(EN(2*dt),2)}, v{vEA+1} offset:{3072 + 512*dt}")
F = Stream()
if opt['tpos'] == 0: tile_reads(F)
else: ttile = tiles(F)
spread(F, max(4, opt['hrt'] + 1), 63, plan)
HB3 = opt['hb3']
F = Stream()
if opt['hmode']: flag_test(F, HF)
F("s_cbranch_vccnz .Lhs")
F.label(".Lhb")
plan.setdefault(opt['hrt'], Stream()).ext(F)
X = Stream()
for n in range(HPRE): h_load(X, n)
spin(".Lh", HF, post=X if X.l else None, drain=False)
for n in range(HPRE, HPRE + HB3):
    F = Stream(); h_load(F, n)
    plan.setdefault(opt['hrt'] + 1 + (n - HPRE) * opt['hgap3'], Stream()).ext(F)
HPRE += HB3
F = Stream(); w2_next(F, opt['wb3'])
if F.l: spread(F, 5, 60, plan)
assert HPRE <= 17
S.ext(weave(conv_block(False, last=True), plan))
ty = conv_fin(S)
stamp(S, 'conv')

assert opt['tpos'] == 0
AC = [20, 176, 196, 40]
vRW = 240
S(f"v_add_u32 v{vRW}, s{sW2B}, v{vL0}")
HD = opt['hd']
hn = HPRE
G2 = Stream()
for n, (p, k) in enumerate(steps):
    if n in (12, 24, 36): stamp(G2, f'g2_p{n//12-1}')
    for dt in range(5):
        c = ("0" if not (opt['fast'] and p == 3) else vr(216 + 4*dt, 4)) if k == 0 else vr(AC[p] + 4*dt, 4)
        G2(f"v_mfma_f32_16x16x32_bf16 {vr(AC[p]+4*dt,4)}, {ar((k*5+dt)*4,4)}, {vr(hreg(n), 4)}, {c}")
        if dt in (0, 2) and hn < 48 and hn <= n + HD:
            assert hn - NH < n or (hn - NH == n and False)
            h_load(G2, hn); hn += 1
        if (5*n + dt) % opt['wev'] == 4: w2_next(G2, 1)
assert hn == 48 and wn[0] == 60
plan = {}
F = Stream()
F.wait(ty)
F(f"buffer_store_dword v{vNON}, v{vZ}, {SRD_WS}, s{sYF} offen sc0 sc1")
plan[opt['ypub']] = F
F = Stream()
for k in range(10 if not opt['fast'] else 0):
    a = 60 + 4*(k & 1)
    F(f"""v_lshlrev_b32 v{a}, 16, v{EN(k)}
v_and_b32 v{a+1}, 0xffff0000, v{EN(k)}
v_lshlrev_b32 v{a+2}, 16, v{vED+k}
v_and_b32 v{a+3}, 0xffff0000, v{vED+k}
v_mul_f32 v{a}, v{a}, v{a+2}
v_mul_f32 v{a+1}, v{a+1}, v{a+3}
v_cvt_pk_bf16_f32 v{EN(k)}, v{a}, v{a+1}""")
YF = [(60, 64, 4)]
F(f"""s_lshl_b32 s11, s{sCB2}, 12
s_add_u32 s11, s11, {FY}
v_and_b32 v2, 31, v0
v_lshl_add_u32 v64, v2, 7, s11
v_lshrrev_b32 v65, 2, v0
v_lshlrev_b32 v65, 7, v65
v_and_b32 v1, 3, v0
v_lshl_add_u32 v65, v1, 3, v65
s_lshl_b32 s11, s{sOWN}, 5
s_add_u32 s11, s11, {L_Y}
v_add_u32 v65, s11, v65""")
vB2 = 216; vXf = [92, 100, 102, 244, 246, 78, 80, 82, 84, 86]
for k in range(10):
    F(f"""v_lshlrev_b32 v{vB2+2*k}, 16, v{vEB+k}
v_and_b32 v{vB2+2*k+1}, 0xffff0000, v{vEB+k}""")
for k in range(10):
    F(f"""v_lshlrev_b32 v{vXf[k]}, 16, v{vEX+k}
v_and_b32 v{vXf[k]+1}, 0xffff0000, v{vEX+k}""")
F(f"s_mul_i32 s11, s{sWAVE}, 6144\ns_add_u32 s11, s11, {L_E}\nv_add_u32 v{vOO}, s11, v{vL0}")
vPA = [66, 67, 1]
for p in range(3):
    F(f"s_sub_u32 s11, s{sWAVE}, {p+1}\ns_and_b32 s11, s11, 3\ns_mul_i32 s11, s11, 15360\ns_add_u32 s11, s11, {L_W}\nv_add_u32 v{vPA[p]}, s11, v{vL0}")
F(f"s_mov_b32 s12, {f32(-LOG2E)}\ns_mov_b32 s13, {f32(-LOG2E)}\ns_mov_b32 s14, 1.0\ns_mov_b32 s15, 1.0")
FA = F
F = Stream(); flag_load(F, YF)
plan.setdefault(opt['yfl'], Stream()).ext(F)
F = Stream(); flag_check(F, YF)
F(f"s_mul_i32 s11, s{sWAVE}, 2560\ns_add_u32 s11, s11, {L_Y}")
for i, o in enumerate((0, 1024, 1536)):
    F(f"s_add_u32 m0, s11, {o}")
    tyl = F(f"buffer_load_dwordx4 v{vYG}, {SRD_WS}, s{sYL+i} offen sc1 lds")
plan.setdefault(opt['ychk'], Stream()).ext(F)
for p in range(3):
    last = 5 * max(n for n, st in enumerate(steps) if st[0] == p) + 4
    F = Stream()
    for dt in range(5):
        F(f"ds_write_b128 v{vRW}, {vr(AC[p]+4*dt,4)} offset:{p*5120 + dt*1024}")
    spread(F, last + 3, last + 3 + min(20, 5 * (12 - KA) - 5 if KA < 12 else 20), plan)
X4 = lambda g: 1 if g % 5 == 4 else 0
fit(G2, plan, FA, 1, opt['yfl'] - 1 if not opt['fast'] else 85, opt['cap2'], X4)
if opt['fast']:
    F = Stream()
    for k in range(10):
        F(f"""v_lshlrev_b32 v2, 16, v{EN(k)}
v_lshlrev_b32 v3, 16, v{vED+k}
v_and_b32 v238, 0xffff0000, v{EN(k)}
v_and_b32 v239, 0xffff0000, v{vED+k}
v_mul_f32 v{EN(k)}, v2, v3
v_mul_f32 v{vED+k}, v238, v239""")
    fit(G2, plan, F, 90, 160, opt['cap2'], X4)
S.ext(weave(G2, plan))
vS = 176; vYT = 196; vG2 = 20
stamp(S, 'g2')
S("s_waitcnt lgkmcnt(0)")
S("s_barrier")
stamp(S, 'e_bar')
PS = lambda p, dt: 108 + 20*p + 4*dt
for p in range(3):
    for dt in range(5):
        S(f"ds_read_b128 {vr(PS(p, dt), 4)}, v{vPA[p]} offset:{p*5120 + dt*1024}")
ac = vG2 + 20
for p in range(3):
    for k in range(10):
        S(f"v_pk_add_f32 {vp(ac+2*k)}, {vp(ac+2*k)}, {vp(PS(p, k//2) + 2*(k&1))}")
T = lambda k: 108 + 2*k
def stage(fn):
    for k in range(10): fn(k, ac + 2*k, T(k))
def y_in():
    S.wait(tyl)
    S("s_barrier")
    for dt in range(5):
        S(f"ds_read_b64_tr_b16 {vr(vYT+2*dt,2)}, v65 offset:{2048*dt}")
if opt['fast']:
    stage(lambda k, a, t: S(f"v_pk_mul_f32 {vp(t)}, {vp(a)}, s[12:13]"))
    stage(lambda k, a, t: S(f"v_exp_f32 v{t}, v{t}\nv_exp_f32 v{t+1}, v{t+1}"))
    stage(lambda k, a, t: S(f"v_pk_add_f32 {vp(t)}, {vp(t)}, s[14:15]"))
    stage(lambda k, a, t: S(f"v_rcp_f32 v{t}, v{t}\nv_rcp_f32 v{t+1}, v{t+1}"))
    y_in()
    stage(lambda k, a, t: S(f"v_pk_mul_f32 {vp(a)}, {vp(a)}, {vp(t)}"))
    stage(lambda k, a, t: S(f"v_dot2_f32_bf16 v{vS+2*k}, v{vYT+k}, s72, v{EN(k)}\nv_dot2_f32_bf16 v{vS+2*k+1}, v{vYT+k}, s73, v{vED+k}"))
    stage(lambda k, a, t: S(f"v_pk_fma_f32 {vp(a)}, {vp(a)}, {vp(vS+2*k)}, {vp(vXf[k])}"))
else:
    stage(lambda k, a, t: S(f"v_cvt_pk_bf16_f32 v{t}, v{a}, v{a+1}"))
    stage(lambda k, a, t: S(f"v_dot2_f32_bf16 v{a}, v{t}, s72, v{vB2+2*k}\nv_dot2_f32_bf16 v{a+1}, v{t}, s73, v{vB2+2*k+1}"))
    stage(lambda k, a, t: S(f"v_cvt_pk_bf16_f32 v{t}, v{a}, v{a+1}"))
    stage(lambda k, a, t: S(f"v_lshlrev_b32 v{a}, 16, v{t}\nv_and_b32 v{a+1}, 0xffff0000, v{t}\nv_pk_mul_f32 {vp(t)}, {vp(a)}, s[12:13]"))
    stage(lambda k, a, t: S(f"v_exp_f32 v{t}, v{t}\nv_exp_f32 v{t+1}, v{t+1}"))
    stage(lambda k, a, t: S(f"v_pk_add_f32 {vp(t)}, {vp(t)}, s[14:15]"))
    stage(lambda k, a, t: S(f"v_rcp_f32 v{t}, v{t}\nv_rcp_f32 v{t+1}, v{t+1}"))
    y_in()
    stage(lambda k, a, t: S(f"v_pk_mul_f32 {vp(a)}, {vp(a)}, {vp(t)}"))
    stage(lambda k, a, t: S(f"v_cvt_pk_bf16_f32 v{t}, v{a}, v{a+1}\nv_lshlrev_b32 v{a}, 16, v{t}\nv_and_b32 v{a+1}, 0xffff0000, v{t}"))
    stage(lambda k, a, t: S(f"v_lshlrev_b32 v{vS+2*k}, 16, v{vYT+k}\nv_and_b32 v{vS+2*k+1}, 0xffff0000, v{vYT+k}\nv_dot2_f32_bf16 v{vS+2*k}, v{EN(k)}, s72, v{vS+2*k}\nv_dot2_f32_bf16 v{vS+2*k+1}, v{EN(k)}, s73, v{vS+2*k+1}"))
    stage(lambda k, a, t: S(f"v_cvt_pk_bf16_f32 v{t}, v{vS+2*k}, v{vS+2*k+1}\nv_lshlrev_b32 v{vS+2*k}, 16, v{t}\nv_and_b32 v{vS+2*k+1}, 0xffff0000, v{t}\nv_pk_mul_f32 {vp(a)}, {vp(a)}, {vp(vS+2*k)}\nv_cvt_pk_bf16_f32 v{t}, v{a}, v{a+1}"))
    stage(lambda k, a, t: S(f"v_dot2_f32_bf16 v{a}, v{t}, s72, v{vXf[k]}\nv_dot2_f32_bf16 v{a+1}, v{t}, s73, v{vXf[k]+1}"))
for k in range(10):
    a = ac + 2*k
    S(f"v_cvt_pk_bf16_f32 v{vEX+k}, v{a}, v{a+1}")
for dt in range(5):
    S(f"ds_write_b64 v{vEA}, {vr(vEX+2*dt,2)} offset:{32*dt}")
for i in range(3):
    S(f"ds_read_b128 {vr(128+4*i,4)}, v{vOO} offset:{1024*i}")
for i in range(3):
    if i == 2: S("s_mov_b32 exec_hi, 0")
    S(f"buffer_store_dwordx4 {vr(128+4*i,4)}, v{vXD+i}, {SRD_OUT}, s{sEN1} offen")
S("s_mov_b32 exec_hi, -1")
if opt.get('drainend'): S("s_waitcnt vmcnt(0)")
stamp(S, 'end')
if opt['stamps']:
    S(f"s_memrealtime s[68:69]\ns_waitcnt lgkmcnt(0)\nv_writelane_b32 v{vST}, s68, 31")
    S(f"s_lshl_b32 s11, s{sWG}, 2\ns_add_u32 s11, s11, s{sWAVE}\ns_lshl_b32 s11, s11, 7\ns_add_u32 s11, s11, {STAMP}\nv_lshlrev_b32 v1, 2, v0\ns_mov_b32 exec_hi, 0")
    S(f"buffer_store_dword v{vST}, v1, {SRD_WS}, s11 offen")
S.label(".Lend")
S("s_endpgm")

body = finalize(S) + finalize(COLD) + ["    s_endpgm"]
H2 = f""".amdgcn_target "amdgcn-amd-amdhsa--gfx950"
.text
.globl {NAME}_kernel
.p2align 8
.type {NAME}_kernel,@function
{NAME}_kernel:"""
body, nbytes, nfix = align_pass(body, H2, minrun=5 if opt['align'] else 100000)
sys.stderr.write(f"code bytes {nbytes}, alignment fixes {nfix}\n")
hdr = open('cdna_kernels/' + NAME + '.s.ref').read().split('\n')
out = []
for l in hdr:
    if l.startswith('; @launch'): out.append(f"; @launch grid=(256,1,1) block=(256,1,1) lds={LDS_BYTES}"); break
    out.append(l)
out.append(H2)
out += body
kb = opt['code_kb']
assert nbytes <= kb * 1024
out.append(f""".fill ({kb*1024 + 2304} - (. - {NAME}_kernel)) / 4, 4, 0xbf800000
.section .rodata,"a"
.p2align 6
.amdhsa_kernel {NAME}_kernel
  .amdhsa_next_free_vgpr 512
  .amdhsa_next_free_sgpr 102
  .amdhsa_accum_offset 256
  .amdhsa_group_segment_fixed_size 0
  .amdhsa_kernarg_size 120
  .amdhsa_user_sgpr_count 2
  .amdhsa_user_sgpr_kernarg_segment_ptr 1
  .amdhsa_system_sgpr_workgroup_id_x 1
.end_amdhsa_kernel""")
if opt['stamps']: out.insert(0, "; stamps: " + ",".join(stamp_names))
print('\n'.join(out))
```

```python
import sys, math, struct
sys.path.insert(0, 'gen')
from emit import *

NAME = "recurrent_scan__ssm_conv_s4d__dense_activation_squared_relu__prompt"
opt = dict(hmode=0, xg=1, wg2=0, w1s=0, lt=3, lt0=4, lt1=40, hrt=2, hgap3=3, cap2=2, capc=2, xev=2, xlead=30, dtlb=1, w3cap=48, stamps=0, spin=2000000, code_kb=35, align=1, b0=8, b2a=2, b2b=2, b2c=4, xf0=4, xf1=6,
           g1pre=8, g1d=10, uw=45, mb=78, uf=48, wa0=84, wan=12, wep=12, wb0=10, wb1=10, wb2=16, tpos=0, xpos=0, ka=12, wb3=0, wev=10, hld=20, hldx=0, hchkx=34,
           hfl=8, tail10=0, stg=0, hrot=0, wrot=0, xrot=0, hb3=16, fast=1, g1fast=0, ypub=50, hchk=58, hgap=4, hgapx=2, hpre=1, hd=12, yfl=185, ychk=225)
for a in sys.argv[1:]:
    k, v = a.split('='); opt[k] = int(v)

def f32(x): return struct.unpack('<I', struct.pack('<f', x))[0]
def vr(b, n=1): return f"v{b}" if n == 1 else f"v[{b}:{b+n-1}]"
def ar(b, n=1): return f"a{b}" if n == 1 else f"a[{b}:{b+n-1}]"
def vp(b): return f"v[{b}:{b+1}]"
def flat(gs):
    s = Stream()
    for g in gs: s.ext(g)
    return s

XNA = 0; XNB = 0x400000; HB = 0x800000; YT = 0x1000000
FX = 0x1500000; FB = FX + 0x8000; FH = FX + 0x10000; FY = FX + 0x40000
W2R = 0x1600000
STAMP = 0x1800000
XAS = 65536; XBS = 16384; HBS = 64; YS = 8192
L_W = 40960
SCR_W = 8704; TROW = 272
KSLOT = SCR_W; OOFF = 4284
L_U = 3 * KSLOT; USLOT = 4352
L_LN = L_U; LNROW = 1344
L_E = L_W + 61440
L_Y = L_E + 4 * 6144
L_P = L_W + 37 * 3072
L_F = L_W - 64
L_V = L_U + 3 * USLOT
LDS_BYTES = 163840
assert L_U + 3 * USLOT <= L_W and L_LN + 8 * LNROW <= L_W
sWG, sWAVE, sRB, sCB, sRB2, sCB2, sCBASE, sPAR, sNONCE = 2, 3, 4, 5, 6, 7, 8, 9, 10
P = lambda k: f"s[{16+2*k}:{17+2*k}]"
pX, pLOGA, pAIM, pCR, pCI, pLOGDT, pDSK, pBX, pW1, pB1, pW2, pB2, pOUT, pDBG, pWS = range(15)
SRD_X, SRD_W1, SRD_W2, SRD_WS, SRD_OUT = "s[48:51]", "s[52:55]", "s[56:59]", "s[60:63]", "s[64:67]"
sXB, sXC, sSCR, sW2B, sROT, sSRC, sRG, sXH = 76, 77, 78, 79, 80, 81, 82, 83
sOWN, sUB, sEN0, sEN1, sHST, sHFL = 84, 85, 86, 87, 88, 89
sHB = 90
sYL = 94
sSL0, sSL1, sISX, sYF2, sJ = 97, 98, 99, 100, 101
sYB, sYF = 74, 75
SPIN_MAX = opt['spin']
JUNK = "a255"
LOG2E = 1.4426950408889634
vU, vK, vKn = 92, 93, 94
vXD, vEA = 95, 98
vW2R, vUl, vKl, vYl, vOO, vUG, vUW = 100, 101, 102, 103, 104, 105, 106
vST = 107
vXF, vW1O, vBD, vB1A, vHS, vENA, vE0, vE1 = 240, 241, 244, 245, 246, 247, 248, 249
vHF, vYG, vL1, vL0, vA0, vA1 = 250, 251, 252, 253, 254, 255

S = Stream()
COLD = Stream()
stamp_names = []
SKIP = set(['x_in', 'ln_flag', 'k_u1', 'kgen', 'xnpoll']) | set('w3_b0 w3_ln ln_st idle ln k_u0 e_bar'.split())
def stamp(s, name):
    if not opt['stamps'] or name in SKIP: return
    if name not in stamp_names: stamp_names.append(name)
    idx = stamp_names.index(name)
    assert 0 < idx < 29
    s(f"s_memtime s[68:69]\ns_waitcnt lgkmcnt(0)\nv_writelane_b32 v{vST}, s68, {idx}")

jn = [0]
def jitter(s, mask, val):
    if not opt.get('jit'): return
    jn[0] += 1
    s(f"s_mul_i32 s0, s{sWG}, {opt['jit']}\ns_add_u32 s0, s0, s{sWAVE}\ns_and_b32 s0, s0, {mask}\ns_cmp_lg_u32 s0, {val}\ns_cbranch_scc1 .Ljit{jn[0]}\ns_sleep 127\ns_sleep 127")
    s.label(f".Ljit{jn[0]}")

def bf16_round(s, dst, src):
    s(f"v_cvt_pk_bf16_f32 {dst}, {src}, {src}")
    s(f"v_and_b32 {dst}, 0xffff0000, {dst}")

def flag_load(s, loads, nonce=None):
    for vd, vo, *n in loads:
        s(f"buffer_load_dword{'x4' if n else ''} {vr(vd, 4 if n else 1)}, v{vo}, {SRD_WS}, 0 offen sc0 sc1")
    if nonce: s(f"global_load_dword v{nonce[0]}, v{nonce[1]}, {P(pDBG)} sc0 sc1")
def flag_test(s, loads, nonce=None):
    regs = [vd + k for vd, vo, *n in loads for k in range(4 if n else 1)]
    if nonce: s(f"v_readfirstlane_b32 s{sNONCE}, v{nonce[0]}")
    for r in regs: s(f"v_xor_b32 v{r}, s{sNONCE}, v{r}")
    for r in regs[1:]: s(f"v_or_b32 v{regs[0]}, v{regs[0]}, v{r}")
    if nonce:
        s(f"v_cmp_eq_u32 vcc, 0, v{nonce[0]}")
        s(f"v_cndmask_b32 v{regs[0]}, v{regs[0]}, 1, vcc")
    s(f"v_cmp_ne_u32 vcc, 0, v{regs[0]}")
uid = [0]
def spin(L, loads, nonce=None, pre="", post=None, drain=True):
    c = COLD
    c.label(f"{L}s")
    c("s_mov_b32 s70, 0")
    if pre: c(pre)
    c.label(f"{L}l")
    flag_load(c, loads, nonce)
    c("s_waitcnt vmcnt(0)")
    flag_test(c, loads, nonce)
    c(f"s_add_u32 s70, s70, 1\ns_cmp_gt_u32 s70, {SPIN_MAX}\ns_cbranch_scc1 {L}x\ns_cbranch_vccz {L}x\ns_sleep 4\ns_branch {L}l")
    c.label(f"{L}x")
    if post:
        c.ext(post)
        if drain: c("s_waitcnt vmcnt(0)")
        else: c.endpath(keep=None)
    c(f"s_nop 4\ns_branch {L}b")
def flag_check(s, loads):
    uid[0] += 1; L = f".Lc{uid[0]}"
    flag_test(s, loads)
    s(f"s_cbranch_vccnz {L}s")
    s.label(f"{L}b")
    spin(L, loads)

if opt['stamps']:
    S("s_memtime s[70:71]"); stamp_names.append('start')
S(f"s_cmp_ge_u32 s{sWG}, 256")
S("s_cbranch_scc1 .Lend")
S("s_load_dwordx16 s[16:31], s[0:1], 0")
S("s_load_dwordx8 s[32:39], s[0:1], 64")
S("s_load_dwordx4 s[40:43], s[0:1], 96")
S("s_load_dwordx2 s[44:45], s[0:1], 112")
vX = 20; vRAW = 120
S(f"""s_getpc_b64 s[72:73]
s_and_b32 s11, s{sWG}, 7
s_lshr_b32 s{sJ}, s{sWG}, 3
s_lshl_b32 s{sRG}, s11, 5
s_add_u32 s{sRG}, s{sRG}, s{sJ}
v_lshrrev_b32 v4, 4, v0
v_lshl_add_u32 v2, s{sRG}, 3, v4
v_mul_u32_u24 v2, 1280, v2
v_and_b32 v7, 15, v0
v_lshl_add_u32 v2, v7, 4, v2
v_lshrrev_b32 v3, 6, v0
v_and_b32 v0, 63, v0
v_readfirstlane_b32 s{sWAVE}, v3
s_and_b32 s{sPAR}, s{sJ}, 1
s_lshl_b32 s{sCBASE}, s11, 4
s_lshr_b32 s15, s{sJ}, 1
s_add_u32 s{sCBASE}, s{sCBASE}, s15
s_mul_i32 s{sCBASE}, s{sCBASE}, 5
s_lshl_b32 s15, s{sPAR}, 1
s_add_u32 s{sCBASE}, s{sCBASE}, s15
s_min_u32 s12, s{sWAVE}, 2
s_add_u32 s12, s12, s{sCBASE}
s_mul_i32 s15, s12, 384
s_lshl_b32 s12, s12, 1
s_and_b32 s13, s12, -4
s_lshl_b32 s46, s12, 3
v_mul_u32_u24 v6, 6, v0
v_and_b32 v6, -4, v6
v_add_u32 v6, s15, v6
v_mov_b32 v10, {L_F}
v_mov_b32 v12, 0
v_mov_b32 v13, 0
ds_write_b64 v10, v[12:13]
s_cmp_ge_u32 s{sWAVE}, 2
s_waitcnt lgkmcnt(0)
s_cbranch_scc1 .Lnox""")
for j in range(5):
    S(f"global_load_dwordx4 {vr(vX+4*j,4)}, v2, {P(pX)} offset:{256*j}")
S.label(".Lnox")
if opt['stamps']:
    S(f"v_mov_b32 v{vST}, 0\nv_writelane_b32 v{vST}, s70, 0\ns_memrealtime s[68:69]\ns_waitcnt lgkmcnt(0)\nv_writelane_b32 v{vST}, s68, 30")
S(f"s_load_dword s47, {P(pLOGDT)}, s13")
S("s_barrier")
S(f"s_cmp_eq_u32 s{sWAVE}, 3\ns_cbranch_scc1 .Lnopar")
for k, p in enumerate((pLOGA, pAIM, pCR, pCI)):
    S(f"global_load_dwordx2 {vr(vRAW+2*k,2)}, v6, {P(p)}")
S.label(".Lnopar")
def srd(name, p, nbytes):
    b = int(name[2:name.index(':')])
    S(f"s_mov_b32 s{b}, s{16+2*p}\ns_mov_b32 s{b+1}, s{17+2*p}\ns_mov_b32 s{b+2}, {nbytes}\ns_mov_b32 s{b+3}, 0x20000")
S(f"""v_min_u32 v10, 2, v0
v_mul_u32_u24 v10, 10, v10
v_min_u32 v11, 1, v0
v_lshlrev_b32 v11, 1, v11
v_cmp_lt_u32 vcc, 1, v0
s_lshr_b32 s12, s{sRG}, 7
v_add_u32 v11, s12, v11
v_cndmask_b32 v10, v11, 10, vcc
v_cmp_lt_u32 vcc, 2, v0
v_cndmask_b32 v10, v10, 11, vcc
v_lshlrev_b32 v10, 21, v10
v_add_u32 v10, 0x1fff80, v10
v_mov_b32 v12, 0x80
s_mul_i32 s12, s{sJ}, {opt['code_kb'] * 32}
v_lshl_add_u32 v1, v0, 5, s12
s_cmp_eq_u32 s{sWAVE}, 1
s_cbranch_scc1 .Ltlb1
s_cmp_eq_u32 s{sWAVE}, 2
s_cbranch_scc1 .Ltlb2
s_cmp_eq_u32 s{sWAVE}, 3
s_cbranch_scc1 .Ltlb3""")
S.junk(f"global_load_dword {JUNK}, v1, s[72:73]"); S.l[-1].kind = 'other'
S("s_branch .Ltlbd")
S.label(".Ltlb1")
if opt['dtlb']:
    S(f"""s_lshl_b32 s12, s{sJ}, 21
s_add_u32 s12, s12, 0x1fff80
s_mov_b64 s[68:69], {P(pWS)}""")
    for n, (p_, off) in enumerate(((pB1, 0x80), (pX, 0), (pX, 0x200000), (pB2, 0x80), (pDSK, 0x80), (pOUT, 0), (pOUT, 0x200000))):
        S(f"s_cmp_eq_u32 s{sJ}, {12+n}\ns_cselect_b64 s[68:69], {P(p_)}, s[68:69]\ns_cselect_b32 s12, {off}, s12")
    S(f"v_mov_b32 v12, s12\ns_cmp_ge_u32 s{sJ}, 19\ns_cbranch_scc1 .Ltlbd")
    S.junk(f"global_load_dword {JUNK}, v12, s[68:69]"); S.l[-1].kind = 'other'
S("s_branch .Ltlbd")
S.label(".Ltlb3")
S.junk(f"global_load_dword {JUNK}, v10, {P(pWS)}"); S.l[-1].kind = 'other'
S("s_branch .Ltlbd")
S.label(".Ltlb2")
S.junk(f"global_load_dword {JUNK}, v12, {P(pDBG)}"); S.l[-1].kind = 'other'
S(f"""s_cmp_lg_u32 s{sWG}, 0
s_cbranch_scc1 .Ltlbd
s_memrealtime s[68:69]
s_waitcnt lgkmcnt(0)
s_lshl_b32 s68, s68, 1
s_or_b32 s68, s68, 1
v_mov_b32 v1, s68
v_mov_b32 v2, 0
global_store_dword v2, v1, {P(pDBG)} sc0 sc1""")
S.l[-1].kind = 'other'
S.label(".Ltlbd")
srd(SRD_W1, pW1, 640*1536*2)
srd(SRD_W2, pW2, 640*1536*2)
srd(SRD_WS, pWS, 0x10000000)
srd(SRD_X, pX, 2048*640*2)
srd(SRD_OUT, pOUT, 2048*640*2)
S(f"""s_lshr_b32 s13, s11, 1
s_and_b32 s{sXH}, s11, 1
s_lshl_b32 s{sRB}, s13, 2
s_and_b32 s15, s{sJ}, 3
s_add_u32 s{sRB}, s{sRB}, s15
s_lshl_b32 s{sCB}, s{sXH}, 3
s_lshr_b32 s12, s{sJ}, 2
s_add_u32 s{sCB}, s{sCB}, s12
s_lshl_b32 s15, s15, 1
s_and_b32 s{sROT}, s{sCB}, {opt['xg'] - 1}
s_mul_i32 s{sROT}, s{sROT}, {8 // opt['xg']}
s_add_u32 s{sROT}, s15, s{sROT}
s_lshl_b32 s{sRB2}, s13, 3
s_and_b32 s15, s{sJ}, 7
s_add_u32 s{sRB2}, s{sRB2}, s15
s_lshl_b32 s{sCB2}, s{sXH}, 2
s_lshr_b32 s15, s{sJ}, 3
s_add_u32 s{sCB2}, s{sCB2}, s15
s_mov_b32 s{sNONCE}, 0
s_mul_i32 s{sSCR}, s{sWAVE}, {SCR_W}
s_mul_i32 s{sW2B}, s{sWAVE}, 15360
s_add_u32 s{sW2B}, s{sW2B}, {L_W}
s_mul_i32 s{sSRC}, s{sCB}, 192
s_mov_b32 s70, {L_W}
s_and_b32 s12, s{sROT}, 7
s_mul_i32 s71, s12, {5*49152}
s_add_u32 s71, s71, s{sSRC}
s_add_u32 s74, s{sSRC}, {40*49152}""")
def divmod_off(dst, i, magic, div, stride):
    S(f"""v_add_u32 v15, {64*i}, v0
v_mul_u32_u24 v2, {magic}, v15
v_lshrrev_b32 v2, 19, v2
v_mul_u32_u24 v3, {div}, v2
v_sub_u32 v3, v15, v3
v_mul_u32_u24 v2, {stride}, v2
v_lshl_add_u32 v{dst}, v3, 4, v2""")
def w1_slot(s):
    for i in range(3):
        s(f"s_add_u32 m0, s70, {i*1024}")
        s(f"buffer_load_dwordx4 v{vW1O+i}, {SRD_W1}, s71 offen lds")
    s(f"""s_add_u32 s70, s70, 3072
s_add_u32 s71, s71, 49152
s_cmp_eq_u32 s71, s74
s_cselect_b32 s71, s{sSRC}, s71""")
def w1_upto(s, n):
    uid[0] += 1; L = f".Lw1_{uid[0]}"
    s(f"s_cmp_ge_u32 s70, {L_W + 3072*n}\ns_cbranch_scc1 {L}x")
    s.label(L)
    s(f"s_waitcnt vmcnt({opt['w3cap']})"); s.l[-1].mn = 's_waitcnt_raw'
    k = len(s.l)
    w1_slot(s)
    for i in s.l[k:]:
        if i.kind == 'vmem': i.kind = 'other'
    s(f"s_cmp_lt_u32 s70, {L_W + 3072*n}\ns_cbranch_scc1 {L}")
    s.label(L + "x")
def w1_slots(s, n, counted=True):
    if n <= 0: return
    uid[0] += 1; L = f".Lw1_{uid[0]}"
    s(f"s_mov_b32 s75, {n}")
    s.label(L)
    s(f"s_waitcnt vmcnt({opt['w3cap']})"); s.l[-1].mn = 's_waitcnt_raw'
    k = len(s.l)
    w1_slot(s)
    s(f"s_sub_u32 s75, s75, 1\ns_cmp_lg_u32 s75, 0\ns_cbranch_scc1 {L}")
    if counted:
        for _ in range(min(3 * (n - 1), 40)): s.assume([])
    else:
        for i in s.l[k:]:
            if i.kind == 'vmem': i.kind = 'other'
for i in range(3): divmod_off(vW1O + i, i, 0xaaab, 12, 3072)
S(f"""s_nop 0
s_lshl_b32 s11, s{sRB}, 2
s_add_u32 s11, s11, s{sWAVE}
s_mul_i32 s{sXB}, s11, {XAS}
s_lshl_b32 s12, s11, 4
s_add_u32 s12, s12, s{sCB}
s_lshl_b32 s12, s12, 7
s_add_u32 s{sHFL}, s12, {FH}
s_lshl_b32 s12, s11, 9
s_add_u32 s12, s12, {FX}
v_and_b32 v1, 3, v0
v_lshl_add_u32 v{vXF}, v1, 7, s12
s_lshl_b32 s11, s11, 1
s_mul_i32 s11, s11, {HBS}
s_mul_i32 s12, s{sCB}, 3
s_add_u32 s11, s11, s12
s_lshl_b32 s11, s11, 10
s_add_u32 s{sHST}, s11, {HB}
s_mul_i32 s{sOWN}, s{sCB2}, {opt['hrot']}
s_add_u32 s{sOWN}, s{sWAVE}, s{sOWN}
s_and_b32 s{sOWN}, s{sOWN}, 3
s_mul_i32 s11, s{sWAVE}, {64*XBS}
s_lshl_b32 s12, s{sCBASE}, 4
s_add_u32 s11, s11, s12
s_add_u32 s{sUB}, s11, {XNB}
s_lshl_b32 s14, s{sRB2}, 6
s_lshl_b32 s12, s{sOWN}, 4
s_add_u32 s14, s14, s12
s_lshr_b32 s13, s14, 5
s_mul_i32 s13, s13, {XAS//1024}
s_mul_i32 s12, s{sCB2}, 5
s_add_u32 s13, s13, s12
s_lshl_b32 s13, s13, 10
s_and_b32 s12, s14, 31
s_lshl_b32 s12, s12, 4
s_add_u32 s{sEN0}, s13, s12
s_mul_i32 s{sEN1}, s14, 1280
s_mul_i32 s12, s{sCB2}, 160
s_add_u32 s{sEN1}, s{sEN1}, s12
s_mul_i32 s11, s{sCB2}, {80*YS}
s_lshl_b32 s12, s{sRB2}, 7
s_add_u32 s11, s11, s12
s_mul_i32 s12, s{sWAVE}, {20*YS}
s_add_u32 s11, s11, s12
s_add_u32 s{sYL}, s11, {YT}
s_add_u32 s{sYL+1}, s{sYL}, {8*YS}
s_add_u32 s{sYL+2}, s{sYL}, {12*YS}
s_add_u32 s{sSL0}, s{sPAR}, s{sWAVE}
s_cmp_eq_u32 s{sWAVE}, 2
s_cselect_b32 s{sSL0}, s{sPAR}, s{sSL0}
s_cselect_b32 s{sISX}, 1, 0
s_add_u32 s{sSL1}, s{sPAR}, 1
s_lshl_b32 s12, s{sPAR}, 1
s_sub_u32 s12, 2, s12
s_cmp_eq_u32 s{sWAVE}, 3
s_cselect_b32 s{sISX}, s{sPAR}, s{sISX}
s_cselect_b32 s{sSL0}, s12, s{sSL0}
s_cselect_b32 s{sSL1}, 0, s{sSL1}""")
for p in range(4):
    S(f"""s_add_u32 s11, s{sOWN}, {p+1}
s_and_b32 s11, s11, 3
s_lshl_b32 s12, s{sRB2}, 2
s_add_u32 s11, s11, s12
s_mul_i32 s11, s11, {HBS}
s_mul_i32 s12, s{sWAVE}, 12
s_add_u32 s11, s11, s12
s_lshl_b32 s11, s11, 10
s_add_u32 s{sHB+p}, s11, {HB}""")
for i in range(3): divmod_off(vXD + i, i, 0xcccd, 10, 1280)
S(f"""v_and_b32 v5, 31, v0
v_lshrrev_b32 v8, 4, v0
v_lshrrev_b32 v9, 5, v0
v_and_b32 v13, 1, v8
v_and_b32 v1, 3, v0
v_lshrrev_b32 v14, 2, v0
v_lshlrev_b32 v{vL0}, 4, v0
v_add_u32 v{vL1}, 1024, v{vL0}
v_lshlrev_b32 v{vB1A}, 3, v9
v_add_u32 v{vB1A}, {L_V}, v{vB1A}
v_add_u32 v{vOO}, s14, v7
v_mul_u32_u24 v{vOO}, 1280, v{vOO}
s_mul_i32 s12, s{sCB2}, 160
v_lshl_add_u32 v{vBD}, v8, 3, s12
v_add_u32 v{vOO}, v{vOO}, v{vBD}
v_lshlrev_b32 v{vBD}, 3, v8
v_add_u32 v{vBD}, {L_V + 256}, v{vBD}
v_lshrrev_b32 v2, 2, v7
v_lshl_add_u32 v3, v9, 3, v2
v_mul_u32_u24 v{vA0}, 192, v3
v_lshl_add_u32 v{vA0}, v1, 3, v{vA0}
v_lshl_add_u32 v{vA0}, v13, 5, v{vA0}
v_add_u32 v{vA0}, {L_W}, v{vA0}
v_add_u32 v{vA1}, 61440, v{vA0}
v_lshl_add_u32 v3, v13, 2, v2
v_lshl_add_u32 v3, v9, 4, v3
v_lshlrev_b32 v3, 8, v3
v_lshl_add_u32 v3, v1, 3, v3
v_add_u32 v{vW2R}, {L_P}, v3
v_mul_u32_u24 v3, {XBS}, v14
v_lshl_add_u32 v{vUG}, v1, 4, v3
v_mul_u32_u24 v3, {USLOT}, v1
v_lshl_add_u32 v3, v14, 4, v3
s_lshl_b32 s12, s{sWAVE}, 10
s_add_u32 s12, s12, {L_U + 256}
v_add_u32 v{vUW}, s12, v3
v_lshlrev_b32 v2, 4, v7
v_lshl_add_u32 v{vENA}, v8, 9, v2
s_mul_i32 s12, s{sWAVE}, 6144
s_add_u32 s12, s12, {L_E}
v_mul_u32_u24 v3, 160, v7
v_lshl_add_u32 v3, v8, 3, v3
v_add_u32 v{vEA}, s12, v3
v_lshl_add_u32 v3, v9, 8, v2
v_lshl_add_u32 v3, v13, 3, v3
v_add_u32 v{vEA+1}, s12, v3
v_mul_u32_u24 v3, {HBS*1024}, v13
v_add_u32 v3, v3, v2
v_lshl_add_u32 v{vHS}, v9, 8, v3
v_lshl_add_u32 v3, v13, 8, v2
v_lshl_add_u32 v{vYl}, v9, 10, v3
v_add_u32 v3, v7, v8
v_lshlrev_b32 v3, 4, v3
v_add_u32 v{vUl}, {L_U + 16}, v3
v_and_b32 v3, 7, v0
v_sub_u32 v3, 8, v3
v_lshrrev_b32 v3, 1, v3
v_lshl_add_u32 v3, v8, 2, v3
v_lshlrev_b32 v{vKl}, 2, v3
v_and_b32 v2, 1, v0
v_sub_u32 v3, 1, v2
v_mul_u32_u24 v3, {OOFF}, v3
v_add_u32 v{vKl}, v{vKl}, v3
v_bfe_u32 v3, v0, 3, 1
v_sub_u32 v3, 1, v3
v_mul_u32_u24 v3, 1056, v3
v_add_u32 v{vKl}, v{vKl}, v3
v_lshrrev_b32 v3, 3, v0
v_mul_u32_u24 v3, {YS}, v3
v_and_b32 v2, 7, v0
v_lshl_add_u32 v{vYG}, v2, 4, v3
s_lshr_b32 s11, s{sRB2}, 1
s_lshl_b32 s11, s11, 2
s_and_b32 s12, s{sRB2}, 1
s_lshl_b32 s12, s12, 1
s_add_u32 s11, s11, s12
s_lshl_b32 s11, s11, 4
s_lshl_b32 s12, s{sWAVE}, 2
s_add_u32 s11, s11, s12
s_lshl_b32 s11, s11, 7
s_add_u32 s11, s11, {FH}
v_and_b32 v3, 1, v14
v_lshlrev_b32 v3, 11, v3
v_lshl_add_u32 v3, v1, 7, v3
v_add_u32 v{vHF}, s11, v3
v_sub_u32 v2, 31, v5
v_lshl_add_u32 v2, v2, 4, s{sSCR}
v_sub_u32 v3, 1, v9
v_lshl_add_u32 v{vE0}, v3, 9, v2
v_mul_u32_u24 v3, 1056, v3
v_add_u32 v{vE1}, v3, v2
v_mul_u32_u24 v1, {LNROW}, v4
v_lshl_add_u32 v1, v7, 4, v1
v_add_u32 v1, {L_LN}, v1""")
def unit_addr(s, sslot):
    s(f"""s_mul_i32 s12, s{sslot}, {USLOT}
v_add_u32 v{vU}, s12, v{vUl}
s_mul_i32 s12, s{sslot}, {KSLOT}
s_mul_i32 s13, s{sISX}, 2112
s_add_u32 s12, s12, s13
v_add_u32 v{vK}, s12, v{vKl}
v_add_u32 v{vKn}, 1056, v{vK}
s_add_u32 s12, s{sCBASE}, s{sslot}
s_mul_i32 s12, s12, {YS}
s_lshl_b32 s13, s{sISX}, 11
s_sub_u32 s12, s12, s13
s_add_u32 s{sYB}, s12, {YT + 2048}
s_nop 0""")
def xreg(i): return ar(120 + 4 * (i % 30), 4)
def xn_load(s, i):
    if i % 5 == 0:
        s(f"s_add_u32 s{sXC}, s{sROT}, {i//5}\ns_and_b32 s{sXC}, s{sXC}, 7\ns_mul_i32 s{sXC}, s{sXC}, 5120\ns_add_u32 s{sXC}, s{sXC}, s{sXB}")
    k = i % 5
    s(f"buffer_load_dwordx4 {xreg(i)}, v{vL0 if k < 4 else vL1}, {SRD_WS}, s{sXC} offen offset:{1024*min(k,3)} sc1")
G1PRE = opt['g1pre']
XF = [(1, vXF)]; XN = (2, 3)
def xn_try(s, tag):
    flag_test(s, XF, XN)
    s("s_mov_b64 s[46:47], vcc")
    out = []
    for n in range(G1PRE):
        x = Stream(); x(f"s_cbranch_vccnz .Lxs{tag}{n}"); xn_load(x, n); x.label(f".Lxs{tag}{n}"); out.append(x)
    return out

stamp(S, 'idle')
jitter(S, 31, 3); jitter(S, 63, 8)
S(f"s_cmp_eq_u32 s{sWAVE}, 3\ns_cbranch_scc1 .Lw3\ns_cmp_eq_u32 s{sWAVE}, 2")
S.save('role')
S("s_cbranch_scc1 .Lkgen")
S("s_waitcnt vmcnt(4)")
vF = 40; NX = 20; vA = 80
for k in range(NX):
    S(f"v_lshlrev_b32 v{vF+2*k}, 16, v{vX+k}")
    S(f"v_and_b32 v{vF+2*k+1}, 0xffff0000, v{vX+k}")
    if k == 3:
        S(f"v_pk_add_f32 {vp(vA)}, {vp(vF)}, {vp(vF+2)}")
        S(f"v_pk_add_f32 {vp(vA+2)}, {vp(vF+4)}, {vp(vF+6)}")
    elif k > 3:
        a = vA + 2 * (k & 1)
        S(f"v_pk_add_f32 {vp(a)}, {vp(a)}, {vp(vF+2*k)}")
stamp(S, 'x_in')
S(f"v_pk_add_f32 {vp(vA)}, {vp(vA)}, {vp(vA+2)}")
S(f"v_add_f32 v{vA}, v{vA}, v{vA+1}")
def rowsum(s, r):
    for sh in (8, 4, 2, 1):
        s(f"v_add_f32_dpp v{r}, v{r}, v{r} row_ror:{sh} row_mask:0xf bank_mask:0xf")
rowsum(S, vA)
S(f"v_mul_f32 v{vA+4}, {f32(-1.0/640)}, v{vA}")
bf16_round(S, f"v{vA}", f"v{vA+4}")
S(f"v_mov_b32 v{vA+1}, v{vA}")
S(f"v_sub_f32 v{vA+4}, v{vA+4}, v{vA}")
for k in range(NX):
    a = vA + 2 + 4 * (k & 1)
    S(f"v_pk_add_f32 {vp(vF+2*k)}, {vp(vF+2*k)}, {vp(vA)}")
    S(f"v_cvt_pk_bf16_f32 v{vX+k}, v{vF+2*k}, v{vF+2*k+1}")
    if k < 2: S(f"v_pk_mul_f32 {vp(a)}, {vp(vF+2*k)}, {vp(vF+2*k)}")
    else: S(f"v_pk_fma_f32 {vp(a)}, {vp(vF+2*k)}, {vp(vF+2*k)}, {vp(a)}")
r_ = vA + 2
S(f"v_pk_add_f32 {vp(r_)}, {vp(r_)}, {vp(vA+6)}")
S(f"v_add_f32 v{r_}, v{r_}, v{r_+1}")
R = Stream(); rowsum(R, r_)
R(f"v_mul_f32 v{vA+4}, v{vA+4}, v{vA+4}\nv_mul_f32 v{r_}, {f32(1.0/640)}, v{r_}\nv_sub_f32 v{r_}, v{r_}, v{vA+4}\nv_max_f32 v{r_}, 0, v{r_}")
bf16_round(R, f"v{r_}", f"v{r_}")
R(f"v_add_f32 v{r_}, {f32(1e-5)}, v{r_}")
bf16_round(R, f"v{r_}", f"v{r_}")
R(f"v_sqrt_f32 v{r_}, v{r_}")
bf16_round(R, f"v{r_}", f"v{r_}")
R(f"v_rcp_f32 v{r_}, v{r_}")
U = []
for k in range(NX):
    g = Stream(); g(f"v_lshlrev_b32 v{vF+2*k}, 16, v{vX+k}\nv_and_b32 v{vF+2*k+1}, 0xffff0000, v{vX+k}"); U.append(g)
S.ext(sprinkle(R, U, 1))
S(f"v_mov_b32 v{r_+1}, v{r_}\ns_lshl_b32 s12, s{sWAVE}, 2\ns_add_u32 s12, s12, {L_F}\nv_mov_b32 v2, s12\nv_mov_b32 v3, 1")
for k in range(NX):
    S(f"v_pk_mul_f32 {vp(vF+2*k)}, {vp(vF+2*k)}, {vp(r_)}")
for k in range(NX):
    S(f"v_cvt_pk_bf16_f32 v{vX+k}, v{vF+2*k}, v{vF+2*k+1}")
for j in range(5):
    S(f"ds_write_b128 v1, {vr(vX+4*j,4)} offset:{256*j}")
S("ds_write_b32 v2, v3")
stamp(S, 'ln')
S("s_branch .Lkgen")
S.label(".Lw3")
S.endpath(keep=None)
w1_slots(S, opt['b0'], False)
S(f"""v_lshrrev_b32 v5, 3, v0
v_and_b32 v6, 7, v0
v_mul_u32_u24 v10, {LNROW}, v6
v_lshl_add_u32 v10, v5, 4, v10
v_add_u32 v10, {L_LN}, v10
v_and_b32 v12, 3, v14
v_mul_u32_u24 v12, {LNROW}, v12
v_and_b32 v4, 3, v0
v_lshl_add_u32 v12, v4, 3, v12
v_lshl_add_u32 v12, v8, 5, v12
v_add_u32 v12, {L_LN}, v12
v_lshlrev_b32 v11, 10, v8
v_and_b32 v5, 1, v5
v_lshl_add_u32 v11, v5, 9, v11
v_lshl_add_u32 v11, v6, 4, v11
v_mul_u32_u24 v6, 1280, v8
v_lshl_add_u32 v6, v7, 4, v6
v_mov_b32 v2, {L_F}
v_mov_b32 v3, 0
s_min_u32 s12, s{sRG}, 239
s_mul_i32 s13, s12, 52429
s_lshr_b32 s13, s13, 18
s_mul_i32 s14, s13, 5
s_sub_u32 s14, s12, s14
s_mul_i32 s15, s13, {32*1280}
s_lshl_b32 s12, s14, 8
s_add_u32 s15, s15, s12
s_mul_i32 s13, s13, 40
s_lshl_b32 s14, s14, 3
s_add_u32 s13, s13, s14
s_lshl_b32 s13, s13, 10
s_add_u32 s14, s13, {W2R}
s_lshr_b32 s12, s{sRG}, 2
s_mul_i32 s12, s12, {XAS}
s_and_b32 s13, s{sRG}, 3
s_lshl_b32 s13, s13, 7
s_add_u32 s12, s12, s13
s_mul_i32 s13, s{sRG}, {XBS}
s_add_u32 s13, s13, {XNB}
s_mov_b32 s11, 0""")
stamp(S, 'w3_b0')
S.label(".Llnw")
S(f"""ds_read_b64 v[16:17], v2
s_waitcnt lgkmcnt(0)
v_and_b32 v16, v16, v17
s_add_u32 s11, s11, 1
v_readfirstlane_b32 s75, v16
s_cmp_gt_u32 s11, {SPIN_MAX*16}
s_cbranch_scc1 .Llnwx
s_cmp_eq_u32 s75, 0
s_cbranch_scc1 .Llnw""")
S.label(".Llnwx")
stamp(S, 'w3_ln')
for j in range(10):
    S(f"ds_read_b128 {vr(20+4*j,4)}, v10 offset:{128*j}")
S(f"global_load_dword v15, v3, {P(pDBG)} sc0 sc1")
for it in range(10):
    S(f"ds_read_b64_tr_b16 {vr(130+4*it,2)}, v12 offset:{128*it}")
    S(f"ds_read_b64_tr_b16 {vr(132+4*it,2)}, v12 offset:{128*it + 4*LNROW}")
for j in range(10):
    tl = S(f"buffer_store_dwordx4 {vr(20+4*j,4)}, v11, {SRD_WS}, s12 offen sc0 sc1")
    if j < 9: S("s_add_u32 s12, s12, 4096")
stamp(S, 'ln_st')
for i in range(8):
    S(f"s_mov_b32 m0, {L_P + 1024*i}")
    tp_ = S(f"buffer_load_dwordx4 v6, {SRD_W2}, s15 offen lds")
    if i < 7: S(f"s_add_u32 s15, s15, {4*1280}")
S(f"""s_mul_i32 s11, s{sCB2}, 160
v_add_u32 v18, s{sSRC}, v{vL0}
v_add_u32 v19, s11, v{vL0}
s_mov_b32 exec_hi, 0
s_mov_b32 exec_lo, 0xfff
s_mov_b32 m0, {L_V}
global_load_lds_dwordx4 v18, {P(pB1)}
s_mov_b32 exec_lo, 0x3ff
s_mov_b32 m0, {L_V + 256}
global_load_lds_dwordx4 v19, {P(pB2)}
s_mov_b32 m0, {L_V + 512}
global_load_lds_dwordx4 v19, {P(pDSK)}
s_mov_b64 exec, -1""")
w1_slots(S, opt['b2a'])
S(f"""v_readfirstlane_b32 s{sNONCE}, v15
v_mul_u32_u24 v1, {USLOT}, v8
v_lshl_add_u32 v1, v7, 4, v1
v_mov_b32 v16, 0
v_mov_b32 v17, 0
v_mov_b32 v18, 0
v_mov_b32 v19, 0
s_mov_b32 exec_hi, 0xffff
s_waitcnt lgkmcnt(0)
ds_write_b128 v1, v[16:19] offset:{L_U}
s_mov_b64 exec, -1""")
S(f"s_cmp_eq_u32 s{sNONCE}, 0\ns_cbranch_scc1 .Lnonce_s")
S.label(".Lnonce_b")
COLD.label(".Lnonce_s")
COLD(f"s_mov_b32 s11, 0")
COLD.label(".Lnonce_l")
COLD(f"global_load_dword v15, v3, {P(pDBG)} sc0 sc1\ns_waitcnt vmcnt(0)\nv_readfirstlane_b32 s{sNONCE}, v15\ns_add_u32 s11, s11, 1\ns_cmp_gt_u32 s11, {SPIN_MAX}\ns_cbranch_scc1 .Lnonce_b\ns_cmp_eq_u32 s{sNONCE}, 0\ns_cbranch_scc1 .Lnonce_l\ns_branch .Lnonce_b")
S(f"""s_lshl_b32 s12, s{sRG}, 7
s_add_u32 s12, s12, {FX}
v_mov_b32 v15, s{sNONCE}""")
S.wait(tl)
S(f"buffer_store_dword v15, v3, {SRD_WS}, s12 offen sc0 sc1")
stamp(S, 'ln_flag')
jitter(S, 15, 7)
for it in range(10):
    S(f"buffer_store_dwordx4 {vr(130+4*it,4)}, v{vL0}, {SRD_WS}, s13 offen offset:{1024*(it%4)} sc0 sc1")
    if it % 4 == 3: S("s_add_u32 s13, s13, 4096")
w1_slots(S, opt['b2b'])
S.wait(tp_)
for dt in range(8):
    for r in range(2):
        S(f"ds_read_b64_tr_b16 {vr(180+4*dt+2*r,2)}, v{vW2R} offset:{r*2048 + dt*32}")
S(f"""v_add_u32 v{vW2R}, 4096, v{vL0}
s_lshr_b32 s11, s{sRG}, 2
s_lshl_b32 s11, s11, 7
s_and_b32 s12, s{sRG}, 3
s_lshl_b32 s12, s12, 2
s_add_u32 s11, s11, s12
s_add_u32 s11, s11, {FB}
v_lshlrev_b32 v8, 7, v0
v_add_u32 v8, {FB}, v8""")
for dt in range(8):
    tl = S(f"buffer_store_dwordx4 {vr(180+4*dt,4)}, v{vL0 if dt < 4 else vW2R}, {SRD_WS}, s14 offen offset:{1024*(dt%4)} sc0 sc1")
w1_slots(S, opt['b2c'])
S.wait(tl)
S(f"buffer_store_dword v15, v3, {SRD_WS}, s11 offen sc0 sc1")
stamp(S, 'fb')
w1_slots(S, 40 - opt['b0'] - opt['b2a'] - opt['b2b'] - opt['b2c'] - 4 * opt['lt'])
S(f"v_mov_b32 v{vE1}, v8")
flag_load(S, XF, XN)
flag_test(S, XF, XN)
stamp(S, 'w1_iss')
S("s_cbranch_vccnz .Lws")
for i in range(G1PRE): xn_load(S, i)
S.label(".Lwb")
X = Stream()
for i in range(G1PRE): xn_load(X, i)
spin(".Lw", XF, XN, post=X, drain=False)
S("s_branch .Lk3")

S.label(".Lkgen")
S.restore('role')
S("s_waitcnt vmcnt(0) lgkmcnt(0)")
vD = 4; vT = 52
vFs = 120; vPK = 184
vFO = 192
vGOl = [224, 228, 232, 236, 76, 80, 84, 88]
vSR, vONE, vDT = 20, 21, 22
vPE = 108
S(f"""s_mov_b32 m0, s{sSCR}
v_mul_u32_u24 v{vSR}, {TROW}, v5
v_lshl_add_u32 v{vSR}, v9, 4, v{vSR}
v_add_u32 v{vSR}, s{sSCR}, v{vSR}
v_mov_b32 v{vONE}, 0x3f80
s_lshr_b32 s47, s47, s46
s_lshl_b32 s47, s47, 16
v_mov_b32 v{vDT}, {f32(LOG2E)}
v_mul_f32 v{vDT}, s47, v{vDT}
v_exp_f32 v{vDT}, v{vDT}
v_and_b32 v1, 1, v0
v_lshlrev_b32 v1, 4, v1
v_mov_b32 v3, 0""")
bf16_round(S, f"v{vDT}", f"v{vDT}")
for k in range(4):
    d0, d1 = vRAW + 2*k, vRAW + 2*k + 1
    S(f"""v_alignbit_b32 v{d0}, v{d1}, v{d0}, v1
v_lshrrev_b32 v{d1}, v1, v{d1}
v_lshlrev_b32 v{vPE+k}, 16, v{d0}
v_and_b32 v{vPE+4+k}, 0xffff0000, v{d0}
v_lshlrev_b32 v{vPE+8+k}, 16, v{d1}""")
S(f"v_add_f32 v{vDT+1}, v{vDT}, v{vDT}\ns_mov_b32 s15, {f32(1.0 / (2 * math.pi))}")
def cmuls(s, lst):
    for d, x, y in lst:
        assert d != x and d != y
        s(f"v_pk_mul_f32 {vp(d)}, {vp(x)}, {vp(y)} op_sel:[0,0] op_sel_hi:[1,0]")
    for d, x, y in lst:
        s(f"v_pk_fma_f32 {vp(d)}, {vp(x)}, {vp(y)}, {vp(d)} op_sel:[1,1,0] op_sel_hi:[0,1,1] neg_lo:[0,1,0]")
I2PI = 1.0 / (2 * math.pi)
i2pi_hi = struct.unpack('<f', struct.pack('<f', I2PI))[0]
i2pi_lo = I2PI - i2pi_hi
hi0 = [0,1,2,3,4,5,6,7,8, 512,516,520, 1024,1032, 1280,1288]
hi1 = [256,256,258,260,260,260,262,264,264, 768,772,776, 1536,1544, 1792,1800]
rowhi = [(hi0, hi1)[(p >> 2) & 1][4 * (p >> 3) + (p & 3)] for p in range(32)]
def k_mfmas(u):
    out = []
    for s_ in range(8):
        x = Stream()
        c = "0" if (s_ == 0 and u == 0) else vr(vD, 16)
        x(f"v_mfma_f32_32x32x16_bf16 {vr(vD,16)}, {vr(vGOl[s_],4)}, {vr(vFO+4*s_,4)}, {c}")
        out.append(x)
    return out
pkc = [0]
def put(s, items, neg, mf=None):
    regs = []
    if mf: s.ext(mf.pop(0))
    for r, rows in items:
        b = vPK + (pkc[0] & 7); pkc[0] += 1
        s(f"v_cvt_pk_bf16_f32 v{b}, v{r}, {'-' if neg else ''}v{r+1}")
        regs.append((b, rows))
    if mf: s.ext(mf.pop(0))
    for b, rows in regs:
        for p in rows: s(f"ds_write_addtid_b32 v{b} offset:{p*TROW}")
    s.pseudo('slot')
def kgen_unit(u):
    A = Stream(); B = Stream()
    pa, pb, pc, pd = range(vPE + 4*u, vPE + 4*u + 4)
    va, vbh, vbl = vT, vT+1, vT+2
    vW1, vW8, vW256, vW2, vW4, vG0 = vT+4, vT+6, vT+8, vT+10, vT+12, vT+14
    G = lambda k: vFs + 2 * k
    A(f"""v_mul_f32 v{va}, {f32(LOG2E)}, v{pa}
v_mul_f32 v{pb}, v{pb}, v{vDT}
v_exp_f32 v{va}, v{va}
v_mul_f32 v{vbh}, s15, v{pb}
v_cvt_pk_bf16_f32 v{va}, v{va}, v{va}
v_fma_f32 v{vbl}, v{pb}, s15, -v{vbh}
v_and_b32 v{va}, 0xffff0000, v{va}
v_fmac_f32 v{vbl}, {f32(i2pi_lo)}, v{pb}
v_mul_f32 v{va}, v{va}, v{vDT}
v_mul_f32 v{va}, {f32(-LOG2E)}, v{va}""")
    t0 = vT + 16
    m8, a8, m1, a1, m2, a2 = range(t0, t0 + 6)
    A(f"""v_mul_f32 v{a8}, {f32(8.0)}, v{vbh}
v_mul_f32 v{m8}, {f32(8.0)}, v{va}
v_fract_f32 v{a8}, v{a8}
v_exp_f32 v{m8}, v{m8}
v_fmac_f32 v{a8}, {f32(8.0)}, v{vbl}
v_exp_f32 v{m1}, v{va}
v_fract_f32 v{a1}, v{vbh}
v_cos_f32 v{vW8}, v{a8}
v_add_f32 v{a1}, v{a1}, v{vbl}
v_sin_f32 v{vW8+1}, v{a8}
v_mul_f32 v{m2}, {f32(256.0)}, v{va}
v_cos_f32 v{vW1}, v{a1}
v_mul_f32 v{a2}, {f32(256.0)}, v{vbh}
v_sin_f32 v{vW1+1}, v{a1}
v_fract_f32 v{a2}, v{a2}
v_exp_f32 v{m2}, v{m2}
v_fmac_f32 v{a2}, {f32(256.0)}, v{vbl}
v_pk_mul_f32 {vp(vW8)}, {vp(vW8)}, {vp(m8)} op_sel:[0,0] op_sel_hi:[1,0]
v_cos_f32 v{vW256}, v{a2}
v_pk_mul_f32 {vp(vW1)}, {vp(vW1)}, {vp(m1)} op_sel:[0,0] op_sel_hi:[1,0]
v_sin_f32 v{vW256+1}, v{a2}""")
    F = lambda k: vW8 if k == 1 else G(k)
    cmuls(A, [(F(2), F(1), F(1)), (vW2, vW1, vW1)])
    A(f"v_mul_f32 v{vG0}, v{pc}, v{vDT+1}\nv_mul_f32 v{vG0+1}, v{pd}, v{vDT+1}")
    cmuls(A, [(F(3), F(2), F(1)), (F(4), F(2), F(2)), (vW4, vW2, vW2)])
    A(f"v_pk_mul_f32 {vp(vW256)}, {vp(vW256)}, {vp(m2)} op_sel:[0,0] op_sel_hi:[1,0]")
    mf = k_mfmas(u - 1) if u > 0 else None
    for lo in range(5, 32, 8):
        cmuls(A, [(F(k), F(k-4), F(4)) for k in range(lo, min(lo+4, 32))])
        cmuls(A, [(F(k), F(k-4), F(4)) for k in range(lo+4, min(lo+8, 32))])
        if lo == 29: A(f"ds_write_addtid_b32 v{vONE}")
        put(A, [(F(k), [k]) for k in range(lo-4, min(lo+4, 32))], False, mf)
    assert not mf
    A.l.pop()
    for s_ in range(8):
        A(f"ds_read_b128 {vr(vFO+4*s_,4)}, v{vSR} offset:{32*s_}")
    A.pseudo('slot')
    his = sorted(set(hi0 + hi1))
    gi = {h: G(n) for n, h in enumerate(his)}; gi[0] = vG0
    rows = lambda h: [p for p in range(32) if rowhi[p] == h]
    steps = [[(1,0,vW1), (2,0,vW2), (4,0,vW4), (8,0,vW8), (256,0,vW256)],
             [(3,2,vW1), (5,4,vW1), (258,256,vW2), (512,256,vW256)],
             [(6,4,vW2), (260,256,vW4), (264,256,vW8), (768,512,vW256)],
             [(7,6,vW1), (262,260,vW2), (516,512,vW4), (1024,768,vW256)],
             [(520,512,vW8), (772,768,vW4), (776,768,vW8), (1280,1024,vW256)],
             [(1032,1024,vW8), (1288,1280,vW8), (1536,1280,vW256)],
             [(1544,1536,vW8), (1792,1536,vW256)],
             [(1800,1792,vW8)]]
    pend = [0]
    for n, st in enumerate(steps):
        cmuls(B, [(gi[d_], gi[x_], y_) for d_, x_, y_ in st])
        if n in (1, 3, 5):
            k = min(8, len(pend))
            put(B, [(gi[h], rows(h)) for h in pend[:k]], True); pend = pend[k:]
        pend += [d_ for d_, x_, y_ in st]
    assert len(pend) <= 8, pend
    put(B, [(gi[h], rows(h)) for h in pend], True)
    B.l.pop()
    for s_ in range(8):
        B(f"ds_read_b128 {vr(vGOl[s_],4)}, v{vSR} offset:{32*s_}")
    s = Stream(); s.ext(A); s.ext(B)
    segs = [Stream()]
    for i in s.l:
        if i.kind == 'slot': segs.append(Stream())
        else: segs[-1].l.append(i)
    return segs
S.ext(flat(kgen_unit(0)))
stamp(S, 'k_u0')
U1 = kgen_unit(1); U2 = kgen_unit(2)
S.ext(flat(U1))
stamp(S, 'k_u1')
S.ext(flat(U2[:opt['xf0']]))
flag_load(S, XF, XN)
S.ext(flat(U2[opt['xf0']:opt['xf1']]))
gs = xn_try(S, 'b')
stamp(S, 'xnpoll')
seg = flat(U2[opt['xf1']:])
S.ext(sprinkle(seg, gs, max(1, len(seg.l) // (len(gs) + 1))))
for x in k_mfmas(2): S.ext(x)
stamp(S, 'kgen')
X = Stream()
vXT = 156 if opt['xpos'] == 0 else 188
d = lambda k: f"v{vD+k}"
X(f"v_and_b32 v236, 1, v0\nv_cmp_eq_u32 vcc, 1, v236")
def wo(s, b, aE, off):
    s(f"v_add_u32 v236, {off + OOFF}, v{aE}")
    s(f"ds_write2_b32 v236, v{b}, v{b+1} offset0:0 offset1:1")
    s(f"ds_write2_b32 v236, v{b+2}, v{b+3} offset0:2 offset1:3")
def build(e_pairs, o_pairs, base, aE, imm):
    for j, (a, b) in enumerate(e_pairs): X(f"v_cvt_pk_bf16_f32 v{base+j}, {a}, {b}")
    for j, (a, b) in enumerate(o_pairs): X(f"v_cvt_pk_bf16_f32 v{base+4+j}, {a}, {b}")
    X(f"v_add_u32 v236, {imm + OOFF}, v{aE}")
    X(f"ds_write_b128 v{aE}, {vr(base,4)} offset:{imm}")
    X(f"ds_write2_b32 v236, v{base+4}, v{base+5} offset0:0 offset1:1")
    X(f"ds_write2_b32 v236, v{base+6}, v{base+7} offset0:2 offset1:3")
build([(d(7),d(6)),(d(5),d(4)),(d(3),d(2)),(d(1),d(0))], [(d(8),d(7)),(d(6),d(5)),(d(4),d(3)),(d(2),d(1))], vXT, vE0, 3*1056)
build([(d(11),d(11)),(d(10),d(10)),(d(10),d(9)),(d(9),d(9))], [(d(11),d(11)),(d(11),d(10)),(d(10),d(10)),(d(9),d(9))], vXT+8, vE0, 2*1056)
for n, (r0, imm) in enumerate(((12, 512), (14, 0))):
    X(f"v_cndmask_b32 v237, {d(r0)}, {d(r0+1)}, vcc")
    V0, V1 = d(r0), d(r0+1)
    build([(V1,V1),(V1,'v237'),(V0,V0),(V0,V0)], [(V1,V1),(V1,V1),('v237',V0),(V0,V0)], vXT+16+8*n, vE1, imm)
z = vXT + 16
X(f"v_mov_b32 v{z}, 0\nv_mov_b32 v{z+1}, 0\nv_mov_b32 v{z+2}, 0\nv_mov_b32 v{z+3}, 0\nv_cvt_pk_bf16_f32 v{z+4}, {d(0)}, 0\nv_mov_b32 v237, s{sSCR}\nv_subrev_u32 v{vE1}, 32, v{vE1}")
XA = X; X = Stream()
X("s_mov_b32 exec_lo, 0\ns_mov_b32 exec_hi, 0x80000000")
X(f"ds_write_b128 v{vE0}, {vr(vXT,4)} offset:{3*1056-32}")
X(f"ds_write_b128 v{vE0}, {vr(vXT+8,4)} offset:{2*1056-32}")
wo(X, vXT+4, vE0, 3*1056-32)
wo(X, vXT+12, vE0, 2*1056-32)
X("s_mov_b32 exec_lo, 0x80000000\ns_mov_b32 exec_hi, 0")
X(f"ds_write_b128 v{vE1}, {vr(vXT+24,4)}")
wo(X, vXT+28, vE1, 0)
X("s_mov_b32 exec_lo, 1")
X(f"ds_write_b128 v237, {vr(z,4)} offset:{(3*264+256)*4}")
X(f"v_add_u32 v237, {OOFF + (3*264+256)*4}, v237")
X(f"ds_write2_b32 v237, v{z+4}, v{z} offset0:0 offset1:1\nds_write2_b32 v237, v{z}, v{z} offset0:2 offset1:3")
X("s_mov_b64 exec, -1")
XB = X
if opt['xpos'] == 0: S.ext(XA); S.ext(XB)
stamp(S, 'exp')
S("s_cmp_lg_u64 s[46:47], 0\ns_cbranch_scc1 .Lxs")
S.label(".Lxb")
X = Stream()
for i in range(G1PRE): xn_load(X, i)
spin(".Lx", XF, XN, post=X, drain=False)
S.label(".Lk3")
S("s_barrier")
stamp(S, 'bar1')

vAC = 20; vAR = 120
vB1P = 68; vB1 = 188
vUL = 160
vEX, vED, vEB = 4, 68, 78
EN = lambda k: 14 + k if k < 6 else 82 + k
L_E = L_W + 61440
L_Y = L_E + 4 * 6144
STG = opt['stg']
order = [(ks, ft) for ks in range(40 - STG) for ft in range(3)] + [(ks, ft) for ft in range(3) for ks in range(40 - STG, 40)]
NAR = 9
def g1_read(s, n):
    ks, ft = order[n]
    for r in range(2):
        base, k = (vA0, ks) if ks < 20 else (vA1, ks - 20)
        s(f"ds_read_b64_tr_b16 {vr(vAR + 4*(n % NAR) + 2*r, 2)}, v{base} offset:{k*3072 + r*768 + ft*64}")
for n in range(6): g1_read(S, n)
LT = opt['lt']
if LT:
    S(f"""s_mul_i32 s13, s{sWAVE}, {LT}
s_add_u32 s13, s13, {40 - 4*LT}
s_mul_i32 s70, s13, 3072
s_add_u32 s70, s70, {L_W}
s_and_b32 s12, s{sROT}, 7
s_mul_i32 s12, s12, 5
s_add_u32 s12, s12, s13
s_cmp_ge_u32 s12, 40
s_cselect_b32 s13, 40, 0
s_sub_u32 s12, s12, s13
s_mul_i32 s71, s12, 49152
s_add_u32 s71, s71, s{sSRC}
s_mov_b32 s14, s{sSRC}
s_mov_b32 s15, s74""")
S(f"""s_mul_i32 s{sSRC}, s{sWAVE}, {12*40*1024}
s_mul_i32 s11, s{sCB2}, 5120
s_add_u32 s{sSRC}, s{sSRC}, s11
s_add_u32 s{sSRC}, s{sSRC}, {W2R - 40960}
s_and_b32 s11, s{sRB2}, {opt['wg2']}
s_mul_i32 s12, s11, {6*40960}
s_add_u32 s{sSRC}, s{sSRC}, s12
s_mul_i32 s22, s11, {12*40960}
s_mul_i32 s11, s11, 6144""")
for p in range(4):
    S(f"s_sub_u32 s{18+p}, s{sHB+p}, s11\ns_add_u32 s{sHB+p}, s{sHB+p}, s11")
G1D = opt['g1d']
Sg = Stream(); nxt = G1PRE
MB = min([opt['mb']] + [n - 6 for n, (ks, ft) in enumerate(order) if ks >= 40 - 4*LT])
UF = [(156, vE1, 4)]
assert opt['wa0'] > MB
first_use = {}
for n, (ks, ft) in enumerate(order): first_use.setdefault(ks, n)
for n, (ks, ft) in enumerate(order):
    if n in (3, 30, 60, 90): stamp(Sg, f'g1_{n//3}')
    if n == MB:
        Sg.pseudo('slot')
        Sg(f"s_cmp_lg_u32 s{sWAVE}, 3\ns_cbranch_scc1 .Lnouc")
        Sg("s_waitcnt vmcnt(0)"); UFW = Sg.l[-1]; UFW.mn = 's_waitcnt_raw'
        flag_check(Sg, UF)
        Sg.label(".Lnouc")
        Sg("s_barrier")
        Sg("s_mov_b32 exec_lo, 0x77777777\ns_mov_b32 exec_hi, 0x77777777")
        for k in range(4):
            Sg(f"buffer_load_dwordx4 {vr(vUL+4*k,4)}, v{vUG}, {SRD_WS}, s{sUB} offen sc1")
            if k < 3: Sg(f"s_add_u32 s{sUB}, s{sUB}, {16*XBS}")
        Sg("s_mov_b64 exec, -1")
    c = vr(vAC + 16*ft, 16) if ks > 0 else "0"
    Sg(f"v_mfma_f32_32x32x16_bf16 {vr(vAC+16*ft,16)}, {vr(vAR + 4*(n % NAR), 4)}, {xreg(ks)}, {c}")
    if n + 6 < 120: g1_read(Sg, n + 6)
    if nxt < 40 and n % opt['xev'] == 0 and first_use[nxt] <= n + 3 * G1D + (opt['xlead'] if nxt >= 40 - STG else 0):
        assert nxt < 30 or max(m for m, o in enumerate(order) if o[0] == nxt - 30) <= n
        xn_load(Sg, nxt); nxt += 1
assert nxt == 40
plan = {}
if opt['xpos'] == 1:
    L = XA.l; per = 4; n = 0
    while L:
        g = Stream(); g(f"s_cmp_eq_u32 s{sWAVE}, 3\ns_cbranch_scc1 .Lxp{n}")
        for i in L[:per]:
            if i.kind == 'ds': i.kind = 'other'
            g.l.append(i)
        L = L[per:]
        g.label(f".Lxp{n}"); plan[1 + n] = g; n += 1
    g = Stream(); g(f"s_cmp_eq_u32 s{sWAVE}, 3\ns_cbranch_scc1 .Lxp{n}")
    for i in XB.l:
        if i.kind == 'ds': i.kind = 'other'
        g.l.append(i)
    g.label(f".Lxp{n}"); plan[1 + n] = g
    assert n + 1 < 30
vCA = 20; vCP = 36; vKB = 44; vR = 176
vNON, vZ = 241, 242
sKO = 18
def w2_load(s, n):
    k, dt = divmod(n, 5)
    if dt == 0: s(f"s_add_u32 s{sSRC}, s{sSRC}, 40960")
    if n == 30: s(f"s_sub_u32 s{sSRC}, s{sSRC}, s22")
    s(f"buffer_load_dwordx4 {ar(4*n,4)}, v{vL0 if dt < 4 else vL1}, {SRD_WS}, s{sSRC} offen offset:{1024*min(dt,3)} sc1")
wn = [0]
def w2_next(s, cnt):
    for _ in range(cnt):
        if wn[0] < 60: w2_load(s, wn[0]); wn[0] += 1
F = Stream()
F(f"v_mov_b32 v{vNON}, s{sNONCE}\nv_mov_b32 v{vZ}, 0")
plan.setdefault(70, Stream()).ext(F)
if LT:
    for k in range(LT):
        for i in range(3):
            G = Stream()
            G(f"s_add_u32 m0, s70, {i*1024}")
            tlt = G(f"buffer_load_dwordx4 v{vW1O+i}, {SRD_W1}, s71 offen lds")
            if i == 2 and k < LT - 1:
                G(f"s_add_u32 s70, s70, 3072\ns_add_u32 s71, s71, 49152\ns_cmp_eq_u32 s71, s15\ns_cselect_b32 s71, s14, s71")
            plan.setdefault(opt['lt0'] + ((3*k + i) * (opt['lt1'] - opt['lt0'])) // (3*LT), Stream()).ext(G)
for i in Sg.l:
    if i.kind == 'slot': i.kind = 'waitonly'; i.need = [tlt] if LT else []
F = Stream()
F(f"s_cmp_lg_u32 s{sWAVE}, 3\ns_cbranch_scc1 .Lnouf")
flag_load(F, UF); F.l[-1].kind = 'other'
F.label(".Lnouf")
plan.setdefault(opt['uf'], Stream()).ext(F)
F = Stream()
for k in range(12):
    F(f"ds_read_b64 {vr(vB1P+2*k,2)}, v{vB1A} offset:{16*k}")
spread(F, 3, 26, plan)
F = Stream()
F(f"""s_mov_b32 s72, 0x00003f80
s_mov_b32 s73, 0x3f800000""")
unit_addr(F, sSL0)
spread(F, 14, 35, plan)
F = Stream()
for k in range(24):
    F(f"v_lshlrev_b32 v{vB1+2*k}, 16, v{vB1P+k}\nv_and_b32 v{vB1+2*k+1}, 0xffff0000, v{vB1P+k}")
spread(F, 30, 62, plan)
F = Stream()
for dt in range(5):
    F(f"ds_read_b64 {vr(vEB+2*dt,2)}, v{vBD} offset:{32*dt}")
    F(f"ds_read_b64 {vr(vED+2*dt,2)}, v{vBD} offset:{256+32*dt}")
spread(F, 64, 84, plan)
F = Stream(); w2_next(F, opt['wan'])
spread(F, opt['wa0'], 119, plan)
def g1_epi(ft, packed):
    E = Stream()
    tp = (4, 108, 176)[ft] if STG else 108 + 8 * ft
    if opt['g1fast']:
        for k in range(8):
            a = vAC + 16*ft + 2*k; b = vB1 + 16*ft + 2*k
            if packed: E(f"v_pk_add_f32 {vp(a)}, {vp(a)}, {vp(b)}\nv_max_f32 v{a}, 0, v{a}\nv_max_f32 v{a+1}, 0, v{a+1}\nv_pk_mul_f32 {vp(a)}, {vp(a)}, {vp(a)}\nv_cvt_pk_bf16_f32 v{tp+k}, v{a}, v{a+1}")
            else: E(f"v_add_f32 v{a}, v{a}, v{b}\nv_add_f32 v{a+1}, v{a+1}, v{b+1}\nv_max_f32 v{a}, 0, v{a}\nv_max_f32 v{a+1}, 0, v{a+1}\nv_mul_f32 v{a}, v{a}, v{a}\nv_mul_f32 v{a+1}, v{a+1}, v{a+1}\nv_cvt_pk_bf16_f32 v{tp+k}, v{a}, v{a+1}")
    for k in range(8 if not opt['g1fast'] else 0):
        a = vAC + 16*ft + 2*k; b = vB1 + 16*ft + 2*k
        E(f"v_cvt_pk_bf16_f32 v{tp+k}, v{a}, v{a+1}")
        E(f"v_dot2_f32_bf16 v{a}, v{tp+k}, s72, v{b}")
        E(f"v_dot2_f32_bf16 v{a+1}, v{tp+k}, s73, v{b+1}")
    for k in range(8 if not opt['g1fast'] else 0):
        a = vAC + 16*ft + 2*k
        E(f"v_cvt_pk_bf16_f32 v{tp+k}, v{a}, v{a+1}")
        E(f"v_pk_max_i16 v{tp+k}, v{tp+k}, 0")
        E(f"v_lshlrev_b32 v{a}, 16, v{tp+k}")
        E(f"v_and_b32 v{a+1}, 0xffff0000, v{tp+k}")
        if packed: E(f"v_pk_mul_f32 {vp(a)}, {vp(a)}, {vp(a)}")
        else: E(f"v_mul_f32 v{a}, v{a}, v{a}\nv_mul_f32 v{a+1}, v{a+1}, v{a+1}")
        E(f"v_cvt_pk_bf16_f32 v{tp+k}, v{a}, v{a+1}")
    t = None
    for jp in range(2):
        t = E(f"buffer_store_dwordx4 {vr(tp+4*jp,4)}, v{vHS}, {SRD_WS}, s{sHST} offen offset:{1024*ft + 512*jp} sc0 sc1")
    return E, t
rest = []
for ft in range(3):
    if STG >= 10 and ft < 2:
        E, th = g1_epi(ft, False)
        a0 = 120 - (2 - ft) * STG
        spread(E, a0 + 2, a0 + STG - 1, plan)
    else: rest.append(ft)
G1S = weave(Sg, plan)
i0 = [n for n, i in enumerate(G1S.l) if i.text and i.text.startswith(".Lnouf")][0]; i1 = G1S.l.index(UFW)
UFW.text = f"s_waitcnt vmcnt({sum(1 for i in G1S.l[i0:i1] if i.kind == 'vmem')})"
S.ext(G1S)
stamp(S, 'g1')
jitter(S, 31, 17)
HQ = []
for ft in rest:
    E, th = g1_epi(ft, True)
    gs = []
    for _ in range(opt['wep'] // len(rest)):
        g = Stream(); w2_next(g, 1); gs.append(g)
    hs = opt.get('hspread', 0)
    if hs:
        st = E.l[-2:]; E.l = E.l[:-2]
        if hs == 1 and HQ:
            g = Stream(); g.l.append(HQ.pop(0)); gs.insert(len(gs) // 2, g)
        HQ.extend(st)
    if gs: E = sprinkle(E, gs, len(E.l) // (len(gs) + 1))
    S.ext(E)
    stamp(S, f'ep{ft}')
    if hs: S.l.append(HQ.pop(0))
S("s_mov_b32 exec_lo, 0x77777777\ns_mov_b32 exec_hi, 0x77777777")
for k in range(4):
    S(f"ds_write_b128 v{vUW}, {vr(vUL+4*k,4)} offset:{256*k}")
S("s_mov_b64 exec, -1")
S("s_waitcnt lgkmcnt(0)")
S("s_barrier")
stamp(S, 'g1ep')

def conv_load(s, sg):
    s(f"ds_read_b128 {vr(vR + 4*(sg & 15), 4)}, v{vU} offset:{64*sg}")
    base, o = (vK, 16*sg) if sg < 16 else (vKn, 16*(sg-16))
    kb = vKB + 4*(sg & 3)
    s(f"ds_read2_b32 {vr(kb,2)}, v{base} offset0:{o} offset1:{o+1}")
    s(f"ds_read2_b32 {vr(kb+2,2)}, v{base} offset0:{o+2} offset1:{o+3}")
def conv_block(ramp, last=False):
    s = Stream()
    for sg in range(16):
        ld = Stream()
        if not (last and sg + 3 >= 16): conv_load(ld, sg + 3)
        for rt in (3, 2, 1, 0):
            first = 12 - 4*rt
            if ramp and sg < first: continue
            c = "0" if (ramp and sg == first) else vr(vCA + 4*rt, 4)
            s(f"v_mfma_f32_16x16x32_bf16 {vr(vCA+4*rt,4)}, {vr(vKB + 4*(sg&3),4)}, {vr(vR + 4*((sg+4+4*rt)&15),4)}, {c}")
            if ld.l: s.l.append(ld.l.pop(0))
        s.ext(ld)
    if not last:
        s(f"v_add_u32 v{vU}, 1024, v{vU}\nv_add_u32 v{vK}, 1056, v{vK}\nv_add_u32 v{vKn}, 1056, v{vKn}")
    return s
def conv_save(s):
    for rt in (3, 2, 1, 0):
        for h in range(2):
            s(f"v_cvt_pk_bf16_f32 v{vCP + 4*(rt>>1) + 2*(rt&1) + h}, v{vCA+4*rt+2*h}, v{vCA+4*rt+2*h+1}")
def conv_fin(s):
    s("s_mov_b32 exec_lo, 0")
    conv_save(s)
    s("s_mov_b32 exec_lo, -1")
    t = None
    for pr in range(2):
        b = vCP + 4*pr
        s(f"v_permlane16_swap_b32 v{b}, v{b+2}")
        s(f"v_permlane16_swap_b32 v{b+1}, v{b+3}")
        t = s(f"buffer_store_dwordx4 {vr(b,4)}, v{vYl}, {SRD_WS}, s{sYB} offen offset:{512*pr} sc0 sc1")
    return t
for sg in range(3): conv_load(S, sg)
S(f"v_add_u32 v{vA0}, 4096, v{vL0}\nv_add_u32 v{vA1}, 8192, v{vL0}")
F = Stream(); w2_next(F, opt['wb0'])
CB = conv_block(True)
P0 = fit(CB, {}, F, 12, 39, opt['capc'] + 1)
for n, i in enumerate(HQ): P0.setdefault(opt.get('hs0', 8) + n * opt.get('hs1', 14), Stream()).l.append(i)
S.ext(weave(CB, P0))
stamp(S, 'cv_b0')
conv_save(S)
FH_ = Stream()
FH_.wait(th)
FH_(f"buffer_store_dword v{vNON}, v{vZ}, {SRD_WS}, s{sHFL} offen sc0 sc1")
F = Stream()
w2_next(F, opt['wb1'])
def tiles(F):
    F(f"s_mul_i32 s11, s{sWAVE}, 6144\ns_add_u32 s11, s11, {L_E}")
    for i in range(3):
        F(f"s_add_u32 m0, s11, {1024*i}")
        F(f"buffer_load_dwordx4 v{vXD+i}, {SRD_X}, s{sEN1} offen lds")
    for i in range(3):
        F(f"s_add_u32 m0, s11, {3072 + 1024*i - 2048*i}")
        F(f"buffer_load_dwordx4 v{vENA}, {SRD_WS}, s{sEN0} offen offset:{2048*i} sc1 lds") if i < 2 else None
    F.l.pop()
    F(f"s_add_u32 m0, s11, {3072 + 2048}\ns_add_u32 s{sEN0}, s{sEN0}, 4096")
    return F(f"buffer_load_dwordx4 v{vENA}, {SRD_WS}, s{sEN0} offen sc1 lds")
if opt['tpos'] == 0: tiles(F)
vH = 108
HF = [(62, vHF)]
assert wn[0] + opt['wb2'] >= 5 * opt['ka'], wn[0]
wb2_0 = wn[0]
if opt['hld'] < 0: flag_load(F, HF)
CB = conv_block(False)
P1 = fit(CB, {opt['hfl']: FH_}, F, opt['w1s'], 63, opt['capc'], lambda g: 1 if g % 4 == 3 else 0)
S.ext(weave(CB, P1))
stamp(S, 'cv_b1')
NH = 17
KA = opt['ka']
steps = [(p, k) for p in range(4) for k in range(KA)] + [(p, k) for p in range(4) for k in range(KA, 12)]
def hreg(n): return vH + 4 * (n % NH)
def h_load(s, n):
    p, k = steps[n]
    s(f"buffer_load_dwordx4 {vr(hreg(n), 4)}, v{(vL0, vA0, vA1)[k//4]}, {SRD_WS}, s{(sHB if k < 6 else 18) + p} offen offset:{1024*(k%4)} sc1")
HPRE = opt['hpre'] if not opt['hmode'] else 0
def h_first(tag, first, gap, ld):
    plan = {}
    if opt['hmode']:
        wn[0] = wb2_0
        F = Stream(); w2_next(F, opt['wb2']); flag_load(F, HF)
        return spread(F, 0, first)
    if opt['hld'] >= 0:
        F = Stream(); flag_load(F, HF); plan[ld] = F
        assert ld < first
    wn[0] = wb2_0
    F = Stream(); w2_next(F, opt['wb2'])
    if F.l: spread(F, 0, first - 1, plan)
    F = Stream()
    flag_test(F, HF)
    plan.setdefault(first, Stream()).ext(F)
    for n in range(HPRE):
        F = Stream()
        F(f"s_cbranch_vccnz .Lhskip{tag}{n}")
        h_load(F, n)
        F.label(f".Lhskip{tag}{n}")
        plan.setdefault(first + 1 + n * gap, Stream()).ext(F)
    return plan
S(f"s_lshl_b32 s{sYF}, s{sRG}, 7\ns_lshl_b32 s12, s{sWAVE}, 2\ns_add_u32 s{sYF}, s{sYF}, s12\ns_add_u32 s{sYF}, s{sYF}, {FY}\ns_cmp_eq_u32 s{sISX}, 1")
S.save('b2')
S("s_cbranch_scc1 .Lb2x")
S.ext(weave(conv_block(False), h_first('a', opt['hchk'], opt['hgap'], opt['hld'])))
S("s_waitcnt lgkmcnt(0)")
S.endpath(keep=None)
S("s_branch .Lb3")
S.label(".Lb2x")
S.restore('b2')
conv_fin(S)
unit_addr(S, sSL1)
for sg in range(3): conv_load(S, sg)
S.ext(weave(conv_block(True), h_first('b', opt['hchkx'], opt['hgapx'], opt['hldx'])))
S("s_waitcnt lgkmcnt(0)")
S.endpath(keep=None)
S.label(".Lb3")
for n in range(HPRE): S.assume([('v', hreg(n) + r) for r in range(4)])
if opt['hmode']: S.assume([('v', 62)])
stamp(S, 'cv_b2')
jitter(S, 63, 5)
conv_save(S)
plan = {}
def tile_reads(F):
    for dt in range(5):
        F(f"ds_read_b64 {vr(vEX+2*dt,2)}, v{vEA} offset:{32*dt}")
        F(f"ds_read_b64 {vr(EN(2*dt),2)}, v{vEA+1} offset:{3072 + 512*dt}")
F = Stream()
if opt['tpos'] == 0: tile_reads(F)
else: ttile = tiles(F)
spread(F, max(4, opt['hrt'] + 1), 63, plan)
HB3 = opt['hb3']
F = Stream()
if opt['hmode']: flag_test(F, HF)
F("s_cbranch_vccnz .Lhs")
F.label(".Lhb")
plan.setdefault(opt['hrt'], Stream()).ext(F)
X = Stream()
for n in range(HPRE): h_load(X, n)
spin(".Lh", HF, post=X if X.l else None, drain=False)
for n in range(HPRE, HPRE + HB3):
    F = Stream(); h_load(F, n)
    plan.setdefault(opt['hrt'] + 1 + (n - HPRE) * opt['hgap3'], Stream()).ext(F)
HPRE += HB3
F = Stream(); w2_next(F, opt['wb3'])
if F.l: spread(F, 5, 60, plan)
assert HPRE <= 17
S.ext(weave(conv_block(False, last=True), plan))
ty = conv_fin(S)
stamp(S, 'conv')
jitter(S, 31, 22)

assert opt['tpos'] == 0
AC = [20, 176, 196, 40]
vRW = 240
S(f"v_add_u32 v{vRW}, s{sW2B}, v{vL0}")
HD = opt['hd']
hn = HPRE
G2 = Stream()
for n, (p, k) in enumerate(steps):
    if n in (12, 24, 36): stamp(G2, f'g2_p{n//12-1}')
    for dt in range(5):
        c = ("0" if not (opt['fast'] and p == 3) else vr(216 + 4*dt, 4)) if k == 0 else vr(AC[p] + 4*dt, 4)
        G2(f"v_mfma_f32_16x16x32_bf16 {vr(AC[p]+4*dt,4)}, {ar((k*5+dt)*4,4)}, {vr(hreg(n), 4)}, {c}")
        if dt in (0, 2) and hn < 48 and hn <= n + HD:
            assert hn - NH < n or (hn - NH == n and False)
            h_load(G2, hn); hn += 1
        if (5*n + dt) % opt['wev'] == 4: w2_next(G2, 1)
assert hn == 48 and wn[0] == 60
plan = {}
F = Stream()
F.wait(ty)
F(f"buffer_store_dword v{vNON}, v{vZ}, {SRD_WS}, s{sYF} offen sc0 sc1")
plan[opt['ypub']] = F
F = Stream()
for k in range(10 if not opt['fast'] else 0):
    a = 60 + 4*(k & 1)
    F(f"""v_lshlrev_b32 v{a}, 16, v{EN(k)}
v_and_b32 v{a+1}, 0xffff0000, v{EN(k)}
v_lshlrev_b32 v{a+2}, 16, v{vED+k}
v_and_b32 v{a+3}, 0xffff0000, v{vED+k}
v_mul_f32 v{a}, v{a}, v{a+2}
v_mul_f32 v{a+1}, v{a+1}, v{a+3}
v_cvt_pk_bf16_f32 v{EN(k)}, v{a}, v{a+1}""")
YF = [(60, 64, 4)]
F(f"""s_lshl_b32 s11, s{sCB2}, 12
s_add_u32 s11, s11, {FY}
v_and_b32 v2, 31, v0
v_lshl_add_u32 v64, v2, 7, s11
v_lshrrev_b32 v65, 2, v0
v_lshlrev_b32 v65, 7, v65
v_and_b32 v1, 3, v0
v_lshl_add_u32 v65, v1, 3, v65
s_lshl_b32 s11, s{sOWN}, 5
s_add_u32 s11, s11, {L_Y}
v_add_u32 v65, s11, v65""")
vB2 = 216; vXf = [92, 100, 102, 244, 246, 78, 80, 82, 84, 86]
for k in range(10):
    F(f"""v_lshlrev_b32 v{vB2+2*k}, 16, v{vEB+k}
v_and_b32 v{vB2+2*k+1}, 0xffff0000, v{vEB+k}""")
for k in range(10):
    F(f"""v_lshlrev_b32 v{vXf[k]}, 16, v{vEX+k}
v_and_b32 v{vXf[k]+1}, 0xffff0000, v{vEX+k}""")
F(f"s_mul_i32 s11, s{sWAVE}, 6144\ns_add_u32 s11, s11, {L_E}\nv_add_u32 v{vOO}, s11, v{vL0}")
vPA = [66, 67, 1]
for p in range(3):
    F(f"s_sub_u32 s11, s{sWAVE}, {p+1}\ns_and_b32 s11, s11, 3\ns_mul_i32 s11, s11, 15360\ns_add_u32 s11, s11, {L_W}\nv_add_u32 v{vPA[p]}, s11, v{vL0}")
F(f"s_mov_b32 s12, {f32(-LOG2E)}\ns_mov_b32 s13, {f32(-LOG2E)}\ns_mov_b32 s14, 1.0\ns_mov_b32 s15, 1.0")
FA = F
F = Stream(); flag_load(F, YF)
plan.setdefault(opt['yfl'], Stream()).ext(F)
F = Stream(); flag_check(F, YF)
F(f"s_mul_i32 s11, s{sWAVE}, 2560\ns_add_u32 s11, s11, {L_Y}")
for i, o in enumerate((0, 1024, 1536)):
    F(f"s_add_u32 m0, s11, {o}")
    tyl = F(f"buffer_load_dwordx4 v{vYG}, {SRD_WS}, s{sYL+i} offen sc1 lds")
plan.setdefault(opt['ychk'], Stream()).ext(F)
for p in range(3):
    last = 5 * max(n for n, st in enumerate(steps) if st[0] == p) + 4
    F = Stream()
    for dt in range(5):
        F(f"ds_write_b128 v{vRW}, {vr(AC[p]+4*dt,4)} offset:{p*5120 + dt*1024}")
    spread(F, last + 3, last + 3 + min(20, 5 * (12 - KA) - 5 if KA < 12 else 20), plan)
X4 = lambda g: 1 if g % 5 == 4 else 0
fit(G2, plan, FA, 1, opt['yfl'] - 1 if not opt['fast'] else 85, opt['cap2'], X4)
if opt['fast']:
    F = Stream()
    for k in range(10):
        F(f"""v_lshlrev_b32 v2, 16, v{EN(k)}
v_lshlrev_b32 v3, 16, v{vED+k}
v_and_b32 v238, 0xffff0000, v{EN(k)}
v_and_b32 v239, 0xffff0000, v{vED+k}
v_mul_f32 v{EN(k)}, v2, v3
v_mul_f32 v{vED+k}, v238, v239""")
    fit(G2, plan, F, 90, 160, opt['cap2'], X4)
S.ext(weave(G2, plan))
vS = 176; vYT = 196; vG2 = 20
stamp(S, 'g2')
S("s_waitcnt lgkmcnt(0)")
S("s_barrier")
stamp(S, 'e_bar')
PS = lambda p, dt: 108 + 20*p + 4*dt
for p in range(3):
    for dt in range(5):
        S(f"ds_read_b128 {vr(PS(p, dt), 4)}, v{vPA[p]} offset:{p*5120 + dt*1024}")
ac = vG2 + 20
for p in range(3):
    for k in range(10):
        S(f"v_pk_add_f32 {vp(ac+2*k)}, {vp(ac+2*k)}, {vp(PS(p, k//2) + 2*(k&1))}")
T = lambda k: 108 + 2*k
def stage(fn):
    for k in range(10): fn(k, ac + 2*k, T(k))
def y_in():
    S.wait(tyl)
    S("s_barrier")
    for dt in range(5):
        S(f"ds_read_b64_tr_b16 {vr(vYT+2*dt,2)}, v65 offset:{2048*dt}")
if opt['fast']:
    stage(lambda k, a, t: S(f"v_pk_mul_f32 {vp(t)}, {vp(a)}, s[12:13]"))
    stage(lambda k, a, t: S(f"v_exp_f32 v{t}, v{t}\nv_exp_f32 v{t+1}, v{t+1}"))
    stage(lambda k, a, t: S(f"v_pk_add_f32 {vp(t)}, {vp(t)}, s[14:15]"))
    stage(lambda k, a, t: S(f"v_rcp_f32 v{t}, v{t}\nv_rcp_f32 v{t+1}, v{t+1}"))
    y_in()
    stage(lambda k, a, t: S(f"v_pk_mul_f32 {vp(a)}, {vp(a)}, {vp(t)}"))
    stage(lambda k, a, t: S(f"v_dot2_f32_bf16 v{vS+2*k}, v{vYT+k}, s72, v{EN(k)}\nv_dot2_f32_bf16 v{vS+2*k+1}, v{vYT+k}, s73, v{vED+k}"))
    stage(lambda k, a, t: S(f"v_pk_fma_f32 {vp(a)}, {vp(a)}, {vp(vS+2*k)}, {vp(vXf[k])}"))
else:
    stage(lambda k, a, t: S(f"v_cvt_pk_bf16_f32 v{t}, v{a}, v{a+1}"))
    stage(lambda k, a, t: S(f"v_dot2_f32_bf16 v{a}, v{t}, s72, v{vB2+2*k}\nv_dot2_f32_bf16 v{a+1}, v{t}, s73, v{vB2+2*k+1}"))
    stage(lambda k, a, t: S(f"v_cvt_pk_bf16_f32 v{t}, v{a}, v{a+1}"))
    stage(lambda k, a, t: S(f"v_lshlrev_b32 v{a}, 16, v{t}\nv_and_b32 v{a+1}, 0xffff0000, v{t}\nv_pk_mul_f32 {vp(t)}, {vp(a)}, s[12:13]"))
    stage(lambda k, a, t: S(f"v_exp_f32 v{t}, v{t}\nv_exp_f32 v{t+1}, v{t+1}"))
    stage(lambda k, a, t: S(f"v_pk_add_f32 {vp(t)}, {vp(t)}, s[14:15]"))
    stage(lambda k, a, t: S(f"v_rcp_f32 v{t}, v{t}\nv_rcp_f32 v{t+1}, v{t+1}"))
    y_in()
    stage(lambda k, a, t: S(f"v_pk_mul_f32 {vp(a)}, {vp(a)}, {vp(t)}"))
    stage(lambda k, a, t: S(f"v_cvt_pk_bf16_f32 v{t}, v{a}, v{a+1}\nv_lshlrev_b32 v{a}, 16, v{t}\nv_and_b32 v{a+1}, 0xffff0000, v{t}"))
    stage(lambda k, a, t: S(f"v_lshlrev_b32 v{vS+2*k}, 16, v{vYT+k}\nv_and_b32 v{vS+2*k+1}, 0xffff0000, v{vYT+k}\nv_dot2_f32_bf16 v{vS+2*k}, v{EN(k)}, s72, v{vS+2*k}\nv_dot2_f32_bf16 v{vS+2*k+1}, v{EN(k)}, s73, v{vS+2*k+1}"))
    stage(lambda k, a, t: S(f"v_cvt_pk_bf16_f32 v{t}, v{vS+2*k}, v{vS+2*k+1}\nv_lshlrev_b32 v{vS+2*k}, 16, v{t}\nv_and_b32 v{vS+2*k+1}, 0xffff0000, v{t}\nv_pk_mul_f32 {vp(a)}, {vp(a)}, {vp(vS+2*k)}\nv_cvt_pk_bf16_f32 v{t}, v{a}, v{a+1}"))
    stage(lambda k, a, t: S(f"v_dot2_f32_bf16 v{a}, v{t}, s72, v{vXf[k]}\nv_dot2_f32_bf16 v{a+1}, v{t}, s73, v{vXf[k]+1}"))
for k in range(10):
    a = ac + 2*k
    S(f"v_cvt_pk_bf16_f32 v{vEX+k}, v{a}, v{a+1}")
for dt in range(5):
    S(f"ds_write_b64 v{vEA}, {vr(vEX+2*dt,2)} offset:{32*dt}")
for i in range(3):
    S(f"ds_read_b128 {vr(128+4*i,4)}, v{vOO} offset:{1024*i}")
for i in range(3):
    if i == 2: S("s_mov_b32 exec_hi, 0")
    S(f"buffer_store_dwordx4 {vr(128+4*i,4)}, v{vXD+i}, {SRD_OUT}, s{sEN1} offen")
S("s_mov_b32 exec_hi, -1")
if opt.get('drainend'): S("s_waitcnt vmcnt(0)")
stamp(S, 'end')
if opt['stamps']:
    S(f"s_memrealtime s[68:69]\ns_waitcnt lgkmcnt(0)\nv_writelane_b32 v{vST}, s68, 31")
    S(f"s_lshl_b32 s11, s{sWG}, 2\ns_add_u32 s11, s11, s{sWAVE}\ns_lshl_b32 s11, s11, 7\ns_add_u32 s11, s11, {STAMP}\nv_lshlrev_b32 v1, 2, v0\ns_mov_b32 exec_hi, 0")
    S(f"buffer_store_dword v{vST}, v1, {SRD_WS}, s11 offen")
S.label(".Lend")
S("s_endpgm")

body = finalize(S) + finalize(COLD) + ["    s_endpgm"]
H2 = f""".amdgcn_target "amdgcn-amd-amdhsa--gfx950"
.text
.globl {NAME}_kernel
.p2align 8
.type {NAME}_kernel,@function
{NAME}_kernel:"""
body, nbytes, nfix = align_pass(body, H2, minrun=5 if opt['align'] else 100000)
sys.stderr.write(f"code bytes {nbytes}, alignment fixes {nfix}\n")
hdr = open('cdna_kernels/' + NAME + '.s.ref').read().split('\n')
out = []
for l in hdr:
    if l.startswith('; @launch'): out.append(f"; @launch grid=(256,1,1) block=(256,1,1) lds={LDS_BYTES}"); break
    out.append(l)
out.append(H2)
out += body
kb = opt['code_kb']
assert nbytes <= kb * 1024
out.append(f""".fill ({kb*1024 + 2304} - (. - {NAME}_kernel)) / 4, 4, 0xbf800000
.section .rodata,"a"
.p2align 6
.amdhsa_kernel {NAME}_kernel
  .amdhsa_next_free_vgpr 512
  .amdhsa_next_free_sgpr 102
  .amdhsa_accum_offset 256
  .amdhsa_group_segment_fixed_size 0
  .amdhsa_kernarg_size 120
  .amdhsa_user_sgpr_count 2
  .amdhsa_user_sgpr_kernarg_segment_ptr 1
  .amdhsa_system_sgpr_workgroup_id_x 1
.end_amdhsa_kernel""")
if opt['stamps']: out.insert(0, "; stamps: " + ",".join(stamp_names))
print('\n'.join(out))
```
